```python
import torch

def _softmax(x, axis=-1):
    return torch.softmax(x, dim=axis)
def _gelu(x):
    return torch.nn.functional.gelu(x, approximate="tanh")
def _silu(x):
    return torch.nn.functional.silu(x)
def _sigmoid(x):
    return torch.sigmoid(x)
def _layernorm(x, axis=-1, eps=1e-5):
    m = x.mean(dim=axis, keepdim=True)
    v = x.var(dim=axis, keepdim=True, unbiased=False)
    return (x - m) / torch.sqrt(v + eps)
def _scatter_add(tgt, idx, src, axis=0):
    return tgt.clone().index_add_(axis, idx, src)
def _segment_sum(src, seg, n):
    out = torch.zeros((n,) + src.shape[1:], dtype=src.dtype)
    return out.index_add_(0, seg, src)
def _pad(x, pw):
    flat = tuple(v for pair in reversed(pw) for v in pair)
    return torch.nn.functional.pad(x, flat)

kernel_name = 'standalone__edge_featured_mpnn_egc__graph'

def setup_inputs():

    _w = (lambda a: (lambda t: t.to(torch.bfloat16) if t.is_floating_point() else t)(torch.as_tensor(a)))
    N, deg, D, De = 50000, 16, 64, max(16, 1)
    E = N * deg
    return {
        "x": _w((lambda *s: torch.randn(*s, dtype=torch.bfloat16) * 0.2)(N, D)),
        "e_attr": _w((lambda *s: torch.randn(*s, dtype=torch.bfloat16) * 0.2)(E, De)),
        "src": _w((lambda lo, hi, *s: torch.randint(lo, hi, s))(0, N, E).to(torch.int64)),
        "dst": _w((lambda lo, hi, *s: torch.randint(lo, hi, s))(0, N, E).to(torch.int64)),
        "u_w": _w((lambda *s: torch.randn(*s, dtype=torch.bfloat16) * 0.05)(D, D)),
        "v_w": _w((lambda *s: torch.randn(*s, dtype=torch.bfloat16) * 0.05)(D, D)),
        "g_w": _w((lambda *s: torch.randn(*s, dtype=torch.bfloat16) * 0.2)(2 * D + De, D)),
    }

def reference(x, e_attr, src, dst, u_w, v_w, g_w):
    N, D = x.shape
    g_in = torch.concatenate([x[dst], x[src], e_attr], axis=-1)
    eta = _sigmoid(g_in @ g_w)
    hv = x @ v_w
    msg = eta * hv[src]
    agg = _segment_sum(msg, dst, N)
    return _silu(x @ u_w + agg)
```

```python
import sys

N = 50000; E = 800000
WN = 25; NWIN = 2000; NB = 250; CH = 3200; NC = 250
WS_WF = 0; WS_TAB = 0x10000; TABROW = 4096; WS_REC = 0x200000; RECROW = CH * 8
M25 = 171798692
NEGLOG2E = 0xBFB8AA3B

out = []
def emit(s=""):
    out.append(s)
def I(s):
    out.append("    " + s)
def L(s):
    out.append(s + ":")

HEADER = """; Kernarg layout for this problem (80 bytes, ptrs only, base s[0:1]):
"""

def srd(d, lo, hi, size, add=0):
    if add:
        I(f"s_add_u32 s{d}, s{lo}, {add}")
        I(f"s_addc_u32 s{d+1}, s{hi}, 0")
    else:
        I(f"s_mov_b32 s{d}, s{lo}")
        I(f"s_mov_b32 s{d+1}, s{hi}")
    I(f"s_mov_b32 s{d+2}, {size}")
    I(f"s_mov_b32 s{d+3}, 0x00020000")

def wave_scan(regs):
    steps = ["row_shr:1 row_mask:0xf bank_mask:0xf", "row_shr:2 row_mask:0xf bank_mask:0xf",
             "row_shr:4 row_mask:0xf bank_mask:0xf", "row_shr:8 row_mask:0xf bank_mask:0xf",
             "row_bcast:15 row_mask:0xa bank_mask:0xf", "row_bcast:31 row_mask:0xc bank_mask:0xf"]
    I("s_nop 1")
    for st in steps:
        for r in regs:
            I(f"v_add_u32_dpp v{r}, v{r}, v{r} {st}")
        if len(regs) < 3:
            I(f"s_nop {2 - len(regs)}")

K1_HIST = 0
K1_WTOT = 8192
K1_STG = 8448
K1_LDS = K1_STG + RECROW

def gen_k1():
    emit(".globl egc_bin_kernel")
    emit(".p2align 8")
    emit(".type egc_bin_kernel,@function")
    L("egc_bin_kernel")
    I(f"s_cmp_ge_u32 s2, {NC}")
    I("s_cbranch_scc1 L_k1_end")
    I("s_load_dwordx4 s[4:7], s[0:1], 16")
    I("s_load_dwordx4 s[8:11], s[0:1], 32")
    I("s_load_dwordx2 s[12:13], s[0:1], 48")
    I("s_load_dwordx2 s[14:15], s[0:1], 72")
    I("v_lshlrev_b32 v1, 3, v0")
    I("v_mov_b32 v2, 0")
    I("v_mov_b32 v3, 0")
    I(f"ds_write_b64 v1, v[2:3] offset:{K1_HIST}")
    I("v_lshlrev_b32 v4, 4, v0")
    I("v_lshrrev_b32 v5, 6, v0")
    I(f"s_mul_i32 s32, s2, {CH*4}")
    I("v_readfirstlane_b32 s3, v5")
    I(f"s_mov_b32 s33, {M25}")
    I("s_mov_b32 s36, -25")
    I(f"s_mul_i32 s37, s2, {CH*32}")
    I("s_waitcnt lgkmcnt(0)")
    srd(16, 4, 5, E * 4)
    srd(20, 6, 7, E * 4)
    srd(24, 14, 15, 0x1000000)
    I(f"v_cmp_gt_u32 vcc, {CH//4}, v0")
    I("s_and_saveexec_b64 s[34:35], vcc")
    I("s_cbranch_execz L_k1_noload")
    I("buffer_load_dwordx4 v[8:11], v4, s[20:23], s32 offen")
    I("buffer_load_dwordx4 v[12:15], v4, s[16:19], s32 offen")
    L("L_k1_noload")
    I("s_mov_b64 exec, s[34:35]")
    I("s_mov_b32 s40, 0")
    I("s_cmp_lg_u32 s3, 15")
    I("s_cbranch_scc1 L_k1_nowf")
    I("s_cmp_ge_u32 s2, 34")
    I("s_cbranch_scc1 L_k1_nowf")
    I("s_mov_b32 s40, 1")
    I("s_mov_b32 s28, s12")
    I("s_mov_b32 s29, s13")
    I(f"s_mov_b32 s30, {144*128}")
    I("s_mov_b32 s31, 0x00020000")
    I("s_mov_b32 s41, s2")
    I("s_cmp_lt_u32 s2, 18")
    I("s_cbranch_scc1 L_k1_wsel")
    I("s_mov_b32 s28, s10")
    I("s_mov_b32 s29, s11")
    I(f"s_mov_b32 s30, {64*128}")
    I("s_sub_u32 s41, s2, 18")
    I("s_cmp_lt_u32 s2, 26")
    I("s_cbranch_scc1 L_k1_wsel")
    I("s_mov_b32 s28, s8")
    I("s_mov_b32 s29, s9")
    I("s_sub_u32 s41, s2, 26")
    L("L_k1_wsel")
    I("s_lshr_b32 s42, s41, 1")
    I("s_lshl_b32 s42, s42, 11")
    I("s_and_b32 s43, s41, 1")
    I("s_lshl_b32 s43, s43, 6")
    I("s_add_u32 s42, s42, s43")
    I("v_and_b32 v40, 31, v0")
    I("v_lshlrev_b32 v40, 1, v40")
    I("v_and_b32 v41, 32, v0")
    I("v_lshl_add_u32 v40, v41, 5, v40")
    for j in range(8):
        I(f"buffer_load_ushort v{44+j}, v40, s[28:31], s42 offen offset:{128*j}")
    L("L_k1_nowf")
    I("s_barrier")
    I("s_and_saveexec_b64 s[34:35], vcc")
    I("s_cbranch_execz L_k1_nohist")
    I("v_mov_b32 v6, 1")
    I("v_lshl_add_u32 v7, v0, 7, s37")
    I("s_waitcnt vmcnt(1)")
    for i in range(4):
        I(f"v_mul_hi_u32 v{16+i}, v{8+i}, s33")
    for i in range(4):
        I(f"v_lshlrev_b32 v{20+i}, 2, v{16+i}")
    for i in range(4):
        I(f"ds_add_rtn_u32 v{24+i}, v{20+i}, v6 offset:{K1_HIST}")
    for i in range(4):
        I(f"v_mad_i32_i24 v{28+i}, v{16+i}, s36, v{8+i}")
    for i in range(4):
        I(f"v_lshlrev_b32 v{16+i}, 29, v{16+i}")
    for i in range(4):
        I(f"v_or3_b32 v{33+2*i}, v{16+i}, v7, v{28+i}")
    for i in range(1, 4):
        I(f"v_add_u32 v{33+2*i}, {32*i}, v{33+2*i}")
    I("s_waitcnt vmcnt(0)")
    for i in range(4):
        I(f"v_lshlrev_b32 v{32+2*i}, 7, v{12+i}")
    L("L_k1_nohist")
    I("s_mov_b64 exec, s[34:35]")
    I("s_waitcnt lgkmcnt(0)")
    I("s_barrier")
    I(f"ds_read_b64 v[2:3], v1 offset:{K1_HIST}")
    I("s_waitcnt lgkmcnt(0)")
    I("v_add_u32 v8, v2, v3")
    I("v_mov_b32 v9, v8")
    wave_scan([9])
    I("s_lshl_b32 s44, s3, 2")
    I("v_mov_b32 v10, s44")
    I("s_mov_b32 exec_lo, 0")
    I("s_mov_b32 exec_hi, 0x80000000")
    I(f"ds_write_b32 v10, v9 offset:{K1_WTOT}")
    I("s_mov_b64 exec, -1")
    I("v_and_b32 v10, 15, v0")
    I("v_lshlrev_b32 v10, 2, v10")
    I("s_waitcnt lgkmcnt(0)")
    I("s_barrier")
    I(f"ds_read_b32 v11, v10 offset:{K1_WTOT}")
    I("s_waitcnt lgkmcnt(0)")
    I("v_mov_b32 v12, v11")
    I("s_nop 1")
    for sh in (1, 2, 4, 8):
        I(f"v_add_u32_dpp v12, v12, v12 row_shr:{sh} row_mask:0xf bank_mask:0xf")
        I("s_nop 1")
    I("v_sub_u32 v12, v12, v11")
    I("s_nop 0")
    I("v_readlane_b32 s45, v12, s3")
    I("v_sub_u32 v9, v9, v8")
    I("s_nop 1")
    I("v_add_u32 v9, s45, v9")
    I("v_add_u32 v10, v9, v2")
    I("v_mov_b32 v12, v9")
    I("v_mov_b32 v13, v10")
    I(f"ds_write_b64 v1, v[12:13] offset:{K1_HIST}")
    I("v_lshl_or_b32 v11, v10, 16, v9")
    I("v_lshlrev_b32 v14, 2, v0")
    I(f"s_lshl_b32 s46, s2, 12")
    I(f"s_add_u32 s46, s46, {WS_TAB}")
    I("buffer_store_dword v11, v14, s[24:27], s46 offen")
    I("s_waitcnt lgkmcnt(0)")
    I("s_barrier")
    I("s_and_saveexec_b64 s[34:35], vcc")
    I("s_cbranch_execz L_k1_noscat")
    for i in range(4):
        I(f"ds_read_b32 v{28+i}, v{20+i} offset:{K1_HIST}")
    for i in range(4):
        I(f"s_waitcnt lgkmcnt({3-i})")
        I(f"v_add_lshl_u32 v{28+i}, v{28+i}, v{24+i}, 3")
    for i in range(4):
        I(f"ds_write_b64 v{28+i}, v[{32+2*i}:{33+2*i}] offset:{K1_STG}")
    L("L_k1_noscat")
    I("s_mov_b64 exec, s[34:35]")
    I("s_waitcnt lgkmcnt(0)")
    I("s_barrier")
    I(f"s_mul_i32 s46, s2, {RECROW}")
    I(f"s_add_u32 s46, s46, {WS_REC}")
    I(f"ds_read_b128 v[8:11], v4 offset:{K1_STG}")
    I(f"v_cmp_gt_u32 vcc, {RECROW//16 - 1024}, v0")
    I("s_and_saveexec_b64 s[34:35], vcc")
    I("s_cbranch_execz L_k1_no2")
    I(f"ds_read_b128 v[12:15], v4 offset:{K1_STG + 16384}")
    I("s_add_u32 s47, s46, 16384")
    I("s_waitcnt lgkmcnt(0)")
    I("buffer_store_dwordx4 v[12:15], v4, s[24:27], s47 offen")
    L("L_k1_no2")
    I("s_mov_b64 exec, s[34:35]")
    I("s_waitcnt lgkmcnt(0)")
    I("buffer_store_dwordx4 v[8:11], v4, s[24:27], s46 offen")
    I("s_cmp_eq_u32 s40, 0")
    I("s_cbranch_scc1 L_k1_end")
    I("s_waitcnt vmcnt(0)")
    for j in range(4):
        I(f"v_lshl_or_b32 v{52+j}, v{45+2*j}, 16, v{44+2*j}")
    I("v_and_b32 v40, 63, v0")
    I("v_lshlrev_b32 v40, 4, v40")
    I("s_lshl_b32 s46, s2, 10")
    I("buffer_store_dwordx4 v[52:55], v40, s[24:27], s46 offen")
    L("L_k1_end")
    I("s_endpgm")

XW = 0
LCAP = 3840
TLIM = 3584
LIST_S = 29440
LIST_M = LIST_S + LCAP * 4
SM = LIST_M + LCAP * 4
SMW = 2000
STG = 76800
STGW = 10240
K2_LDS = STG + 8 * STGW
WSTG = STG
BASET = STG + 49152
WTOT = STG + 57344
EMASK = 0x01FFFFE0

G = [0, 32]; H = [16, 48]
AX = 64; AD = 80; AE = 96; S = 100
VAX = 108; PC = 112; AEA = 113; LSA = 114; LMA = 115; K1C = 116; SRD_ = 117; XWC = 118; SW = 119
A_WG = 0; A_WV = 72; A_AGG = 104

def wg(s, c): return A_WG + (2 * s + c) * 4
def wv(s, c): return A_WV + (2 * s + c) * 4
def vr(b, n): return f"v[{b}:{b+n-1}]"
def ar(b, n): return f"a[{b}:{b+n-1}]"

def mfma(d, a, b, c):
    return f"v_mfma_f32_32x32x16_bf16 {d}, {a}, {b}, {c}"

def mfma_group(c):
    m = []
    g = vr(G[c], 16); h = vr(H[c], 16)
    m.append(mfma(g, vr(AE, 4), ar(wg(8, c), 4), "0"))
    for s in range(4):
        m.append(mfma(g, vr(AX + 4 * s, 4), ar(wg(4 + s, c), 4), g))
    for s in range(4):
        m.append(mfma(g, vr(AD + 4 * s, 4), ar(wg(s, c), 4), g))
    for s in range(4):
        m.append(mfma(h, vr(AX + 4 * s, 4), ar(wv(s, c), 4), "0" if s == 0 else h))
    return m

def valu_group(c):
    g = G[c]; h = H[c]
    stages = [
        lambda i: f"v_mul_f32 v{g+i}, s43, v{g+i}",
        lambda i: f"v_exp_f32 v{g+i}, v{g+i}",
        lambda i: f"v_add_f32 v{g+i}, 1.0, v{g+i}",
        lambda i: f"v_rcp_f32 v{g+i}, v{g+i}",
        lambda i: f"v_mul_f32 v{g+i}, v{g+i}, v{h+i}",
    ]
    v = []
    D = 2
    nst = len(stages)
    for step in range(16 + D * nst + 2):
        for k in range(nst):
            i = step - D * k
            if 0 <= i < 16:
                v.append(stages[k](i))
        i = step - D * nst
        if 0 <= i < 16 and i % 2 == 1:
            p = i // 2
            v.append(f"v_cvt_pk_bf16_f32 v{g+p}, v{g+i-1}, v{g+i}")
    return v

def agg_group(c):
    a = ar(A_AGG + 16 * c, 16)
    return [mfma(a, vr(S, 4), vr(G[c], 4), a), mfma(a, vr(S + 4, 4), vr(G[c] + 4, 4), a)]

def interleave(mf, va, inserts):
    n = len(va)
    per = 6
    mi = 0
    for i, v in enumerate(va):
        if i % per == 0 and mi < len(mf):
            for x in mf[mi] if isinstance(mf[mi], list) else [mf[mi]]:
                I(x)
            mi += 1
        if i in inserts:
            for x in inserts[i]:
                if x.endswith(":"):
                    emit(x)
                else:
                    I(x)
        I(v)
    assert mi == len(mf)

def dma_issue(par, tag):
    r = []
    r.append(f"v_add_u32 v{S+0}, v{PC}, v{S+0}")
    r.append(f"v_xad_u32 v{S+1}, v{PC}, 64, v{S+1}")
    r.append(f"v_add_u32 v{S+2}, v{PC}, v{S+2}")
    r.append(f"v_xad_u32 v{S+3}, v{PC}, 64, v{S+3}")
    r.append(f"v_bfi_b32 v{S+4}, s40, v{AE+1}, v{VAX}")
    for k in range(4):
        r.append(f"s_add_u32 m0, s37, {par*5120 + k*1024}")
        r.append("s_nop 0")
        r.append(f"buffer_load_dwordx4 v{S+k}, s[12:15], 0 offen lds")
    r.append(f"s_add_u32 m0, s37, {par*5120 + 4096}")
    r.append("s_nop 0")
    r.append(f"buffer_load_dwordx4 v{S+4}, s[16:19], 0 offen lds")
    return r

def a_reads(par):
    r = []
    for s in range(4):
        r.append(f"ds_read_b128 {vr(AX+4*s,4)}, v{VAX+s} offset:{par*5120}")
    for s in range(4):
        r.append(f"ds_read_b128 {vr(AD+4*s,4)}, v{AE+2} offset:{32*s}")
    r.append(f"ds_read_b128 {vr(AE,4)}, v{AEA} offset:{par*5120}")
    return r

def gen_k2():
    emit(".globl egc_main_kernel")
    emit(".p2align 8")
    emit(".type egc_main_kernel,@function")
    L("egc_main_kernel")
    I("s_cmp_ge_u32 s2, 256")
    I("s_cbranch_scc1 L_k2_end")
    I("s_and_b32 s38, s2, 7")
    I("s_lshr_b32 s39, s2, 3")
    I(f"s_mul_i32 s44, s38, {NB}")
    I(f"s_add_u32 s45, s44, {NB}")
    I("s_lshr_b32 s44, s44, 3")
    I("s_lshr_b32 s45, s45, 3")
    I("s_add_u32 s32, s44, s39")
    I("s_cmp_ge_u32 s32, s45")
    I("s_cbranch_scc1 L_k2_end")
    I("s_load_dwordx4 s[4:7], s[0:1], 0")
    I("s_load_dwordx2 s[8:9], s[0:1], 56")
    I("s_load_dwordx2 s[10:11], s[0:1], 72")
    I("v_lshrrev_b32 v1, 6, v0")
    I("v_and_b32 v2, 63, v0")
    I("v_readfirstlane_b32 s3, v1")
    I(f"s_mov_b32 s40, {EMASK}")
    I("s_movk_i32 s41, 144")
    I("s_movk_i32 s42, 80")
    I(f"s_mov_b32 s43, {NEGLOG2E}")
    I(f"s_mul_i32 s37, s3, {STGW}")
    I(f"s_add_u32 s37, s37, {STG}")
    I("v_and_b32 v3, 31, v2")
    I("v_lshrrev_b32 v4, 5, v2")
    I("v_bfe_u32 v5, v3, 1, 3")
    I("v_xor_b32 v5, v5, v4")
    I("v_lshlrev_b32 v5, 4, v5")
    I("v_lshl_add_u32 v5, v3, 7, v5")
    I(f"v_add_u32 v{VAX}, s37, v5")
    for s in range(1, 4):
        I(f"v_xor_b32 v6, {32*s}, v5")
        I(f"v_add_u32 v{VAX+s}, s37, v6")
    I("v_lshrrev_b32 v5, 4, v2")
    I("v_and_b32 v6, 7, v2")
    I("v_xor_b32 v5, v5, v6")
    I(f"v_lshlrev_b32 v{PC}, 4, v5")
    I("v_bfe_u32 v5, v3, 1, 1")
    I("v_xor_b32 v5, v5, v4")
    I("v_lshl_add_u32 v5, v5, 5, v3")
    I("v_lshlrev_b32 v5, 4, v5")
    I("s_add_u32 s46, s37, 4096")
    I(f"v_add_u32 v{AEA}, s46, v5")
    I(f"s_mul_i32 s46, s3, {SMW}")
    I(f"s_add_u32 s46, s46, {SM}")
    I("v_lshrrev_b32 v5, 4, v3")
    I("v_lshlrev_b32 v5, 5, v5")
    I("v_bfe_u32 v6, v3, 2, 1")
    I("v_lshl_add_u32 v5, v6, 4, v5")
    I("v_bfe_u32 v6, v3, 3, 1")
    I("v_lshl_add_u32 v5, v6, 3, v5")
    I("v_and_b32 v6, 3, v3")
    I("v_lshl_add_u32 v5, v6, 1, v5")
    I(f"v_add_u32 v{K1C}, s46, v5")
    I("v_lshlrev_b32 v5, 4, v4")
    I("v_add_u32 v6, s46, v5")
    I(f"v_mad_u32_u24 v{SRD_}, v3, s42, v6")
    I(f"s_mul_i32 s46, s3, {WN*144}")
    I(f"v_add_u32 v{XWC}, s46, v5")
    I("v_mul_u32_u24 v5, 57, v2")
    I("v_lshrrev_b32 v5, 9, v5")
    I("v_mul_u32_u24 v6, 9, v5")
    I("v_sub_u32 v6, v2, v6")
    I("v_lshlrev_b32 v6, 4, v6")
    I("v_lshl_add_u32 v7, v5, 7, v6")
    I("v_lshlrev_b32 v8, 4, v2")
    I("s_mov_b32 s33, 0")
    I(f"s_movk_i32 s34, {NC}")
    I("s_mov_b32 s47, 1")
    I("s_waitcnt lgkmcnt(0)")
    srd(12, 4, 5, N * 128)
    srd(16, 6, 7, E * 32)
    srd(20, 10, 11, NC * TABROW, WS_TAB)
    srd(24, 10, 11, NC * RECROW, WS_REC)
    srd(28, 10, 11, 34 * 1024)
    I("s_lshl_b32 s48, s32, 4")
    L("L_round")
    I("v_mbcnt_lo_u32_b32 v2, -1, 0")
    I("v_mbcnt_hi_u32_b32 v2, -1, v2")
    I("s_lshl_b32 s46, s3, 6")
    I("v_add_u32 v0, s46, v2")
    I("v_lshrrev_b32 v1, 1, v0")
    I("v_lshlrev_b32 v3, 12, v1")
    I("buffer_load_dwordx4 v[24:27], v3, s[20:23], s48 offen")
    I("buffer_load_ushort v28, v3, s[20:23], s48 offen offset:16")
    I("s_cmp_eq_u32 s47, 0")
    I("s_cbranch_scc1 L_nodma")
    for k in range(5):
        I(f"s_add_u32 s46, s3, {8*k}")
        I("s_lshl_b32 s46, s46, 10")
        I(f"s_add_u32 m0, s46, {WSTG}")
        I("s_nop 0")
        I("buffer_load_dwordx4 v8, s[28:31], s46 offen lds")
    mask = 0
    for l in range(63):
        if l % 9 < 8:
            mask |= 1 << l
    I(f"s_mov_b32 exec_lo, {mask & 0xffffffff:#x}")
    I(f"s_mov_b32 exec_hi, {mask >> 32:#x}")
    I(f"s_mul_i32 s49, s32, {200*128}")
    for k in range(4):
        I(f"s_add_u32 s46, s3, {8*k}")
        I("s_min_u32 s46, s46, 28")
        I("s_mul_i32 s50, s46, 896")
        I("s_add_u32 s50, s50, s49")
        I("s_mul_i32 m0, s46, 1008")
        I("s_nop 0")
        I("buffer_load_dwordx4 v7, s[12:15], s50 offen lds")
    I("s_mov_b64 exec, -1")
    I("s_waitcnt vmcnt(9)")
    I("s_branch L_tab")
    L("L_nodma")
    I("s_waitcnt vmcnt(0)")
    L("L_tab")
    I("v_and_b32 v29, 0xffff, v24")
    I("v_subrev_u32 v30, s33, v1")
    I("s_sub_u32 s46, s34, s33")
    I("v_cmp_gt_u32 vcc, s46, v30")
    I("v_and_b32 v31, 1, v0")
    I("s_nop 0")
    I("v_cndmask_b32 v30, v29, v28, vcc")
    I("v_lshl_add_u32 v64, v31, 1, v29")
    I(f"s_movk_i32 s46, {RECROW}")
    I("v_mul_u32_u24 v65, s46, v1")
    I("v_lshl_add_u32 v65, v64, 3, v65")
    for i in range(6):
        I(f"buffer_load_dwordx4 v[{4*i}:{4*i+3}], v65, s[24:27], 0 offen offset:{32*i}")
    I("v_mbcnt_lo_u32_b32 v67, -1, 0")
    I("v_mbcnt_hi_u32_b32 v67, -1, v67")
    I("s_lshl_b32 s46, s3, 5")
    I("v_lshrrev_b32 v66, 1, v67")
    I("v_add_u32 v66, s46, v66")
    I("v_sub_u32 v68, v30, v64")
    I("v_cmp_eq_u32 s[50:51], 0, v31")
    I("s_and_b64 vcc, vcc, s[50:51]")
    I("v_alignbit_b32 v72, v25, v24, 16")
    I("v_alignbit_b32 v73, v26, v25, 16")
    I("v_alignbit_b32 v74, v27, v26, 16")
    I("v_alignbit_b32 v75, v28, v27, 16")
    for i in range(4):
        I(f"v_sub_u32 v{72+i}, v{72+i}, v{24+i}")
    I("v_sub_u32 v76, v28, v29")
    for i in range(5):
        I(f"v_cndmask_b32 v{72+i}, 0, v{72+i}, vcc")
    for i in range(5):
        I(f"v_mov_b32 v{80+i}, v{72+i}")
    wave_scan([80, 81, 82, 83, 84])
    I("s_lshl_b32 s46, s3, 5")
    I("v_mov_b32 v69, s46")
    I("s_mov_b32 exec_lo, 0")
    I("s_mov_b32 exec_hi, 0x80000000")
    I(f"v_add_u32 v69, {WTOT}, v69")
    I("ds_write_b128 v69, v[80:83]")
    I("ds_write_b32 v69, v84 offset:16")
    I("s_mov_b64 exec, -1")
    I("v_and_b32 v69, 7, v67")
    I("v_lshlrev_b32 v69, 5, v69")
    I(f"v_add_u32 v69, {WTOT}, v69")
    I("s_waitcnt vmcnt(6) lgkmcnt(0)")
    I("s_barrier")
    I("ds_read_b128 v[88:91], v69")
    I("ds_read_b32 v92, v69 offset:16")
    I("s_cmp_eq_u32 s47, 0")
    I("s_cbranch_scc1 L_noinit")
    I(f"v_lshlrev_b32 v70, 4, v67")
    I(f"v_add_u32 v70, {WSTG}, v70")
    for f in range(26):
        I(f"ds_read_b128 {ar(4*f,4)}, v70 offset:{1024*f}")
    for f in range(8):
        I(f"ds_read_b128 {vr(32+4*f,4)}, v70 offset:{1024*(26+f)}")
    I("v_and_b32 v71, 31, v67")
    I(f"v_mad_u32_u24 v71, v71, s41, v{XWC}")
    for s in range(3):
        I(f"ds_read_b128 {vr(96+4*s,4)}, v71 offset:{32*s}")
    I("s_waitcnt lgkmcnt(0)")
    for c in range(2):
        a = ar(A_AGG + 16 * c, 16)
        for s in range(3):
            I(mfma(a, vr(96 + 4 * s, 4), vr(32 + (2 * s + c) * 4, 4), "0" if s == 0 else a))
    I(f"ds_read_b128 {vr(96,4)}, v71 offset:96")
    I("v_mov_b32 v100, 0")
    I("v_mov_b32 v101, 0")
    I("v_mov_b32 v102, 0")
    I("v_mov_b32 v103, 0")
    I(f"s_mul_i32 s46, s3, {SMW}")
    I(f"s_add_u32 s46, s46, {SM}")
    I("v_lshlrev_b32 v70, 4, v67")
    I("v_add_u32 v70, s46, v70")
    I("ds_write_b128 v70, v[100:103]")
    I("v_cmp_gt_u32 vcc, 61, v67")
    I("s_and_saveexec_b64 s[50:51], vcc")
    I("ds_write_b128 v70, v[100:103] offset:1024")
    I("s_mov_b64 exec, -1")
    I("s_waitcnt lgkmcnt(0)")
    for c in range(2):
        a = ar(A_AGG + 16 * c, 16)
        I(mfma(a, vr(96, 4), vr(32 + (6 + c) * 4, 4), a))
    I("s_mov_b32 s47, 0")
    L("L_noinit")
    I("s_waitcnt lgkmcnt(0)")
    for i in range(5):
        I(f"v_mov_b32 v{96+i}, v{88+i}")
    I("s_nop 1")
    for sh in (1, 2, 4):
        for i in range(5):
            I(f"v_add_u32_dpp v{96+i}, v{96+i}, v{96+i} row_shr:{sh} row_mask:0xf bank_mask:0xf")
    I("s_nop 1")
    for i in range(4):
        I(f"v_sub_u32 v{88+i}, v{96+i}, v{88+i}")
    I("v_readlane_b32 s60, v100, 7")
    for i in range(4):
        I(f"v_readlane_b32 s{56+i}, v{96+i}, 7")
    for i in range(4):
        I(f"v_readlane_b32 s{52+i}, v{88+i}, s3")
    I(f"s_cmp_le_u32 s60, {TLIM}")
    I("s_cbranch_scc1 L_fits")
    I("s_add_u32 s46, s33, 1")
    I("s_cmp_eq_u32 s46, s34")
    I("s_cbranch_scc1 L_round_end")
    I("s_mov_b32 s34, s46")
    I("s_waitcnt vmcnt(0)")
    I("s_barrier")
    I("s_branch L_round")
    L("L_fits")
    I("s_mov_b32 s61, 0")
    I("s_mov_b32 s62, 0")
    I("s_mov_b32 s63, 0")
    for i in range(4):
        I(f"s_add_u32 s64, s{56+i}, 0x001f001f")
        I("s_and_b32 s64, s64, 0xffe0ffe0")
        I("s_and_b32 s65, s64, 0xffff")
        I("s_lshr_b32 s66, s64, 16")
        I("s_add_u32 s67, s61, s65")
        I(f"s_and_b32 s68, s{56+i}, 0xffff")
        I(f"s_cmp_eq_u32 s3, {2*i}")
        I("s_cselect_b32 s62, s61, s62")
        I("s_cselect_b32 s63, s68, s63")
        I(f"s_lshr_b32 s68, s{56+i}, 16")
        I(f"s_cmp_eq_u32 s3, {2*i+1}")
        I("s_cselect_b32 s62, s67, s62")
        I("s_cselect_b32 s63, s68, s63")
        I("s_lshl_b32 s68, s67, 16")
        I("s_or_b32 s68, s68, s61")
        I(f"s_add_u32 s{52+i}, s{52+i}, s68")
        I(f"s_add_u32 s{52+i}, s{52+i}, 0x10001000")
        I("s_add_u32 s61, s67, s66")
    for i in range(4):
        I(f"v_sub_u32 v{80+i}, v{80+i}, v{72+i}")
    for i in range(4):
        I(f"v_add_u32 v{80+i}, s{52+i}, v{80+i}")
    for i in range(4):
        I(f"v_sub_u32 v{80+i}, v{80+i}, v{24+i}")
    I("v_lshlrev_b32 v69, 4, v66")
    I(f"v_add_u32 v69, {BASET}, v69")
    I("s_mov_b32 exec_lo, 0x55555555")
    I("s_mov_b32 exec_hi, 0x55555555")
    I("ds_write_b128 v69, v[80:83]")
    I("s_mov_b64 exec, -1")
    I("s_add_u32 s64, s63, 31")
    I("s_lshr_b32 s35, s64, 5")
    I("s_lshl_b32 s64, s35, 5")
    I("s_sub_u32 s64, s64, s63")
    I("s_add_u32 s65, s62, s63")
    I("v_add_lshl_u32 v70, v67, s65, 2")
    I("v_mov_b32 v71, 0xffffff00")
    I(f"v_mov_b32 v77, {EMASK}")
    I("v_cmp_gt_u32 vcc, s64, v67")
    I("s_and_saveexec_b64 s[50:51], vcc")
    I(f"ds_write2st64_b32 v70, v71, v77 offset0:{LIST_S//256} offset1:{LIST_M//256}")
    I("s_mov_b64 exec, -1")
    L("L_scat")
    I("s_waitcnt vmcnt(0)")
    for r in range(12):
        I(f"v_lshrrev_b32 v{32+r}, 28, v{2*r+1}")
    for r in range(12):
        I(f"v_add_u32 v{32+r}, v{32+r}, v69")
    for r in range(12):
        I(f"ds_read_u16 v{32+r}, v{32+r}")
    o0 = (LIST_S - 16384) // 256; o1 = (LIST_M - 16384) // 256
    for r in range(12):
        i, k = r // 2, r % 2
        I(f"v_cmpx_lt_i32 vcc, {4*i+k}, v68")
        I("s_waitcnt lgkmcnt(11)")
        I("s_cbranch_execz L_scat_done")
        I(f"v_add3_u32 v{32+r}, v{32+r}, v64, {4*i+k}")
        I(f"v_lshlrev_b32 v{32+r}, 2, v{32+r}")
        I(f"ds_write2st64_b32 v{32+r}, v{2*r}, v{2*r+1} offset0:{o0} offset1:{o1}")
    I("v_cmpx_lt_i32 vcc, 24, v68")
    I("s_nop 0")
    I("s_cbranch_execz L_scat_done")
    I("s_mov_b64 exec, -1")
    I("v_add_u32 v64, 24, v64")
    I("v_subrev_u32 v68, 24, v68")
    I("v_add_u32 v65, 192, v65")
    I("s_waitcnt lgkmcnt(0)")
    for i in range(6):
        I(f"buffer_load_dwordx4 v[{4*i}:{4*i+3}], v65, s[24:27], 0 offen offset:{32*i}")
    I("s_branch L_scat")
    L("L_scat_done")
    I("s_mov_b64 exec, -1")
    I("s_lshl_b32 s64, s62, 2")
    I("v_lshrrev_b32 v70, 3, v67")
    I("v_lshlrev_b32 v70, 4, v70")
    I(f"s_add_u32 s65, s64, {LIST_S}")
    I(f"v_add_u32 v{LSA}, s65, v70")
    I("v_and_b32 v70, 7, v67")
    I("v_bfe_u32 v71, v67, 3, 2")
    I("v_lshl_add_u32 v70, v70, 2, v71")
    I("v_lshlrev_b32 v70, 2, v70")
    I(f"s_add_u32 s65, s64, {LIST_M}")
    I(f"v_add_u32 v{LMA}, s65, v70")
    for i in range(32):
        I(f"v_mov_b32 v{G[1]+i}, 0")
    I("s_waitcnt lgkmcnt(0)")
    I("s_barrier")
    I("s_cmp_eq_u32 s35, 0")
    I("s_cbranch_scc1 L_round_end")
    I(f"ds_read_b128 {vr(S,4)}, v{LSA}")
    I(f"ds_read_b32 v{AE+1}, v{LMA}")
    I("s_waitcnt lgkmcnt(0)")
    for x in dma_issue(0, "f0"):
        I(x)
    I(f"v_and_b32 v{AE+1}, 31, v{AE+1}")
    I(f"v_mad_u32_u24 v{AE+2}, v{AE+1}, s41, v{XWC}")
    I(f"v_mad_u32_u24 v{SW}, v{AE+1}, s42, v{K1C}")
    I(f"v_mov_b32 v{AE+3}, 1.0")
    I(f"ds_write_b16_d16_hi v{SW}, v{AE+3}")
    I("s_cmp_lt_u32 s35, 2")
    I("s_cbranch_scc1 L_fill1")
    I(f"ds_read_b128 {vr(S,4)}, v{LSA} offset:128")
    I(f"ds_read_b32 v{AE+1}, v{LMA} offset:128")
    I("s_waitcnt lgkmcnt(0)")
    for x in dma_issue(1, "f1"):
        I(x)
    I("s_waitcnt vmcnt(5)")
    I("s_branch L_fill2")
    L("L_fill1")
    I("s_waitcnt vmcnt(0)")
    L("L_fill2")
    for x in a_reads(0):
        I(x)
    for i in range(8):
        I(f"v_mov_b32 v{S+i}, 0")
    I("s_mov_b32 s36, 0")
    L("L_loop")
    for par in range(2):
        I("s_waitcnt lgkmcnt(0)")
        interleave(mfma_group(0), valu_group(1), {})
        I("s_nop 1")
        for x in agg_group(1):
            I(x)
        early = [f"ds_read_b128 {vr(S,4)}, v{LSA} offset:256",
                 f"ds_read2_b32 {vr(AE,2)}, v{LMA} offset0:32 offset1:64"]
        mid = ["s_add_u32 s46, s36, 2",
               "s_cmp_ge_u32 s46, s35",
               "s_waitcnt lgkmcnt(0)",
               f"s_cbranch_scc1 L_nodma_{par}"] + dma_issue(par, f"l{par}") + [f"L_nodma_{par}:"]
        late = [f"ds_read_b128 {vr(S,4)}, v{SRD_}",
                f"ds_read_b128 {vr(S+4,4)}, v{SRD_} offset:32",
                f"v_mov_b32 v{AE+3}, 1.0",
                f"v_and_b32 v{AE+1}, 31, v{AE}",
                f"ds_write_b16 v{SW}, v{AE+3}",
                f"v_mad_u32_u24 v{AE+2}, v{AE+1}, s41, v{XWC}",
                f"v_mad_u32_u24 v{SW}, v{AE+1}, s42, v{K1C}",
                f"v_add_u32 v{LSA}, 128, v{LSA}",
                f"v_add_u32 v{LMA}, 128, v{LMA}",
                "s_add_u32 s36, s36, 1",
                "s_cmp_ge_u32 s36, s35",
                f"s_cbranch_scc1 L_last_{par}",
                f"ds_write_b16_d16_hi v{SW}, v{AE+3}",
                "s_add_u32 s46, s36, 1",
                "s_cmp_lt_u32 s46, s35",
                f"s_cbranch_scc1 L_w5_{par}",
                "s_waitcnt vmcnt(0)",
                f"L_w5_{par}:",
                "s_waitcnt vmcnt(5)"] + a_reads(par ^ 1) + [f"L_last_{par}:"]
        va = valu_group(0)
        interleave(mfma_group(1), va, {1: early, 14: mid, 76: late})
        I("s_cmp_ge_u32 s36, s35")
        I(f"s_cbranch_scc1 L_fin_{par}")
        I("s_waitcnt lgkmcnt(11)")
        for x in agg_group(0):
            I(x)
        if par == 1:
            I("s_branch L_loop")
        else:
            I("s_branch L_cont_0")
        L(f"L_fin_{par}")
        I("s_waitcnt lgkmcnt(0)")
        for x in agg_group(0):
            I(x)
        I("s_branch L_tail")
        if par == 0:
            L("L_cont_0")
    L("L_tail")
    for x in valu_group(1):
        I(x)
    I("s_nop 1")
    for x in agg_group(1):
        I(x)
    L("L_round_end")
    I(f"s_cmp_ge_u32 s34, {NC}")
    I("s_cbranch_scc1 L_epi")
    I("s_mov_b32 s33, s34")
    I("s_add_u32 s34, s34, 1")
    I("s_waitcnt vmcnt(0) lgkmcnt(0)")
    I("s_barrier")
    I("s_branch L_round")
    L("L_epi")
    srd(28, 8, 9, N * 128)
    I("v_mbcnt_lo_u32_b32 v67, -1, 0")
    I("v_mbcnt_hi_u32_b32 v67, -1, v67")
    I("v_and_b32 v68, 31, v67")
    I("v_lshrrev_b32 v69, 5, v67")
    I("v_lshlrev_b32 v68, 1, v68")
    I("v_lshl_add_u32 v68, v69, 9, v68")
    I("v_add_u32 v68, s37, v68")
    I("v_lshlrev_b32 v70, 4, v67")
    I("v_add_u32 v71, s37, v70")
    I("s_nop 7")
    I("s_nop 7")
    regs = [i for i in range(13)]
    for c in range(2):
        for i in regs:
            I(f"v_accvgpr_read_b32 v{16*c+i}, a{A_AGG+16*c+i}")
    ids = [16 * c + i for c in range(2) for i in regs]
    for r in ids:
        I(f"v_mul_f32 v{32+r}, s43, v{r}")
    for r in ids:
        I(f"v_exp_f32 v{32+r}, v{32+r}")
    for r in ids:
        I(f"v_add_f32 v{32+r}, 1.0, v{32+r}")
    for r in ids:
        I(f"v_rcp_f32 v{32+r}, v{32+r}")
    for r in ids:
        I(f"v_mul_f32 v{r}, v{r}, v{32+r}")
    for i in regs:
        I(f"v_cvt_pk_bf16_f32 v{32+i}, v{i}, v{16+i}")
    for i in regs:
        row = 8 * (i >> 2) + (i & 3)
        I(f"ds_write_b16 v68, v{32+i} offset:{row*128}")
        I(f"ds_write_b16_d16_hi v68, v{32+i} offset:{row*128+64}")
    I("s_waitcnt lgkmcnt(0)")
    for k in range(4):
        I(f"ds_read_b128 {vr(4*k,4)}, v71 offset:{1024*k}")
    I(f"s_lshl_b32 s46, s32, 3")
    I("s_add_u32 s46, s46, s3")
    I(f"s_mul_i32 s46, s46, {WN*128}")
    for k in range(3):
        I(f"s_waitcnt lgkmcnt({3-k})")
        I(f"buffer_store_dwordx4 {vr(4*k,4)}, v70, s[28:31], s46 offen offset:{1024*k}")
    I("s_waitcnt lgkmcnt(0)")
    I("s_mov_b64 exec, 0xff")
    I(f"buffer_store_dwordx4 {vr(12,4)}, v70, s[28:31], s46 offen offset:3072")
    L("L_k2_end")
    I("s_endpgm")

def kd(name, vgpr, sgpr, accum):
    emit(f".amdhsa_kernel {name}")
    emit(f"  .amdhsa_next_free_vgpr {vgpr}")
    emit(f"  .amdhsa_next_free_sgpr {sgpr}")
    emit(f"  .amdhsa_accum_offset {accum}")
    emit("  .amdhsa_group_segment_fixed_size 0")
    emit("  .amdhsa_kernarg_size 80")
    emit("  .amdhsa_user_sgpr_count 2")
    emit("  .amdhsa_user_sgpr_kernarg_segment_ptr 1")
    emit("  .amdhsa_system_sgpr_workgroup_id_x 1")
    emit(".end_amdhsa_kernel")

def main():
    emit(HEADER.rstrip("\n"))
    emit(f"; @launch kernel=egc_bin_kernel grid=({NC},1,1) block=(1024,1,1) lds={K1_LDS}")
    emit(f"; @launch kernel=egc_main_kernel grid=(256,1,1) block=(512,1,1) lds={K2_LDS}")
    emit('.amdgcn_target "amdgcn-amd-amdhsa--gfx950"')
    emit(".text")
    gen_k1()
    gen_k2()
    emit('.section .rodata,"a"')
    emit(".p2align 6")
    kd("egc_bin_kernel", 56, 56, 56)
    emit(".p2align 6")
    kd("egc_main_kernel", 256, 80, 120)
    path = sys.argv[1] if len(sys.argv) > 1 else "standalone__edge_featured_mpnn_egc__graph.s"
    open(path, "w").write("\n".join(out) + "\n")

main()
```

```python
import sys

N = 50000; E = 800000
WN = 25; NWIN = 2000; NB = 250; CH = 3200; NC = 250
WS_WF = 0; WS_TAB = 0x10000; TABROW = 4096; WS_REC = 0x200000; RECROW = CH * 8
M25 = 171798692
NEGLOG2E = 0xBFB8AA3B

import os
STAMP = int(os.environ.get("STAMP", "0"))
def stamp(k):
    if STAMP:
        I(f"s_memtime s[{70+2*k}:{71+2*k}]")
        I("s_waitcnt lgkmcnt(0)")
out = []
def emit(s=""):
    out.append(s)
DROP = os.environ.get("DROP", "").split(",")
INLOOP = [False]
def I(s):
    if INLOOP[0]:
        op = s.split()[0]
        if "mfma" in DROP and op.startswith("v_mfma"): return
        if "trans" in DROP and op in ("v_exp_f32", "v_rcp_f32"): return
        if "valu" in DROP and op in ("v_exp_f32", "v_rcp_f32", "v_mul_f32", "v_add_f32", "v_cvt_pk_bf16_f32"): return
        if "dma" in DROP and op.startswith("buffer_load"): return
        if "lds" in DROP and op.startswith("ds_read_b128"): return
    out.append("    " + s)
def L(s):
    out.append(s + ":")

HEADER = """; Kernarg layout for this problem (80 bytes, ptrs only, base s[0:1]):
"""

def srd(d, lo, hi, size, add=0):
    if add:
        I(f"s_add_u32 s{d}, s{lo}, {add}")
        I(f"s_addc_u32 s{d+1}, s{hi}, 0")
    else:
        I(f"s_mov_b32 s{d}, s{lo}")
        I(f"s_mov_b32 s{d+1}, s{hi}")
    I(f"s_mov_b32 s{d+2}, {size}")
    I(f"s_mov_b32 s{d+3}, 0x00020000")

def wave_scan(regs):
    steps = ["row_shr:1 row_mask:0xf bank_mask:0xf", "row_shr:2 row_mask:0xf bank_mask:0xf",
             "row_shr:4 row_mask:0xf bank_mask:0xf", "row_shr:8 row_mask:0xf bank_mask:0xf",
             "row_bcast:15 row_mask:0xa bank_mask:0xf", "row_bcast:31 row_mask:0xc bank_mask:0xf"]
    I("s_nop 1")
    for st in steps:
        for r in regs:
            I(f"v_add_u32_dpp v{r}, v{r}, v{r} {st}")
        if len(regs) < 3:
            I(f"s_nop {2 - len(regs)}")

K1_HIST = 0
K1_WTOT = 8192
K1_STG = 8448
K1_LDS = K1_STG + RECROW

def gen_k1():
    emit(".globl egc_bin_kernel")
    emit(".p2align 8")
    emit(".type egc_bin_kernel,@function")
    L("egc_bin_kernel")
    I(f"s_cmp_ge_u32 s2, {NC}")
    I("s_cbranch_scc1 L_k1_end")
    I("s_load_dwordx4 s[4:7], s[0:1], 16")
    I("s_load_dwordx4 s[8:11], s[0:1], 32")
    I("s_load_dwordx2 s[12:13], s[0:1], 48")
    I("s_load_dwordx2 s[14:15], s[0:1], 72")
    I("v_lshlrev_b32 v1, 3, v0")
    I("v_mov_b32 v2, 0")
    I("v_mov_b32 v3, 0")
    I(f"ds_write_b64 v1, v[2:3] offset:{K1_HIST}")
    I("v_lshlrev_b32 v4, 4, v0")
    I("v_lshrrev_b32 v5, 6, v0")
    I(f"s_mul_i32 s32, s2, {CH*4}")
    I("v_readfirstlane_b32 s3, v5")
    I(f"s_mov_b32 s33, {M25}")
    I("s_mov_b32 s36, -25")
    I(f"s_mul_i32 s37, s2, {CH*32}")
    I("s_waitcnt lgkmcnt(0)")
    srd(16, 4, 5, E * 4)
    srd(20, 6, 7, E * 4)
    srd(24, 14, 15, 0x1000000)
    I(f"v_cmp_gt_u32 vcc, {CH//4}, v0")
    I("s_and_saveexec_b64 s[34:35], vcc")
    I("s_cbranch_execz L_k1_noload")
    I("buffer_load_dwordx4 v[8:11], v4, s[20:23], s32 offen")
    I("buffer_load_dwordx4 v[12:15], v4, s[16:19], s32 offen")
    L("L_k1_noload")
    I("s_mov_b64 exec, s[34:35]")
    I("s_mov_b32 s40, 0")
    I("s_cmp_lg_u32 s3, 15")
    I("s_cbranch_scc1 L_k1_nowf")
    I("s_cmp_ge_u32 s2, 34")
    I("s_cbranch_scc1 L_k1_nowf")
    I("s_mov_b32 s40, 1")
    I("s_mov_b32 s28, s12")
    I("s_mov_b32 s29, s13")
    I(f"s_mov_b32 s30, {144*128}")
    I("s_mov_b32 s31, 0x00020000")
    I("s_mov_b32 s41, s2")
    I("s_cmp_lt_u32 s2, 18")
    I("s_cbranch_scc1 L_k1_wsel")
    I("s_mov_b32 s28, s10")
    I("s_mov_b32 s29, s11")
    I(f"s_mov_b32 s30, {64*128}")
    I("s_sub_u32 s41, s2, 18")
    I("s_cmp_lt_u32 s2, 26")
    I("s_cbranch_scc1 L_k1_wsel")
    I("s_mov_b32 s28, s8")
    I("s_mov_b32 s29, s9")
    I("s_sub_u32 s41, s2, 26")
    L("L_k1_wsel")
    I("s_lshr_b32 s42, s41, 1")
    I("s_lshl_b32 s42, s42, 11")
    I("s_and_b32 s43, s41, 1")
    I("s_lshl_b32 s43, s43, 6")
    I("s_add_u32 s42, s42, s43")
    I("v_and_b32 v40, 31, v0")
    I("v_lshlrev_b32 v40, 1, v40")
    I("v_and_b32 v41, 32, v0")
    I("v_lshl_add_u32 v40, v41, 5, v40")
    for j in range(8):
        I(f"buffer_load_ushort v{44+j}, v40, s[28:31], s42 offen offset:{128*j}")
    L("L_k1_nowf")
    I("s_barrier")
    I("s_and_saveexec_b64 s[34:35], vcc")
    I("s_cbranch_execz L_k1_nohist")
    I("v_mov_b32 v6, 1")
    I("v_lshl_add_u32 v7, v0, 7, s37")
    I("s_waitcnt vmcnt(1)")
    for i in range(4):
        I(f"v_mul_hi_u32 v{16+i}, v{8+i}, s33")
    for i in range(4):
        I(f"v_lshlrev_b32 v{20+i}, 2, v{16+i}")
    for i in range(4):
        I(f"ds_add_rtn_u32 v{24+i}, v{20+i}, v6 offset:{K1_HIST}")
    for i in range(4):
        I(f"v_mad_i32_i24 v{28+i}, v{16+i}, s36, v{8+i}")
    for i in range(4):
        I(f"v_lshlrev_b32 v{16+i}, 29, v{16+i}")
    for i in range(4):
        I(f"v_or3_b32 v{33+2*i}, v{16+i}, v7, v{28+i}")
    for i in range(1, 4):
        I(f"v_add_u32 v{33+2*i}, {32*i}, v{33+2*i}")
    I("s_waitcnt vmcnt(0)")
    for i in range(4):
        I(f"v_lshlrev_b32 v{32+2*i}, 7, v{12+i}")
    L("L_k1_nohist")
    I("s_mov_b64 exec, s[34:35]")
    I("s_waitcnt lgkmcnt(0)")
    I("s_barrier")
    I(f"ds_read_b64 v[2:3], v1 offset:{K1_HIST}")
    I("s_waitcnt lgkmcnt(0)")
    I("v_add_u32 v8, v2, v3")
    I("v_mov_b32 v9, v8")
    wave_scan([9])
    I("s_lshl_b32 s44, s3, 2")
    I("v_mov_b32 v10, s44")
    I("s_mov_b32 exec_lo, 0")
    I("s_mov_b32 exec_hi, 0x80000000")
    I(f"ds_write_b32 v10, v9 offset:{K1_WTOT}")
    I("s_mov_b64 exec, -1")
    I("v_and_b32 v10, 15, v0")
    I("v_lshlrev_b32 v10, 2, v10")
    I("s_waitcnt lgkmcnt(0)")
    I("s_barrier")
    I(f"ds_read_b32 v11, v10 offset:{K1_WTOT}")
    I("s_waitcnt lgkmcnt(0)")
    I("v_mov_b32 v12, v11")
    I("s_nop 1")
    for sh in (1, 2, 4, 8):
        I(f"v_add_u32_dpp v12, v12, v12 row_shr:{sh} row_mask:0xf bank_mask:0xf")
        I("s_nop 1")
    I("v_sub_u32 v12, v12, v11")
    I("s_nop 0")
    I("v_readlane_b32 s45, v12, s3")
    I("v_sub_u32 v9, v9, v8")
    I("s_nop 1")
    I("v_add_u32 v9, s45, v9")
    I("v_add_u32 v10, v9, v2")
    I("v_mov_b32 v12, v9")
    I("v_mov_b32 v13, v10")
    I(f"ds_write_b64 v1, v[12:13] offset:{K1_HIST}")
    I("v_lshl_or_b32 v11, v10, 16, v9")
    I("v_lshlrev_b32 v14, 2, v0")
    I(f"s_lshl_b32 s46, s2, 12")
    I(f"s_add_u32 s46, s46, {WS_TAB}")
    I("buffer_store_dword v11, v14, s[24:27], s46 offen")
    I("s_waitcnt lgkmcnt(0)")
    I("s_barrier")
    I("s_and_saveexec_b64 s[34:35], vcc")
    I("s_cbranch_execz L_k1_noscat")
    for i in range(4):
        I(f"ds_read_b32 v{28+i}, v{20+i} offset:{K1_HIST}")
    for i in range(4):
        I(f"s_waitcnt lgkmcnt({3-i})")
        I(f"v_add_lshl_u32 v{28+i}, v{28+i}, v{24+i}, 3")
    for i in range(4):
        I(f"ds_write_b64 v{28+i}, v[{32+2*i}:{33+2*i}] offset:{K1_STG}")
    L("L_k1_noscat")
    I("s_mov_b64 exec, s[34:35]")
    I("s_waitcnt lgkmcnt(0)")
    I("s_barrier")
    I(f"s_mul_i32 s46, s2, {RECROW}")
    I(f"s_add_u32 s46, s46, {WS_REC}")
    I(f"ds_read_b128 v[8:11], v4 offset:{K1_STG}")
    I(f"v_cmp_gt_u32 vcc, {RECROW//16 - 1024}, v0")
    I("s_and_saveexec_b64 s[34:35], vcc")
    I("s_cbranch_execz L_k1_no2")
    I(f"ds_read_b128 v[12:15], v4 offset:{K1_STG + 16384}")
    I("s_add_u32 s47, s46, 16384")
    I("s_waitcnt lgkmcnt(0)")
    I("buffer_store_dwordx4 v[12:15], v4, s[24:27], s47 offen")
    L("L_k1_no2")
    I("s_mov_b64 exec, s[34:35]")
    I("s_waitcnt lgkmcnt(0)")
    I("buffer_store_dwordx4 v[8:11], v4, s[24:27], s46 offen")
    I("s_cmp_eq_u32 s40, 0")
    I("s_cbranch_scc1 L_k1_end")
    I("s_waitcnt vmcnt(0)")
    for j in range(4):
        I(f"v_lshl_or_b32 v{52+j}, v{45+2*j}, 16, v{44+2*j}")
    I("v_and_b32 v40, 63, v0")
    I("v_lshlrev_b32 v40, 4, v40")
    I("s_lshl_b32 s46, s2, 10")
    I("buffer_store_dwordx4 v[52:55], v40, s[24:27], s46 offen")
    L("L_k1_end")
    I("s_endpgm")

XW = 0
LCAP = 3840
TLIM = 3584
LIST_S = 29440
LIST_M = LIST_S + LCAP * 4
SM = LIST_M + LCAP * 4
SMW = 2000
STG = 76800
STGW = 10240
K2_LDS = STG + 8 * STGW
WSTG = STG
BASET = STG + 49152
WTOT = STG + 57344
EMASK = 0x01FFFFE0

G = [0, 32]; H = [16, 48]
AX = 64; AD = 80; AE = 96; S = 100
VAX = 108; PC = 112; AEA = 113; LSA = 114; LMA = 115; K1C = 116; SRD_ = 117; XWC = 118; SW = 119
A_WG = 0; A_WV = 72; A_AGG = 104

def wg(s, c): return A_WG + (2 * s + c) * 4
def wv(s, c): return A_WV + (2 * s + c) * 4
def vr(b, n): return f"v[{b}:{b+n-1}]"
def ar(b, n): return f"a[{b}:{b+n-1}]"

def mfma(d, a, b, c):
    return f"v_mfma_f32_32x32x16_bf16 {d}, {a}, {b}, {c}"

def mfma_group(c):
    m = []
    g = vr(G[c], 16); h = vr(H[c], 16)
    m.append(mfma(g, vr(AE, 4), ar(wg(8, c), 4), "0"))
    for s in range(4):
        m.append(mfma(g, vr(AX + 4 * s, 4), ar(wg(4 + s, c), 4), g))
    for s in range(4):
        m.append(mfma(g, vr(AD + 4 * s, 4), ar(wg(s, c), 4), g))
    for s in range(4):
        m.append(mfma(h, vr(AX + 4 * s, 4), ar(wv(s, c), 4), "0" if s == 0 else h))
    return m

def valu_group(c):
    g = G[c]; h = H[c]
    stages = [
        lambda i: f"v_mul_f32 v{g+i}, s43, v{g+i}",
        lambda i: f"v_exp_f32 v{g+i}, v{g+i}",
        lambda i: f"v_add_f32 v{g+i}, 1.0, v{g+i}",
        lambda i: f"v_rcp_f32 v{g+i}, v{g+i}",
        lambda i: f"v_mul_f32 v{g+i}, v{g+i}, v{h+i}",
    ]
    v = []
    D = 2
    nst = len(stages)
    for step in range(16 + D * nst + 2):
        for k in range(nst):
            i = step - D * k
            if 0 <= i < 16:
                v.append(stages[k](i))
        i = step - D * nst
        if 0 <= i < 16 and i % 2 == 1:
            p = i // 2
            v.append(f"v_cvt_pk_bf16_f32 v{g+p}, v{g+i-1}, v{g+i}")
    return v

def agg_group(c):
    a = ar(A_AGG + 16 * c, 16)
    return [mfma(a, vr(S, 4), vr(G[c], 4), a), mfma(a, vr(S + 4, 4), vr(G[c] + 4, 4), a)]

def interleave(mf, va, inserts):
    n = len(va)
    per = 6
    mi = 0
    for i, v in enumerate(va):
        if i % per == 0 and mi < len(mf):
            for x in mf[mi] if isinstance(mf[mi], list) else [mf[mi]]:
                I(x)
            mi += 1
        if i in inserts:
            for x in inserts[i]:
                if x.endswith(":"):
                    emit(x)
                else:
                    I(x)
        I(v)
    assert mi == len(mf)

def dma_issue(par, tag):
    r = []
    if int(os.environ.get("NOMEM", "0")):
        for k in range(4):
            r.append(f"v_and_b32 v{S+k}, 0x3f80, v{S+k}")
        r.append(f"v_and_b32 v{AE+1}, 0x3fff, v{AE+1}")
    r.append(f"v_add_u32 v{S+0}, v{PC}, v{S+0}")
    r.append(f"v_xad_u32 v{S+1}, v{PC}, 64, v{S+1}")
    r.append(f"v_add_u32 v{S+2}, v{PC}, v{S+2}")
    r.append(f"v_xad_u32 v{S+3}, v{PC}, 64, v{S+3}")
    r.append(f"v_bfi_b32 v{S+4}, s40, v{AE+1}, v{VAX}")
    for k in range(4):
        r.append(f"s_add_u32 m0, s37, {par*5120 + k*1024}")
        r.append("s_nop 0")
        r.append(f"buffer_load_dwordx4 v{S+k}, s[12:15], 0 offen lds")
    r.append(f"s_add_u32 m0, s37, {par*5120 + 4096}")
    r.append("s_nop 0")
    r.append(f"buffer_load_dwordx4 v{S+4}, s[16:19], 0 offen lds")
    return r

def a_reads(par):
    r = []
    for s in range(4):
        r.append(f"ds_read_b128 {vr(AX+4*s,4)}, v{VAX+s} offset:{par*5120}")
    for s in range(4):
        r.append(f"ds_read_b128 {vr(AD+4*s,4)}, v{AE+2} offset:{32*s}")
    r.append(f"ds_read_b128 {vr(AE,4)}, v{AEA} offset:{par*5120}")
    return r

def gen_k2():
    emit(".globl egc_main_kernel")
    emit(".p2align 8")
    emit(".type egc_main_kernel,@function")
    L("egc_main_kernel")
    I("s_cmp_ge_u32 s2, 256")
    I("s_cbranch_scc1 L_k2_end")
    I("s_and_b32 s38, s2, 7")
    I("s_lshr_b32 s39, s2, 3")
    I(f"s_mul_i32 s44, s38, {NB}")
    I(f"s_add_u32 s45, s44, {NB}")
    I("s_lshr_b32 s44, s44, 3")
    I("s_lshr_b32 s45, s45, 3")
    I("s_add_u32 s32, s44, s39")
    I("s_cmp_ge_u32 s32, s45")
    I("s_cbranch_scc1 L_k2_end")
    stamp(0)
    I("s_load_dwordx4 s[4:7], s[0:1], 0")
    I("s_load_dwordx2 s[8:9], s[0:1], 56")
    I("s_load_dwordx2 s[10:11], s[0:1], 72")
    I("v_lshrrev_b32 v1, 6, v0")
    I("v_and_b32 v2, 63, v0")
    I("v_readfirstlane_b32 s3, v1")
    I(f"s_mov_b32 s40, {EMASK}")
    I("s_movk_i32 s41, 144")
    I("s_movk_i32 s42, 80")
    I(f"s_mov_b32 s43, {NEGLOG2E}")
    I(f"s_mul_i32 s37, s3, {STGW}")
    I(f"s_add_u32 s37, s37, {STG}")
    I("v_and_b32 v3, 31, v2")
    I("v_lshrrev_b32 v4, 5, v2")
    I("v_bfe_u32 v5, v3, 1, 3")
    I("v_xor_b32 v5, v5, v4")
    I("v_lshlrev_b32 v5, 4, v5")
    I("v_lshl_add_u32 v5, v3, 7, v5")
    I(f"v_add_u32 v{VAX}, s37, v5")
    for s in range(1, 4):
        I(f"v_xor_b32 v6, {32*s}, v5")
        I(f"v_add_u32 v{VAX+s}, s37, v6")
    I("v_lshrrev_b32 v5, 4, v2")
    I("v_and_b32 v6, 7, v2")
    I("v_xor_b32 v5, v5, v6")
    I(f"v_lshlrev_b32 v{PC}, 4, v5")
    I("v_bfe_u32 v5, v3, 1, 1")
    I("v_xor_b32 v5, v5, v4")
    I("v_lshl_add_u32 v5, v5, 5, v3")
    I("v_lshlrev_b32 v5, 4, v5")
    I("s_add_u32 s46, s37, 4096")
    I(f"v_add_u32 v{AEA}, s46, v5")
    I(f"s_mul_i32 s46, s3, {SMW}")
    I(f"s_add_u32 s46, s46, {SM}")
    I("v_lshrrev_b32 v5, 4, v3")
    I("v_lshlrev_b32 v5, 5, v5")
    I("v_bfe_u32 v6, v3, 2, 1")
    I("v_lshl_add_u32 v5, v6, 4, v5")
    I("v_bfe_u32 v6, v3, 3, 1")
    I("v_lshl_add_u32 v5, v6, 3, v5")
    I("v_and_b32 v6, 3, v3")
    I("v_lshl_add_u32 v5, v6, 1, v5")
    I(f"v_add_u32 v{K1C}, s46, v5")
    I("v_lshlrev_b32 v5, 4, v4")
    I("v_add_u32 v6, s46, v5")
    I(f"v_mad_u32_u24 v{SRD_}, v3, s42, v6")
    I(f"s_mul_i32 s46, s3, {WN*144}")
    I(f"v_add_u32 v{XWC}, s46, v5")
    I("v_mul_u32_u24 v5, 57, v2")
    I("v_lshrrev_b32 v5, 9, v5")
    I("v_mul_u32_u24 v6, 9, v5")
    I("v_sub_u32 v6, v2, v6")
    I("v_lshlrev_b32 v6, 4, v6")
    I("v_lshl_add_u32 v7, v5, 7, v6")
    I("v_lshlrev_b32 v8, 4, v2")
    I("s_mov_b32 s33, 0")
    I(f"s_movk_i32 s34, {NC}")
    I("s_mov_b32 s47, 1")
    I("s_waitcnt lgkmcnt(0)")
    srd(12, 4, 5, N * 128)
    srd(16, 6, 7, E * 32)
    srd(20, 10, 11, NC * TABROW, WS_TAB)
    srd(24, 10, 11, NC * RECROW, WS_REC)
    srd(28, 10, 11, 34 * 1024)
    I("s_lshl_b32 s48, s32, 4")
    L("L_round")
    I("v_mbcnt_lo_u32_b32 v2, -1, 0")
    I("v_mbcnt_hi_u32_b32 v2, -1, v2")
    I("s_lshl_b32 s46, s3, 6")
    I("v_add_u32 v0, s46, v2")
    I("v_lshrrev_b32 v1, 1, v0")
    I("v_lshlrev_b32 v3, 12, v1")
    I("buffer_load_dwordx4 v[24:27], v3, s[20:23], s48 offen")
    I("buffer_load_ushort v28, v3, s[20:23], s48 offen offset:16")
    I("s_cmp_eq_u32 s47, 0")
    I("s_cbranch_scc1 L_nodma")
    for k in range(5):
        I(f"s_add_u32 s46, s3, {8*k}")
        I("s_lshl_b32 s46, s46, 10")
        I(f"s_add_u32 m0, s46, {WSTG}")
        I("s_nop 0")
        I("buffer_load_dwordx4 v8, s[28:31], s46 offen lds")
    mask = 0
    for l in range(63):
        if l % 9 < 8:
            mask |= 1 << l
    I(f"s_mov_b32 exec_lo, {mask & 0xffffffff:#x}")
    I(f"s_mov_b32 exec_hi, {mask >> 32:#x}")
    I(f"s_mul_i32 s49, s32, {200*128}")
    for k in range(4):
        I(f"s_add_u32 s46, s3, {8*k}")
        I("s_min_u32 s46, s46, 28")
        I("s_mul_i32 s50, s46, 896")
        I("s_add_u32 s50, s50, s49")
        I("s_mul_i32 m0, s46, 1008")
        I("s_nop 0")
        I("buffer_load_dwordx4 v7, s[12:15], s50 offen lds")
    I("s_mov_b64 exec, -1")
    I("s_waitcnt vmcnt(9)")
    I("s_branch L_tab")
    L("L_nodma")
    I("s_waitcnt vmcnt(0)")
    L("L_tab")
    stamp(1)
    I("v_and_b32 v29, 0xffff, v24")
    I("v_subrev_u32 v30, s33, v1")
    I("s_sub_u32 s46, s34, s33")
    I("v_cmp_gt_u32 vcc, s46, v30")
    I("v_and_b32 v31, 1, v0")
    I("s_nop 0")
    I("v_cndmask_b32 v30, v29, v28, vcc")
    I("v_lshl_add_u32 v64, v31, 1, v29")
    I(f"s_movk_i32 s46, {RECROW}")
    I("v_mul_u32_u24 v65, s46, v1")
    I("v_lshl_add_u32 v65, v64, 3, v65")
    for i in range(6):
        I(f"buffer_load_dwordx4 v[{4*i}:{4*i+3}], v65, s[24:27], 0 offen offset:{32*i}")
    I("v_mbcnt_lo_u32_b32 v67, -1, 0")
    I("v_mbcnt_hi_u32_b32 v67, -1, v67")
    I("s_lshl_b32 s46, s3, 5")
    I("v_lshrrev_b32 v66, 1, v67")
    I("v_add_u32 v66, s46, v66")
    I("v_sub_u32 v68, v30, v64")
    I("v_cmp_eq_u32 s[50:51], 0, v31")
    I("s_and_b64 vcc, vcc, s[50:51]")
    I("v_alignbit_b32 v72, v25, v24, 16")
    I("v_alignbit_b32 v73, v26, v25, 16")
    I("v_alignbit_b32 v74, v27, v26, 16")
    I("v_alignbit_b32 v75, v28, v27, 16")
    for i in range(4):
        I(f"v_sub_u32 v{72+i}, v{72+i}, v{24+i}")
    I("v_sub_u32 v76, v28, v29")
    for i in range(5):
        I(f"v_cndmask_b32 v{72+i}, 0, v{72+i}, vcc")
    for i in range(5):
        I(f"v_mov_b32 v{80+i}, v{72+i}")
    wave_scan([80, 81, 82, 83, 84])
    I("s_lshl_b32 s46, s3, 5")
    I("v_mov_b32 v69, s46")
    I("s_mov_b32 exec_lo, 0")
    I("s_mov_b32 exec_hi, 0x80000000")
    I(f"v_add_u32 v69, {WTOT}, v69")
    I("ds_write_b128 v69, v[80:83]")
    I("ds_write_b32 v69, v84 offset:16")
    I("s_mov_b64 exec, -1")
    I("v_and_b32 v69, 7, v67")
    I("v_lshlrev_b32 v69, 5, v69")
    I(f"v_add_u32 v69, {WTOT}, v69")
    I("s_waitcnt vmcnt(6) lgkmcnt(0)")
    I("s_barrier")
    stamp(2)
    I("ds_read_b128 v[88:91], v69")
    I("ds_read_b32 v92, v69 offset:16")
    I("s_cmp_eq_u32 s47, 0")
    I("s_cbranch_scc1 L_noinit")
    I(f"v_lshlrev_b32 v70, 4, v67")
    I(f"v_add_u32 v70, {WSTG}, v70")
    for f in range(26):
        I(f"ds_read_b128 {ar(4*f,4)}, v70 offset:{1024*f}")
    for f in range(8):
        I(f"ds_read_b128 {vr(32+4*f,4)}, v70 offset:{1024*(26+f)}")
    I("v_and_b32 v71, 31, v67")
    I(f"v_mad_u32_u24 v71, v71, s41, v{XWC}")
    for s in range(3):
        I(f"ds_read_b128 {vr(96+4*s,4)}, v71 offset:{32*s}")
    I("s_waitcnt lgkmcnt(0)")
    for c in range(2):
        a = ar(A_AGG + 16 * c, 16)
        for s in range(3):
            I(mfma(a, vr(96 + 4 * s, 4), vr(32 + (2 * s + c) * 4, 4), "0" if s == 0 else a))
    I(f"ds_read_b128 {vr(96,4)}, v71 offset:96")
    I("v_mov_b32 v100, 0")
    I("v_mov_b32 v101, 0")
    I("v_mov_b32 v102, 0")
    I("v_mov_b32 v103, 0")
    I(f"s_mul_i32 s46, s3, {SMW}")
    I(f"s_add_u32 s46, s46, {SM}")
    I("v_lshlrev_b32 v70, 4, v67")
    I("v_add_u32 v70, s46, v70")
    I("ds_write_b128 v70, v[100:103]")
    I("v_cmp_gt_u32 vcc, 61, v67")
    I("s_and_saveexec_b64 s[50:51], vcc")
    I("ds_write_b128 v70, v[100:103] offset:1024")
    I("s_mov_b64 exec, -1")
    I("s_waitcnt lgkmcnt(0)")
    for c in range(2):
        a = ar(A_AGG + 16 * c, 16)
        I(mfma(a, vr(96, 4), vr(32 + (6 + c) * 4, 4), a))
    I("s_mov_b32 s47, 0")
    L("L_noinit")
    I("s_waitcnt lgkmcnt(0)")
    for i in range(5):
        I(f"v_mov_b32 v{96+i}, v{88+i}")
    I("s_nop 1")
    for sh in (1, 2, 4):
        for i in range(5):
            I(f"v_add_u32_dpp v{96+i}, v{96+i}, v{96+i} row_shr:{sh} row_mask:0xf bank_mask:0xf")
    I("s_nop 1")
    for i in range(4):
        I(f"v_sub_u32 v{88+i}, v{96+i}, v{88+i}")
    I("v_readlane_b32 s60, v100, 7")
    for i in range(4):
        I(f"v_readlane_b32 s{56+i}, v{96+i}, 7")
    for i in range(4):
        I(f"v_readlane_b32 s{52+i}, v{88+i}, s3")
    I(f"s_cmp_le_u32 s60, {TLIM}")
    I("s_cbranch_scc1 L_fits")
    I("s_add_u32 s46, s33, 1")
    I("s_cmp_eq_u32 s46, s34")
    I("s_cbranch_scc1 L_round_end")
    I("s_mov_b32 s34, s46")
    I("s_waitcnt vmcnt(0)")
    I("s_barrier")
    I("s_branch L_round")
    L("L_fits")
    I("s_mov_b32 s61, 0")
    I("s_mov_b32 s62, 0")
    I("s_mov_b32 s63, 0")
    for i in range(4):
        I(f"s_add_u32 s64, s{56+i}, 0x001f001f")
        I("s_and_b32 s64, s64, 0xffe0ffe0")
        I("s_and_b32 s65, s64, 0xffff")
        I("s_lshr_b32 s66, s64, 16")
        I("s_add_u32 s67, s61, s65")
        I(f"s_and_b32 s68, s{56+i}, 0xffff")
        I(f"s_cmp_eq_u32 s3, {2*i}")
        I("s_cselect_b32 s62, s61, s62")
        I("s_cselect_b32 s63, s68, s63")
        I(f"s_lshr_b32 s68, s{56+i}, 16")
        I(f"s_cmp_eq_u32 s3, {2*i+1}")
        I("s_cselect_b32 s62, s67, s62")
        I("s_cselect_b32 s63, s68, s63")
        I("s_lshl_b32 s68, s67, 16")
        I("s_or_b32 s68, s68, s61")
        I(f"s_add_u32 s{52+i}, s{52+i}, s68")
        I(f"s_add_u32 s{52+i}, s{52+i}, 0x10001000")
        I("s_add_u32 s61, s67, s66")
    for i in range(4):
        I(f"v_sub_u32 v{80+i}, v{80+i}, v{72+i}")
    for i in range(4):
        I(f"v_add_u32 v{80+i}, s{52+i}, v{80+i}")
    for i in range(4):
        I(f"v_sub_u32 v{80+i}, v{80+i}, v{24+i}")
    I("v_lshlrev_b32 v69, 4, v66")
    I(f"v_add_u32 v69, {BASET}, v69")
    I("s_mov_b32 exec_lo, 0x55555555")
    I("s_mov_b32 exec_hi, 0x55555555")
    I("ds_write_b128 v69, v[80:83]")
    I("s_mov_b64 exec, -1")
    I("s_add_u32 s64, s63, 31")
    I("s_lshr_b32 s35, s64, 5")
    I("s_lshl_b32 s64, s35, 5")
    I("s_sub_u32 s64, s64, s63")
    I("s_add_u32 s65, s62, s63")
    I("v_add_lshl_u32 v70, v67, s65, 2")
    I("v_mov_b32 v71, 0xffffff00")
    I(f"v_mov_b32 v77, {EMASK}")
    I("v_cmp_gt_u32 vcc, s64, v67")
    I("s_and_saveexec_b64 s[50:51], vcc")
    I(f"ds_write2st64_b32 v70, v71, v77 offset0:{LIST_S//256} offset1:{LIST_M//256}")
    I("s_mov_b64 exec, -1")
    L("L_scat")
    I("s_waitcnt vmcnt(0)")
    stamp(3)
    for r in range(12):
        I(f"v_lshrrev_b32 v{32+r}, 28, v{2*r+1}")
    for r in range(12):
        I(f"v_add_u32 v{32+r}, v{32+r}, v69")
    for r in range(12):
        I(f"ds_read_u16 v{32+r}, v{32+r}")
    o0 = (LIST_S - 16384) // 256; o1 = (LIST_M - 16384) // 256
    for r in range(12):
        i, k = r // 2, r % 2
        I(f"v_cmpx_lt_i32 vcc, {4*i+k}, v68")
        I("s_waitcnt lgkmcnt(11)")
        I("s_cbranch_execz L_scat_done")
        I(f"v_add3_u32 v{32+r}, v{32+r}, v64, {4*i+k}")
        I(f"v_lshlrev_b32 v{32+r}, 2, v{32+r}")
        I(f"ds_write2st64_b32 v{32+r}, v{2*r}, v{2*r+1} offset0:{o0} offset1:{o1}")
    I("v_cmpx_lt_i32 vcc, 24, v68")
    I("s_nop 0")
    I("s_cbranch_execz L_scat_done")
    I("s_mov_b64 exec, -1")
    I("v_add_u32 v64, 24, v64")
    I("v_subrev_u32 v68, 24, v68")
    I("v_add_u32 v65, 192, v65")
    I("s_waitcnt lgkmcnt(0)")
    for i in range(6):
        I(f"buffer_load_dwordx4 v[{4*i}:{4*i+3}], v65, s[24:27], 0 offen offset:{32*i}")
    I("s_branch L_scat")
    L("L_scat_done")
    I("s_mov_b64 exec, -1")
    I("s_lshl_b32 s64, s62, 2")
    I("v_lshrrev_b32 v70, 3, v67")
    I("v_lshlrev_b32 v70, 4, v70")
    I(f"s_add_u32 s65, s64, {LIST_S}")
    I(f"v_add_u32 v{LSA}, s65, v70")
    I("v_and_b32 v70, 7, v67")
    I("v_bfe_u32 v71, v67, 3, 2")
    I("v_lshl_add_u32 v70, v70, 2, v71")
    I("v_lshlrev_b32 v70, 2, v70")
    I(f"s_add_u32 s65, s64, {LIST_M}")
    I(f"v_add_u32 v{LMA}, s65, v70")
    for i in range(32):
        I(f"v_mov_b32 v{G[1]+i}, 0")
    I("s_waitcnt lgkmcnt(0)")
    I("s_barrier")
    stamp(4)
    I("s_cmp_eq_u32 s35, 0")
    I("s_cbranch_scc1 L_round_end")
    I(f"ds_read_b128 {vr(S,4)}, v{LSA}")
    I(f"ds_read_b32 v{AE+1}, v{LMA}")
    I("s_waitcnt lgkmcnt(0)")
    for x in dma_issue(0, "f0"):
        I(x)
    I(f"v_and_b32 v{AE+1}, 31, v{AE+1}")
    I(f"v_mad_u32_u24 v{AE+2}, v{AE+1}, s41, v{XWC}")
    I(f"v_mad_u32_u24 v{SW}, v{AE+1}, s42, v{K1C}")
    I(f"v_mov_b32 v{AE+3}, 1.0")
    I(f"ds_write_b16_d16_hi v{SW}, v{AE+3}")
    I("s_cmp_lt_u32 s35, 2")
    I("s_cbranch_scc1 L_fill1")
    I(f"ds_read_b128 {vr(S,4)}, v{LSA} offset:128")
    I(f"ds_read_b32 v{AE+1}, v{LMA} offset:128")
    I("s_waitcnt lgkmcnt(0)")
    for x in dma_issue(1, "f1"):
        I(x)
    I("s_waitcnt vmcnt(5)")
    I("s_branch L_fill2")
    L("L_fill1")
    I("s_waitcnt vmcnt(0)")
    L("L_fill2")
    for x in a_reads(0):
        I(x)
    for i in range(8):
        I(f"v_mov_b32 v{S+i}, 0")
    I("s_mov_b32 s36, 0")
    stamp(5)
    L("L_loop")
    INLOOP[0] = True
    for par in range(2):
        I("s_waitcnt lgkmcnt(0)")
        interleave(mfma_group(0), valu_group(1), {})
        I("s_nop 1")
        for x in agg_group(1):
            I(x)
        early = [f"ds_read_b128 {vr(S,4)}, v{LSA} offset:256",
                 f"ds_read2_b32 {vr(AE,2)}, v{LMA} offset0:32 offset1:64"]
        mid = ["s_add_u32 s46, s36, 2",
               "s_cmp_ge_u32 s46, s35",
               "s_waitcnt lgkmcnt(0)",
               f"s_cbranch_scc1 L_nodma_{par}"] + dma_issue(par, f"l{par}") + [f"L_nodma_{par}:"]
        late = [f"ds_read_b128 {vr(S,4)}, v{SRD_}",
                f"ds_read_b128 {vr(S+4,4)}, v{SRD_} offset:32",
                f"v_mov_b32 v{AE+3}, 1.0",
                f"v_and_b32 v{AE+1}, 31, v{AE}",
                f"ds_write_b16 v{SW}, v{AE+3}",
                f"v_mad_u32_u24 v{AE+2}, v{AE+1}, s41, v{XWC}",
                f"v_mad_u32_u24 v{SW}, v{AE+1}, s42, v{K1C}",
                f"v_add_u32 v{LSA}, 128, v{LSA}",
                f"v_add_u32 v{LMA}, 128, v{LMA}",
                "s_add_u32 s36, s36, 1",
                "s_cmp_ge_u32 s36, s35",
                f"s_cbranch_scc1 L_last_{par}",
                f"ds_write_b16_d16_hi v{SW}, v{AE+3}",
                "s_add_u32 s46, s36, 1",
                "s_cmp_lt_u32 s46, s35",
                f"s_cbranch_scc1 L_w5_{par}",
                "s_waitcnt vmcnt(0)",
                f"L_w5_{par}:",
                "s_waitcnt vmcnt(5)"] + a_reads(par ^ 1) + [f"L_last_{par}:"]
        va = valu_group(0)
        interleave(mfma_group(1), va, {1: early, 14: mid, 76: late})
        I("s_cmp_ge_u32 s36, s35")
        I(f"s_cbranch_scc1 L_fin_{par}")
        I("s_waitcnt lgkmcnt(11)")
        for x in agg_group(0):
            I(x)
        if par == 1:
            I("s_branch L_loop")
        else:
            I("s_branch L_cont_0")
        L(f"L_fin_{par}")
        I("s_waitcnt lgkmcnt(0)")
        for x in agg_group(0):
            I(x)
        I("s_branch L_tail")
        if par == 0:
            L("L_cont_0")
    L("L_tail")
    INLOOP[0] = False
    for x in valu_group(1):
        I(x)
    I("s_nop 1")
    for x in agg_group(1):
        I(x)
    L("L_round_end")
    I(f"s_cmp_ge_u32 s34, {NC}")
    I("s_cbranch_scc1 L_epi")
    I("s_mov_b32 s33, s34")
    I("s_add_u32 s34, s34, 1")
    I("s_waitcnt vmcnt(0) lgkmcnt(0)")
    I("s_barrier")
    I("s_branch L_round")
    L("L_epi")
    stamp(6)
    srd(28, 8, 9, N * 128)
    I("v_mbcnt_lo_u32_b32 v67, -1, 0")
    I("v_mbcnt_hi_u32_b32 v67, -1, v67")
    I("v_and_b32 v68, 31, v67")
    I("v_lshrrev_b32 v69, 5, v67")
    I("v_lshlrev_b32 v68, 1, v68")
    I("v_lshl_add_u32 v68, v69, 9, v68")
    I("v_add_u32 v68, s37, v68")
    I("v_lshlrev_b32 v70, 4, v67")
    I("v_add_u32 v71, s37, v70")
    I("s_nop 7")
    I("s_nop 7")
    regs = [i for i in range(13)]
    for c in range(2):
        for i in regs:
            I(f"v_accvgpr_read_b32 v{16*c+i}, a{A_AGG+16*c+i}")
    ids = [16 * c + i for c in range(2) for i in regs]
    for r in ids:
        I(f"v_mul_f32 v{32+r}, s43, v{r}")
    for r in ids:
        I(f"v_exp_f32 v{32+r}, v{32+r}")
    for r in ids:
        I(f"v_add_f32 v{32+r}, 1.0, v{32+r}")
    for r in ids:
        I(f"v_rcp_f32 v{32+r}, v{32+r}")
    for r in ids:
        I(f"v_mul_f32 v{r}, v{r}, v{32+r}")
    for i in regs:
        I(f"v_cvt_pk_bf16_f32 v{32+i}, v{i}, v{16+i}")
    for i in regs:
        row = 8 * (i >> 2) + (i & 3)
        I(f"ds_write_b16 v68, v{32+i} offset:{row*128}")
        I(f"ds_write_b16_d16_hi v68, v{32+i} offset:{row*128+64}")
    I("s_waitcnt lgkmcnt(0)")
    for k in range(4):
        I(f"ds_read_b128 {vr(4*k,4)}, v71 offset:{1024*k}")
    I(f"s_lshl_b32 s46, s32, 3")
    I("s_add_u32 s46, s46, s3")
    I(f"s_mul_i32 s46, s46, {WN*128}")
    for k in range(3):
        I(f"s_waitcnt lgkmcnt({3-k})")
        I(f"buffer_store_dwordx4 {vr(4*k,4)}, v70, s[28:31], s46 offen offset:{1024*k}")
    I("s_waitcnt lgkmcnt(0)")
    I("s_mov_b64 exec, 0xff")
    I(f"buffer_store_dwordx4 {vr(12,4)}, v70, s[28:31], s46 offen offset:3072")
    if STAMP:
        I("s_waitcnt vmcnt(0)")
        stamp(7)
        srd(28, 10, 11, 0x100000, 0x1000000)
        I("s_mov_b64 exec, 1")
        I("s_lshl_b32 s46, s2, 3")
        I("s_add_u32 s46, s46, s3")
        I("s_lshl_b32 s46, s46, 6")
        I("v_mov_b32 v0, 0")
        for k in range(8):
            I(f"v_mov_b32 v1, s{70+2*k}")
            I(f"buffer_store_dword v1, v0, s[28:31], s46 offen offset:{4*k}")
        I("v_mov_b32 v1, s35")
        I(f"buffer_store_dword v1, v0, s[28:31], s46 offen offset:32")
        I("s_getreg_b32 s47, hwreg(HW_REG_XCC_ID)")
        I("v_mov_b32 v1, s47")
        I(f"buffer_store_dword v1, v0, s[28:31], s46 offen offset:36")
    L("L_k2_end")
    I("s_endpgm")

def kd(name, vgpr, sgpr, accum):
    emit(f".amdhsa_kernel {name}")
    emit(f"  .amdhsa_next_free_vgpr {vgpr}")
    emit(f"  .amdhsa_next_free_sgpr {sgpr}")
    emit(f"  .amdhsa_accum_offset {accum}")
    emit("  .amdhsa_group_segment_fixed_size 0")
    emit("  .amdhsa_kernarg_size 80")
    emit("  .amdhsa_user_sgpr_count 2")
    emit("  .amdhsa_user_sgpr_kernarg_segment_ptr 1")
    emit("  .amdhsa_system_sgpr_workgroup_id_x 1")
    emit(".end_amdhsa_kernel")

def main():
    emit(HEADER.rstrip("\n"))
    emit(f"; @launch kernel=egc_bin_kernel grid=({NC},1,1) block=(1024,1,1) lds={K1_LDS}")
    emit(f"; @launch kernel=egc_main_kernel grid=(256,1,1) block=(512,1,1) lds={K2_LDS}")
    emit('.amdgcn_target "amdgcn-amd-amdhsa--gfx950"')
    emit(".text")
    gen_k1()
    gen_k2()
    emit('.section .rodata,"a"')
    emit(".p2align 6")
    kd("egc_bin_kernel", 56, 56, 56)
    emit(".p2align 6")
    kd("egc_main_kernel", 256, 96, 120)
    path = sys.argv[1] if len(sys.argv) > 1 else "standalone__edge_featured_mpnn_egc__graph.s"
    open(path, "w").write("\n".join(out) + "\n")

main()
```

```python
import sys, os

N = 50000; E = 800000
WN = 25; NWIN = 2000; NB = 250; CH = 3200; NC = 250
WS_WF = 0; WS_TAB = 0x10000; TABROW = 8192; WS_REC = 0x400000; RECROW = CH * 8
PRESCALE = int(os.environ.get('PRESCALE', '0')) if 'os' in globals() else 0
M25 = 171798692
NEGLOG2E = 0xBFB8AA3B

import os
STAMP = int(os.environ.get("STAMP", "0"))
def stamp(k):
    if STAMP:
        I(f"s_memtime s[{70+2*k}:{71+2*k}]")
        I("s_waitcnt lgkmcnt(0)")
out = []
def emit(s=""):
    out.append(s)
DROP = os.environ.get("DROP", "").split(",")
INLOOP = [False]
def I(s):
    if INLOOP[0]:
        op = s.split()[0]
        if "mfma" in DROP and op.startswith("v_mfma"): return
        if "trans" in DROP and op in ("v_exp_f32", "v_rcp_f32"): return
        if "valu" in DROP and op in ("v_exp_f32", "v_rcp_f32", "v_mul_f32", "v_add_f32", "v_cvt_pk_bf16_f32"): return
        if "dma" in DROP and op.startswith("buffer_load"): return
        if "lds" in DROP and op.startswith("ds_read_b128"): return
    out.append("    " + s)
def L(s):
    out.append(s + ":")

HEADER = """; Kernarg layout for this problem (80 bytes, ptrs only, base s[0:1]):
"""

def srd(d, lo, hi, size, add=0):
    if add:
        I(f"s_add_u32 s{d}, s{lo}, {add}")
        I(f"s_addc_u32 s{d+1}, s{hi}, 0")
    else:
        I(f"s_mov_b32 s{d}, s{lo}")
        I(f"s_mov_b32 s{d+1}, s{hi}")
    I(f"s_mov_b32 s{d+2}, {size}")
    I(f"s_mov_b32 s{d+3}, 0x00020000")

def wave_scan(regs):
    steps = ["row_shr:1 row_mask:0xf bank_mask:0xf", "row_shr:2 row_mask:0xf bank_mask:0xf",
             "row_shr:4 row_mask:0xf bank_mask:0xf", "row_shr:8 row_mask:0xf bank_mask:0xf",
             "row_bcast:15 row_mask:0xa bank_mask:0xf", "row_bcast:31 row_mask:0xc bank_mask:0xf"]
    I("s_nop 1")
    for st in steps:
        for r in regs:
            I(f"v_add_u32_dpp v{r}, v{r}, v{r} {st}")
        if len(regs) < 3:
            I(f"s_nop {2 - len(regs)}")

K1_HIST = 0
K1_WTOT = 8192
K1_STG = 8448
K1_LDS = K1_STG + RECROW

def gen_k1():
    emit(".globl egc_bin_kernel")
    emit(".p2align 8")
    emit(".type egc_bin_kernel,@function")
    L("egc_bin_kernel")
    I(f"s_cmp_ge_u32 s2, {NC}")
    I("s_cbranch_scc1 L_k1_end")
    I("s_load_dwordx4 s[4:7], s[0:1], 16")
    I("s_load_dwordx4 s[8:11], s[0:1], 32")
    I("s_load_dwordx2 s[12:13], s[0:1], 48")
    I("s_load_dwordx2 s[14:15], s[0:1], 72")
    I("v_lshlrev_b32 v1, 3, v0")
    I("v_mov_b32 v2, 0")
    I("v_mov_b32 v3, 0")
    I(f"ds_write_b64 v1, v[2:3] offset:{K1_HIST}")
    I("v_lshlrev_b32 v4, 4, v0")
    I("v_lshrrev_b32 v5, 6, v0")
    I(f"s_mul_i32 s32, s2, {CH*4}")
    I("v_readfirstlane_b32 s3, v5")
    I(f"s_mov_b32 s33, {M25}")
    I("s_mov_b32 s36, -25")
    I(f"s_mul_i32 s37, s2, {CH*32}")
    I("s_waitcnt lgkmcnt(0)")
    srd(16, 4, 5, E * 4)
    srd(20, 6, 7, E * 4)
    srd(24, 14, 15, 0x1000000)
    I(f"v_cmp_gt_u32 vcc, {CH//4}, v0")
    I("s_and_saveexec_b64 s[34:35], vcc")
    I("s_cbranch_execz L_k1_noload")
    I("buffer_load_dwordx4 v[8:11], v4, s[20:23], s32 offen")
    I("buffer_load_dwordx4 v[12:15], v4, s[16:19], s32 offen")
    L("L_k1_noload")
    I("s_mov_b64 exec, s[34:35]")
    I("s_mov_b32 s40, 0")
    I("s_cmp_lg_u32 s3, 15")
    I("s_cbranch_scc1 L_k1_nowf")
    I("s_cmp_ge_u32 s2, 34")
    I("s_cbranch_scc1 L_k1_nowf")
    I("s_mov_b32 s40, 1")
    I("s_mov_b32 s28, s12")
    I("s_mov_b32 s29, s13")
    I(f"s_mov_b32 s30, {144*128}")
    I("s_mov_b32 s31, 0x00020000")
    I("s_mov_b32 s41, s2")
    I("s_cmp_lt_u32 s2, 18")
    I("s_cbranch_scc1 L_k1_wsel")
    I("s_mov_b32 s28, s10")
    I("s_mov_b32 s29, s11")
    I(f"s_mov_b32 s30, {64*128}")
    I("s_sub_u32 s41, s2, 18")
    I("s_cmp_lt_u32 s2, 26")
    I("s_cbranch_scc1 L_k1_wsel")
    I("s_mov_b32 s28, s8")
    I("s_mov_b32 s29, s9")
    I("s_sub_u32 s41, s2, 26")
    L("L_k1_wsel")
    I("s_lshr_b32 s42, s41, 1")
    I("s_lshl_b32 s42, s42, 11")
    I("s_and_b32 s43, s41, 1")
    I("s_lshl_b32 s43, s43, 6")
    I("s_add_u32 s42, s42, s43")
    I("v_and_b32 v40, 31, v0")
    I("v_lshlrev_b32 v40, 1, v40")
    I("v_and_b32 v41, 32, v0")
    I("v_lshl_add_u32 v40, v41, 5, v40")
    for j in range(8):
        I(f"buffer_load_ushort v{44+j}, v40, s[28:31], s42 offen offset:{128*j}")
    L("L_k1_nowf")
    I("s_barrier")
    I("s_and_saveexec_b64 s[34:35], vcc")
    I("s_cbranch_execz L_k1_nohist")
    I("v_mov_b32 v6, 1")
    I("v_lshl_add_u32 v7, v0, 7, s37")
    I("s_waitcnt vmcnt(1)")
    for i in range(4):
        I(f"v_mul_hi_u32 v{16+i}, v{8+i}, s33")
    for i in range(4):
        I(f"v_lshlrev_b32 v{20+i}, 2, v{16+i}")
    for i in range(4):
        I(f"ds_add_rtn_u32 v{24+i}, v{20+i}, v6 offset:{K1_HIST}")
    for i in range(4):
        I(f"v_mad_i32_i24 v{28+i}, v{16+i}, s36, v{8+i}")
    for i in range(4):
        I(f"v_lshlrev_b32 v{16+i}, 29, v{16+i}")
    for i in range(4):
        I(f"v_or3_b32 v{33+2*i}, v{16+i}, v7, v{28+i}")
    for i in range(1, 4):
        I(f"v_add_u32 v{33+2*i}, {32*i}, v{33+2*i}")
    I("s_waitcnt vmcnt(0)")
    for i in range(4):
        I(f"v_lshlrev_b32 v{32+2*i}, 7, v{12+i}")
    L("L_k1_nohist")
    I("s_mov_b64 exec, s[34:35]")
    I("s_waitcnt lgkmcnt(0)")
    I("s_barrier")
    I(f"ds_read_b64 v[2:3], v1 offset:{K1_HIST}")
    I("s_waitcnt lgkmcnt(0)")
    I("v_add_u32 v8, v2, v3")
    I("v_mov_b32 v9, v8")
    wave_scan([9])
    I("s_lshl_b32 s44, s3, 2")
    I("v_mov_b32 v10, s44")
    I("s_mov_b32 exec_lo, 0")
    I("s_mov_b32 exec_hi, 0x80000000")
    I(f"ds_write_b32 v10, v9 offset:{K1_WTOT}")
    I("s_mov_b64 exec, -1")
    I("v_and_b32 v10, 15, v0")
    I("v_lshlrev_b32 v10, 2, v10")
    I("s_waitcnt lgkmcnt(0)")
    I("s_barrier")
    I(f"ds_read_b32 v11, v10 offset:{K1_WTOT}")
    I("s_waitcnt lgkmcnt(0)")
    I("v_mov_b32 v12, v11")
    I("s_nop 1")
    for sh in (1, 2, 4, 8):
        I(f"v_add_u32_dpp v12, v12, v12 row_shr:{sh} row_mask:0xf bank_mask:0xf")
        I("s_nop 1")
    I("v_sub_u32 v12, v12, v11")
    I("s_nop 0")
    I("v_readlane_b32 s45, v12, s3")
    I("v_sub_u32 v9, v9, v8")
    I("s_nop 1")
    I("v_add_u32 v9, s45, v9")
    I("v_add_u32 v10, v9, v2")
    I("v_mov_b32 v12, v9")
    I("v_mov_b32 v13, v10")
    I(f"ds_write_b64 v1, v[12:13] offset:{K1_HIST}")
    I("s_waitcnt lgkmcnt(0)")
    I("s_barrier")
    I(f"s_movk_i32 s50, {NB}")
    I("v_cmp_gt_u32 s[48:49], s50, v0")
    I("s_and_saveexec_b64 s[34:35], s[48:49]")
    I("s_cbranch_execz L_k1_notab")
    I("v_lshlrev_b32 v14, 5, v0")
    I(f"ds_read_b128 v[8:11], v14 offset:{K1_HIST}")
    I(f"ds_read_b128 v[16:19], v14 offset:{K1_HIST+16}")
    I(f"ds_read_b32 v12, v14 offset:{K1_HIST+32}")
    I("v_lshlrev_b32 v14, 13, v0")
    I("s_lshl_b32 s46, s2, 5")
    I(f"s_add_u32 s46, s46, {WS_TAB}")
    I("s_waitcnt lgkmcnt(0)")
    I("v_lshl_or_b32 v8, v9, 16, v8")
    I("v_lshl_or_b32 v9, v11, 16, v10")
    I("v_lshl_or_b32 v10, v17, 16, v16")
    I("v_lshl_or_b32 v11, v19, 16, v18")
    I("buffer_store_dwordx4 v[8:11], v14, s[24:27], s46 offen")
    I("buffer_store_dword v12, v14, s[24:27], s46 offen offset:16")
    L("L_k1_notab")
    I("s_mov_b64 exec, s[34:35]")
    I("s_and_saveexec_b64 s[34:35], vcc")
    I("s_cbranch_execz L_k1_noscat")
    for i in range(4):
        I(f"ds_read_b32 v{28+i}, v{20+i} offset:{K1_HIST}")
    for i in range(4):
        I(f"s_waitcnt lgkmcnt({3-i})")
        I(f"v_add_lshl_u32 v{28+i}, v{28+i}, v{24+i}, 3")
    for i in range(4):
        I(f"ds_write_b64 v{28+i}, v[{32+2*i}:{33+2*i}] offset:{K1_STG}")
    L("L_k1_noscat")
    I("s_mov_b64 exec, s[34:35]")
    I("s_waitcnt lgkmcnt(0)")
    I("s_barrier")
    I(f"s_mul_i32 s46, s2, {RECROW}")
    I(f"s_add_u32 s46, s46, {WS_REC}")
    I(f"ds_read_b128 v[8:11], v4 offset:{K1_STG}")
    I(f"v_cmp_gt_u32 vcc, {RECROW//16 - 1024}, v0")
    I("s_and_saveexec_b64 s[34:35], vcc")
    I("s_cbranch_execz L_k1_no2")
    I(f"ds_read_b128 v[12:15], v4 offset:{K1_STG + 16384}")
    I("s_add_u32 s47, s46, 16384")
    I("s_waitcnt lgkmcnt(0)")
    I("buffer_store_dwordx4 v[12:15], v4, s[24:27], s47 offen")
    L("L_k1_no2")
    I("s_mov_b64 exec, s[34:35]")
    I("s_waitcnt lgkmcnt(0)")
    I("buffer_store_dwordx4 v[8:11], v4, s[24:27], s46 offen")
    I("s_cmp_eq_u32 s40, 0")
    I("s_cbranch_scc1 L_k1_end")
    I("s_waitcnt vmcnt(0)")
    if PRESCALE:
        I("s_sub_u32 s46, s2, 8")
        I("s_cmp_lt_u32 s46, 10")
        I(f"s_cselect_b32 s47, {NEGLOG2E}, 1.0")
        for j in range(8):
            I(f"v_lshlrev_b32 v{44+j}, 16, v{44+j}")
        for j in range(8):
            I(f"v_mul_f32 v{44+j}, s47, v{44+j}")
        for j in range(4):
            I(f"v_cvt_pk_bf16_f32 v{52+j}, v{44+2*j}, v{45+2*j}")
    else:
        for j in range(4):
            I(f"v_lshl_or_b32 v{52+j}, v{45+2*j}, 16, v{44+2*j}")
    I("v_and_b32 v40, 63, v0")
    I("v_lshlrev_b32 v40, 4, v40")
    I("s_lshl_b32 s46, s2, 10")
    I("buffer_store_dwordx4 v[52:55], v40, s[24:27], s46 offen")
    L("L_k1_end")
    I("s_endpgm")

WSTG = 0
LCAP = 3840
TLIM = 3584
LIST_S = 34816
LIST_M = LIST_S + LCAP * 4
SM = LIST_M + LCAP * 4
SMW = 2000
OH = SM + 16576
BASET = OH + 2560
WTOT = BASET + 4096
STG = WTOT + 256
STGW = 8192
K2_LDS = STG + 8 * STGW
assert STG % 128 == 0 or True
EMASK = 0x01FFFFE0

G = [0, 32]; H = [16, 48]
AX = 64; ST = 80; S = 88; EB = [96, 100]; T = 104
VAX = 112; PC = 116; H16 = 117; LSA = 118; LMA = 119; K1C = 120; SRA = 121; OHC = 122; SW = 123; ONE = 124
A_WB = 0; A_WV = 40; A_XA = 72; A_AGG = 88

def wb(s, c): return A_WB + (2 * s + c) * 4
def wv(s, c): return A_WV + (2 * s + c) * 4
def xa(s, c): return A_XA + (2 * s + c) * 4
def vr(b, n): return f"v[{b}:{b+n-1}]"
def ar(b, n): return f"a[{b}:{b+n-1}]"

def mfma(d, a, b, c):
    return f"v_mfma_f32_32x32x16_bf16 {d}, {a}, {b}, {c}"

def mfma_group(c, par):
    m = []
    g = vr(G[c], 16); h = vr(H[c], 16)
    m.append(mfma(g, vr(EB[par], 4), ar(wb(4, c), 4), "0"))
    for s in range(2):
        m.append(mfma(g, vr(ST + 4 * s, 4), ar(xa(s, c), 4), g))
    for s in range(4):
        m.append(mfma(g, vr(AX + 4 * s, 4), ar(wb(s, c), 4), g))
    for s in range(4):
        m.append(mfma(h, vr(AX + 4 * s, 4), ar(wv(s, c), 4), "0" if s == 0 else h))
    return m

def valu_group(c):
    g = G[c]; h = H[c]
    stages = [
        lambda i: f"v_mul_f32 v{g+i}, s43, v{g+i}",
        lambda i: f"v_exp_f32 v{g+i}, v{g+i}",
        lambda i: f"v_add_f32 v{g+i}, 1.0, v{g+i}",
        lambda i: f"v_rcp_f32 v{g+i}, v{g+i}",
        lambda i: f"v_mul_f32 v{g+i}, v{g+i}, v{h+i}",
    ]
    if PRESCALE:
        stages = stages[1:]
    v = []
    D = 2
    nst = len(stages)
    for step in range(16 + D * nst + 2):
        for k in range(nst):
            i = step - D * k
            if 0 <= i < 16:
                v.append(stages[k](i))
        i = step - D * nst
        if 0 <= i < 16 and i % 2 == 1:
            p = i // 2
            v.append(f"v_cvt_pk_bf16_f32 v{g+p}, v{g+i-1}, v{g+i}")
    return v

def agg_group(c):
    a = ar(A_AGG + 16 * c, 16)
    return [mfma(a, vr(S, 4), vr(G[c], 4), a), mfma(a, vr(S + 4, 4), vr(G[c] + 4, 4), a)]

def put(lst):
    for x in lst:
        if x.endswith(":"):
            emit(x)
        else:
            I(x)

def interleave(mf, va, per, inserts):
    mi = 0
    for i, v in enumerate(va):
        if i % per == 0 and mi < len(mf):
            I(mf[mi])
            mi += 1
        if i in inserts:
            put(inserts[i])
        I(v)
    assert mi == len(mf)

NOMEM = int(os.environ.get("NOMEM", "0"))
def x_dma(par):
    r = []
    if NOMEM:
        for k in range(4):
            r.append(f"v_and_b32 v{T+k}, 0x3f80, v{T+k}")
    r.append(f"v_add_u32 v{T+0}, v{PC}, v{T+0}")
    r.append(f"v_xad_u32 v{T+1}, v{PC}, 64, v{T+1}")
    r.append(f"v_add_u32 v{T+2}, v{PC}, v{T+2}")
    r.append(f"v_xad_u32 v{T+3}, v{PC}, 64, v{T+3}")
    for k in range(4):
        r.append(f"s_add_u32 m0, s37, {par*4096 + k*1024}")
        r.append("s_nop 0")
        r.append(f"buffer_load_dwordx4 v{T+k}, s[12:15], 0 offen lds")
    return r

def e_load(par, meta):
    r = []
    if NOMEM:
        r.append(f"v_and_b32 v{meta}, 0x3fff, v{meta}")
    r.append(f"v_and_or_b32 v{T+6}, v{meta}, s40, v{H16}")
    r.append(f"buffer_load_dwordx4 {vr(EB[par],4)}, v{T+6}, s[16:19], 0 offen")
    return r

def a_reads(par):
    r = []
    for s in range(2):
        r.append(f"ds_read_b128 {vr(ST+4*s,4)}, v{T+7} offset:{16*s}")
    for s in range(4):
        r.append(f"ds_read_b128 {vr(AX+4*s,4)}, v{VAX+s} offset:{par*4096}")
    return r

PRIO = int(os.environ.get("PRIO", "1"))
def prio_code(par):
    r = ["s_sub_u32 s64, s35, s36"]
    for lim, p in ((10, 2), (7, 1), (4, 0)):
        r += [f"s_cmp_eq_u32 s64, {lim - 1}",
              f"s_cbranch_scc0 L_pr_{par}_{p}",
              f"s_setprio {p}",
              f"L_pr_{par}_{p}:"]
    return r

def gen_k2():
    emit(".globl egc_main_kernel")
    emit(".p2align 8")
    emit(".type egc_main_kernel,@function")
    L("egc_main_kernel")
    I("s_cmp_ge_u32 s2, 256")
    I("s_cbranch_scc1 L_k2_end")
    I("s_load_dwordx2 s[10:11], s[0:1], 72")
    I("s_load_dwordx4 s[4:7], s[0:1], 0")
    I("s_load_dwordx2 s[8:9], s[0:1], 56")
    I("s_and_b32 s38, s2, 7")
    I("s_lshr_b32 s39, s2, 3")
    I(f"s_mul_i32 s44, s38, {NB}")
    I(f"s_add_u32 s45, s44, {NB}")
    I("s_lshr_b32 s44, s44, 3")
    I("s_lshr_b32 s45, s45, 3")
    I("s_add_u32 s32, s44, s39")
    I("s_cmp_ge_u32 s32, s45")
    I("s_cbranch_scc1 L_k2_end")
    stamp(0)
    I("v_lshrrev_b32 v1, 6, v0")
    I("v_and_b32 v67, 63, v0")
    I("v_readfirstlane_b32 s3, v1")
    I("s_mov_b32 s33, 0")
    I(f"s_movk_i32 s34, {NC}")
    I("s_mov_b32 s47, 1")
    I("s_lshl_b32 s48, s32, 13")
    I(f"s_add_u32 s48, s48, {WS_TAB}")
    I("s_waitcnt lgkmcnt(0)")
    I("s_add_u32 s20, s10, s48")
    I("s_addc_u32 s21, s11, 0")
    I(f"s_mov_b32 s22, {NC*32}")
    I("s_mov_b32 s23, 0x00020000")
    L("L_round")
    I("s_lshl_b32 s46, s3, 5")
    I("v_lshrrev_b32 v66, 1, v67")
    I("v_add_u32 v66, s46, v66")
    I("v_lshlrev_b32 v65, 5, v66")
    I("buffer_load_dwordx4 v[24:27], v65, s[20:23], 0 offen")
    I("buffer_load_dword v28, v65, s[20:23], 0 offen offset:16")
    I("s_cmp_eq_u32 s47, 0")
    I("s_cbranch_scc1 L_noconst")
    srd(12, 4, 5, N * 128)
    srd(16, 6, 7, E * 32)
    srd(24, 10, 11, NC * RECROW, WS_REC)
    srd(28, 10, 11, 34 * 1024)
    I(f"s_mov_b32 s40, {EMASK}")
    I("s_movk_i32 s42, 80")
    I(f"s_mov_b32 s43, {NEGLOG2E}")
    I(f"s_lshl_b32 s37, s3, 13")
    I(f"s_add_u32 s37, s37, {STG}")
    I("v_and_b32 v3, 31, v67")
    I("v_lshrrev_b32 v4, 5, v67")
    I("v_bfe_u32 v5, v3, 1, 3")
    I("v_xor_b32 v5, v5, v4")
    I("v_lshlrev_b32 v5, 4, v5")
    I("v_lshl_add_u32 v5, v3, 7, v5")
    I(f"v_add_u32 v{VAX}, s37, v5")
    for s in range(1, 4):
        I(f"v_xor_b32 v6, {32*s}, v5")
        I(f"v_add_u32 v{VAX+s}, s37, v6")
    I("v_lshrrev_b32 v5, 4, v67")
    I("v_and_b32 v6, 7, v67")
    I("v_xor_b32 v5, v5, v6")
    I(f"v_lshlrev_b32 v{PC}, 4, v5")
    I(f"v_lshlrev_b32 v{H16}, 4, v4")
    I(f"s_mul_i32 s46, s3, {SMW}")
    I(f"s_add_u32 s46, s46, {SM}")
    I("v_lshrrev_b32 v5, 4, v3")
    I("v_lshlrev_b32 v5, 5, v5")
    I("v_bfe_u32 v6, v3, 2, 1")
    I("v_lshl_add_u32 v5, v6, 4, v5")
    I("v_bfe_u32 v6, v3, 3, 1")
    I("v_lshl_add_u32 v5, v6, 3, v5")
    I("v_and_b32 v6, 3, v3")
    I("v_lshl_add_u32 v5, v6, 1, v5")
    I(f"v_add_u32 v{K1C}, s46, v5")
    I(f"v_add_u32 v6, s46, v{H16}")
    I(f"v_mad_u32_u24 v{SRA}, v3, s42, v6")
    I("v_lshlrev_b32 v6, 5, v4")
    I(f"v_add_u32 v{OHC}, {OH}, v6")
    I(f"v_mov_b32 v{ONE}, 1.0")
    for i in range(4):
        I(f"v_mov_b32 v{8+i}, 0")
    I("v_lshlrev_b32 v70, 4, v67")
    I("v_add_u32 v7, s46, v70")
    I("ds_write_b128 v7, v[8:11]")
    I("v_cmp_gt_u32 vcc, 61, v67")
    I("s_and_saveexec_b64 s[50:51], vcc")
    I("ds_write_b128 v7, v[8:11] offset:1024")
    I("s_mov_b64 exec, -1")
    I("s_cmp_lg_u32 s3, 0")
    I("s_cbranch_scc1 L_noconst")
    I(f"v_add_u32 v7, {OH}, v70")
    I("ds_write_b128 v7, v[8:11]")
    I("ds_write_b128 v7, v[8:11] offset:1024")
    I("s_mov_b32 exec_hi, 0")
    I("ds_write_b128 v7, v[8:11] offset:2048")
    I("v_bfe_u32 v6, v3, 2, 1")
    I("v_lshlrev_b32 v6, 5, v6")
    I("v_lshrrev_b32 v7, 4, v3")
    I("v_lshl_add_u32 v6, v7, 4, v6")
    I("v_and_b32 v7, 15, v5")
    I("v_add_u32 v6, v6, v7")
    I("v_mad_u32_u24 v6, v3, s42, v6")
    I(f"v_add_u32 v6, {OH}, v6")
    I(f"ds_write_b16_d16_hi v6, v{ONE}")
    I("s_mov_b64 exec, -1")
    L("L_noconst")
    I("s_waitcnt vmcnt(0)")
    stamp(1)
    I("v_and_b32 v29, 0xffff, v24")
    I("v_subrev_u32 v30, s33, v66")
    I("s_sub_u32 s46, s34, s33")
    I("v_cmp_gt_u32 s[52:53], s46, v30")
    I("v_and_b32 v31, 1, v67")
    I("v_lshl_add_u32 v64, v31, 1, v29")
    I("v_cndmask_b32 v30, v29, v28, s[52:53]")
    I(f"s_movk_i32 s46, {RECROW}")
    I("v_mul_u32_u24 v65, s46, v66")
    I("v_lshl_add_u32 v65, v64, 3, v65")
    I("v_sub_u32 v68, v30, v64")
    def rec_loads(tag):
        for i in range(6):
            I(f"v_cmpx_lt_i32 vcc, {4*i}, v68")
            I("s_nop 0")
            I(f"s_cbranch_execz L_rl_{tag}")
            I(f"buffer_load_dwordx4 v[{4*i}:{4*i+3}], v65, s[24:27], 0 offen offset:{32*i}")
        L(f"L_rl_{tag}")
        I("s_mov_b64 exec, -1")
    rec_loads("a")
    I("v_cmp_eq_u32 vcc, 0, v31")
    I("s_and_b64 vcc, vcc, s[52:53]")
    I("v_alignbit_b32 v72, v25, v24, 16")
    I("v_alignbit_b32 v73, v26, v25, 16")
    I("v_alignbit_b32 v74, v27, v26, 16")
    I("v_alignbit_b32 v75, v28, v27, 16")
    for i in range(4):
        I(f"v_sub_u32 v{72+i}, v{72+i}, v{24+i}")
    I("v_sub_u32 v76, v28, v29")
    for i in range(5):
        I(f"v_cndmask_b32 v{72+i}, 0, v{72+i}, vcc")
    for i in range(5):
        I(f"v_mov_b32 v{80+i}, v{72+i}")
    wave_scan([80, 81, 82, 83, 84])
    I("s_lshl_b32 s46, s3, 5")
    I(f"s_add_u32 s46, s46, {WTOT}")
    I("v_mov_b32 v69, s46")
    I("s_mov_b32 exec_lo, 0")
    I("s_mov_b32 exec_hi, 0x80000000")
    I("ds_write_b128 v69, v[80:83]")
    I("ds_write_b32 v69, v84 offset:16")
    I("s_mov_b64 exec, -1")
    I("v_and_b32 v69, 7, v67")
    I("v_lshlrev_b32 v69, 5, v69")
    I(f"v_add_u32 v69, {WTOT}, v69")
    I("s_waitcnt lgkmcnt(0)")
    I("s_barrier")
    stamp(2)
    I("ds_read_b128 v[88:91], v69")
    I("ds_read_b32 v92, v69 offset:16")
    I("s_waitcnt lgkmcnt(0)")
    for i in range(5):
        I(f"v_mov_b32 v{32+i}, v{88+i}")
    I("s_nop 1")
    for sh in (1, 2, 4):
        for i in range(5):
            I(f"v_add_u32_dpp v{32+i}, v{32+i}, v{32+i} row_shr:{sh} row_mask:0xf bank_mask:0xf")
    I("s_nop 1")
    for i in range(4):
        I(f"v_sub_u32 v{88+i}, v{32+i}, v{88+i}")
    I("v_readlane_b32 s60, v36, 7")
    for i in range(4):
        I(f"v_readlane_b32 s{56+i}, v{32+i}, 7")
    for i in range(4):
        I(f"v_readlane_b32 s{52+i}, v{88+i}, s3")
    I(f"s_cmp_le_u32 s60, {TLIM}")
    I("s_cbranch_scc1 L_fits")
    I("s_sub_u32 s46, s34, s33")
    I("s_cmp_eq_u32 s46, 1")
    I("s_cselect_b32 s34, s34, s33")
    for i in range(4):
        I(f"s_mov_b32 s{56+i}, 0")
    I("v_mov_b32 v68, 0")
    L("L_fits")
    I("s_mov_b32 s61, 0")
    I("s_mov_b32 s62, 0")
    I("s_mov_b32 s63, 0")
    for i in range(4):
        I(f"s_add_u32 s64, s{56+i}, 0x001f001f")
        I("s_and_b32 s64, s64, 0xffe0ffe0")
        I("s_and_b32 s65, s64, 0xffff")
        I("s_lshr_b32 s66, s64, 16")
        I("s_add_u32 s67, s61, s65")
        I(f"s_and_b32 s68, s{56+i}, 0xffff")
        I(f"s_cmp_eq_u32 s3, {2*i}")
        I("s_cselect_b32 s62, s61, s62")
        I("s_cselect_b32 s63, s68, s63")
        I(f"s_lshr_b32 s68, s{56+i}, 16")
        I(f"s_cmp_eq_u32 s3, {2*i+1}")
        I("s_cselect_b32 s62, s67, s62")
        I("s_cselect_b32 s63, s68, s63")
        I("s_lshl_b32 s68, s67, 16")
        I("s_or_b32 s68, s68, s61")
        I(f"s_add_u32 s{52+i}, s{52+i}, s68")
        I(f"s_add_u32 s{52+i}, s{52+i}, 0x10001000")
        I("s_add_u32 s61, s67, s66")
    for i in range(4):
        I(f"v_sub_u32 v{80+i}, v{80+i}, v{72+i}")
    for i in range(4):
        I(f"v_add_u32 v{80+i}, s{52+i}, v{80+i}")
    for i in range(4):
        I(f"v_sub_u32 v{80+i}, v{80+i}, v{24+i}")
    I("v_lshlrev_b32 v69, 4, v66")
    I(f"v_add_u32 v69, {BASET}, v69")
    I("s_mov_b32 exec_lo, 0x55555555")
    I("s_mov_b32 exec_hi, 0x55555555")
    I("ds_write_b128 v69, v[80:83]")
    I("s_mov_b64 exec, -1")
    I("s_add_u32 s64, s63, 31")
    I("s_lshr_b32 s35, s64, 5")
    I("s_lshl_b32 s64, s35, 5")
    I("s_sub_u32 s64, s64, s63")
    I("s_add_u32 s65, s62, s63")
    I("v_add_lshl_u32 v72, v67, s65, 2")
    I("v_mov_b32 v73, 0xffffff00")
    I(f"v_mov_b32 v74, {EMASK}")
    I("v_cmp_gt_u32 vcc, s64, v67")
    I("s_and_saveexec_b64 s[50:51], vcc")
    I(f"ds_write2st64_b32 v72, v73, v74 offset0:{LIST_S//256} offset1:{LIST_M//256}")
    I("s_mov_b64 exec, -1")
    I("s_lshl_b32 s64, s62, 2")
    I("v_lshrrev_b32 v72, 3, v67")
    I("v_lshlrev_b32 v72, 4, v72")
    I(f"s_add_u32 s65, s64, {LIST_S}")
    I(f"v_add_u32 v{LSA}, s65, v72")
    I("v_and_b32 v72, 7, v67")
    I("v_bfe_u32 v73, v67, 3, 2")
    I("v_lshl_add_u32 v72, v72, 2, v73")
    I("v_lshlrev_b32 v72, 2, v72")
    I(f"s_add_u32 s65, s64, {LIST_M}")
    I(f"v_add_u32 v{LMA}, s65, v72")
    L("L_scat")
    I("s_waitcnt vmcnt(0)")
    stamp(3)
    for r in range(12):
        I(f"v_lshrrev_b32 v{32+r}, 28, v{2*r+1}")
    for r in range(12):
        I(f"v_add_u32 v{32+r}, v{32+r}, v69")
    for r in range(12):
        I(f"ds_read_u16 v{32+r}, v{32+r}")
    o0 = (LIST_S - 16384) // 256; o1 = (LIST_M - 16384) // 256
    for r in range(12):
        i, k = r // 2, r % 2
        I(f"v_cmpx_lt_i32 vcc, {4*i+k}, v68")
        I("s_waitcnt lgkmcnt(11)")
        I("s_cbranch_execz L_scat_done")
        I(f"v_add3_u32 v{32+r}, v{32+r}, v64, {4*i+k}")
        I(f"v_lshlrev_b32 v{32+r}, 2, v{32+r}")
        I(f"ds_write2st64_b32 v{32+r}, v{2*r}, v{2*r+1} offset0:{o0} offset1:{o1}")
    I("v_cmpx_lt_i32 vcc, 24, v68")
    I("s_nop 0")
    I("s_cbranch_execz L_scat_done")
    I("s_mov_b64 exec, -1")
    I("v_add_u32 v64, 24, v64")
    I("v_subrev_u32 v68, 24, v68")
    I("v_add_u32 v65, 192, v65")
    I("s_waitcnt lgkmcnt(0)")
    rec_loads("b")
    I("s_branch L_scat")
    L("L_scat_done")
    I("s_mov_b64 exec, -1")
    I("s_waitcnt lgkmcnt(0)")
    I("s_barrier")
    stamp(4)
    I(f"ds_read_b128 {vr(T,4)}, v{LSA}")
    I(f"ds_read2_b32 {vr(T+4,2)}, v{LMA} offset0:0 offset1:32")
    I("s_cmp_eq_u32 s35, 0")
    I("s_cbranch_scc1 L_fill_a")
    I("s_waitcnt lgkmcnt(0)")
    put(x_dma(0))
    put(e_load(0, T + 4))
    L("L_fill_a")
    I(f"ds_read_b128 {vr(T,4)}, v{LSA} offset:128")
    I("s_cmp_eq_u32 s47, 0")
    I("s_cbranch_scc1 L_fill_b")
    for k in range(5):
        I(f"s_add_u32 s46, s3, {8*k}")
        if k == 4:
            I("s_min_u32 s46, s46, 33")
        I("s_lshl_b32 s46, s46, 10")
        I(f"s_add_u32 m0, s46, {WSTG}")
        I("s_nop 0")
        I("buffer_load_dwordx4 v70, s[28:31], s46 offen lds")
    for i in range(16):
        if 64 + i not in (67, 70, 71):
            I(f"v_mov_b32 v{64+i}, 0")
    I("v_and_b32 v80, 31, v67")
    I(f"v_lshl_add_u32 v81, v80, 7, v{H16}")
    I("v_mov_b32 v82, v70")
    I("v_mov_b32 v67, 0")
    I("v_mov_b32 v70, 0")
    I("v_mov_b32 v71, 0")
    I("s_lshl_b32 s46, s32, 3")
    I("s_add_u32 s46, s46, s3")
    I(f"s_mul_i32 s49, s46, {WN*128}")
    I("s_mov_b32 exec_lo, 0x1ffffff")
    I("s_mov_b32 exec_hi, 0x1ffffff")
    for s in range(4):
        I(f"buffer_load_dwordx4 {vr(64+4*s,4)}, v81, s[12:15], s49 offen offset:{32*s}")
    I("s_mov_b64 exec, -1")
    L("L_fill_b")
    I("s_cmp_lt_u32 s35, 2")
    I("s_cbranch_scc1 L_fill_c")
    I("s_waitcnt lgkmcnt(0)")
    put(x_dma(1))
    put(e_load(1, T + 5))
    I("s_waitcnt vmcnt(5)")
    I("s_branch L_fill_d")
    L("L_fill_c")
    I("s_waitcnt vmcnt(0)")
    L("L_fill_d")
    I("s_cmp_eq_u32 s47, 0")
    I("s_cbranch_scc1 L_noinit")
    I("s_barrier")
    for f in range(8):
        I(f"ds_read_b128 {vr(4*f,4)}, v82 offset:{WSTG+1024*f}")
    for f in range(8):
        I(f"ds_read_b128 {ar(4*f,4)}, v82 offset:{WSTG+1024*(26+f)}")
    for f in range(8):
        I(f"ds_read_b128 {ar(A_WV+4*f,4)}, v82 offset:{WSTG+1024*(18+f)}")
    I("s_waitcnt lgkmcnt(15)")
    I("s_waitcnt lgkmcnt(8)")
    for c in range(2):
        d = vr(32 + 16 * c, 16)
        for s in range(4):
            I(mfma(d, vr(64 + 4 * s, 4), vr((2 * s + c) * 4, 4), "0" if s == 0 else d))
    for c in range(2):
        a = ar(A_AGG + 16 * c, 16)
        for s in range(4):
            I(mfma(a, vr(64 + 4 * s, 4), ar((2 * s + c) * 4, 4), "0" if s == 0 else a))
    for f in range(10):
        I(f"ds_read_b128 {ar(A_WB+4*f,4)}, v82 offset:{WSTG+1024*(8+f)}")
    if PRESCALE:
        for i in range(32):
            I(f"v_mul_f32 v{32+i}, s43, v{32+i}")
    for c in range(2):
        for p in range(8):
            I(f"v_cvt_pk_bf16_f32 v{8*c+p}, v{32+16*c+2*p}, v{32+16*c+2*p+1}")
    for c in range(2):
        for p in range(8):
            I(f"v_accvgpr_write_b32 a{xa(p//4, c) + p%4}, v{8*c+p}")
    I("s_mov_b32 s47, 0")
    L("L_noinit")
    I("s_cmp_eq_u32 s35, 0")
    I("s_cbranch_scc1 L_round_end")
    I(f"v_and_b32 v{T+4}, 31, v{T+4}")
    I(f"v_mad_u32_u24 v{T+7}, v{T+4}, s42, v{OHC}")
    I(f"v_mad_u32_u24 v{SW}, v{T+4}, s42, v{K1C}")
    I(f"ds_write_b16_d16_hi v{SW}, v{ONE}")
    put(a_reads(0))
    for i in range(32):
        I(f"v_mov_b32 v{G[1]+i}, 0")
    for i in range(8):
        I(f"v_mov_b32 v{S+i}, 0")
    I("s_mov_b32 s36, 0")
    if PRIO:
        I("s_setprio 3")
    stamp(5)
    L("L_loop")
    INLOOP[0] = True
    nv = len(valu_group(0))
    per = 6 if PRESCALE else 7
    for par in range(2):
        I(f"ds_read_b128 {vr(T,4)}, v{LSA} offset:256")
        I("s_add_u32 s46, s36, 2")
        if PRIO:
            put(prio_code(par))
        I("s_waitcnt lgkmcnt(1)")
        mid0 = ["s_cmp_ge_u32 s46, s35",
                "s_waitcnt lgkmcnt(0)",
                f"s_cbranch_scc1 L_nox_{par}"] + x_dma(par) + [f"L_nox_{par}:"]
        interleave(mfma_group(0, par), valu_group(1), per, {9: mid0})
        I("s_nop 1")
        put(agg_group(1))
        early = [f"ds_read2_b32 {vr(T+4,2)}, v{LMA} offset0:32 offset1:64",
                 f"ds_read_b128 {vr(S,4)}, v{SRA}",
                 f"ds_read_b128 {vr(S+4,4)}, v{SRA} offset:32",
                 f"ds_write_b16 v{SW}, v{ONE}"]
        mid1 = ["s_cmp_ge_u32 s46, s35",
                "s_waitcnt lgkmcnt(3)",
                f"s_cbranch_scc1 L_noe_{par}"] + e_load(par, T + 5) + [f"L_noe_{par}:",
                f"v_and_b32 v{T+4}, 31, v{T+4}",
                f"v_mad_u32_u24 v{T+7}, v{T+4}, s42, v{OHC}",
                f"v_mad_u32_u24 v{SW}, v{T+4}, s42, v{K1C}",
                f"v_add_u32 v{LSA}, 128, v{LSA}",
                f"v_add_u32 v{LMA}, 128, v{LMA}",
                "s_add_u32 s36, s36, 1"]
        late = ["s_waitcnt lgkmcnt(0)",
                "s_cmp_ge_u32 s36, s35",
                f"s_cbranch_scc1 L_last_{par}",
                f"ds_write_b16_d16_hi v{SW}, v{ONE}",
                "s_cmp_lt_u32 s46, s35",
                f"s_cbranch_scc1 L_w5_{par}",
                "s_waitcnt vmcnt(0)",
                f"L_w5_{par}:",
                "s_waitcnt vmcnt(5)"] + a_reads(par ^ 1) + [f"L_last_{par}:"]
        interleave(mfma_group(1, par), valu_group(0), per, {1: early, 12: mid1, 10 * per + 1: late})
        I("s_nop 0")
        I("s_cmp_ge_u32 s36, s35")
        put(agg_group(0))
        if par == 0:
            I("s_cbranch_scc1 L_tail")
        else:
            I("s_cbranch_scc0 L_loop")
    L("L_tail")
    INLOOP[0] = False
    put(valu_group(1))
    I("s_nop 1")
    put(agg_group(1))
    L("L_round_end")
    I(f"s_cmp_ge_u32 s34, {NC}")
    I("s_cbranch_scc1 L_epi")
    I("s_mov_b32 s33, s34")
    I("s_add_u32 s34, s34, 1")
    I("v_mbcnt_lo_u32_b32 v67, -1, 0")
    I("v_mbcnt_hi_u32_b32 v67, -1, v67")
    I("s_waitcnt vmcnt(0) lgkmcnt(0)")
    I("s_barrier")
    I("s_branch L_round")
    L("L_epi")
    stamp(6)
    srd(28, 8, 9, N * 128)
    I("v_mbcnt_lo_u32_b32 v67, -1, 0")
    I("v_mbcnt_hi_u32_b32 v67, -1, v67")
    I("v_and_b32 v68, 31, v67")
    I("v_lshrrev_b32 v69, 5, v67")
    I("v_lshlrev_b32 v68, 1, v68")
    I("v_lshl_add_u32 v68, v69, 9, v68")
    I("v_add_u32 v68, s37, v68")
    I("v_lshlrev_b32 v70, 4, v67")
    I("v_add_u32 v71, s37, v70")
    I("s_nop 7")
    I("s_nop 7")
    regs = [i for i in range(13)]
    for c in range(2):
        for i in regs:
            I(f"v_accvgpr_read_b32 v{16*c+i}, a{A_AGG+16*c+i}")
    ids = [16 * c + i for c in range(2) for i in regs]
    for r in ids:
        I(f"v_mul_f32 v{32+r}, s43, v{r}")
    for r in ids:
        I(f"v_exp_f32 v{32+r}, v{32+r}")
    for r in ids:
        I(f"v_add_f32 v{32+r}, 1.0, v{32+r}")
    for r in ids:
        I(f"v_rcp_f32 v{32+r}, v{32+r}")
    for r in ids:
        I(f"v_mul_f32 v{r}, v{r}, v{32+r}")
    for i in regs:
        I(f"v_cvt_pk_bf16_f32 v{32+i}, v{i}, v{16+i}")
    for i in regs:
        row = 8 * (i >> 2) + (i & 3)
        I(f"ds_write_b16 v68, v{32+i} offset:{row*128}")
        I(f"ds_write_b16_d16_hi v68, v{32+i} offset:{row*128+64}")
    I("s_waitcnt lgkmcnt(0)")
    for k in range(4):
        I(f"ds_read_b128 {vr(4*k,4)}, v71 offset:{1024*k}")
    for k in range(3):
        I(f"s_waitcnt lgkmcnt({3-k})")
        I(f"buffer_store_dwordx4 {vr(4*k,4)}, v70, s[28:31], s49 offen offset:{1024*k}")
    I("s_waitcnt lgkmcnt(0)")
    I("s_mov_b64 exec, 0xff")
    I(f"buffer_store_dwordx4 {vr(12,4)}, v70, s[28:31], s49 offen offset:3072")
    if STAMP:
        I("s_waitcnt vmcnt(0)")
        stamp(7)
        srd(28, 10, 11, 0x100000, 0x1000000)
        I("s_mov_b64 exec, 1")
        I("s_lshl_b32 s46, s2, 3")
        I("s_add_u32 s46, s46, s3")
        I("s_lshl_b32 s46, s46, 6")
        I("v_mov_b32 v0, 0")
        for k in range(8):
            I(f"v_mov_b32 v1, s{70+2*k}")
            I(f"buffer_store_dword v1, v0, s[28:31], s46 offen offset:{4*k}")
        I("v_mov_b32 v1, s35")
        I(f"buffer_store_dword v1, v0, s[28:31], s46 offen offset:32")
        I("s_getreg_b32 s47, hwreg(HW_REG_XCC_ID)")
        I("v_mov_b32 v1, s47")
        I(f"buffer_store_dword v1, v0, s[28:31], s46 offen offset:36")
    L("L_k2_end")
    I("s_endpgm")

def kd(name, vgpr, sgpr, accum):
    emit(f".amdhsa_kernel {name}")
    emit(f"  .amdhsa_next_free_vgpr {vgpr}")
    emit(f"  .amdhsa_next_free_sgpr {sgpr}")
    emit(f"  .amdhsa_accum_offset {accum}")
    emit("  .amdhsa_group_segment_fixed_size 0")
    emit("  .amdhsa_kernarg_size 80")
    emit("  .amdhsa_user_sgpr_count 2")
    emit("  .amdhsa_user_sgpr_kernarg_segment_ptr 1")
    emit("  .amdhsa_system_sgpr_workgroup_id_x 1")
    emit(".end_amdhsa_kernel")

def main():
    emit(HEADER.rstrip("\n"))
    emit(f"; @launch kernel=egc_bin_kernel grid=({NC},1,1) block=(1024,1,1) lds={K1_LDS}")
    emit(f"; @launch kernel=egc_main_kernel grid=(256,1,1) block=(512,1,1) lds={K2_LDS}")
    emit('.amdgcn_target "amdgcn-amd-amdhsa--gfx950"')
    emit(".text")
    gen_k1()
    gen_k2()
    emit('.section .rodata,"a"')
    emit(".p2align 6")
    kd("egc_bin_kernel", 56, 56, 56)
    emit(".p2align 6")
    kd("egc_main_kernel", 248, 96, 128)
    path = sys.argv[1] if len(sys.argv) > 1 else "standalone__edge_featured_mpnn_egc__graph.s"
    open(path, "w").write("\n".join(out) + "\n")

main()
```

```python
import sys, os

N = 50000; E = 800000
WN = 25; NWIN = 2000; NB = 250; CH = 3200; NC = 250
WS_WF = 0; WS_TAB = 0x10000; TABROW = 8192; WS_REC = 0x400000; RECROW = CH * 8
PRESCALE = int(os.environ.get('PRESCALE', '0')) if 'os' in globals() else 0
PERM = int(os.environ.get('PERM', '0'))
WS_EAS = 0x2000000
M25 = 171798692
NEGLOG2E = 0xBFB8AA3B

import os
STAMP = int(os.environ.get("STAMP", "0"))
def stamp(k):
    if STAMP:
        I(f"s_memtime s[{70+2*k}:{71+2*k}]")
        I("s_waitcnt lgkmcnt(0)")
out = []
def emit(s=""):
    out.append(s)
DROP = os.environ.get("DROP", "").split(",")
INLOOP = [False]
def I(s):
    if INLOOP[0]:
        op = s.split()[0]
        if "mfma" in DROP and op.startswith("v_mfma"): return
        if "trans" in DROP and op in ("v_exp_f32", "v_rcp_f32"): return
        if "valu" in DROP and op in ("v_exp_f32", "v_rcp_f32", "v_mul_f32", "v_add_f32", "v_cvt_pk_bf16_f32"): return
        if "dma" in DROP and op.startswith("buffer_load"): return
        if "lds" in DROP and op.startswith("ds_read_b128"): return
    out.append("    " + s)
def L(s):
    out.append(s + ":")

HEADER = """; Kernarg layout for this problem (80 bytes, ptrs only, base s[0:1]):
"""

def srd(d, lo, hi, size, add=0):
    if add:
        I(f"s_add_u32 s{d}, s{lo}, {add}")
        I(f"s_addc_u32 s{d+1}, s{hi}, 0")
    else:
        I(f"s_mov_b32 s{d}, s{lo}")
        I(f"s_mov_b32 s{d+1}, s{hi}")
    I(f"s_mov_b32 s{d+2}, {size}")
    I(f"s_mov_b32 s{d+3}, 0x00020000")

def wave_scan(regs):
    steps = ["row_shr:1 row_mask:0xf bank_mask:0xf", "row_shr:2 row_mask:0xf bank_mask:0xf",
             "row_shr:4 row_mask:0xf bank_mask:0xf", "row_shr:8 row_mask:0xf bank_mask:0xf",
             "row_bcast:15 row_mask:0xa bank_mask:0xf", "row_bcast:31 row_mask:0xc bank_mask:0xf"]
    I("s_nop 1")
    for st in steps:
        for r in regs:
            I(f"v_add_u32_dpp v{r}, v{r}, v{r} {st}")
        if len(regs) < 3:
            I(f"s_nop {2 - len(regs)}")

K1_HIST = 0
K1_WTOT = 8192
K1_STG = 8448
K1_POS = K1_STG + RECROW
K1_LDS = K1_POS + (CH * 4 if PERM else 0)

def gen_k1():
    emit(".globl egc_bin_kernel")
    emit(".p2align 8")
    emit(".type egc_bin_kernel,@function")
    L("egc_bin_kernel")
    I(f"s_cmp_ge_u32 s2, {NC}")
    I("s_cbranch_scc1 L_k1_end")
    I("s_load_dwordx4 s[4:7], s[0:1], 16")
    I("s_load_dwordx4 s[8:11], s[0:1], 32")
    I("s_load_dwordx2 s[12:13], s[0:1], 48")
    I("s_load_dwordx2 s[14:15], s[0:1], 72")
    if PERM:
        I("s_load_dwordx2 s[60:61], s[0:1], 8")
    I("v_lshlrev_b32 v1, 3, v0")
    I("v_mov_b32 v2, 0")
    I("v_mov_b32 v3, 0")
    I(f"ds_write_b64 v1, v[2:3] offset:{K1_HIST}")
    I("v_lshlrev_b32 v4, 4, v0")
    I("v_lshrrev_b32 v5, 6, v0")
    I(f"s_mul_i32 s32, s2, {CH*4}")
    I("v_readfirstlane_b32 s3, v5")
    I(f"s_mov_b32 s33, {M25}")
    I("s_mov_b32 s36, -25")
    I(f"s_mul_i32 s37, s2, {CH*32}")
    I("s_waitcnt lgkmcnt(0)")
    srd(16, 4, 5, E * 4)
    srd(20, 6, 7, E * 4)
    srd(24, 14, 15, 0x1000000)
    if PERM:
        srd(52, 60, 61, E * 32)
        srd(56, 14, 15, E * 32, WS_EAS)
    I(f"v_cmp_gt_u32 vcc, {CH//4}, v0")
    I("s_and_saveexec_b64 s[34:35], vcc")
    I("s_cbranch_execz L_k1_noload")
    I("buffer_load_dwordx4 v[8:11], v4, s[20:23], s32 offen")
    I("buffer_load_dwordx4 v[12:15], v4, s[16:19], s32 offen")
    L("L_k1_noload")
    I("s_mov_b64 exec, s[34:35]")
    I("s_mov_b32 s40, 0")
    I("s_cmp_lg_u32 s3, 15")
    I("s_cbranch_scc1 L_k1_nowf")
    I("s_cmp_ge_u32 s2, 34")
    I("s_cbranch_scc1 L_k1_nowf")
    I("s_mov_b32 s40, 1")
    I("s_mov_b32 s28, s12")
    I("s_mov_b32 s29, s13")
    I(f"s_mov_b32 s30, {144*128}")
    I("s_mov_b32 s31, 0x00020000")
    I("s_mov_b32 s41, s2")
    I("s_cmp_lt_u32 s2, 18")
    I("s_cbranch_scc1 L_k1_wsel")
    I("s_mov_b32 s28, s10")
    I("s_mov_b32 s29, s11")
    I(f"s_mov_b32 s30, {64*128}")
    I("s_sub_u32 s41, s2, 18")
    I("s_cmp_lt_u32 s2, 26")
    I("s_cbranch_scc1 L_k1_wsel")
    I("s_mov_b32 s28, s8")
    I("s_mov_b32 s29, s9")
    I("s_sub_u32 s41, s2, 26")
    L("L_k1_wsel")
    I("s_lshr_b32 s42, s41, 1")
    I("s_lshl_b32 s42, s42, 11")
    I("s_and_b32 s43, s41, 1")
    I("s_lshl_b32 s43, s43, 6")
    I("s_add_u32 s42, s42, s43")
    I("v_and_b32 v40, 31, v0")
    I("v_lshlrev_b32 v40, 1, v40")
    I("v_and_b32 v41, 32, v0")
    I("v_lshl_add_u32 v40, v41, 5, v40")
    for j in range(8):
        I(f"buffer_load_ushort v{44+j}, v40, s[28:31], s42 offen offset:{128*j}")
    L("L_k1_nowf")
    I("s_barrier")
    if PERM:
        for k in range(7):
            if k == 6:
                I("s_cmp_ge_u32 s3, 4")
                I("s_cbranch_scc1 L_k1_e6")
            I(f"s_add_u32 s62, s37, {16384*k}")
            I(f"buffer_load_dwordx4 v[{56+4*k}:{59+4*k}], v4, s[52:55], s62 offen" + os.environ.get("K1EPOL", ""))
        L("L_k1_e6")
    ne = 6 if PERM else 0
    I("s_and_saveexec_b64 s[34:35], vcc")
    I("s_cbranch_execz L_k1_nohist")
    I("v_mov_b32 v6, 1")
    if PERM:
        I("v_mov_b32 v7, s37")
    else:
        I("v_lshl_add_u32 v7, v0, 7, s37")
    I(f"s_waitcnt vmcnt({ne+1})")
    for i in range(4):
        I(f"v_mul_hi_u32 v{16+i}, v{8+i}, s33")
    for i in range(4):
        I(f"v_lshlrev_b32 v{20+i}, 2, v{16+i}")
    for i in range(4):
        I(f"ds_add_rtn_u32 v{24+i}, v{20+i}, v6 offset:{K1_HIST}")
    for i in range(4):
        I(f"v_mad_i32_i24 v{28+i}, v{16+i}, s36, v{8+i}")
    for i in range(4):
        I(f"v_lshlrev_b32 v{16+i}, 29, v{16+i}")
    for i in range(4):
        I(f"v_or3_b32 v{33+2*i}, v{16+i}, v7, v{28+i}")
    if not PERM:
        for i in range(1, 4):
            I(f"v_add_u32 v{33+2*i}, {32*i}, v{33+2*i}")
    I(f"s_waitcnt vmcnt({ne})")
    for i in range(4):
        I(f"v_lshlrev_b32 v{32+2*i}, 7, v{12+i}")
    L("L_k1_nohist")
    I("s_mov_b64 exec, s[34:35]")
    I("s_waitcnt lgkmcnt(0)")
    I("s_barrier")
    I(f"ds_read_b64 v[2:3], v1 offset:{K1_HIST}")
    I("s_waitcnt lgkmcnt(0)")
    I("v_add_u32 v8, v2, v3")
    I("v_mov_b32 v9, v8")
    wave_scan([9])
    I("s_lshl_b32 s44, s3, 2")
    I("v_mov_b32 v10, s44")
    I("s_mov_b32 exec_lo, 0")
    I("s_mov_b32 exec_hi, 0x80000000")
    I(f"ds_write_b32 v10, v9 offset:{K1_WTOT}")
    I("s_mov_b64 exec, -1")
    I("v_and_b32 v10, 15, v0")
    I("v_lshlrev_b32 v10, 2, v10")
    I("s_waitcnt lgkmcnt(0)")
    I("s_barrier")
    I(f"ds_read_b32 v11, v10 offset:{K1_WTOT}")
    I("s_waitcnt lgkmcnt(0)")
    I("v_mov_b32 v12, v11")
    I("s_nop 1")
    for sh in (1, 2, 4, 8):
        I(f"v_add_u32_dpp v12, v12, v12 row_shr:{sh} row_mask:0xf bank_mask:0xf")
        I("s_nop 1")
    I("v_sub_u32 v12, v12, v11")
    I("s_nop 0")
    I("v_readlane_b32 s45, v12, s3")
    I("v_sub_u32 v9, v9, v8")
    I("s_nop 1")
    I("v_add_u32 v9, s45, v9")
    I("v_add_u32 v10, v9, v2")
    I("v_mov_b32 v12, v9")
    I("v_mov_b32 v13, v10")
    I(f"ds_write_b64 v1, v[12:13] offset:{K1_HIST}")
    I("s_waitcnt lgkmcnt(0)")
    I("s_barrier")
    I(f"s_movk_i32 s50, {NB}")
    I("v_cmp_gt_u32 s[48:49], s50, v0")
    I("s_and_saveexec_b64 s[34:35], s[48:49]")
    I("s_cbranch_execz L_k1_notab")
    I("v_lshlrev_b32 v14, 5, v0")
    I(f"ds_read_b128 v[8:11], v14 offset:{K1_HIST}")
    I(f"ds_read_b128 v[16:19], v14 offset:{K1_HIST+16}")
    I(f"ds_read_b32 v12, v14 offset:{K1_HIST+32}")
    I("v_lshlrev_b32 v14, 13, v0")
    I("s_lshl_b32 s46, s2, 5")
    I(f"s_add_u32 s46, s46, {WS_TAB}")
    I("s_waitcnt lgkmcnt(0)")
    I("v_lshl_or_b32 v8, v9, 16, v8")
    I("v_lshl_or_b32 v9, v11, 16, v10")
    I("v_lshl_or_b32 v10, v17, 16, v16")
    I("v_lshl_or_b32 v11, v19, 16, v18")
    I("buffer_store_dwordx4 v[8:11], v14, s[24:27], s46 offen")
    I("buffer_store_dword v12, v14, s[24:27], s46 offen offset:16")
    L("L_k1_notab")
    I("s_mov_b64 exec, s[34:35]")
    I("s_and_saveexec_b64 s[34:35], vcc")
    I("s_cbranch_execz L_k1_noscat")
    for i in range(4):
        I(f"ds_read_b32 v{28+i}, v{20+i} offset:{K1_HIST}")
    for i in range(4):
        I(f"s_waitcnt lgkmcnt({3-i})")
        I(f"v_add_lshl_u32 v{28+i}, v{28+i}, v{24+i}, 3")
    if PERM:
        for i in range(4):
            I(f"v_lshlrev_b32 v{20+i}, 2, v{28+i}")
        for i in range(4):
            I(f"v_add_u32 v{33+2*i}, v{33+2*i}, v{20+i}")
        I(f"ds_write_b128 v4, v[20:23] offset:{K1_POS}")
    for i in range(4):
        I(f"ds_write_b64 v{28+i}, v[{32+2*i}:{33+2*i}] offset:{K1_STG}")
    L("L_k1_noscat")
    I("s_mov_b64 exec, s[34:35]")
    I("s_waitcnt lgkmcnt(0)")
    I("s_barrier")
    I(f"s_mul_i32 s46, s2, {RECROW}")
    I(f"s_add_u32 s46, s46, {WS_REC}")
    I(f"ds_read_b128 v[8:11], v4 offset:{K1_STG}")
    I(f"v_cmp_gt_u32 vcc, {RECROW//16 - 1024}, v0")
    I("s_and_saveexec_b64 s[34:35], vcc")
    I("s_cbranch_execz L_k1_no2")
    I(f"ds_read_b128 v[12:15], v4 offset:{K1_STG + 16384}")
    I("s_add_u32 s47, s46, 16384")
    I("s_waitcnt lgkmcnt(0)")
    I("buffer_store_dwordx4 v[12:15], v4, s[24:27], s47 offen")
    L("L_k1_no2")
    I("s_mov_b64 exec, s[34:35]")
    I("s_waitcnt lgkmcnt(0)")
    I("buffer_store_dwordx4 v[8:11], v4, s[24:27], s46 offen")
    if PERM:
        I("v_lshrrev_b32 v16, 1, v0")
        I("v_lshlrev_b32 v16, 2, v16")
        I("v_and_b32 v17, 1, v0")
        I("v_lshlrev_b32 v17, 4, v17")
        for k in range(7):
            I(f"ds_read_b32 v{20+k}, v16 offset:{K1_POS+2048*k}")
        for k in range(7):
            if k == 6:
                I("s_cmp_ge_u32 s3, 4")
                I("s_cbranch_scc1 L_k1_s6")
            I(f"s_waitcnt lgkmcnt({6-k})")
            I(f"v_add_u32 v{20+k}, v{20+k}, v17")
            if k == 0:
                I("s_waitcnt vmcnt(0)")
            I(f"buffer_store_dwordx4 v[{56+4*k}:{59+4*k}], v{20+k}, s[56:59], s37 offen" + os.environ.get("K1SPOL", ""))
        L("L_k1_s6")
    I("s_cmp_eq_u32 s40, 0")
    I("s_cbranch_scc1 L_k1_end")
    I("s_waitcnt vmcnt(0)")
    if PRESCALE:
        I("s_sub_u32 s46, s2, 8")
        I("s_cmp_lt_u32 s46, 10")
        I(f"s_cselect_b32 s47, {NEGLOG2E}, 1.0")
        for j in range(8):
            I(f"v_lshlrev_b32 v{44+j}, 16, v{44+j}")
        for j in range(8):
            I(f"v_mul_f32 v{44+j}, s47, v{44+j}")
        for j in range(4):
            I(f"v_cvt_pk_bf16_f32 v{52+j}, v{44+2*j}, v{45+2*j}")
    else:
        for j in range(4):
            I(f"v_lshl_or_b32 v{52+j}, v{45+2*j}, 16, v{44+2*j}")
    I("v_and_b32 v40, 63, v0")
    I("v_lshlrev_b32 v40, 4, v40")
    I("s_lshl_b32 s46, s2, 10")
    I("buffer_store_dwordx4 v[52:55], v40, s[24:27], s46 offen")
    L("L_k1_end")
    I("s_endpgm")

WSTG = 0
LCAP = 3840
TLIM = 3584
LIST_S = 34816
LIST_M = LIST_S + LCAP * 4
SM = LIST_M + LCAP * 4
SMW = 2000
OH = SM + 16576
BASET = OH + 2560
WTOT = BASET + 4096
STG = WTOT + 256
STGW = 8192
K2_LDS = STG + 8 * STGW
assert STG % 128 == 0 or True
EMASK = 0x01FFFFE0

G = [0, 32]; H = [16, 48]
AX = 64; ST = 80; S = 88; EB = [96, 100]; T = 104
VAX = 112; PC = 116; H16 = 117; LSA = 118; LMA = 119; K1C = 120; SRA = 121; OHC = 122; SW = 123; ONE = 124
A_WB = 0; A_WV = 40; A_XA = 72; A_AGG = 88

def wb(s, c): return A_WB + (2 * s + c) * 4
def wv(s, c): return A_WV + (2 * s + c) * 4
def xa(s, c): return A_XA + (2 * s + c) * 4
def vr(b, n): return f"v[{b}:{b+n-1}]"
def ar(b, n): return f"a[{b}:{b+n-1}]"

def mfma(d, a, b, c):
    return f"v_mfma_f32_32x32x16_bf16 {d}, {a}, {b}, {c}"

def mfma_group(c, par):
    m = []
    g = vr(G[c], 16); h = vr(H[c], 16)
    m.append(mfma(g, vr(EB[par], 4), ar(wb(4, c), 4), "0"))
    for s in range(2):
        m.append(mfma(g, vr(ST + 4 * s, 4), ar(xa(s, c), 4), g))
    for s in range(4):
        m.append(mfma(g, vr(AX + 4 * s, 4), ar(wb(s, c), 4), g))
    for s in range(4):
        m.append(mfma(h, vr(AX + 4 * s, 4), ar(wv(s, c), 4), "0" if s == 0 else h))
    return m

def valu_group(c):
    g = G[c]; h = H[c]
    stages = [
        lambda i: f"v_mul_f32 v{g+i}, s43, v{g+i}",
        lambda i: f"v_exp_f32 v{g+i}, v{g+i}",
        lambda i: f"v_add_f32 v{g+i}, 1.0, v{g+i}",
        lambda i: f"v_rcp_f32 v{g+i}, v{g+i}",
        lambda i: f"v_mul_f32 v{g+i}, v{g+i}, v{h+i}",
    ]
    if PRESCALE:
        stages = stages[1:]
    v = []
    D = 2
    nst = len(stages)
    for step in range(16 + D * nst + 2):
        for k in range(nst):
            i = step - D * k
            if 0 <= i < 16:
                v.append(stages[k](i))
        i = step - D * nst
        if 0 <= i < 16 and i % 2 == 1:
            p = i // 2
            v.append(f"v_cvt_pk_bf16_f32 v{g+p}, v{g+i-1}, v{g+i}")
    return v

def agg_group(c):
    a = ar(A_AGG + 16 * c, 16)
    return [mfma(a, vr(S, 4), vr(G[c], 4), a), mfma(a, vr(S + 4, 4), vr(G[c] + 4, 4), a)]

def put(lst):
    for x in lst:
        if x.endswith(":"):
            emit(x)
        else:
            I(x)

def interleave(mf, va, per, inserts):
    mi = 0
    for i, v in enumerate(va):
        if i % per == 0 and mi < len(mf):
            I(mf[mi])
            mi += 1
        if i in inserts:
            put(inserts[i])
        I(v)
    assert mi == len(mf)

NOMEM = int(os.environ.get("NOMEM", "0"))
def x_dma(par):
    r = []
    if NOMEM:
        for k in range(4):
            r.append(f"v_and_b32 v{T+k}, 0x3f80, v{T+k}")
    r.append(f"v_add_u32 v{T+0}, v{PC}, v{T+0}")
    r.append(f"v_xad_u32 v{T+1}, v{PC}, 64, v{T+1}")
    r.append(f"v_add_u32 v{T+2}, v{PC}, v{T+2}")
    r.append(f"v_xad_u32 v{T+3}, v{PC}, 64, v{T+3}")
    for k in range(4):
        r.append(f"s_add_u32 m0, s37, {par*4096 + k*1024}")
        r.append("s_nop 0")
        r.append(f"buffer_load_dwordx4 v{T+k}, s[12:15], 0 offen lds")
    return r

def e_load(par, meta):
    r = []
    if NOMEM:
        r.append(f"v_and_b32 v{meta}, 0x3fff, v{meta}")
    r.append(f"v_and_or_b32 v{T+6}, v{meta}, s40, v{H16}")
    r.append(f"buffer_load_dwordx4 {vr(EB[par],4)}, v{T+6}, s[16:19], 0 offen" + os.environ.get("EPOL", ""))
    return r

def a_reads(par):
    r = []
    for s in range(2):
        r.append(f"ds_read_b128 {vr(ST+4*s,4)}, v{T+7} offset:{16*s}")
    for s in range(4):
        r.append(f"ds_read_b128 {vr(AX+4*s,4)}, v{VAX+s} offset:{par*4096}")
    return r

PRIO = int(os.environ.get("PRIO", "1"))
def prio_code(par):
    r = ["s_sub_u32 s64, s35, s36"]
    for lim, p in ((10, 2), (7, 1), (4, 0)):
        r += [f"s_cmp_eq_u32 s64, {lim - 1}",
              f"s_cbranch_scc0 L_pr_{par}_{p}",
              f"s_setprio {p}",
              f"L_pr_{par}_{p}:"]
    return r

def gen_k2():
    emit(".globl egc_main_kernel")
    emit(".p2align 8")
    emit(".type egc_main_kernel,@function")
    L("egc_main_kernel")
    I("s_cmp_ge_u32 s2, 256")
    I("s_cbranch_scc1 L_k2_end")
    I("s_load_dwordx2 s[10:11], s[0:1], 72")
    I("s_load_dwordx4 s[4:7], s[0:1], 0")
    I("s_load_dwordx2 s[8:9], s[0:1], 56")
    I("s_and_b32 s38, s2, 7")
    I("s_lshr_b32 s39, s2, 3")
    I(f"s_mul_i32 s44, s38, {NB}")
    I(f"s_add_u32 s45, s44, {NB}")
    I("s_lshr_b32 s44, s44, 3")
    I("s_lshr_b32 s45, s45, 3")
    I("s_add_u32 s32, s44, s39")
    I("s_cmp_ge_u32 s32, s45")
    I("s_cbranch_scc1 L_k2_end")
    stamp(0)
    I("v_lshrrev_b32 v1, 6, v0")
    I("v_and_b32 v67, 63, v0")
    I("v_readfirstlane_b32 s3, v1")
    I("s_mov_b32 s33, 0")
    I(f"s_movk_i32 s34, {NC}")
    I("s_mov_b32 s47, 1")
    I("s_lshl_b32 s48, s32, 13")
    I(f"s_add_u32 s48, s48, {WS_TAB}")
    I("s_waitcnt lgkmcnt(0)")
    I("s_add_u32 s20, s10, s48")
    I("s_addc_u32 s21, s11, 0")
    I(f"s_mov_b32 s22, {NC*32}")
    I("s_mov_b32 s23, 0x00020000")
    L("L_round")
    I("s_lshl_b32 s46, s3, 5")
    I("v_lshrrev_b32 v66, 1, v67")
    I("v_add_u32 v66, s46, v66")
    I("v_lshlrev_b32 v65, 5, v66")
    I("buffer_load_dwordx4 v[24:27], v65, s[20:23], 0 offen")
    I("buffer_load_dword v28, v65, s[20:23], 0 offen offset:16")
    I("s_cmp_eq_u32 s47, 0")
    I("s_cbranch_scc1 L_noconst")
    srd(12, 4, 5, N * 128)
    if PERM:
        srd(16, 10, 11, E * 32, WS_EAS)
    else:
        srd(16, 6, 7, E * 32)
    srd(24, 10, 11, NC * RECROW, WS_REC)
    srd(28, 10, 11, 34 * 1024)
    I(f"s_mov_b32 s40, {EMASK}")
    I("s_movk_i32 s42, 80")
    I(f"s_mov_b32 s43, {NEGLOG2E}")
    I(f"s_lshl_b32 s37, s3, 13")
    I(f"s_add_u32 s37, s37, {STG}")
    I("v_and_b32 v3, 31, v67")
    I("v_lshrrev_b32 v4, 5, v67")
    I("v_bfe_u32 v5, v3, 1, 3")
    I("v_xor_b32 v5, v5, v4")
    I("v_lshlrev_b32 v5, 4, v5")
    I("v_lshl_add_u32 v5, v3, 7, v5")
    I(f"v_add_u32 v{VAX}, s37, v5")
    for s in range(1, 4):
        I(f"v_xor_b32 v6, {32*s}, v5")
        I(f"v_add_u32 v{VAX+s}, s37, v6")
    I("v_lshrrev_b32 v5, 4, v67")
    I("v_and_b32 v6, 7, v67")
    I("v_xor_b32 v5, v5, v6")
    I(f"v_lshlrev_b32 v{PC}, 4, v5")
    I(f"v_lshlrev_b32 v{H16}, 4, v4")
    I(f"s_mul_i32 s46, s3, {SMW}")
    I(f"s_add_u32 s46, s46, {SM}")
    I("v_lshrrev_b32 v5, 4, v3")
    I("v_lshlrev_b32 v5, 5, v5")
    I("v_bfe_u32 v6, v3, 2, 1")
    I("v_lshl_add_u32 v5, v6, 4, v5")
    I("v_bfe_u32 v6, v3, 3, 1")
    I("v_lshl_add_u32 v5, v6, 3, v5")
    I("v_and_b32 v6, 3, v3")
    I("v_lshl_add_u32 v5, v6, 1, v5")
    I(f"v_add_u32 v{K1C}, s46, v5")
    I(f"v_add_u32 v6, s46, v{H16}")
    I(f"v_mad_u32_u24 v{SRA}, v3, s42, v6")
    I("v_lshlrev_b32 v6, 5, v4")
    I(f"v_add_u32 v{OHC}, {OH}, v6")
    I(f"v_mov_b32 v{ONE}, 1.0")
    for i in range(4):
        I(f"v_mov_b32 v{8+i}, 0")
    I("v_lshlrev_b32 v70, 4, v67")
    I("v_add_u32 v7, s46, v70")
    I("ds_write_b128 v7, v[8:11]")
    I("v_cmp_gt_u32 vcc, 61, v67")
    I("s_and_saveexec_b64 s[50:51], vcc")
    I("ds_write_b128 v7, v[8:11] offset:1024")
    I("s_mov_b64 exec, -1")
    I("s_cmp_lg_u32 s3, 0")
    I("s_cbranch_scc1 L_noconst")
    I(f"v_add_u32 v7, {OH}, v70")
    I("ds_write_b128 v7, v[8:11]")
    I("ds_write_b128 v7, v[8:11] offset:1024")
    I("s_mov_b32 exec_hi, 0")
    I("ds_write_b128 v7, v[8:11] offset:2048")
    I("v_bfe_u32 v6, v3, 2, 1")
    I("v_lshlrev_b32 v6, 5, v6")
    I("v_lshrrev_b32 v7, 4, v3")
    I("v_lshl_add_u32 v6, v7, 4, v6")
    I("v_and_b32 v7, 15, v5")
    I("v_add_u32 v6, v6, v7")
    I("v_mad_u32_u24 v6, v3, s42, v6")
    I(f"v_add_u32 v6, {OH}, v6")
    I(f"ds_write_b16_d16_hi v6, v{ONE}")
    I("s_mov_b64 exec, -1")
    L("L_noconst")
    I("s_waitcnt vmcnt(0)")
    stamp(1)
    I("v_and_b32 v29, 0xffff, v24")
    I("v_subrev_u32 v30, s33, v66")
    I("s_sub_u32 s46, s34, s33")
    I("v_cmp_gt_u32 s[52:53], s46, v30")
    I("v_and_b32 v31, 1, v67")
    I("v_lshl_add_u32 v64, v31, 1, v29")
    I("v_cndmask_b32 v30, v29, v28, s[52:53]")
    I(f"s_movk_i32 s46, {RECROW}")
    I("v_mul_u32_u24 v65, s46, v66")
    I("v_lshl_add_u32 v65, v64, 3, v65")
    I("v_sub_u32 v68, v30, v64")
    def rec_loads(tag):
        for i in range(6):
            I(f"v_cmpx_lt_i32 vcc, {4*i}, v68")
            I("s_nop 0")
            I(f"s_cbranch_execz L_rl_{tag}")
            I(f"buffer_load_dwordx4 v[{4*i}:{4*i+3}], v65, s[24:27], 0 offen offset:{32*i}")
        L(f"L_rl_{tag}")
        I("s_mov_b64 exec, -1")
    rec_loads("a")
    I("v_cmp_eq_u32 vcc, 0, v31")
    I("s_and_b64 vcc, vcc, s[52:53]")
    I("v_alignbit_b32 v72, v25, v24, 16")
    I("v_alignbit_b32 v73, v26, v25, 16")
    I("v_alignbit_b32 v74, v27, v26, 16")
    I("v_alignbit_b32 v75, v28, v27, 16")
    for i in range(4):
        I(f"v_sub_u32 v{72+i}, v{72+i}, v{24+i}")
    I("v_sub_u32 v76, v28, v29")
    for i in range(5):
        I(f"v_cndmask_b32 v{72+i}, 0, v{72+i}, vcc")
    for i in range(5):
        I(f"v_mov_b32 v{80+i}, v{72+i}")
    wave_scan([80, 81, 82, 83, 84])
    I("s_lshl_b32 s46, s3, 5")
    I(f"s_add_u32 s46, s46, {WTOT}")
    I("v_mov_b32 v69, s46")
    I("s_mov_b32 exec_lo, 0")
    I("s_mov_b32 exec_hi, 0x80000000")
    I("ds_write_b128 v69, v[80:83]")
    I("ds_write_b32 v69, v84 offset:16")
    I("s_mov_b64 exec, -1")
    I("v_and_b32 v69, 7, v67")
    I("v_lshlrev_b32 v69, 5, v69")
    I(f"v_add_u32 v69, {WTOT}, v69")
    I("s_waitcnt lgkmcnt(0)")
    I("s_barrier")
    stamp(2)
    I("ds_read_b128 v[88:91], v69")
    I("ds_read_b32 v92, v69 offset:16")
    I("s_waitcnt lgkmcnt(0)")
    for i in range(5):
        I(f"v_mov_b32 v{32+i}, v{88+i}")
    I("s_nop 1")
    for sh in (1, 2, 4):
        for i in range(5):
            I(f"v_add_u32_dpp v{32+i}, v{32+i}, v{32+i} row_shr:{sh} row_mask:0xf bank_mask:0xf")
    I("s_nop 1")
    for i in range(4):
        I(f"v_sub_u32 v{88+i}, v{32+i}, v{88+i}")
    I("v_readlane_b32 s60, v36, 7")
    for i in range(4):
        I(f"v_readlane_b32 s{56+i}, v{32+i}, 7")
    for i in range(4):
        I(f"v_readlane_b32 s{52+i}, v{88+i}, s3")
    I(f"s_cmp_le_u32 s60, {TLIM}")
    I("s_cbranch_scc1 L_fits")
    I("s_sub_u32 s46, s34, s33")
    I("s_cmp_eq_u32 s46, 1")
    I("s_cselect_b32 s34, s34, s33")
    for i in range(4):
        I(f"s_mov_b32 s{56+i}, 0")
    I("v_mov_b32 v68, 0")
    L("L_fits")
    I("s_mov_b32 s61, 0")
    I("s_mov_b32 s62, 0")
    I("s_mov_b32 s63, 0")
    for i in range(4):
        I(f"s_add_u32 s64, s{56+i}, 0x001f001f")
        I("s_and_b32 s64, s64, 0xffe0ffe0")
        I("s_and_b32 s65, s64, 0xffff")
        I("s_lshr_b32 s66, s64, 16")
        I("s_add_u32 s67, s61, s65")
        I(f"s_and_b32 s68, s{56+i}, 0xffff")
        I(f"s_cmp_eq_u32 s3, {2*i}")
        I("s_cselect_b32 s62, s61, s62")
        I("s_cselect_b32 s63, s68, s63")
        I(f"s_lshr_b32 s68, s{56+i}, 16")
        I(f"s_cmp_eq_u32 s3, {2*i+1}")
        I("s_cselect_b32 s62, s67, s62")
        I("s_cselect_b32 s63, s68, s63")
        I("s_lshl_b32 s68, s67, 16")
        I("s_or_b32 s68, s68, s61")
        I(f"s_add_u32 s{52+i}, s{52+i}, s68")
        I(f"s_add_u32 s{52+i}, s{52+i}, 0x10001000")
        I("s_add_u32 s61, s67, s66")
    for i in range(4):
        I(f"v_sub_u32 v{80+i}, v{80+i}, v{72+i}")
    for i in range(4):
        I(f"v_add_u32 v{80+i}, s{52+i}, v{80+i}")
    for i in range(4):
        I(f"v_sub_u32 v{80+i}, v{80+i}, v{24+i}")
    I("v_lshlrev_b32 v69, 4, v66")
    I(f"v_add_u32 v69, {BASET}, v69")
    I("s_mov_b32 exec_lo, 0x55555555")
    I("s_mov_b32 exec_hi, 0x55555555")
    I("ds_write_b128 v69, v[80:83]")
    I("s_mov_b64 exec, -1")
    I("s_add_u32 s64, s63, 31")
    I("s_lshr_b32 s35, s64, 5")
    I("s_lshl_b32 s64, s35, 5")
    I("s_sub_u32 s64, s64, s63")
    I("s_add_u32 s65, s62, s63")
    I("v_add_lshl_u32 v72, v67, s65, 2")
    I("v_mov_b32 v73, 0xffffff00")
    I(f"v_mov_b32 v74, {EMASK}")
    I("v_cmp_gt_u32 vcc, s64, v67")
    I("s_and_saveexec_b64 s[50:51], vcc")
    I(f"ds_write2st64_b32 v72, v73, v74 offset0:{LIST_S//256} offset1:{LIST_M//256}")
    I("s_mov_b64 exec, -1")
    I("s_lshl_b32 s64, s62, 2")
    I("v_lshrrev_b32 v72, 3, v67")
    I("v_lshlrev_b32 v72, 4, v72")
    I(f"s_add_u32 s65, s64, {LIST_S}")
    I(f"v_add_u32 v{LSA}, s65, v72")
    I("v_and_b32 v72, 7, v67")
    I("v_bfe_u32 v73, v67, 3, 2")
    I("v_lshl_add_u32 v72, v72, 2, v73")
    I("v_lshlrev_b32 v72, 2, v72")
    I(f"s_add_u32 s65, s64, {LIST_M}")
    I(f"v_add_u32 v{LMA}, s65, v72")
    I("s_cmp_eq_u32 s47, 0")
    I("s_cbranch_scc1 L_scat")
    for k in range(5):
        I(f"s_add_u32 s46, s3, {8*k}")
        if k == 4:
            I("s_min_u32 s46, s46, 33")
        I("s_lshl_b32 s46, s46, 10")
        I(f"s_add_u32 m0, s46, {WSTG}")
        I("s_nop 0")
        I("buffer_load_dwordx4 v70, s[28:31], s46 offen lds")
    for i in range(16):
        I(f"v_mov_b32 v{80+i}, 0")
    I("v_and_b32 v72, 31, v67")
    I(f"v_lshl_add_u32 v72, v72, 7, v{H16}")
    I("s_lshl_b32 s46, s32, 3")
    I("s_add_u32 s46, s46, s3")
    I(f"s_mul_i32 s49, s46, {WN*128}")
    I("s_mov_b32 exec_lo, 0x1ffffff")
    I("s_mov_b32 exec_hi, 0x1ffffff")
    for s in range(4):
        I(f"buffer_load_dwordx4 {vr(80+4*s,4)}, v72, s[12:15], s49 offen offset:{32*s}")
    I("s_mov_b64 exec, -1")
    I("s_waitcnt vmcnt(9)")
    I("s_branch L_scat1")
    L("L_scat")
    I("s_waitcnt vmcnt(0)")
    L("L_scat1")
    stamp(3)
    for r in range(12):
        I(f"v_lshrrev_b32 v{32+r}, 28, v{2*r+1}")
    for r in range(12):
        I(f"v_add_u32 v{32+r}, v{32+r}, v69")
    for r in range(12):
        I(f"ds_read_u16 v{32+r}, v{32+r}")
    o0 = (LIST_S - 16384) // 256; o1 = (LIST_M - 16384) // 256
    for r in range(12):
        i, k = r // 2, r % 2
        I(f"v_cmpx_lt_i32 vcc, {4*i+k}, v68")
        I("s_waitcnt lgkmcnt(11)")
        I("s_cbranch_execz L_scat_done")
        I(f"v_add3_u32 v{32+r}, v{32+r}, v64, {4*i+k}")
        I(f"v_lshlrev_b32 v{32+r}, 2, v{32+r}")
        I(f"ds_write2st64_b32 v{32+r}, v{2*r}, v{2*r+1} offset0:{o0} offset1:{o1}")
    I("v_cmpx_lt_i32 vcc, 24, v68")
    I("s_nop 0")
    I("s_cbranch_execz L_scat_done")
    I("s_mov_b64 exec, -1")
    I("v_add_u32 v64, 24, v64")
    I("v_subrev_u32 v68, 24, v68")
    I("v_add_u32 v65, 192, v65")
    I("s_waitcnt lgkmcnt(0)")
    rec_loads("b")
    I("s_branch L_scat")
    L("L_scat_done")
    I("s_mov_b64 exec, -1")
    I("s_waitcnt lgkmcnt(0)")
    I("s_barrier")
    stamp(4)
    I(f"ds_read_b128 {vr(T,4)}, v{LSA}")
    I(f"ds_read2_b32 {vr(T+4,2)}, v{LMA} offset0:0 offset1:32")
    I("s_cmp_eq_u32 s35, 0")
    I("s_cbranch_scc1 L_fill_a")
    I("s_waitcnt lgkmcnt(0)")
    put(x_dma(0))
    put(e_load(0, T + 4))
    I("s_waitcnt vmcnt(5)")
    I("s_branch L_fill_d")
    L("L_fill_a")
    I("s_waitcnt vmcnt(0)")
    L("L_fill_d")
    I(f"ds_read_b128 {vr(T,4)}, v{LSA} offset:128")
    I("s_cmp_eq_u32 s47, 0")
    I("s_cbranch_scc1 L_noinit")
    I("s_barrier")
    for f in range(8):
        I(f"ds_read_b128 {vr(4*f,4)}, v70 offset:{WSTG+1024*f}")
    for f in range(8):
        I(f"ds_read_b128 {ar(4*f,4)}, v70 offset:{WSTG+1024*(26+f)}")
    for f in range(8):
        I(f"ds_read_b128 {ar(A_WV+4*f,4)}, v70 offset:{WSTG+1024*(18+f)}")
    I("s_waitcnt lgkmcnt(15)")
    I("s_waitcnt lgkmcnt(8)")
    for c in range(2):
        d = vr(32 + 16 * c, 16)
        for s in range(4):
            I(mfma(d, vr(80 + 4 * s, 4), vr((2 * s + c) * 4, 4), "0" if s == 0 else d))
    for c in range(2):
        a = ar(A_AGG + 16 * c, 16)
        for s in range(4):
            I(mfma(a, vr(80 + 4 * s, 4), ar((2 * s + c) * 4, 4), "0" if s == 0 else a))
    for f in range(10):
        I(f"ds_read_b128 {ar(A_WB+4*f,4)}, v70 offset:{WSTG+1024*(8+f)}")
    if PRESCALE:
        for i in range(32):
            I(f"v_mul_f32 v{32+i}, s43, v{32+i}")
    for c in range(2):
        for p in range(8):
            I(f"v_cvt_pk_bf16_f32 v{8*c+p}, v{32+16*c+2*p}, v{32+16*c+2*p+1}")
    for c in range(2):
        for p in range(8):
            I(f"v_accvgpr_write_b32 a{xa(p//4, c) + p%4}, v{8*c+p}")
    I("s_mov_b32 s47, 0")
    L("L_noinit")
    I("s_cmp_eq_u32 s35, 0")
    I("s_cbranch_scc1 L_round_end")
    I(f"v_and_b32 v{T+4}, 31, v{T+4}")
    I(f"v_mad_u32_u24 v{T+7}, v{T+4}, s42, v{OHC}")
    I(f"v_mad_u32_u24 v{SW}, v{T+4}, s42, v{K1C}")
    I(f"ds_write_b16_d16_hi v{SW}, v{ONE}")
    I("s_cmp_lt_u32 s35, 2")
    I("s_cbranch_scc1 L_fill_c")
    I("s_waitcnt lgkmcnt(0)")
    put(x_dma(1))
    put(e_load(1, T + 5))
    I("s_waitcnt vmcnt(5)")
    I("s_branch L_fill_e")
    L("L_fill_c")
    I("s_waitcnt vmcnt(0)")
    L("L_fill_e")
    put(a_reads(0))
    for i in range(32):
        I(f"v_mov_b32 v{G[1]+i}, 0")
    for i in range(8):
        I(f"v_mov_b32 v{S+i}, 0")
    I("s_mov_b32 s36, 0")
    if PRIO:
        I("s_setprio 3")
    stamp(5)
    L("L_loop")
    INLOOP[0] = True
    nv = len(valu_group(0))
    per = 6 if PRESCALE else 7
    for par in range(2):
        I(f"ds_read_b128 {vr(T,4)}, v{LSA} offset:256")
        I("s_add_u32 s46, s36, 2")
        if PRIO:
            put(prio_code(par))
        I("s_waitcnt lgkmcnt(1)")
        mid0 = ["s_cmp_ge_u32 s46, s35",
                "s_waitcnt lgkmcnt(0)",
                f"s_cbranch_scc1 L_nox_{par}"] + x_dma(par) + [f"L_nox_{par}:"]
        interleave(mfma_group(0, par), valu_group(1), per, {9: mid0})
        I("s_nop 1")
        put(agg_group(1))
        early = [f"ds_read2_b32 {vr(T+4,2)}, v{LMA} offset0:32 offset1:64",
                 f"ds_read_b128 {vr(S,4)}, v{SRA}",
                 f"ds_read_b128 {vr(S+4,4)}, v{SRA} offset:32",
                 f"ds_write_b16 v{SW}, v{ONE}"]
        mid1 = ["s_cmp_ge_u32 s46, s35",
                "s_waitcnt lgkmcnt(3)",
                f"s_cbranch_scc1 L_noe_{par}"] + e_load(par, T + 5) + [f"L_noe_{par}:",
                f"v_and_b32 v{T+4}, 31, v{T+4}",
                f"v_mad_u32_u24 v{T+7}, v{T+4}, s42, v{OHC}",
                f"v_mad_u32_u24 v{SW}, v{T+4}, s42, v{K1C}",
                f"v_add_u32 v{LSA}, 128, v{LSA}",
                f"v_add_u32 v{LMA}, 128, v{LMA}",
                "s_add_u32 s36, s36, 1"]
        late = ["s_waitcnt lgkmcnt(0)",
                "s_cmp_ge_u32 s36, s35",
                f"s_cbranch_scc1 L_last_{par}",
                f"ds_write_b16_d16_hi v{SW}, v{ONE}",
                "s_cmp_lt_u32 s46, s35",
                f"s_cbranch_scc1 L_w5_{par}",
                "s_waitcnt vmcnt(0)",
                f"L_w5_{par}:",
                "s_waitcnt vmcnt(5)"] + a_reads(par ^ 1) + [f"L_last_{par}:"]
        interleave(mfma_group(1, par), valu_group(0), per, {1: early, 12: mid1, 10 * per + 1: late})
        I("s_nop 0")
        I("s_cmp_ge_u32 s36, s35")
        put(agg_group(0))
        if par == 0:
            I("s_cbranch_scc1 L_tail")
        else:
            I("s_cbranch_scc0 L_loop")
    L("L_tail")
    INLOOP[0] = False
    put(valu_group(1))
    I("s_nop 1")
    put(agg_group(1))
    L("L_round_end")
    I(f"s_cmp_ge_u32 s34, {NC}")
    I("s_cbranch_scc1 L_epi")
    I("s_mov_b32 s33, s34")
    I("s_add_u32 s34, s34, 1")
    I("v_mbcnt_lo_u32_b32 v67, -1, 0")
    I("v_mbcnt_hi_u32_b32 v67, -1, v67")
    I("s_waitcnt vmcnt(0) lgkmcnt(0)")
    I("s_barrier")
    I("s_branch L_round")
    L("L_epi")
    stamp(6)
    srd(28, 8, 9, N * 128)
    I("v_mbcnt_lo_u32_b32 v67, -1, 0")
    I("v_mbcnt_hi_u32_b32 v67, -1, v67")
    I("v_and_b32 v68, 31, v67")
    I("v_lshrrev_b32 v69, 5, v67")
    I("v_lshlrev_b32 v68, 1, v68")
    I("v_lshl_add_u32 v68, v69, 9, v68")
    I("v_add_u32 v68, s37, v68")
    I("v_lshlrev_b32 v70, 4, v67")
    I("v_add_u32 v71, s37, v70")
    I("s_nop 7")
    I("s_nop 7")
    regs = [i for i in range(13)]
    for c in range(2):
        for i in regs:
            I(f"v_accvgpr_read_b32 v{16*c+i}, a{A_AGG+16*c+i}")
    ids = [16 * c + i for c in range(2) for i in regs]
    for r in ids:
        I(f"v_mul_f32 v{32+r}, s43, v{r}")
    for r in ids:
        I(f"v_exp_f32 v{32+r}, v{32+r}")
    for r in ids:
        I(f"v_add_f32 v{32+r}, 1.0, v{32+r}")
    for r in ids:
        I(f"v_rcp_f32 v{32+r}, v{32+r}")
    for r in ids:
        I(f"v_mul_f32 v{r}, v{r}, v{32+r}")
    for i in regs:
        I(f"v_cvt_pk_bf16_f32 v{32+i}, v{i}, v{16+i}")
    for i in regs:
        row = 8 * (i >> 2) + (i & 3)
        I(f"ds_write_b16 v68, v{32+i} offset:{row*128}")
        I(f"ds_write_b16_d16_hi v68, v{32+i} offset:{row*128+64}")
    I("s_waitcnt lgkmcnt(0)")
    for k in range(4):
        I(f"ds_read_b128 {vr(4*k,4)}, v71 offset:{1024*k}")
    for k in range(3):
        I(f"s_waitcnt lgkmcnt({3-k})")
        I(f"buffer_store_dwordx4 {vr(4*k,4)}, v70, s[28:31], s49 offen offset:{1024*k}")
    I("s_waitcnt lgkmcnt(0)")
    I("s_mov_b64 exec, 0xff")
    I(f"buffer_store_dwordx4 {vr(12,4)}, v70, s[28:31], s49 offen offset:3072")
    if STAMP:
        I("s_waitcnt vmcnt(0)")
        stamp(7)
        srd(28, 10, 11, 0x100000, 0x1000000)
        I("s_mov_b64 exec, 1")
        I("s_lshl_b32 s46, s2, 3")
        I("s_add_u32 s46, s46, s3")
        I("s_lshl_b32 s46, s46, 6")
        I("v_mov_b32 v0, 0")
        for k in range(8):
            I(f"v_mov_b32 v1, s{70+2*k}")
            I(f"buffer_store_dword v1, v0, s[28:31], s46 offen offset:{4*k}")
        I("v_mov_b32 v1, s35")
        I(f"buffer_store_dword v1, v0, s[28:31], s46 offen offset:32")
        I("s_getreg_b32 s47, hwreg(HW_REG_XCC_ID)")
        I("v_mov_b32 v1, s47")
        I(f"buffer_store_dword v1, v0, s[28:31], s46 offen offset:36")
    L("L_k2_end")
    I("s_endpgm")

def kd(name, vgpr, sgpr, accum):
    emit(f".amdhsa_kernel {name}")
    emit(f"  .amdhsa_next_free_vgpr {vgpr}")
    emit(f"  .amdhsa_next_free_sgpr {sgpr}")
    emit(f"  .amdhsa_accum_offset {accum}")
    emit("  .amdhsa_group_segment_fixed_size 0")
    emit("  .amdhsa_kernarg_size 80")
    emit("  .amdhsa_user_sgpr_count 2")
    emit("  .amdhsa_user_sgpr_kernarg_segment_ptr 1")
    emit("  .amdhsa_system_sgpr_workgroup_id_x 1")
    emit(".end_amdhsa_kernel")

def main():
    emit(HEADER.rstrip("\n"))
    emit(f"; @launch kernel=egc_bin_kernel grid=({NC},1,1) block=(1024,1,1) lds={K1_LDS}")
    emit(f"; @launch kernel=egc_main_kernel grid=(256,1,1) block=(512,1,1) lds={K2_LDS}")
    emit('.amdgcn_target "amdgcn-amd-amdhsa--gfx950"')
    emit(".text")
    gen_k1()
    gen_k2()
    emit('.section .rodata,"a"')
    emit(".p2align 6")
    kd("egc_bin_kernel", 84 if PERM else 56, 72, 84 if PERM else 56)
    emit(".p2align 6")
    kd("egc_main_kernel", 248, 96, 128)
    path = sys.argv[1] if len(sys.argv) > 1 else "standalone__edge_featured_mpnn_egc__graph.s"
    open(path, "w").write("\n".join(out) + "\n")

main()
```

```python
import sys, os

N = 50000; E = 800000
WN = 25; NWIN = 2000; NB = 250; CH = 3200; NC = 250
WS_WF = 0; WS_TAB = 0x10000; TABROW = 8192; WS_REC = 0x400000; RECROW = CH * 8
PRESCALE = int(os.environ.get('PRESCALE', '0')) if 'os' in globals() else 0
PERM = int(os.environ.get('PERM', '0'))
WS_EAS = 0x2000000
K1PF = int(os.environ.get('K1PF', '0'))
M25 = 171798692
NEGLOG2E = 0xBFB8AA3B

import os
STAMP = int(os.environ.get("STAMP", "0"))
def stamp(k):
    if STAMP:
        I(f"s_memtime s[{70+2*k}:{71+2*k}]")
        I("s_waitcnt lgkmcnt(0)")
out = []
def emit(s=""):
    out.append(s)
DROP = os.environ.get("DROP", "").split(",")
INLOOP = [False]
def I(s):
    if INLOOP[0]:
        op = s.split()[0]
        if "mfma" in DROP and op.startswith("v_mfma"): return
        if "trans" in DROP and op in ("v_exp_f32", "v_rcp_f32"): return
        if "valu" in DROP and op in ("v_exp_f32", "v_rcp_f32", "v_mul_f32", "v_add_f32", "v_cvt_pk_bf16_f32"): return
        if "dma" in DROP and op.startswith("buffer_load"): return
        if "lds" in DROP and op.startswith("ds_read_b128"): return
    out.append("    " + s)
def L(s):
    out.append(s + ":")

HEADER = """; Kernarg layout for this problem (80 bytes, ptrs only, base s[0:1]):
"""

def srd(d, lo, hi, size, add=0):
    if add:
        I(f"s_add_u32 s{d}, s{lo}, {add}")
        I(f"s_addc_u32 s{d+1}, s{hi}, 0")
    else:
        I(f"s_mov_b32 s{d}, s{lo}")
        I(f"s_mov_b32 s{d+1}, s{hi}")
    I(f"s_mov_b32 s{d+2}, {size}")
    I(f"s_mov_b32 s{d+3}, 0x00020000")

def wave_scan(regs):
    steps = ["row_shr:1 row_mask:0xf bank_mask:0xf", "row_shr:2 row_mask:0xf bank_mask:0xf",
             "row_shr:4 row_mask:0xf bank_mask:0xf", "row_shr:8 row_mask:0xf bank_mask:0xf",
             "row_bcast:15 row_mask:0xa bank_mask:0xf", "row_bcast:31 row_mask:0xc bank_mask:0xf"]
    I("s_nop 1")
    for st in steps:
        for r in regs:
            I(f"v_add_u32_dpp v{r}, v{r}, v{r} {st}")
        if len(regs) < 3:
            I(f"s_nop {2 - len(regs)}")

K1_HIST = 0
K1_WTOT = 8192
K1_STG = 8448
K1_POS = K1_STG + RECROW
K1_LDS = K1_POS + (CH * 4 if PERM else 0)

def gen_k1():
    emit(".globl egc_bin_kernel")
    emit(".p2align 8")
    emit(".type egc_bin_kernel,@function")
    L("egc_bin_kernel")
    I(f"s_cmp_ge_u32 s2, {NC}")
    I("s_cbranch_scc1 L_k1_end")
    I("s_load_dwordx4 s[4:7], s[0:1], 16")
    I("s_load_dwordx4 s[8:11], s[0:1], 32")
    I("s_load_dwordx2 s[12:13], s[0:1], 48")
    I("s_load_dwordx2 s[14:15], s[0:1], 72")
    if PERM:
        I("s_load_dwordx2 s[60:61], s[0:1], 8")
    if K1PF:
        I("s_load_dwordx2 s[64:65], s[0:1], 0")
    I("v_lshlrev_b32 v1, 3, v0")
    I("v_mov_b32 v2, 0")
    I("v_mov_b32 v3, 0")
    I(f"ds_write_b64 v1, v[2:3] offset:{K1_HIST}")
    I("v_lshlrev_b32 v4, 4, v0")
    I("v_lshrrev_b32 v5, 6, v0")
    I(f"s_mul_i32 s32, s2, {CH*4}")
    I("v_readfirstlane_b32 s3, v5")
    I(f"s_mov_b32 s33, {M25}")
    I("s_mov_b32 s36, -25")
    I(f"s_mul_i32 s37, s2, {CH*32}")
    I("s_waitcnt lgkmcnt(0)")
    srd(16, 4, 5, E * 4)
    srd(20, 6, 7, E * 4)
    srd(24, 14, 15, 0x1000000)
    if PERM:
        srd(52, 60, 61, E * 32)
        srd(56, 14, 15, E * 32, WS_EAS)
    I(f"v_cmp_gt_u32 vcc, {CH//4}, v0")
    I("s_and_saveexec_b64 s[34:35], vcc")
    I("s_cbranch_execz L_k1_noload")
    I("buffer_load_dwordx4 v[8:11], v4, s[20:23], s32 offen")
    I("buffer_load_dwordx4 v[12:15], v4, s[16:19], s32 offen")
    L("L_k1_noload")
    I("s_mov_b64 exec, s[34:35]")
    I("s_mov_b32 s40, 0")
    I("s_cmp_lg_u32 s3, 15")
    I("s_cbranch_scc1 L_k1_nowf")
    I("s_cmp_ge_u32 s2, 34")
    I("s_cbranch_scc1 L_k1_nowf")
    I("s_mov_b32 s40, 1")
    I("s_mov_b32 s28, s12")
    I("s_mov_b32 s29, s13")
    I(f"s_mov_b32 s30, {144*128}")
    I("s_mov_b32 s31, 0x00020000")
    I("s_mov_b32 s41, s2")
    I("s_cmp_lt_u32 s2, 18")
    I("s_cbranch_scc1 L_k1_wsel")
    I("s_mov_b32 s28, s10")
    I("s_mov_b32 s29, s11")
    I(f"s_mov_b32 s30, {64*128}")
    I("s_sub_u32 s41, s2, 18")
    I("s_cmp_lt_u32 s2, 26")
    I("s_cbranch_scc1 L_k1_wsel")
    I("s_mov_b32 s28, s8")
    I("s_mov_b32 s29, s9")
    I("s_sub_u32 s41, s2, 26")
    L("L_k1_wsel")
    I("s_lshr_b32 s42, s41, 1")
    I("s_lshl_b32 s42, s42, 11")
    I("s_and_b32 s43, s41, 1")
    I("s_lshl_b32 s43, s43, 6")
    I("s_add_u32 s42, s42, s43")
    I("v_and_b32 v40, 31, v0")
    I("v_lshlrev_b32 v40, 1, v40")
    I("v_and_b32 v41, 32, v0")
    I("v_lshl_add_u32 v40, v41, 5, v40")
    for j in range(8):
        I(f"buffer_load_ushort v{44+j}, v40, s[28:31], s42 offen offset:{128*j}")
    L("L_k1_nowf")
    I("s_barrier")
    if K1PF:
        I("s_mov_b32 s66, s64")
        I("s_mov_b32 s67, s65")
        I("s_mov_b32 s64, s66")
        I("s_mov_b32 s65, s67")
        I(f"s_mov_b32 s66, {N*128}")
        I("s_mov_b32 s67, 0x00020000")
        I("s_lshr_b32 s62, s2, 3")
        I(f"s_mul_i32 s62, s62, {K1PF*128}")
        I("v_lshlrev_b32 v3, 7, v0")
        I(f"s_movk_i32 s63, {K1PF}")
        I("v_cmp_gt_u32 s[48:49], s63, v0")
        I("s_and_saveexec_b64 s[34:35], s[48:49]")
        I("s_cbranch_execz L_k1_nopf")
        I("buffer_load_dword v42, v3, s[64:67], s62 offen")
        L("L_k1_nopf")
        I("s_mov_b64 exec, s[34:35]")
    if PERM:
        for k in range(7):
            if k == 6:
                I("s_cmp_ge_u32 s3, 4")
                I("s_cbranch_scc1 L_k1_e6")
            I(f"s_add_u32 s62, s37, {16384*k}")
            I(f"buffer_load_dwordx4 v[{56+4*k}:{59+4*k}], v4, s[52:55], s62 offen" + os.environ.get("K1EPOL", ""))
        L("L_k1_e6")
    ne = 6 if PERM else 0
    if K1PF >= CH // 4 + 32: ne += 1
    I("s_and_saveexec_b64 s[34:35], vcc")
    I("s_cbranch_execz L_k1_nohist")
    I("v_mov_b32 v6, 1")
    if PERM:
        I("v_mov_b32 v7, s37")
    else:
        I("v_lshl_add_u32 v7, v0, 7, s37")
    I(f"s_waitcnt vmcnt({ne+1})")
    for i in range(4):
        I(f"v_mul_hi_u32 v{16+i}, v{8+i}, s33")
    for i in range(4):
        I(f"v_lshlrev_b32 v{20+i}, 2, v{16+i}")
    for i in range(4):
        I(f"ds_add_rtn_u32 v{24+i}, v{20+i}, v6 offset:{K1_HIST}")
    for i in range(4):
        I(f"v_mad_i32_i24 v{28+i}, v{16+i}, s36, v{8+i}")
    for i in range(4):
        I(f"v_lshlrev_b32 v{16+i}, 29, v{16+i}")
    for i in range(4):
        I(f"v_or3_b32 v{33+2*i}, v{16+i}, v7, v{28+i}")
    if not PERM:
        for i in range(1, 4):
            I(f"v_add_u32 v{33+2*i}, {32*i}, v{33+2*i}")
    I(f"s_waitcnt vmcnt({ne})")
    for i in range(4):
        I(f"v_lshlrev_b32 v{32+2*i}, 7, v{12+i}")
    L("L_k1_nohist")
    I("s_mov_b64 exec, s[34:35]")
    I("s_waitcnt lgkmcnt(0)")
    I("s_barrier")
    I(f"ds_read_b64 v[2:3], v1 offset:{K1_HIST}")
    I("s_waitcnt lgkmcnt(0)")
    I("v_add_u32 v8, v2, v3")
    I("v_mov_b32 v9, v8")
    wave_scan([9])
    I("s_lshl_b32 s44, s3, 2")
    I("v_mov_b32 v10, s44")
    I("s_mov_b32 exec_lo, 0")
    I("s_mov_b32 exec_hi, 0x80000000")
    I(f"ds_write_b32 v10, v9 offset:{K1_WTOT}")
    I("s_mov_b64 exec, -1")
    I("v_and_b32 v10, 15, v0")
    I("v_lshlrev_b32 v10, 2, v10")
    I("s_waitcnt lgkmcnt(0)")
    I("s_barrier")
    I(f"ds_read_b32 v11, v10 offset:{K1_WTOT}")
    I("s_waitcnt lgkmcnt(0)")
    I("v_mov_b32 v12, v11")
    I("s_nop 1")
    for sh in (1, 2, 4, 8):
        I(f"v_add_u32_dpp v12, v12, v12 row_shr:{sh} row_mask:0xf bank_mask:0xf")
        I("s_nop 1")
    I("v_sub_u32 v12, v12, v11")
    I("s_nop 0")
    I("v_readlane_b32 s45, v12, s3")
    I("v_sub_u32 v9, v9, v8")
    I("s_nop 1")
    I("v_add_u32 v9, s45, v9")
    I("v_add_u32 v10, v9, v2")
    I("v_mov_b32 v12, v9")
    I("v_mov_b32 v13, v10")
    I(f"ds_write_b64 v1, v[12:13] offset:{K1_HIST}")
    I("s_waitcnt lgkmcnt(0)")
    I("s_barrier")
    I(f"s_movk_i32 s50, {NB}")
    I("v_cmp_gt_u32 s[48:49], s50, v0")
    I("s_and_saveexec_b64 s[34:35], s[48:49]")
    I("s_cbranch_execz L_k1_notab")
    I("v_lshlrev_b32 v14, 5, v0")
    I(f"ds_read_b128 v[8:11], v14 offset:{K1_HIST}")
    I(f"ds_read_b128 v[16:19], v14 offset:{K1_HIST+16}")
    I(f"ds_read_b32 v12, v14 offset:{K1_HIST+32}")
    I("v_lshlrev_b32 v14, 13, v0")
    I("s_lshl_b32 s46, s2, 5")
    I(f"s_add_u32 s46, s46, {WS_TAB}")
    I("s_waitcnt lgkmcnt(0)")
    I("v_lshl_or_b32 v8, v9, 16, v8")
    I("v_lshl_or_b32 v9, v11, 16, v10")
    I("v_lshl_or_b32 v10, v17, 16, v16")
    I("v_lshl_or_b32 v11, v19, 16, v18")
    I("buffer_store_dwordx4 v[8:11], v14, s[24:27], s46 offen")
    I("buffer_store_dword v12, v14, s[24:27], s46 offen offset:16")
    L("L_k1_notab")
    I("s_mov_b64 exec, s[34:35]")
    I("s_and_saveexec_b64 s[34:35], vcc")
    I("s_cbranch_execz L_k1_noscat")
    for i in range(4):
        I(f"ds_read_b32 v{28+i}, v{20+i} offset:{K1_HIST}")
    for i in range(4):
        I(f"s_waitcnt lgkmcnt({3-i})")
        I(f"v_add_lshl_u32 v{28+i}, v{28+i}, v{24+i}, 3")
    if PERM:
        for i in range(4):
            I(f"v_lshlrev_b32 v{20+i}, 2, v{28+i}")
        for i in range(4):
            I(f"v_add_u32 v{33+2*i}, v{33+2*i}, v{20+i}")
        I(f"ds_write_b128 v4, v[20:23] offset:{K1_POS}")
    for i in range(4):
        I(f"ds_write_b64 v{28+i}, v[{32+2*i}:{33+2*i}] offset:{K1_STG}")
    L("L_k1_noscat")
    I("s_mov_b64 exec, s[34:35]")
    I("s_waitcnt lgkmcnt(0)")
    I("s_barrier")
    I(f"s_mul_i32 s46, s2, {RECROW}")
    I(f"s_add_u32 s46, s46, {WS_REC}")
    I(f"ds_read_b128 v[8:11], v4 offset:{K1_STG}")
    I(f"v_cmp_gt_u32 vcc, {RECROW//16 - 1024}, v0")
    I("s_and_saveexec_b64 s[34:35], vcc")
    I("s_cbranch_execz L_k1_no2")
    I(f"ds_read_b128 v[12:15], v4 offset:{K1_STG + 16384}")
    I("s_add_u32 s47, s46, 16384")
    I("s_waitcnt lgkmcnt(0)")
    I("buffer_store_dwordx4 v[12:15], v4, s[24:27], s47 offen")
    L("L_k1_no2")
    I("s_mov_b64 exec, s[34:35]")
    I("s_waitcnt lgkmcnt(0)")
    I("buffer_store_dwordx4 v[8:11], v4, s[24:27], s46 offen")
    if PERM:
        I("v_lshrrev_b32 v16, 1, v0")
        I("v_lshlrev_b32 v16, 2, v16")
        I("v_and_b32 v17, 1, v0")
        I("v_lshlrev_b32 v17, 4, v17")
        for k in range(7):
            I(f"ds_read_b32 v{20+k}, v16 offset:{K1_POS+2048*k}")
        for k in range(7):
            if k == 6:
                I("s_cmp_ge_u32 s3, 4")
                I("s_cbranch_scc1 L_k1_s6")
            I(f"s_waitcnt lgkmcnt({6-k})")
            I(f"v_add_u32 v{20+k}, v{20+k}, v17")
            if k == 0:
                I("s_waitcnt vmcnt(0)")
            I(f"buffer_store_dwordx4 v[{56+4*k}:{59+4*k}], v{20+k}, s[56:59], s37 offen" + os.environ.get("K1SPOL", ""))
        L("L_k1_s6")
    I("s_cmp_eq_u32 s40, 0")
    I("s_cbranch_scc1 L_k1_end")
    I("s_waitcnt vmcnt(0)")
    if PRESCALE:
        I("s_sub_u32 s46, s2, 8")
        I("s_cmp_lt_u32 s46, 10")
        I(f"s_cselect_b32 s47, {NEGLOG2E}, 1.0")
        for j in range(8):
            I(f"v_lshlrev_b32 v{44+j}, 16, v{44+j}")
        for j in range(8):
            I(f"v_mul_f32 v{44+j}, s47, v{44+j}")
        for j in range(4):
            I(f"v_cvt_pk_bf16_f32 v{52+j}, v{44+2*j}, v{45+2*j}")
    else:
        for j in range(4):
            I(f"v_lshl_or_b32 v{52+j}, v{45+2*j}, 16, v{44+2*j}")
    I("v_and_b32 v40, 63, v0")
    I("v_lshlrev_b32 v40, 4, v40")
    I("s_lshl_b32 s46, s2, 10")
    I("buffer_store_dwordx4 v[52:55], v40, s[24:27], s46 offen")
    L("L_k1_end")
    I("s_endpgm")

WSTG = 0
LCAP = 4352
TLIM = 3584
LIST_S = 34816
LIST_M = LIST_S + LCAP * 4
SM = LIST_M + LCAP * 4
SMW = 2000
OH = SM + 16576
BASET = OH + 2560
WTOT = BASET + 4096
STG = WTOT + 256
STGW = 8192
K2_LDS = STG + 8 * STGW
assert STG % 128 == 0 or True
EMASK = 0x01FFFFE0

G = [0, 32]; H = [16, 48]
AX = 64; ST = 80; S = 88; EB = [96, 100]; T = 104
VAX = 112; PC = 116; H16 = 117; LSA = 118; LMA = 119; K1C = 120; SRA = 121; OHC = 122; SW = 123; ONE = 124
A_WB = 0; A_WV = 40; A_XA = 72; A_AGG = 88

def wb(s, c): return A_WB + (2 * s + c) * 4
def wv(s, c): return A_WV + (2 * s + c) * 4
def xa(s, c): return A_XA + (2 * s + c) * 4
def vr(b, n): return f"v[{b}:{b+n-1}]"
def ar(b, n): return f"a[{b}:{b+n-1}]"

def mfma(d, a, b, c):
    return f"v_mfma_f32_32x32x16_bf16 {d}, {a}, {b}, {c}"

def mfma_group(c, par):
    m = []
    g = vr(G[c], 16); h = vr(H[c], 16)
    m.append(mfma(g, vr(EB[par], 4), ar(wb(4, c), 4), "0"))
    for s in range(2):
        m.append(mfma(g, vr(ST + 4 * s, 4), ar(xa(s, c), 4), g))
    for s in range(4):
        m.append(mfma(g, vr(AX + 4 * s, 4), ar(wb(s, c), 4), g))
    for s in range(4):
        m.append(mfma(h, vr(AX + 4 * s, 4), ar(wv(s, c), 4), "0" if s == 0 else h))
    return m

def valu_group(c):
    g = G[c]; h = H[c]
    stages = [
        lambda i: f"v_mul_f32 v{g+i}, s43, v{g+i}",
        lambda i: f"v_exp_f32 v{g+i}, v{g+i}",
        lambda i: f"v_add_f32 v{g+i}, 1.0, v{g+i}",
        lambda i: f"v_rcp_f32 v{g+i}, v{g+i}",
        lambda i: f"v_mul_f32 v{g+i}, v{g+i}, v{h+i}",
    ]
    if PRESCALE:
        stages = stages[1:]
    v = []
    D = 2
    nst = len(stages)
    for step in range(16 + D * nst + 2):
        for k in range(nst):
            i = step - D * k
            if 0 <= i < 16:
                v.append(stages[k](i))
        i = step - D * nst
        if 0 <= i < 16 and i % 2 == 1:
            p = i // 2
            v.append(f"v_cvt_pk_bf16_f32 v{g+p}, v{g+i-1}, v{g+i}")
    return v

def agg_group(c):
    a = ar(A_AGG + 16 * c, 16)
    return [mfma(a, vr(S, 4), vr(G[c], 4), a), mfma(a, vr(S + 4, 4), vr(G[c] + 4, 4), a)]

def put(lst):
    for x in lst:
        if x.endswith(":"):
            emit(x)
        else:
            I(x)

def interleave(mf, va, per, inserts):
    mi = 0
    for i, v in enumerate(va):
        if i % per == 0 and mi < len(mf):
            I(mf[mi])
            mi += 1
        if i in inserts:
            put(inserts[i])
        I(v)
    assert mi == len(mf)

NOMEM = int(os.environ.get("NOMEM", "0"))
def x_dma(par):
    r = []
    if NOMEM:
        for k in range(4):
            r.append(f"v_and_b32 v{T+k}, 0x3f80, v{T+k}")
    r.append(f"v_add_u32 v{T+0}, v{PC}, v{T+0}")
    r.append(f"v_xad_u32 v{T+1}, v{PC}, 64, v{T+1}")
    r.append(f"v_add_u32 v{T+2}, v{PC}, v{T+2}")
    r.append(f"v_xad_u32 v{T+3}, v{PC}, 64, v{T+3}")
    for k in range(4):
        r.append(f"s_add_u32 m0, s37, {par*4096 + k*1024}")
        r.append("s_nop 0")
        r.append(f"buffer_load_dwordx4 v{T+k}, s[12:15], 0 offen lds")
    return r

def e_load(par, meta):
    r = []
    if NOMEM:
        r.append(f"v_and_b32 v{meta}, 0x3fff, v{meta}")
    r.append(f"v_and_or_b32 v{T+6}, v{meta}, s40, v{H16}")
    r.append(f"buffer_load_dwordx4 {vr(EB[par],4)}, v{T+6}, s[16:19], 0 offen" + os.environ.get("EPOL", ""))
    return r

def a_reads(par):
    r = []
    for s in range(2):
        r.append(f"ds_read_b128 {vr(ST+4*s,4)}, v{T+7} offset:{16*s}")
    for s in range(4):
        r.append(f"ds_read_b128 {vr(AX+4*s,4)}, v{VAX+s} offset:{par*4096}")
    return r

PRIO = int(os.environ.get("PRIO", "1"))
def prio_code(par):
    r = []
    for lim, p in ((10, 2), (7, 1), (4, 0)):
        r += [f"s_cmp_lt_u32 s36, {lim}",
              f"s_cbranch_scc0 L_pr_done",
              f"s_setprio {p}"]
    r += ["L_pr_done:"]
    return r

def gen_k2():
    emit(".globl egc_main_kernel")
    emit(".p2align 8")
    emit(".type egc_main_kernel,@function")
    L("egc_main_kernel")
    I("s_cmp_ge_u32 s2, 256")
    I("s_cbranch_scc1 L_k2_end")
    I("s_load_dwordx2 s[10:11], s[0:1], 72")
    I("s_load_dwordx4 s[4:7], s[0:1], 0")
    I("s_load_dwordx2 s[8:9], s[0:1], 56")
    I("s_and_b32 s38, s2, 7")
    I("s_lshr_b32 s39, s2, 3")
    I(f"s_mul_i32 s44, s38, {NB}")
    I(f"s_add_u32 s45, s44, {NB}")
    I("s_lshr_b32 s44, s44, 3")
    I("s_lshr_b32 s45, s45, 3")
    I("s_add_u32 s32, s44, s39")
    I("s_cmp_ge_u32 s32, s45")
    I("s_cbranch_scc1 L_k2_end")
    stamp(0)
    if STAMP:
        I("s_memrealtime s[86:87]")
    I("v_lshrrev_b32 v1, 6, v0")
    I("v_and_b32 v67, 63, v0")
    I("v_readfirstlane_b32 s3, v1")
    I("s_mov_b32 s33, 0")
    I(f"s_movk_i32 s34, {NC}")
    I("s_mov_b32 s47, 1")
    I("s_lshl_b32 s48, s32, 13")
    I(f"s_add_u32 s48, s48, {WS_TAB}")
    I("s_waitcnt lgkmcnt(0)")
    I("s_add_u32 s20, s10, s48")
    I("s_addc_u32 s21, s11, 0")
    I(f"s_mov_b32 s22, {NC*32}")
    I("s_mov_b32 s23, 0x00020000")
    L("L_round")
    I("s_lshl_b32 s46, s3, 5")
    I("v_lshrrev_b32 v66, 1, v67")
    I("v_add_u32 v66, s46, v66")
    I("v_lshlrev_b32 v65, 5, v66")
    I("buffer_load_dwordx4 v[24:27], v65, s[20:23], 0 offen")
    I("buffer_load_dword v28, v65, s[20:23], 0 offen offset:16")
    I("s_cmp_eq_u32 s47, 0")
    I("s_cbranch_scc1 L_noconst")
    srd(12, 4, 5, N * 128)
    if PERM:
        srd(16, 10, 11, E * 32, WS_EAS)
    else:
        srd(16, 6, 7, E * 32)
    srd(24, 10, 11, NC * RECROW, WS_REC)
    srd(28, 10, 11, 34 * 1024)
    I(f"s_mov_b32 s40, {EMASK}")
    I("s_movk_i32 s42, 80")
    I(f"s_mov_b32 s43, {NEGLOG2E}")
    I(f"s_lshl_b32 s37, s3, 13")
    I(f"s_add_u32 s37, s37, {STG}")
    I("v_and_b32 v3, 31, v67")
    I("v_lshrrev_b32 v4, 5, v67")
    I("v_bfe_u32 v5, v3, 1, 3")
    I("v_xor_b32 v5, v5, v4")
    I("v_lshlrev_b32 v5, 4, v5")
    I("v_lshl_add_u32 v5, v3, 7, v5")
    I(f"v_add_u32 v{VAX}, s37, v5")
    for s in range(1, 4):
        I(f"v_xor_b32 v6, {32*s}, v5")
        I(f"v_add_u32 v{VAX+s}, s37, v6")
    I("v_lshrrev_b32 v5, 4, v67")
    I("v_and_b32 v6, 7, v67")
    I("v_xor_b32 v5, v5, v6")
    I(f"v_lshlrev_b32 v{PC}, 4, v5")
    I(f"v_lshlrev_b32 v{H16}, 4, v4")
    I(f"s_mul_i32 s46, s3, {SMW}")
    I(f"s_add_u32 s46, s46, {SM}")
    I("v_lshrrev_b32 v5, 4, v3")
    I("v_lshlrev_b32 v5, 5, v5")
    I("v_bfe_u32 v6, v3, 2, 1")
    I("v_lshl_add_u32 v5, v6, 4, v5")
    I("v_bfe_u32 v6, v3, 3, 1")
    I("v_lshl_add_u32 v5, v6, 3, v5")
    I("v_and_b32 v6, 3, v3")
    I("v_lshl_add_u32 v5, v6, 1, v5")
    I(f"v_add_u32 v{K1C}, s46, v5")
    I(f"v_add_u32 v6, s46, v{H16}")
    I(f"v_mad_u32_u24 v{SRA}, v3, s42, v6")
    I("v_lshlrev_b32 v6, 5, v4")
    I(f"v_add_u32 v{OHC}, {OH}, v6")
    I(f"v_mov_b32 v{ONE}, 1.0")
    for i in range(4):
        I(f"v_mov_b32 v{8+i}, 0")
    I("v_lshlrev_b32 v70, 4, v67")
    I("v_add_u32 v7, s46, v70")
    I("ds_write_b128 v7, v[8:11]")
    I("v_cmp_gt_u32 vcc, 61, v67")
    I("s_and_saveexec_b64 s[50:51], vcc")
    I("ds_write_b128 v7, v[8:11] offset:1024")
    I("s_mov_b64 exec, -1")
    I("s_cmp_lg_u32 s3, 0")
    I("s_cbranch_scc1 L_noconst")
    I(f"v_add_u32 v7, {OH}, v70")
    I("ds_write_b128 v7, v[8:11]")
    I("ds_write_b128 v7, v[8:11] offset:1024")
    I("s_mov_b32 exec_hi, 0")
    I("ds_write_b128 v7, v[8:11] offset:2048")
    I("v_bfe_u32 v6, v3, 2, 1")
    I("v_lshlrev_b32 v6, 5, v6")
    I("v_lshrrev_b32 v7, 4, v3")
    I("v_lshl_add_u32 v6, v7, 4, v6")
    I("v_and_b32 v7, 15, v5")
    I("v_add_u32 v6, v6, v7")
    I("v_mad_u32_u24 v6, v3, s42, v6")
    I(f"v_add_u32 v6, {OH}, v6")
    I(f"ds_write_b16_d16_hi v6, v{ONE}")
    I("s_mov_b64 exec, -1")
    L("L_noconst")
    I("s_waitcnt vmcnt(0)")
    stamp(1)
    I("v_and_b32 v29, 0xffff, v24")
    I("v_subrev_u32 v30, s33, v66")
    I("s_sub_u32 s46, s34, s33")
    I("v_cmp_gt_u32 s[52:53], s46, v30")
    I("v_and_b32 v31, 1, v67")
    I("v_lshl_add_u32 v64, v31, 1, v29")
    I("v_cndmask_b32 v30, v29, v28, s[52:53]")
    I(f"s_movk_i32 s46, {RECROW}")
    I("v_mul_u32_u24 v65, s46, v66")
    I("v_lshl_add_u32 v65, v64, 3, v65")
    I("v_sub_u32 v68, v30, v64")
    def rec_loads(tag):
        for i in range(6):
            I(f"v_cmpx_lt_i32 vcc, {4*i}, v68")
            I("s_nop 0")
            I(f"s_cbranch_execz L_rl_{tag}")
            I(f"buffer_load_dwordx4 v[{4*i}:{4*i+3}], v65, s[24:27], 0 offen offset:{32*i}")
        L(f"L_rl_{tag}")
        I("s_mov_b64 exec, -1")
    rec_loads("a")
    I("v_cmp_eq_u32 vcc, 0, v31")
    I("s_and_b64 vcc, vcc, s[52:53]")
    I("v_alignbit_b32 v72, v25, v24, 16")
    I("v_alignbit_b32 v73, v26, v25, 16")
    I("v_alignbit_b32 v74, v27, v26, 16")
    I("v_alignbit_b32 v75, v28, v27, 16")
    for i in range(4):
        I(f"v_sub_u32 v{72+i}, v{72+i}, v{24+i}")
    I("v_sub_u32 v76, v28, v29")
    for i in range(5):
        I(f"v_cndmask_b32 v{72+i}, 0, v{72+i}, vcc")
    for i in range(5):
        I(f"v_mov_b32 v{80+i}, v{72+i}")
    wave_scan([80, 81, 82, 83, 84])
    I("s_lshl_b32 s46, s3, 5")
    I(f"s_add_u32 s46, s46, {WTOT}")
    I("v_mov_b32 v69, s46")
    I("s_mov_b32 exec_lo, 0")
    I("s_mov_b32 exec_hi, 0x80000000")
    I("ds_write_b128 v69, v[80:83]")
    I("ds_write_b32 v69, v84 offset:16")
    I("s_mov_b64 exec, -1")
    I("v_and_b32 v69, 7, v67")
    I("v_lshlrev_b32 v69, 5, v69")
    I(f"v_add_u32 v69, {WTOT}, v69")
    I("s_waitcnt lgkmcnt(0)")
    I("s_barrier")
    stamp(2)
    I("ds_read_b128 v[88:91], v69")
    I("ds_read_b32 v92, v69 offset:16")
    I("s_waitcnt lgkmcnt(0)")
    for i in range(5):
        I(f"v_mov_b32 v{32+i}, v{88+i}")
    I("s_nop 1")
    for sh in (1, 2, 4):
        for i in range(5):
            I(f"v_add_u32_dpp v{32+i}, v{32+i}, v{32+i} row_shr:{sh} row_mask:0xf bank_mask:0xf")
    I("s_nop 1")
    for i in range(4):
        I(f"v_sub_u32 v{88+i}, v{32+i}, v{88+i}")
    I("v_readlane_b32 s60, v36, 7")
    for i in range(4):
        I(f"v_readlane_b32 s{56+i}, v{32+i}, 7")
    for i in range(4):
        I(f"v_readlane_b32 s{52+i}, v{88+i}, s3")
    I(f"s_cmp_le_u32 s60, {TLIM}")
    I("s_cbranch_scc1 L_fits")
    I("s_sub_u32 s46, s34, s33")
    I("s_cmp_eq_u32 s46, 1")
    I("s_cselect_b32 s34, s34, s33")
    for i in range(4):
        I(f"s_mov_b32 s{56+i}, 0")
    I("v_mov_b32 v68, 0")
    L("L_fits")
    I("s_mov_b32 s61, 0")
    I("s_mov_b32 s62, 0")
    I("s_mov_b32 s63, 0")
    for i in range(4):
        I(f"s_add_u32 s64, s{56+i}, 0x005f005f")
        I("s_and_b32 s64, s64, 0xffe0ffe0")
        I("s_and_b32 s65, s64, 0xffff")
        I("s_lshr_b32 s66, s64, 16")
        I("s_add_u32 s67, s61, s65")
        I(f"s_and_b32 s68, s{56+i}, 0xffff")
        I(f"s_cmp_eq_u32 s3, {2*i}")
        I("s_cselect_b32 s62, s61, s62")
        I("s_cselect_b32 s63, s68, s63")
        I(f"s_lshr_b32 s68, s{56+i}, 16")
        I(f"s_cmp_eq_u32 s3, {2*i+1}")
        I("s_cselect_b32 s62, s67, s62")
        I("s_cselect_b32 s63, s68, s63")
        I("s_lshl_b32 s68, s67, 16")
        I("s_or_b32 s68, s68, s61")
        I(f"s_add_u32 s{52+i}, s{52+i}, s68")
        I(f"s_add_u32 s{52+i}, s{52+i}, 0x10001000")
        I("s_add_u32 s61, s67, s66")
    for i in range(4):
        I(f"v_sub_u32 v{80+i}, v{80+i}, v{72+i}")
    for i in range(4):
        I(f"v_add_u32 v{80+i}, s{52+i}, v{80+i}")
    for i in range(4):
        I(f"v_sub_u32 v{80+i}, v{80+i}, v{24+i}")
    I("v_lshlrev_b32 v69, 4, v66")
    I(f"v_add_u32 v69, {BASET}, v69")
    I("s_mov_b32 exec_lo, 0x55555555")
    I("s_mov_b32 exec_hi, 0x55555555")
    I("ds_write_b128 v69, v[80:83]")
    I("s_mov_b64 exec, -1")
    I("s_add_u32 s64, s63, 31")
    I("s_lshr_b32 s35, s64, 5")
    I("s_lshl_b32 s64, s35, 5")
    I("s_sub_u32 s64, s64, s63")
    I("s_add_u32 s65, s62, s63")
    I("v_add_lshl_u32 v72, v67, s65, 2")
    I("v_mov_b32 v73, 0xffffff00")
    I(f"v_mov_b32 v74, {EMASK}")
    I(f"ds_write2st64_b32 v72, v73, v74 offset0:{LIST_S//256} offset1:{LIST_M//256}")
    I("v_cmp_gt_u32 vcc, s64, v67")
    I("s_and_saveexec_b64 s[50:51], vcc")
    I(f"ds_write2st64_b32 v72, v73, v74 offset0:{LIST_S//256+1} offset1:{LIST_M//256+1}")
    I("s_mov_b64 exec, -1")
    I("s_lshl_b32 s64, s62, 2")
    I("v_lshrrev_b32 v72, 3, v67")
    I("v_lshlrev_b32 v72, 4, v72")
    I(f"s_add_u32 s65, s64, {LIST_S}")
    I(f"v_add_u32 v{LSA}, s65, v72")
    I("v_and_b32 v72, 7, v67")
    I("v_bfe_u32 v73, v67, 3, 2")
    I("v_lshl_add_u32 v72, v72, 2, v73")
    I("v_lshlrev_b32 v72, 2, v72")
    I(f"s_add_u32 s65, s64, {LIST_M}")
    I(f"v_add_u32 v{LMA}, s65, v72")
    I("s_cmp_eq_u32 s47, 0")
    I("s_cbranch_scc1 L_scat")
    for k in range(5):
        I(f"s_add_u32 s46, s3, {8*k}")
        if k == 4:
            I("s_min_u32 s46, s46, 33")
        I("s_lshl_b32 s46, s46, 10")
        I(f"s_add_u32 m0, s46, {WSTG}")
        I("s_nop 0")
        I("buffer_load_dwordx4 v70, s[28:31], s46 offen lds")
    for i in range(16):
        I(f"v_mov_b32 v{80+i}, 0")
    I("v_and_b32 v72, 31, v67")
    I(f"v_lshl_add_u32 v72, v72, 7, v{H16}")
    I("s_lshl_b32 s46, s32, 3")
    I("s_add_u32 s46, s46, s3")
    I(f"s_mul_i32 s49, s46, {WN*128}")
    I("s_mov_b32 exec_lo, 0x1ffffff")
    I("s_mov_b32 exec_hi, 0x1ffffff")
    for s in range(4):
        I(f"buffer_load_dwordx4 {vr(80+4*s,4)}, v72, s[12:15], s49 offen offset:{32*s}")
    I("s_mov_b64 exec, -1")
    I("s_waitcnt vmcnt(9)")
    I("s_branch L_scat1")
    L("L_scat")
    I("s_waitcnt vmcnt(0)")
    L("L_scat1")
    stamp(3)
    for r in range(12):
        I(f"v_lshrrev_b32 v{32+r}, 28, v{2*r+1}")
    for r in range(12):
        I(f"v_add_u32 v{32+r}, v{32+r}, v69")
    for r in range(12):
        I(f"ds_read_u16 v{32+r}, v{32+r}")
    o0 = (LIST_S - 16384) // 256; o1 = (LIST_M - 16384) // 256
    for r in range(12):
        i, k = r // 2, r % 2
        I(f"v_cmpx_lt_i32 vcc, {4*i+k}, v68")
        I("s_waitcnt lgkmcnt(11)")
        I("s_cbranch_execz L_scat_done")
        I(f"v_add3_u32 v{32+r}, v{32+r}, v64, {4*i+k}")
        I(f"v_lshlrev_b32 v{32+r}, 2, v{32+r}")
        I(f"ds_write2st64_b32 v{32+r}, v{2*r}, v{2*r+1} offset0:{o0} offset1:{o1}")
    I("v_cmpx_lt_i32 vcc, 24, v68")
    I("s_nop 0")
    I("s_cbranch_execz L_scat_done")
    I("s_mov_b64 exec, -1")
    I("v_add_u32 v64, 24, v64")
    I("v_subrev_u32 v68, 24, v68")
    I("v_add_u32 v65, 192, v65")
    I("s_waitcnt lgkmcnt(0)")
    rec_loads("b")
    I("s_branch L_scat")
    L("L_scat_done")
    I("s_mov_b64 exec, -1")
    I("s_waitcnt lgkmcnt(0)")
    I("s_barrier")
    stamp(4)
    I(f"ds_read_b128 {vr(T,4)}, v{LSA}")
    I(f"ds_read2_b32 {vr(T+4,2)}, v{LMA} offset0:0 offset1:32")
    I("s_waitcnt lgkmcnt(0)")
    put(x_dma(0))
    put(e_load(0, T + 4))
    I(f"ds_read_b128 {vr(T,4)}, v{LSA} offset:128")
    I("s_cmp_eq_u32 s47, 0")
    I("s_cbranch_scc1 L_noinit")
    I("s_waitcnt vmcnt(5)")
    I("s_barrier")
    for f in range(8):
        I(f"ds_read_b128 {vr(4*f,4)}, v70 offset:{WSTG+1024*f}")
    for f in range(8):
        I(f"ds_read_b128 {ar(4*f,4)}, v70 offset:{WSTG+1024*(26+f)}")
    for f in range(8):
        I(f"ds_read_b128 {ar(A_WV+4*f,4)}, v70 offset:{WSTG+1024*(18+f)}")
    I("s_waitcnt lgkmcnt(15)")
    I("s_waitcnt lgkmcnt(8)")
    for c in range(2):
        d = vr(32 + 16 * c, 16)
        for s in range(4):
            I(mfma(d, vr(80 + 4 * s, 4), vr((2 * s + c) * 4, 4), "0" if s == 0 else d))
    for c in range(2):
        a = ar(A_AGG + 16 * c, 16)
        for s in range(4):
            I(mfma(a, vr(80 + 4 * s, 4), ar((2 * s + c) * 4, 4), "0" if s == 0 else a))
    for f in range(10):
        I(f"ds_read_b128 {ar(A_WB+4*f,4)}, v70 offset:{WSTG+1024*(8+f)}")
    if PRESCALE:
        for i in range(32):
            I(f"v_mul_f32 v{32+i}, s43, v{32+i}")
    for c in range(2):
        for p in range(8):
            I(f"v_cvt_pk_bf16_f32 v{8*c+p}, v{32+16*c+2*p}, v{32+16*c+2*p+1}")
    for c in range(2):
        for p in range(8):
            I(f"v_accvgpr_write_b32 a{xa(p//4, c) + p%4}, v{8*c+p}")
    I("s_mov_b32 s47, 0")
    L("L_noinit")
    I("s_cmp_eq_u32 s35, 0")
    I("s_cbranch_scc1 L_round_end")
    I(f"v_and_b32 v{T+4}, 31, v{T+4}")
    I(f"v_mad_u32_u24 v{T+7}, v{T+4}, s42, v{OHC}")
    I(f"v_mad_u32_u24 v{SW}, v{T+4}, s42, v{K1C}")
    I(f"ds_write_b16_d16_hi v{SW}, v{ONE}")
    I("s_waitcnt lgkmcnt(0)")
    put(x_dma(1))
    put(e_load(1, T + 5))
    for i in range(8):
        I(f"v_mov_b32 v{G[0]+i}, 0")
    for i in range(32):
        I(f"v_mov_b32 v{G[1]+i}, 0")
    for i in range(8):
        I(f"v_mov_b32 v{S+i}, 0")
    I("s_waitcnt vmcnt(5)")
    put(a_reads(0))
    I(f"ds_read_b128 {vr(T,4)}, v{LSA} offset:256")
    I("s_mov_b32 s36, s35")
    if PRIO:
        I("s_setprio 3")
    stamp(5)
    L("L_loop")
    INLOOP[0] = True
    nv = len(valu_group(0))
    pos = [2 + (k * (nv - 4)) // 13 for k in range(13)]
    def sched(mf, va, inserts):
        pend = []
        mi = 0
        for i, v in enumerate(va):
            if mi < len(mf) and i == pos[mi]:
                put(inserts.get(('b', mi), []))
                I(mf[mi])
                put(inserts.get(('m', mi), []))
                pend += inserts.get(('s', mi), [])
                mi += 1
            I(v)
            if pend:
                put([pend.pop(0)])
        assert mi == len(mf)
        put(pend)
    def nonop(lst):
        return [x for x in lst if x != "s_nop 0"]
    for par in range(2):
        ins = {('b', 3): ["s_waitcnt lgkmcnt(1)"],
               ('m', 4): ["s_waitcnt lgkmcnt(0)"],
               ('s', 4): nonop(x_dma(par))}
        if PRIO and par == 0:
            ins[('m', 0)] = prio_code(par)
        sched(agg_group(0) + mfma_group(0, par), valu_group(1), ins)
        ins = {('m', 0): [f"ds_read2_b32 {vr(T+4,2)}, v{LMA} offset0:32 offset1:64"],
               ('s', 1): [f"ds_read_b128 {vr(S,4)}, v{SRA}",
                          f"ds_read_b128 {vr(S+4,4)}, v{SRA} offset:32",
                          f"ds_write_b16 v{SW}, v{ONE}"],
               ('m', 3): ["s_waitcnt lgkmcnt(3)"] + e_load(par, T + 5),
               ('s', 3): [f"v_and_b32 v{T+4}, 31, v{T+4}",
                          f"v_add_u32 v{LSA}, 128, v{LSA}",
                          f"v_mad_u32_u24 v{T+7}, v{T+4}, s42, v{OHC}",
                          f"v_mad_u32_u24 v{SW}, v{T+4}, s42, v{K1C}",
                          f"v_add_u32 v{LMA}, 128, v{LMA}",
                          f"ds_write_b16_d16_hi v{SW}, v{ONE}",
                          "s_sub_u32 s36, s36, 1"],
               ('m', 4): [f"v_mov_b32 v{T+6}, v{T+6}"] * int(os.environ.get("EXTRAV", "0")),
               ('m', 12): ["s_waitcnt vmcnt(5) lgkmcnt(0)"] + a_reads(par ^ 1) + [f"ds_read_b128 {vr(T,4)}, v{LSA} offset:256"]}
        sched(agg_group(1) + mfma_group(1, par), valu_group(0), ins)
        I("s_cmp_eq_u32 s36, 0")
        if par == 0:
            I("s_cbranch_scc1 L_tail")
        else:
            I("s_cbranch_scc0 L_loop")
    L("L_tail")
    INLOOP[0] = False
    I(f"ds_write_b16 v{SW}, v{ONE}")
    I("s_nop 0")
    put(agg_group(0))
    put(valu_group(1))
    I("s_nop 1")
    put(agg_group(1))
    L("L_round_end")
    I(f"s_cmp_ge_u32 s34, {NC}")
    I("s_cbranch_scc1 L_epi")
    I("s_mov_b32 s33, s34")
    I("s_add_u32 s34, s34, 1")
    I("v_mbcnt_lo_u32_b32 v67, -1, 0")
    I("v_mbcnt_hi_u32_b32 v67, -1, v67")
    I("s_waitcnt vmcnt(0) lgkmcnt(0)")
    I("s_barrier")
    I("s_branch L_round")
    L("L_epi")
    I("s_waitcnt vmcnt(0) lgkmcnt(0)")
    stamp(6)
    srd(28, 8, 9, N * 128)
    I("v_mbcnt_lo_u32_b32 v67, -1, 0")
    I("v_mbcnt_hi_u32_b32 v67, -1, v67")
    I("v_and_b32 v68, 31, v67")
    I("v_lshrrev_b32 v69, 5, v67")
    I("v_lshlrev_b32 v68, 1, v68")
    I("v_lshl_add_u32 v68, v69, 9, v68")
    I("v_add_u32 v68, s37, v68")
    I("v_lshlrev_b32 v70, 4, v67")
    I("v_add_u32 v71, s37, v70")
    I("s_nop 7")
    I("s_nop 7")
    regs = [i for i in range(13)]
    for c in range(2):
        for i in regs:
            I(f"v_accvgpr_read_b32 v{16*c+i}, a{A_AGG+16*c+i}")
    ids = [16 * c + i for c in range(2) for i in regs]
    for r in ids:
        I(f"v_mul_f32 v{32+r}, s43, v{r}")
    for r in ids:
        I(f"v_exp_f32 v{32+r}, v{32+r}")
    for r in ids:
        I(f"v_add_f32 v{32+r}, 1.0, v{32+r}")
    for r in ids:
        I(f"v_rcp_f32 v{32+r}, v{32+r}")
    for r in ids:
        I(f"v_mul_f32 v{r}, v{r}, v{32+r}")
    for i in regs:
        I(f"v_cvt_pk_bf16_f32 v{32+i}, v{i}, v{16+i}")
    for i in regs:
        row = 8 * (i >> 2) + (i & 3)
        I(f"ds_write_b16 v68, v{32+i} offset:{row*128}")
        I(f"ds_write_b16_d16_hi v68, v{32+i} offset:{row*128+64}")
    I("s_waitcnt lgkmcnt(0)")
    for k in range(4):
        I(f"ds_read_b128 {vr(4*k,4)}, v71 offset:{1024*k}")
    for k in range(3):
        I(f"s_waitcnt lgkmcnt({3-k})")
        I(f"buffer_store_dwordx4 {vr(4*k,4)}, v70, s[28:31], s49 offen offset:{1024*k}")
    I("s_waitcnt lgkmcnt(0)")
    I("s_mov_b64 exec, 0xff")
    I(f"buffer_store_dwordx4 {vr(12,4)}, v70, s[28:31], s49 offen offset:3072")
    if STAMP:
        I("s_waitcnt vmcnt(0)")
        stamp(7)
        srd(28, 10, 11, 0x100000, 0x1000000)
        I("s_mov_b64 exec, 1")
        I("s_lshl_b32 s46, s2, 3")
        I("s_add_u32 s46, s46, s3")
        I("s_lshl_b32 s46, s46, 6")
        I("v_mov_b32 v0, 0")
        for k in range(8):
            I(f"v_mov_b32 v1, s{70+2*k}")
            I(f"buffer_store_dword v1, v0, s[28:31], s46 offen offset:{4*k}")
        I("v_mov_b32 v1, s35")
        I(f"buffer_store_dword v1, v0, s[28:31], s46 offen offset:32")
        I("s_getreg_b32 s47, hwreg(HW_REG_XCC_ID)")
        I("v_mov_b32 v1, s47")
        I(f"buffer_store_dword v1, v0, s[28:31], s46 offen offset:36")
        I("s_getreg_b32 s47, hwreg(HW_REG_HW_ID)")
        I("v_mov_b32 v1, s47")
        I(f"buffer_store_dword v1, v0, s[28:31], s46 offen offset:40")
        I("s_memrealtime s[50:51]")
        I("s_waitcnt lgkmcnt(0)")
        I("v_mov_b32 v1, s50")
        I(f"buffer_store_dword v1, v0, s[28:31], s46 offen offset:44")
        I("v_mov_b32 v1, s86")
        I(f"buffer_store_dword v1, v0, s[28:31], s46 offen offset:48")
    L("L_k2_end")
    I("s_endpgm")

def kd(name, vgpr, sgpr, accum):
    emit(f".amdhsa_kernel {name}")
    emit(f"  .amdhsa_next_free_vgpr {vgpr}")
    emit(f"  .amdhsa_next_free_sgpr {sgpr}")
    emit(f"  .amdhsa_accum_offset {accum}")
    emit("  .amdhsa_group_segment_fixed_size 0")
    emit("  .amdhsa_kernarg_size 80")
    emit("  .amdhsa_user_sgpr_count 2")
    emit("  .amdhsa_user_sgpr_kernarg_segment_ptr 1")
    emit("  .amdhsa_system_sgpr_workgroup_id_x 1")
    emit(".end_amdhsa_kernel")

def main():
    emit(HEADER.rstrip("\n"))
    emit(f"; @launch kernel=egc_bin_kernel grid=({NC},1,1) block=(1024,1,1) lds={K1_LDS}")
    emit(f"; @launch kernel=egc_main_kernel grid=(256,1,1) block=(512,1,1) lds={K2_LDS}")
    emit('.amdgcn_target "amdgcn-amd-amdhsa--gfx950"')
    emit(".text")
    gen_k1()
    gen_k2()
    emit('.section .rodata,"a"')
    emit(".p2align 6")
    kd("egc_bin_kernel", 84 if PERM else 56, 72, 84 if PERM else 56)
    emit(".p2align 6")
    kd("egc_main_kernel", 248, 96, 128)
    path = sys.argv[1] if len(sys.argv) > 1 else "standalone__edge_featured_mpnn_egc__graph.s"
    open(path, "w").write("\n".join(out) + "\n")

main()
```

```python
import sys,re
src=sys.argv[1]
s=open(src).read()
def stampcode(off, ws_lo, tag, tmp):
    return f'''    s_cmp_lg_u32 s2, 0
    s_cbranch_scc1 L_diag_{tag}
    s_load_dwordx2 s[{tmp}:{tmp+1}], s[0:1], 72
    s_memrealtime s[{tmp+4}:{tmp+5}]
    s_waitcnt lgkmcnt(0)
    s_add_u32 s{tmp}, s{tmp}, 0x1800000
    s_addc_u32 s{tmp+1}, s{tmp+1}, 0
    s_mov_b32 s{tmp+2}, 64
    s_mov_b32 s{tmp+3}, 0x00020000
    v_mov_b32 v1, s{tmp+4}
    v_lshlrev_b32 v2, 6, v0
    buffer_store_dword v1, v2, s[{tmp}:{tmp+3}], 0 offen offset:{off}
L_diag_{tag}:
'''
s=s.replace("egc_bin_kernel:\n","egc_bin_kernel:\n"+stampcode(0,0,"a",44))
s=s.replace("egc_main_kernel:\n","egc_main_kernel:\n"+stampcode(4,0,"b",44))
def spin(which):
    sel = {"x":"s_sub_u32 s12, s9, s8", "y":"s_sub_u32 s12, s10, s9", "z":"s_mov_b32 s12, 0"}[which]
    return f'''.globl egc_spin_kernel
.p2align 8
.type egc_spin_kernel,@function
egc_spin_kernel:
    s_cmp_lg_u32 s2, 0
    s_cbranch_scc1 L_spin_end
    s_memrealtime s[10:11]
    s_load_dwordx2 s[4:5], s[0:1], 72
    s_waitcnt lgkmcnt(0)
    s_add_u32 s4, s4, 0x1800000
    s_addc_u32 s5, s5, 0
    s_load_dwordx2 s[8:9], s[4:5], 0
    s_waitcnt lgkmcnt(0)
    {sel}
    s_lshl_b32 s12, s12, 2
    s_min_u32 s12, s12, 50000
L_spin:
    s_memrealtime s[14:15]
    s_waitcnt lgkmcnt(0)
    s_sub_u32 s13, s14, s10
    s_cmp_lt_u32 s13, s12
    s_cbranch_scc1 L_spin
L_spin_end:
    s_endpgm
'''
kd='''.p2align 6
.amdhsa_kernel egc_spin_kernel
  .amdhsa_next_free_vgpr 8
  .amdhsa_next_free_sgpr 24
  .amdhsa_accum_offset 8
  .amdhsa_group_segment_fixed_size 0
  .amdhsa_kernarg_size 80
  .amdhsa_user_sgpr_count 2
  .amdhsa_user_sgpr_kernarg_segment_ptr 1
  .amdhsa_system_sgpr_workgroup_id_x 1
.end_amdhsa_kernel
'''
m=re.search(r"; @launch kernel=egc_main_kernel[^\n]*\n",s)
for w in "xyz":
    c=s.replace(m.group(0),m.group(0)+"; @launch kernel=egc_spin_kernel grid=(1,1,1) block=(64,1,1) lds=0\n")
    c=c.replace('.section .rodata,"a"',spin(w)+'.section .rodata,"a"')+kd
    open(f'diag_{w}.s','w').write(c)
```

```python
import sys, os

N = 50000; E = 800000
WN = 25; NWIN = 2000; NB = 250; CH = 3200; NC = 250
WS_WF = 0; WS_TAB = 0x10000; TABROW = 8192; WS_REC = 0x400000; RECROW = CH * 8
PRESCALE = int(os.environ.get('PRESCALE', '0')) if 'os' in globals() else 0
PERM = int(os.environ.get('PERM', '0'))
WS_EAS = 0x2000000
K1PF = int(os.environ.get('K1PF', '0'))
K2PF = int(os.environ.get('K2PF', '0'))
PAIR = int(os.environ.get('PAIR', '1'))
CODEPF = int(os.environ.get('CODEPF', '0'))
M25 = 171798692
NEGLOG2E = 0xBFB8AA3B

import os
STAMP = int(os.environ.get("STAMP", "0"))
def stamp(k):
    if STAMP:
        I(f"s_memtime s[{70+2*k}:{71+2*k}]")
        I("s_waitcnt lgkmcnt(0)")
out = []
def emit(s=""):
    out.append(s)
DROP = os.environ.get("DROP", "").split(",")
INLOOP = [False]
def I(s):
    if INLOOP[0]:
        op = s.split()[0]
        if "mfma" in DROP and op.startswith("v_mfma"): return
        if "msparse" in DROP and op.startswith("v_mfma") and (s.split()[1].startswith("a[") or s.split()[2] in ("v[80:83],", "v[84:87],")): return
        if "mh" in DROP and op.startswith("v_mfma") and s.split()[1] in ("v[16:31],", "v[48:63],"): return
        if "trans" in DROP and op in ("v_exp_f32", "v_rcp_f32"): return
        if "valu" in DROP and op in ("v_exp_f32", "v_rcp_f32", "v_mul_f32", "v_add_f32", "v_cvt_pk_bf16_f32"): return
        if "dma" in DROP and op.startswith("buffer_load"): return
        if "lds" in DROP and op.startswith("ds_read_b128"): return
    out.append("    " + s)
def L(s):
    out.append(s + ":")

HEADER = """; Kernarg layout for this problem (80 bytes, ptrs only, base s[0:1]):
"""

def srd(d, lo, hi, size, add=0):
    if add:
        I(f"s_add_u32 s{d}, s{lo}, {add}")
        I(f"s_addc_u32 s{d+1}, s{hi}, 0")
    else:
        I(f"s_mov_b32 s{d}, s{lo}")
        I(f"s_mov_b32 s{d+1}, s{hi}")
    I(f"s_mov_b32 s{d+2}, {size}")
    I(f"s_mov_b32 s{d+3}, 0x00020000")

def wave_scan(regs):
    steps = ["row_shr:1 row_mask:0xf bank_mask:0xf", "row_shr:2 row_mask:0xf bank_mask:0xf",
             "row_shr:4 row_mask:0xf bank_mask:0xf", "row_shr:8 row_mask:0xf bank_mask:0xf",
             "row_bcast:15 row_mask:0xa bank_mask:0xf", "row_bcast:31 row_mask:0xc bank_mask:0xf"]
    I("s_nop 1")
    for st in steps:
        for r in regs:
            I(f"v_add_u32_dpp v{r}, v{r}, v{r} {st}")
        if len(regs) < 3:
            I(f"s_nop {2 - len(regs)}")

K1_HIST = 0
K1_WTOT = 8192
K1_STG = 8448
K1_POS = K1_STG + RECROW
K1_LDS = K1_POS + (CH * 4 if PERM else 0)

def gen_k1():
    emit(".globl egc_bin_kernel")
    emit(".p2align 8")
    emit(".type egc_bin_kernel,@function")
    L("egc_bin_kernel")
    I(f"s_cmp_ge_u32 s2, {NC}")
    I("s_cbranch_scc1 L_k1_end")
    I("s_load_dwordx4 s[4:7], s[0:1], 16")
    I("s_load_dwordx4 s[8:11], s[0:1], 32")
    I("s_load_dwordx2 s[12:13], s[0:1], 48")
    I("s_load_dwordx2 s[14:15], s[0:1], 72")
    if PERM:
        I("s_load_dwordx2 s[60:61], s[0:1], 8")
    if K1PF:
        I("s_load_dwordx2 s[64:65], s[0:1], 0")
    I("v_lshlrev_b32 v1, 3, v0")
    I("v_mov_b32 v2, 0")
    I("v_mov_b32 v3, 0")
    I(f"ds_write_b64 v1, v[2:3] offset:{K1_HIST}")
    I("v_lshlrev_b32 v4, 4, v0")
    I("v_lshrrev_b32 v5, 6, v0")
    I(f"s_mul_i32 s32, s2, {CH*4}")
    I("v_readfirstlane_b32 s3, v5")
    I(f"s_mov_b32 s33, {M25}")
    I("s_mov_b32 s36, -25")
    I(f"s_mul_i32 s37, s2, {CH*32}")
    I("s_waitcnt lgkmcnt(0)")
    srd(16, 4, 5, E * 4)
    srd(20, 6, 7, E * 4)
    srd(24, 14, 15, 0x1000000)
    if PERM:
        srd(52, 60, 61, E * 32)
        srd(56, 14, 15, E * 32, WS_EAS)
    I(f"v_cmp_gt_u32 vcc, {CH//4}, v0")
    I("s_and_saveexec_b64 s[34:35], vcc")
    I("s_cbranch_execz L_k1_noload")
    I("buffer_load_dwordx4 v[8:11], v4, s[20:23], s32 offen")
    I("buffer_load_dwordx4 v[12:15], v4, s[16:19], s32 offen")
    L("L_k1_noload")
    I("s_mov_b64 exec, s[34:35]")
    if CODEPF:
        I("s_cmp_lg_u32 s3, 14")
        I("s_cbranch_scc1 L_k1_nocpf")
        I("s_getpc_b64 s[62:63]")
        L("L_k1_pc")
        I("s_add_u32 s62, s62, egc_main_kernel-L_k1_pc")
        I("s_addc_u32 s63, s63, 0")
        I("v_and_b32 v40, 63, v0")
        I("v_lshlrev_b32 v40, 7, v40")
        I("v_min_u32 v41, L_k2_last-egc_main_kernel-8192, v40")
        I("v_add_u32 v41, 8192, v41")
        I("global_load_dword v42, v40, s[62:63]")
        I("global_load_dword v43, v41, s[62:63]")
        L("L_k1_nocpf")
    I("s_mov_b32 s40, 0")
    I("s_cmp_lg_u32 s3, 15")
    I("s_cbranch_scc1 L_k1_nowf")
    I("s_cmp_ge_u32 s2, 34")
    I("s_cbranch_scc1 L_k1_nowf")
    I("s_mov_b32 s40, 1")
    I("s_mov_b32 s28, s12")
    I("s_mov_b32 s29, s13")
    I(f"s_mov_b32 s30, {144*128}")
    I("s_mov_b32 s31, 0x00020000")
    I("s_mov_b32 s41, s2")
    I("s_cmp_lt_u32 s2, 18")
    I("s_cbranch_scc1 L_k1_wsel")
    I("s_mov_b32 s28, s10")
    I("s_mov_b32 s29, s11")
    I(f"s_mov_b32 s30, {64*128}")
    I("s_sub_u32 s41, s2, 18")
    I("s_cmp_lt_u32 s2, 26")
    I("s_cbranch_scc1 L_k1_wsel")
    I("s_mov_b32 s28, s8")
    I("s_mov_b32 s29, s9")
    I("s_sub_u32 s41, s2, 26")
    L("L_k1_wsel")
    I("s_lshr_b32 s42, s41, 1")
    I("s_lshl_b32 s42, s42, 11")
    I("s_and_b32 s43, s41, 1")
    I("s_lshl_b32 s43, s43, 6")
    I("s_add_u32 s42, s42, s43")
    I("v_and_b32 v40, 31, v0")
    I("v_lshlrev_b32 v40, 1, v40")
    I("v_and_b32 v41, 32, v0")
    I("v_lshl_add_u32 v40, v41, 5, v40")
    for j in range(8):
        I(f"buffer_load_ushort v{44+j}, v40, s[28:31], s42 offen offset:{128*j}")
    L("L_k1_nowf")
    I("s_barrier")
    if K1PF:
        I("s_mov_b32 s66, s64")
        I("s_mov_b32 s67, s65")
        I("s_mov_b32 s64, s66")
        I("s_mov_b32 s65, s67")
        I(f"s_mov_b32 s66, {N*128}")
        I("s_mov_b32 s67, 0x00020000")
        I("s_lshr_b32 s62, s2, 3")
        I(f"s_mul_i32 s62, s62, {K1PF*128}")
        I("v_lshlrev_b32 v3, 7, v0")
        I(f"s_movk_i32 s63, {K1PF}")
        I("v_cmp_gt_u32 s[48:49], s63, v0")
        I("s_and_saveexec_b64 s[34:35], s[48:49]")
        I("s_cbranch_execz L_k1_nopf")
        I("buffer_load_dword v42, v3, s[64:67], s62 offen")
        L("L_k1_nopf")
        I("s_mov_b64 exec, s[34:35]")
    if PERM:
        for k in range(7):
            if k == 6:
                I("s_cmp_ge_u32 s3, 4")
                I("s_cbranch_scc1 L_k1_e6")
            I(f"s_add_u32 s62, s37, {16384*k}")
            I(f"buffer_load_dwordx4 v[{56+4*k}:{59+4*k}], v4, s[52:55], s62 offen" + os.environ.get("K1EPOL", ""))
        L("L_k1_e6")
    ne = 6 if PERM else 0
    if K1PF >= CH // 4 + 32: ne += 1
    I("s_and_saveexec_b64 s[34:35], vcc")
    I("s_cbranch_execz L_k1_nohist")
    I("v_mov_b32 v6, 1")
    if PERM:
        I("v_mov_b32 v7, s37")
    else:
        I("v_lshl_add_u32 v7, v0, 7, s37")
    I(f"s_waitcnt vmcnt({ne+1})")
    for i in range(4):
        I(f"v_mul_hi_u32 v{16+i}, v{8+i}, s33")
    for i in range(4):
        I(f"v_lshlrev_b32 v{20+i}, 2, v{16+i}")
    for i in range(4):
        I(f"ds_add_rtn_u32 v{24+i}, v{20+i}, v6 offset:{K1_HIST}")
    for i in range(4):
        I(f"v_mad_i32_i24 v{28+i}, v{16+i}, s36, v{8+i}")
    for i in range(4):
        I(f"v_lshlrev_b32 v{16+i}, 29, v{16+i}")
    for i in range(4):
        I(f"v_or3_b32 v{33+2*i}, v{16+i}, v7, v{28+i}")
    if not PERM:
        for i in range(1, 4):
            I(f"v_add_u32 v{33+2*i}, {32*i}, v{33+2*i}")
    I(f"s_waitcnt vmcnt({ne})")
    for i in range(4):
        I(f"v_lshlrev_b32 v{32+2*i}, 7, v{12+i}")
    L("L_k1_nohist")
    I("s_mov_b64 exec, s[34:35]")
    I("s_waitcnt lgkmcnt(0)")
    I("s_barrier")
    I(f"ds_read_b64 v[2:3], v1 offset:{K1_HIST}")
    I("s_waitcnt lgkmcnt(0)")
    I("v_add_u32 v8, v2, v3")
    I("v_mov_b32 v9, v8")
    wave_scan([9])
    I("s_lshl_b32 s44, s3, 2")
    I("v_mov_b32 v10, s44")
    I("s_mov_b32 exec_lo, 0")
    I("s_mov_b32 exec_hi, 0x80000000")
    I(f"ds_write_b32 v10, v9 offset:{K1_WTOT}")
    I("s_mov_b64 exec, -1")
    I("v_and_b32 v10, 15, v0")
    I("v_lshlrev_b32 v10, 2, v10")
    I("s_waitcnt lgkmcnt(0)")
    I("s_barrier")
    I(f"ds_read_b32 v11, v10 offset:{K1_WTOT}")
    I("s_waitcnt lgkmcnt(0)")
    I("v_mov_b32 v12, v11")
    I("s_nop 1")
    for sh in (1, 2, 4, 8):
        I(f"v_add_u32_dpp v12, v12, v12 row_shr:{sh} row_mask:0xf bank_mask:0xf")
        I("s_nop 1")
    I("v_sub_u32 v12, v12, v11")
    I("s_nop 0")
    I("v_readlane_b32 s45, v12, s3")
    I("v_sub_u32 v9, v9, v8")
    I("s_nop 1")
    I("v_add_u32 v9, s45, v9")
    I("v_add_u32 v10, v9, v2")
    I("v_mov_b32 v12, v9")
    I("v_mov_b32 v13, v10")
    I(f"ds_write_b64 v1, v[12:13] offset:{K1_HIST}")
    I("s_waitcnt lgkmcnt(0)")
    I("s_barrier")
    I(f"s_movk_i32 s50, {NB}")
    I("v_cmp_gt_u32 s[48:49], s50, v0")
    I("s_and_saveexec_b64 s[34:35], s[48:49]")
    I("s_cbranch_execz L_k1_notab")
    I("v_lshlrev_b32 v14, 5, v0")
    I(f"ds_read_b128 v[8:11], v14 offset:{K1_HIST}")
    I(f"ds_read_b128 v[16:19], v14 offset:{K1_HIST+16}")
    I(f"ds_read_b32 v12, v14 offset:{K1_HIST+32}")
    I("v_lshlrev_b32 v14, 13, v0")
    I("s_lshl_b32 s46, s2, 5")
    I(f"s_add_u32 s46, s46, {WS_TAB}")
    I("s_waitcnt lgkmcnt(0)")
    I("v_lshl_or_b32 v8, v9, 16, v8")
    I("v_lshl_or_b32 v9, v11, 16, v10")
    I("v_lshl_or_b32 v10, v17, 16, v16")
    I("v_lshl_or_b32 v11, v19, 16, v18")
    I("buffer_store_dwordx4 v[8:11], v14, s[24:27], s46 offen")
    I("buffer_store_dword v12, v14, s[24:27], s46 offen offset:16")
    L("L_k1_notab")
    I("s_mov_b64 exec, s[34:35]")
    I("s_and_saveexec_b64 s[34:35], vcc")
    I("s_cbranch_execz L_k1_noscat")
    for i in range(4):
        I(f"ds_read_b32 v{28+i}, v{20+i} offset:{K1_HIST}")
    for i in range(4):
        I(f"s_waitcnt lgkmcnt({3-i})")
        I(f"v_add_lshl_u32 v{28+i}, v{28+i}, v{24+i}, 3")
    if PERM:
        for i in range(4):
            I(f"v_lshlrev_b32 v{20+i}, 2, v{28+i}")
        for i in range(4):
            I(f"v_add_u32 v{33+2*i}, v{33+2*i}, v{20+i}")
        I(f"ds_write_b128 v4, v[20:23] offset:{K1_POS}")
    for i in range(4):
        I(f"ds_write_b64 v{28+i}, v[{32+2*i}:{33+2*i}] offset:{K1_STG}")
    L("L_k1_noscat")
    I("s_mov_b64 exec, s[34:35]")
    I("s_waitcnt lgkmcnt(0)")
    I("s_barrier")
    I(f"s_mul_i32 s46, s2, {RECROW}")
    I(f"s_add_u32 s46, s46, {WS_REC}")
    I(f"ds_read_b128 v[8:11], v4 offset:{K1_STG}")
    I(f"v_cmp_gt_u32 vcc, {RECROW//16 - 1024}, v0")
    I("s_and_saveexec_b64 s[34:35], vcc")
    I("s_cbranch_execz L_k1_no2")
    I(f"ds_read_b128 v[12:15], v4 offset:{K1_STG + 16384}")
    I("s_add_u32 s47, s46, 16384")
    I("s_waitcnt lgkmcnt(0)")
    I("buffer_store_dwordx4 v[12:15], v4, s[24:27], s47 offen")
    L("L_k1_no2")
    I("s_mov_b64 exec, s[34:35]")
    I("s_waitcnt lgkmcnt(0)")
    I("buffer_store_dwordx4 v[8:11], v4, s[24:27], s46 offen")
    if PERM:
        I("v_lshrrev_b32 v16, 1, v0")
        I("v_lshlrev_b32 v16, 2, v16")
        I("v_and_b32 v17, 1, v0")
        I("v_lshlrev_b32 v17, 4, v17")
        for k in range(7):
            I(f"ds_read_b32 v{20+k}, v16 offset:{K1_POS+2048*k}")
        for k in range(7):
            if k == 6:
                I("s_cmp_ge_u32 s3, 4")
                I("s_cbranch_scc1 L_k1_s6")
            I(f"s_waitcnt lgkmcnt({6-k})")
            I(f"v_add_u32 v{20+k}, v{20+k}, v17")
            if k == 0:
                I("s_waitcnt vmcnt(0)")
            I(f"buffer_store_dwordx4 v[{56+4*k}:{59+4*k}], v{20+k}, s[56:59], s37 offen" + os.environ.get("K1SPOL", ""))
        L("L_k1_s6")
    I("s_cmp_eq_u32 s40, 0")
    I("s_cbranch_scc1 L_k1_end")
    I("s_waitcnt vmcnt(0)")
    if PRESCALE:
        I("s_sub_u32 s46, s2, 8")
        I("s_cmp_lt_u32 s46, 10")
        I(f"s_cselect_b32 s47, {NEGLOG2E}, 1.0")
        for j in range(8):
            I(f"v_lshlrev_b32 v{44+j}, 16, v{44+j}")
        for j in range(8):
            I(f"v_mul_f32 v{44+j}, s47, v{44+j}")
        for j in range(4):
            I(f"v_cvt_pk_bf16_f32 v{52+j}, v{44+2*j}, v{45+2*j}")
    else:
        for j in range(4):
            I(f"v_lshl_or_b32 v{52+j}, v{45+2*j}, 16, v{44+2*j}")
    I("v_and_b32 v40, 63, v0")
    I("v_lshlrev_b32 v40, 4, v40")
    I("s_lshl_b32 s46, s2, 10")
    I("buffer_store_dwordx4 v[52:55], v40, s[24:27], s46 offen")
    L("L_k1_end")
    I("s_endpgm")

WSTG = 0
LCAP = 4352
TLIM = 3584
LIST_S = 34816
LIST_M = LIST_S + LCAP * 4
SM = LIST_M + LCAP * 4
SMW = 2000
OH = SM + 16576
BASET = OH + 2560
WTOT = BASET + 4096
STG = WTOT + 256
STGW = 8192
K2_LDS = STG + 8 * STGW
assert STG % 128 == 0 or True
EMASK = 0x01FFFFE0

G = [0, 32]; H = [16, 48]
AX = 64; ST = 80; S = 88; EB = [96, 100]; T = 104
VAX = 112; PC = 116; H16 = 117; LSA = 118; LMA = 119; K1C = 120; SRA = 121; OHC = 122; SW = 123; ONE = 124
A_WB = 0; A_WV = 40; A_XA = 72; A_AGG = 88

def wb(s, c): return A_WB + (2 * s + c) * 4
def wv(s, c): return A_WV + (2 * s + c) * 4
def xa(s, c): return A_XA + (2 * s + c) * 4
def vr(b, n): return f"v[{b}:{b+n-1}]"
def ar(b, n): return f"a[{b}:{b+n-1}]"

def mfma(d, a, b, c):
    return f"v_mfma_f32_32x32x16_bf16 {d}, {a}, {b}, {c}"

def mfma_group(c, par):
    m = []
    g = vr(G[c], 16); h = vr(H[c], 16)
    m.append(mfma(g, vr(EB[par], 4), ar(wb(4, c), 4), "0"))
    for s in range(2):
        m.append(mfma(g, vr(ST + 4 * s, 4), ar(xa(s, c), 4), g))
    for s in range(4):
        m.append(mfma(g, vr(AX + 4 * s, 4), ar(wb(s, c), 4), g))
    for s in range(4):
        m.append(mfma(h, vr(AX + 4 * s, 4), ar(wv(s, c), 4), "0" if s == 0 else h))
    return m

def valu_group(c):
    g = G[c]; h = H[c]
    stages = [
        lambda i: f"v_mul_f32 v{g+i}, s43, v{g+i}",
        lambda i: f"v_exp_f32 v{g+i}, v{g+i}",
        lambda i: f"v_add_f32 v{g+i}, 1.0, v{g+i}",
        lambda i: f"v_rcp_f32 v{g+i}, v{g+i}",
        lambda i: f"v_mul_f32 v{g+i}, v{g+i}, v{h+i}",
    ]
    if PRESCALE:
        stages = stages[1:]
    v = []
    D = 2
    nst = len(stages)
    for step in range(16 + D * nst + 2):
        for k in range(nst):
            i = step - D * k
            if 0 <= i < 16:
                v.append(stages[k](i))
        i = step - D * nst
        if 0 <= i < 16 and i % 2 == 1:
            p = i // 2
            v.append(f"v_cvt_pk_bf16_f32 v{g+p}, v{g+i-1}, v{g+i}")
    return v

def agg_group(c):
    a = ar(A_AGG + 16 * c, 16)
    return [mfma(a, vr(S, 4), vr(G[c], 4), a), mfma(a, vr(S + 4, 4), vr(G[c] + 4, 4), a)]

def put(lst):
    for x in lst:
        if x.endswith(":"):
            emit(x)
        else:
            I(x)

def interleave(mf, va, per, inserts):
    mi = 0
    for i, v in enumerate(va):
        if i % per == 0 and mi < len(mf):
            I(mf[mi])
            mi += 1
        if i in inserts:
            put(inserts[i])
        I(v)
    assert mi == len(mf)

NOMEM = int(os.environ.get("NOMEM", "0"))
def x_dma(par):
    r = []
    if NOMEM:
        for k in range(4):
            r.append(f"v_and_b32 v{T+k}, 0x3f80, v{T+k}")
    r.append(f"v_add_u32 v{T+0}, v{PC}, v{T+0}")
    r.append(f"v_xad_u32 v{T+1}, v{PC}, 64, v{T+1}")
    r.append(f"v_add_u32 v{T+2}, v{PC}, v{T+2}")
    r.append(f"v_xad_u32 v{T+3}, v{PC}, 64, v{T+3}")
    for k in range(4):
        r.append(f"s_add_u32 m0, s37, {par*4096 + k*1024}")
        r.append("s_nop 0")
        r.append(f"buffer_load_dwordx4 v{T+k}, s[12:15], 0 offen lds")
    return r

def e_load(par, meta):
    r = []
    if NOMEM:
        r.append(f"v_and_b32 v{meta}, 0x3fff, v{meta}")
    r.append(f"v_and_or_b32 v{T+6}, v{meta}, s40, v{H16}")
    r.append(f"buffer_load_dwordx4 {vr(EB[par],4)}, v{T+6}, s[16:19], 0 offen" + os.environ.get("EPOL", ""))
    return r

def a_reads(par):
    r = []
    for s in range(2):
        r.append(f"ds_read_b128 {vr(ST+4*s,4)}, v{T+7} offset:{16*s}")
    for s in range(4):
        r.append(f"ds_read_b128 {vr(AX+4*s,4)}, v{VAX+s} offset:{par*4096}")
    return r

PRIO = int(os.environ.get("PRIO", "1"))
def prio_code(par):
    r = []
    for lim, p in ((10, 2), (7, 1), (4, 0)):
        r += [f"s_cmp_lt_u32 s36, {lim}",
              f"s_cbranch_scc0 L_pr_done",
              f"s_setprio {p}"]
    r += ["L_pr_done:"]
    return r

def gen_k2():
    emit(".globl egc_main_kernel")
    emit(".p2align 8")
    emit(".type egc_main_kernel,@function")
    L("egc_main_kernel")
    I("s_cmp_ge_u32 s2, 256")
    I("s_cbranch_scc1 L_k2_end")
    I("s_load_dwordx2 s[10:11], s[0:1], 72")
    I("s_load_dwordx4 s[4:7], s[0:1], 0")
    I("s_load_dwordx2 s[8:9], s[0:1], 56")
    I("s_and_b32 s38, s2, 7")
    I("s_lshr_b32 s39, s2, 3")
    I(f"s_mul_i32 s44, s38, {NB}")
    I(f"s_add_u32 s45, s44, {NB}")
    I("s_lshr_b32 s44, s44, 3")
    I("s_lshr_b32 s45, s45, 3")
    I("s_add_u32 s32, s44, s39")
    I("s_cmp_ge_u32 s32, s45")
    I("s_cbranch_scc1 L_k2_end")
    stamp(0)
    if STAMP:
        I("s_memrealtime s[86:87]")
    I("v_lshrrev_b32 v1, 6, v0")
    I("v_and_b32 v67, 63, v0")
    I("v_readfirstlane_b32 s3, v1")
    I("s_mov_b32 s33, 0")
    I(f"s_movk_i32 s34, {NC}")
    I("s_mov_b32 s47, 1")
    I("s_lshl_b32 s48, s32, 13")
    I(f"s_add_u32 s48, s48, {WS_TAB}")
    I("s_waitcnt lgkmcnt(0)")
    I("s_add_u32 s20, s10, s48")
    I("s_addc_u32 s21, s11, 0")
    I(f"s_mov_b32 s22, {NC*32}")
    I("s_mov_b32 s23, 0x00020000")
    L("L_round")
    I("s_lshl_b32 s46, s3, 5")
    I("v_lshrrev_b32 v66, 1, v67")
    I("v_add_u32 v66, s46, v66")
    I("v_lshlrev_b32 v65, 5, v66")
    I("buffer_load_dwordx4 v[48:51], v65, s[20:23], 0 offen")
    I("buffer_load_dword v52, v65, s[20:23], 0 offen offset:16")
    I("s_cmp_eq_u32 s47, 0")
    I("s_cbranch_scc1 L_noconst")
    srd(12, 4, 5, N * 128)
    if PERM:
        srd(16, 10, 11, E * 32, WS_EAS)
    else:
        srd(16, 6, 7, E * 32)
    srd(24, 10, 11, NC * RECROW, WS_REC)
    srd(28, 10, 11, 34 * 1024)
    I(f"s_mov_b32 s40, {EMASK}")
    I("s_movk_i32 s42, 80")
    I(f"s_mov_b32 s43, {NEGLOG2E}")
    I(f"s_lshl_b32 s37, s3, 13")
    I(f"s_add_u32 s37, s37, {STG}")
    I("v_and_b32 v3, 31, v67")
    I("v_lshrrev_b32 v4, 5, v67")
    I("v_bfe_u32 v5, v3, 1, 3")
    I("v_xor_b32 v5, v5, v4")
    I("v_lshlrev_b32 v5, 4, v5")
    I("v_lshl_add_u32 v5, v3, 7, v5")
    I(f"v_add_u32 v{VAX}, s37, v5")
    for s in range(1, 4):
        I(f"v_xor_b32 v6, {32*s}, v5")
        I(f"v_add_u32 v{VAX+s}, s37, v6")
    I("v_lshrrev_b32 v5, 4, v67")
    I("v_and_b32 v6, 7, v67")
    I("v_xor_b32 v5, v5, v6")
    I(f"v_lshlrev_b32 v{PC}, 4, v5")
    I(f"v_lshlrev_b32 v{H16}, 4, v4")
    I(f"s_mul_i32 s46, s3, {SMW}")
    I(f"s_add_u32 s46, s46, {SM}")
    I("v_lshrrev_b32 v5, 4, v3")
    I("v_lshlrev_b32 v5, 5, v5")
    I("v_bfe_u32 v6, v3, 2, 1")
    I("v_lshl_add_u32 v5, v6, 4, v5")
    I("v_bfe_u32 v6, v3, 3, 1")
    I("v_lshl_add_u32 v5, v6, 3, v5")
    I("v_and_b32 v6, 3, v3")
    I("v_lshl_add_u32 v5, v6, 1, v5")
    I(f"v_add_u32 v{K1C}, s46, v5")
    I(f"v_add_u32 v6, s46, v{H16}")
    I(f"v_mad_u32_u24 v{SRA}, v3, s42, v6")
    I("v_lshlrev_b32 v6, 5, v4")
    I(f"v_add_u32 v{OHC}, {OH}, v6")
    I(f"v_mov_b32 v{ONE}, 1.0")
    for i in range(4):
        I(f"v_mov_b32 v{8+i}, 0")
    I("v_lshlrev_b32 v70, 4, v67")
    I("v_add_u32 v7, s46, v70")
    I("ds_write_b128 v7, v[8:11]")
    I("v_cmp_gt_u32 vcc, 61, v67")
    I("s_and_saveexec_b64 s[50:51], vcc")
    I("ds_write_b128 v7, v[8:11] offset:1024")
    I("s_mov_b64 exec, -1")
    I("s_cmp_lg_u32 s3, 0")
    I("s_cbranch_scc1 L_noconst")
    I(f"v_add_u32 v7, {OH}, v70")
    I("ds_write_b128 v7, v[8:11]")
    I("ds_write_b128 v7, v[8:11] offset:1024")
    I("s_mov_b32 exec_hi, 0")
    I("ds_write_b128 v7, v[8:11] offset:2048")
    I("v_bfe_u32 v6, v3, 2, 1")
    I("v_lshlrev_b32 v6, 5, v6")
    I("v_lshrrev_b32 v7, 4, v3")
    I("v_lshl_add_u32 v6, v7, 4, v6")
    I("v_and_b32 v7, 15, v5")
    I("v_add_u32 v6, v6, v7")
    I("v_mad_u32_u24 v6, v3, s42, v6")
    I(f"v_add_u32 v6, {OH}, v6")
    I(f"ds_write_b16_d16_hi v6, v{ONE}")
    I("s_mov_b64 exec, -1")
    L("L_noconst")
    I("s_waitcnt vmcnt(0)")
    stamp(1)
    I("v_and_b32 v53, 0xffff, v48")
    I("v_subrev_u32 v54, s33, v66")
    I("s_sub_u32 s46, s34, s33")
    I("v_cmp_gt_u32 s[52:53], s46, v54")
    I("v_and_b32 v55, 1, v67")
    I("v_lshl_add_u32 v64, v55, 1, v53")
    I("v_cndmask_b32 v54, v53, v52, s[52:53]")
    I(f"s_movk_i32 s46, {RECROW}")
    I("v_mul_u32_u24 v65, s46, v66")
    I("v_lshl_add_u32 v65, v64, 3, v65")
    I("v_sub_u32 v68, v54, v64")
    def rec_loads(tag):
        for i in range(8):
            I(f"v_cmpx_lt_i32 vcc, {4*i}, v68")
            I("s_nop 0")
            I(f"s_cbranch_execz L_rl_{tag}")
            I(f"buffer_load_dwordx4 v[{4*i}:{4*i+3}], v65, s[24:27], 0 offen offset:{32*i}")
        L(f"L_rl_{tag}")
        I("s_mov_b64 exec, -1")
    rec_loads("a")
    if K2PF:
        I("s_cmp_eq_u32 s47, 0")
        I("s_cbranch_scc1 L_nopf")
        I("s_lshl_b32 s46, s39, 3")
        I("s_add_u32 s46, s46, s3")
        I(f"s_mul_i32 s46, s46, {K2PF*64*128}")
        I("v_lshlrev_b32 v71, 7, v67")
        for k in range(K2PF):
            I(f"s_add_u32 s50, s46, {k*8192}")
            I(f"buffer_load_dword v{T+k}, v71, s[12:15], s50 offen")
        L("L_nopf")
    I("v_cmp_eq_u32 vcc, 0, v55")
    I("s_and_b64 vcc, vcc, s[52:53]")
    I("v_alignbit_b32 v72, v49, v48, 16")
    I("v_alignbit_b32 v73, v50, v49, 16")
    I("v_alignbit_b32 v74, v51, v50, 16")
    I("v_alignbit_b32 v75, v52, v51, 16")
    for i in range(4):
        I(f"v_sub_u32 v{72+i}, v{72+i}, v{48+i}")
    I("v_sub_u32 v76, v52, v53")
    for i in range(5):
        I(f"v_cndmask_b32 v{72+i}, 0, v{72+i}, vcc")
    for i in range(5):
        I(f"v_mov_b32 v{80+i}, v{72+i}")
    wave_scan([80, 81, 82, 83, 84])
    I("s_lshl_b32 s46, s3, 5")
    I(f"s_add_u32 s46, s46, {WTOT}")
    I("v_mov_b32 v69, s46")
    I("s_mov_b32 exec_lo, 0")
    I("s_mov_b32 exec_hi, 0x80000000")
    I("ds_write_b128 v69, v[80:83]")
    I("ds_write_b32 v69, v84 offset:16")
    I("s_mov_b64 exec, -1")
    I("v_and_b32 v69, 7, v67")
    I("v_lshlrev_b32 v69, 5, v69")
    I(f"v_add_u32 v69, {WTOT}, v69")
    I("s_waitcnt lgkmcnt(0)")
    I("s_barrier")
    stamp(2)
    I("ds_read_b128 v[88:91], v69")
    I("ds_read_b32 v92, v69 offset:16")
    I("s_waitcnt lgkmcnt(0)")
    for i in range(5):
        I(f"v_mov_b32 v{56+i}, v{88+i}")
    I("s_nop 1")
    for sh in (1, 2, 4):
        for i in range(5):
            I(f"v_add_u32_dpp v{56+i}, v{56+i}, v{56+i} row_shr:{sh} row_mask:0xf bank_mask:0xf")
    I("s_nop 1")
    for i in range(4):
        I(f"v_sub_u32 v{88+i}, v{56+i}, v{88+i}")
    I("v_readlane_b32 s60, v60, 7")
    for i in range(4):
        I(f"v_readlane_b32 s{56+i}, v{56+i}, 7")
    for i in range(4):
        I(f"v_readlane_b32 s{52+i}, v{88+i}, s3")
    I(f"s_cmp_le_u32 s60, {TLIM}")
    I("s_cbranch_scc1 L_fits")
    I("s_sub_u32 s46, s34, s33")
    I("s_cmp_eq_u32 s46, 1")
    I("s_cselect_b32 s34, s34, s33")
    for i in range(4):
        I(f"s_mov_b32 s{56+i}, 0")
    I("v_mov_b32 v68, 0")
    L("L_fits")
    I("s_cmp_eq_u32 s47, 0")
    I("s_cbranch_scc1 L_paired")
    if PAIR:
        for i in range(4):
            I(f"v_mov_b32 v{56+i}, s{56+i}")
        I("v_and_b32 v60, 7, v67")
        I("v_lshrrev_b32 v61, 3, v67")
        for (src, dst) in ((60, 62), (61, 63)):
            I(f"v_bfe_u32 v93, v{src}, 1, 1")
            I(f"v_cmp_eq_u32 vcc, 1, v93")
            I(f"v_bfe_u32 v93, v{src}, 2, 1")
            I(f"v_cmp_eq_u32 s[50:51], 1, v93")
            I("v_cndmask_b32 v94, v56, v57, vcc")
            I("v_cndmask_b32 v95, v58, v59, vcc")
            I(f"v_and_b32 v93, 1, v{src}")
            I("v_cndmask_b32 v94, v94, v95, s[50:51]")
            I("v_lshlrev_b32 v93, 4, v93")
            I("v_bfe_u32 v94, v94, v93, 16")
            I(f"v_lshl_add_u32 v{dst}, v94, 3, v{src}")
        I("v_cmp_gt_u32 vcc, v62, v63")
        I("s_sub_u32 s64, 11, s3")
        I("s_cmp_lt_u32 s3, 4")
        I("s_cselect_b32 s64, s3, s64")
        I("s_mov_b32 s41, 0")
        for i in range(8):
            I(f"s_bfe_u32 s65, {'vcc_lo' if i < 4 else 'vcc_hi'}, {(8*(i%4)) | (8 << 16)}")
            I("s_bcnt1_i32_b32 s65, s65")
            I("s_cmp_eq_u32 s65, s64")
            I(f"s_cselect_b32 s41, {i}, s41")
    else:
        I("s_mov_b32 s41, s3")
    L("L_paired")
    I("s_mov_b32 s61, 0")
    I("s_mov_b32 s62, 0")
    I("s_mov_b32 s63, 0")
    for i in range(4):
        I(f"s_add_u32 s64, s{56+i}, 0x005f005f")
        I("s_and_b32 s64, s64, 0xffe0ffe0")
        I("s_and_b32 s65, s64, 0xffff")
        I("s_lshr_b32 s66, s64, 16")
        I("s_add_u32 s67, s61, s65")
        I(f"s_and_b32 s68, s{56+i}, 0xffff")
        I(f"s_cmp_eq_u32 s41, {2*i}")
        I("s_cselect_b32 s62, s61, s62")
        I("s_cselect_b32 s63, s68, s63")
        I(f"s_lshr_b32 s68, s{56+i}, 16")
        I(f"s_cmp_eq_u32 s41, {2*i+1}")
        I("s_cselect_b32 s62, s67, s62")
        I("s_cselect_b32 s63, s68, s63")
        I("s_lshl_b32 s68, s67, 16")
        I("s_or_b32 s68, s68, s61")
        I(f"s_add_u32 s{52+i}, s{52+i}, s68")
        I(f"s_add_u32 s{52+i}, s{52+i}, 0x10001000")
        I("s_add_u32 s61, s67, s66")
    for i in range(4):
        I(f"v_sub_u32 v{80+i}, v{80+i}, v{72+i}")
    for i in range(4):
        I(f"v_add_u32 v{80+i}, s{52+i}, v{80+i}")
    for i in range(4):
        I(f"v_sub_u32 v{80+i}, v{80+i}, v{48+i}")
    I("v_lshlrev_b32 v69, 4, v66")
    I(f"v_add_u32 v69, {BASET}, v69")
    I("s_mov_b32 exec_lo, 0x55555555")
    I("s_mov_b32 exec_hi, 0x55555555")
    I("ds_write_b128 v69, v[80:83]")
    I("s_mov_b64 exec, -1")
    I("s_add_u32 s64, s63, 31")
    I("s_lshr_b32 s35, s64, 5")
    I("s_lshl_b32 s64, s35, 5")
    I("s_sub_u32 s64, s64, s63")
    I("s_add_u32 s65, s62, s63")
    I("v_add_lshl_u32 v72, v67, s65, 2")
    I("v_mov_b32 v73, 0xffffff00")
    I(f"v_mov_b32 v74, {EMASK}")
    I(f"ds_write2st64_b32 v72, v73, v74 offset0:{LIST_S//256} offset1:{LIST_M//256}")
    I("v_cmp_gt_u32 vcc, s64, v67")
    I("s_and_saveexec_b64 s[50:51], vcc")
    I(f"ds_write2st64_b32 v72, v73, v74 offset0:{LIST_S//256+1} offset1:{LIST_M//256+1}")
    I("s_mov_b64 exec, -1")
    I("s_lshl_b32 s64, s62, 2")
    I("v_lshrrev_b32 v72, 3, v67")
    I("v_lshlrev_b32 v72, 4, v72")
    I(f"s_add_u32 s65, s64, {LIST_S}")
    I(f"v_add_u32 v{LSA}, s65, v72")
    I("v_and_b32 v72, 7, v67")
    I("v_bfe_u32 v73, v67, 3, 2")
    I("v_lshl_add_u32 v72, v72, 2, v73")
    I("v_lshlrev_b32 v72, 2, v72")
    I(f"s_add_u32 s65, s64, {LIST_M}")
    I(f"v_add_u32 v{LMA}, s65, v72")
    I("s_cmp_eq_u32 s47, 0")
    I("s_cbranch_scc1 L_scat")
    for k in range(5):
        I(f"s_add_u32 s46, s3, {8*k}")
        if k == 4:
            I("s_min_u32 s46, s46, 33")
        I("s_lshl_b32 s46, s46, 10")
        I(f"s_add_u32 m0, s46, {WSTG}")
        I("s_nop 0")
        I("buffer_load_dwordx4 v70, s[28:31], s46 offen lds")
    for i in range(16):
        I(f"v_mov_b32 v{80+i}, 0")
    I("v_and_b32 v72, 31, v67")
    I(f"v_lshl_add_u32 v72, v72, 7, v{H16}")
    I("s_lshl_b32 s46, s32, 3")
    I("s_add_u32 s46, s46, s41")
    I(f"s_mul_i32 s49, s46, {WN*128}")
    I("s_mov_b32 exec_lo, 0x1ffffff")
    I("s_mov_b32 exec_hi, 0x1ffffff")
    for s in range(4):
        I(f"buffer_load_dwordx4 {vr(80+4*s,4)}, v72, s[12:15], s49 offen offset:{32*s}")
    I("s_mov_b64 exec, -1")
    I(f"s_waitcnt vmcnt({9+K2PF})")
    I("s_branch L_scat1")
    L("L_scat")
    I("s_waitcnt vmcnt(0)")
    L("L_scat1")
    stamp(3)
    o0 = (LIST_S - 16384) // 256; o1 = (LIST_M - 16384) // 256
    for half in range(2):
        R = range(8 * half, 8 * half + 8)
        if half:
            I("v_cmpx_lt_i32 vcc, 16, v68")
            I("s_nop 0")
            I("s_cbranch_execz L_scat_done")
        for r in R:
            I(f"v_lshrrev_b32 v{32+r}, 28, v{2*r+1}")
        for r in R:
            I(f"v_add_u32 v{32+r}, v{32+r}, v69")
        for r in R:
            I(f"ds_read_u16 v{32+r}, v{32+r}")
        for r in R:
            i, k = r // 2, r % 2
            I(f"v_cmpx_lt_i32 vcc, {4*i+k}, v68")
            I("s_waitcnt lgkmcnt(7)")
            I("s_cbranch_execz L_scat_done")
            I(f"v_add3_u32 v{32+r}, v{32+r}, v64, {4*i+k}")
            I(f"v_lshlrev_b32 v{32+r}, 2, v{32+r}")
            I(f"ds_write2st64_b32 v{32+r}, v{2*r}, v{2*r+1} offset0:{o0} offset1:{o1}")
    I("v_cmpx_lt_i32 vcc, 32, v68")
    I("s_nop 0")
    I("s_cbranch_execz L_scat_done")
    I("s_mov_b64 exec, -1")
    I("v_add_u32 v64, 32, v64")
    I("v_subrev_u32 v68, 32, v68")
    I("v_add_u32 v65, 256, v65")
    I("s_waitcnt lgkmcnt(0)")
    rec_loads("b")
    I("s_branch L_scat")
    L("L_scat_done")
    I("s_mov_b64 exec, -1")
    I("s_waitcnt lgkmcnt(0)")
    I("s_barrier")
    stamp(4)
    I(f"ds_read_b128 {vr(T,4)}, v{LSA}")
    I(f"ds_read2_b32 {vr(T+4,2)}, v{LMA} offset0:0 offset1:32")
    I("s_waitcnt lgkmcnt(0)")
    put(x_dma(0))
    put(e_load(0, T + 4))
    I(f"ds_read_b128 {vr(T,4)}, v{LSA} offset:128")
    I("s_cmp_eq_u32 s47, 0")
    I("s_cbranch_scc1 L_noinit")
    I("s_waitcnt vmcnt(5)")
    I("s_barrier")
    for f in range(8):
        I(f"ds_read_b128 {vr(4*f,4)}, v70 offset:{WSTG+1024*f}")
    for f in range(8):
        I(f"ds_read_b128 {ar(4*f,4)}, v70 offset:{WSTG+1024*(26+f)}")
    for f in range(8):
        I(f"ds_read_b128 {ar(A_WV+4*f,4)}, v70 offset:{WSTG+1024*(18+f)}")
    I("s_waitcnt lgkmcnt(15)")
    I("s_waitcnt lgkmcnt(8)")
    for c in range(2):
        d = vr(32 + 16 * c, 16)
        for s in range(4):
            I(mfma(d, vr(80 + 4 * s, 4), vr((2 * s + c) * 4, 4), "0" if s == 0 else d))
    for c in range(2):
        a = ar(A_AGG + 16 * c, 16)
        for s in range(4):
            I(mfma(a, vr(80 + 4 * s, 4), ar((2 * s + c) * 4, 4), "0" if s == 0 else a))
    for f in range(10):
        I(f"ds_read_b128 {ar(A_WB+4*f,4)}, v70 offset:{WSTG+1024*(8+f)}")
    if PRESCALE:
        for i in range(32):
            I(f"v_mul_f32 v{32+i}, s43, v{32+i}")
    for c in range(2):
        for p in range(8):
            I(f"v_cvt_pk_bf16_f32 v{8*c+p}, v{32+16*c+2*p}, v{32+16*c+2*p+1}")
    for c in range(2):
        for p in range(8):
            I(f"v_accvgpr_write_b32 a{xa(p//4, c) + p%4}, v{8*c+p}")
    I("s_mov_b32 s47, 0")
    L("L_noinit")
    I("s_cmp_eq_u32 s35, 0")
    I("s_cbranch_scc1 L_round_end")
    I(f"v_and_b32 v{T+4}, 31, v{T+4}")
    I(f"v_mad_u32_u24 v{T+7}, v{T+4}, s42, v{OHC}")
    I(f"v_mad_u32_u24 v{SW}, v{T+4}, s42, v{K1C}")
    I(f"ds_write_b16_d16_hi v{SW}, v{ONE}")
    I("s_waitcnt lgkmcnt(0)")
    put(x_dma(1))
    put(e_load(1, T + 5))
    for i in range(8):
        I(f"v_mov_b32 v{G[1]+i}, 0")
    for i in range(8):
        I(f"v_mov_b32 v{S+i}, 0")
    I("s_waitcnt vmcnt(5)")
    put(a_reads(0))
    I(f"ds_read_b128 {vr(T,4)}, v{LSA} offset:256")
    I("s_mov_b32 s36, s35")
    if PRIO:
        I("s_setprio 3")
    stamp(5)
    m0 = mfma_group(0, 0)
    I(m0[0])
    I("s_waitcnt lgkmcnt(0)")
    I(m0[1])
    put(x_dma(0))
    put(m0[2:])
    I("s_nop 7")
    I("s_branch L_p1_0")
    L("L_loop")
    INLOOP[0] = True
    nv = len(valu_group(0))
    pos = [2 + (k * (nv - 4)) // 13 for k in range(13)]
    def sched(mf, va, inserts):
        pend = []
        mi = 0
        for i, v in enumerate(va):
            if mi < len(mf) and i == pos[mi]:
                put(inserts.get(('b', mi), []))
                I(mf[mi])
                put(inserts.get(('m', mi), []))
                pend += inserts.get(('s', mi), [])
                mi += 1
            I(v)
            if pend:
                put([pend.pop(0)])
        assert mi == len(mf)
        put(pend)
    def nonop(lst):
        return [x for x in lst if x != "s_nop 0"]
    for par in range(2):
        ins = {('b', 3): ["s_waitcnt lgkmcnt(1)"],
               ('m', 4): ["s_waitcnt lgkmcnt(0)"],
               ('s', 4): nonop(x_dma(par))}
        if PRIO and par == 0:
            ins[('m', 0)] = prio_code(par)
        sched(agg_group(0) + mfma_group(0, par), valu_group(1), ins)
        L(f"L_p1_{par}")
        ins = {('m', 0): [f"ds_read2_b32 {vr(T+4,2)}, v{LMA} offset0:32 offset1:64"],
               ('s', 1): [f"ds_read_b128 {vr(S,4)}, v{SRA}",
                          f"ds_read_b128 {vr(S+4,4)}, v{SRA} offset:32",
                          f"ds_write_b16 v{SW}, v{ONE}"],
               ('m', 3): ["s_waitcnt lgkmcnt(3)"] + e_load(par, T + 5),
               ('s', 3): [f"v_and_b32 v{T+4}, 31, v{T+4}",
                          f"v_add_u32 v{LSA}, 128, v{LSA}",
                          f"v_mad_u32_u24 v{T+7}, v{T+4}, s42, v{OHC}",
                          f"v_mad_u32_u24 v{SW}, v{T+4}, s42, v{K1C}",
                          f"v_add_u32 v{LMA}, 128, v{LMA}",
                          f"ds_write_b16_d16_hi v{SW}, v{ONE}",
                          "s_sub_u32 s36, s36, 1"],
               ('m', 4): [f"v_mov_b32 v{T+6}, v{T+6}"] * int(os.environ.get("EXTRAV", "0")),
               ('m', 12): ["s_waitcnt vmcnt(5) lgkmcnt(0)"] + a_reads(par ^ 1) + [f"ds_read_b128 {vr(T,4)}, v{LSA} offset:256"]}
        sched(agg_group(1) + mfma_group(1, par), valu_group(0), ins)
        I("s_cmp_eq_u32 s36, 0")
        if par == 0:
            I("s_cbranch_scc1 L_tail")
        else:
            I("s_cbranch_scc0 L_loop")
    L("L_tail")
    INLOOP[0] = False
    I(f"ds_write_b16 v{SW}, v{ONE}")
    I("s_nop 0")
    put(agg_group(0))
    put(valu_group(1))
    I("s_nop 1")
    put(agg_group(1))
    L("L_round_end")
    I(f"s_cmp_ge_u32 s34, {NC}")
    I("s_cbranch_scc1 L_epi")
    I("s_mov_b32 s33, s34")
    I("s_add_u32 s34, s34, 1")
    I("v_mbcnt_lo_u32_b32 v67, -1, 0")
    I("v_mbcnt_hi_u32_b32 v67, -1, v67")
    I("s_waitcnt vmcnt(0) lgkmcnt(0)")
    I("s_barrier")
    I("s_branch L_round")
    L("L_epi")
    I("s_waitcnt vmcnt(0) lgkmcnt(0)")
    stamp(6)
    srd(28, 8, 9, N * 128)
    I("v_mbcnt_lo_u32_b32 v67, -1, 0")
    I("v_mbcnt_hi_u32_b32 v67, -1, v67")
    I("v_and_b32 v68, 31, v67")
    I("v_lshrrev_b32 v69, 5, v67")
    I("v_lshlrev_b32 v68, 1, v68")
    I("v_lshl_add_u32 v68, v69, 9, v68")
    I("v_add_u32 v68, s37, v68")
    I("v_lshlrev_b32 v70, 4, v67")
    I("v_add_u32 v71, s37, v70")
    I("s_nop 7")
    I("s_nop 7")
    regs = [i for i in range(13)]
    for c in range(2):
        for i in regs:
            I(f"v_accvgpr_read_b32 v{16*c+i}, a{A_AGG+16*c+i}")
    ids = [16 * c + i for c in range(2) for i in regs]
    for r in ids:
        I(f"v_mul_f32 v{32+r}, s43, v{r}")
    for r in ids:
        I(f"v_exp_f32 v{32+r}, v{32+r}")
    for r in ids:
        I(f"v_add_f32 v{32+r}, 1.0, v{32+r}")
    for r in ids:
        I(f"v_rcp_f32 v{32+r}, v{32+r}")
    for r in ids:
        I(f"v_mul_f32 v{r}, v{r}, v{32+r}")
    for i in regs:
        I(f"v_cvt_pk_bf16_f32 v{32+i}, v{i}, v{16+i}")
    for i in regs:
        row = 8 * (i >> 2) + (i & 3)
        I(f"ds_write_b16 v68, v{32+i} offset:{row*128}")
        I(f"ds_write_b16_d16_hi v68, v{32+i} offset:{row*128+64}")
    I("s_waitcnt lgkmcnt(0)")
    for k in range(4):
        I(f"ds_read_b128 {vr(4*k,4)}, v71 offset:{1024*k}")
    for k in range(3):
        I(f"s_waitcnt lgkmcnt({3-k})")
        I(f"buffer_store_dwordx4 {vr(4*k,4)}, v70, s[28:31], s49 offen offset:{1024*k}")
    I("s_waitcnt lgkmcnt(0)")
    I("s_mov_b64 exec, 0xff")
    I(f"buffer_store_dwordx4 {vr(12,4)}, v70, s[28:31], s49 offen offset:3072")
    if STAMP:
        I("s_waitcnt vmcnt(0)")
        stamp(7)
        srd(28, 10, 11, 0x100000, 0x1000000)
        I("s_mov_b64 exec, 1")
        I("s_lshl_b32 s46, s2, 3")
        I("s_add_u32 s46, s46, s3")
        I("s_lshl_b32 s46, s46, 6")
        I("v_mov_b32 v0, 0")
        for k in range(8):
            I(f"v_mov_b32 v1, s{70+2*k}")
            I(f"buffer_store_dword v1, v0, s[28:31], s46 offen offset:{4*k}")
        I("v_mov_b32 v1, s35")
        I(f"buffer_store_dword v1, v0, s[28:31], s46 offen offset:32")
        I("s_getreg_b32 s47, hwreg(HW_REG_XCC_ID)")
        I("v_mov_b32 v1, s47")
        I(f"buffer_store_dword v1, v0, s[28:31], s46 offen offset:36")
        I("s_getreg_b32 s47, hwreg(HW_REG_HW_ID)")
        I("v_mov_b32 v1, s47")
        I(f"buffer_store_dword v1, v0, s[28:31], s46 offen offset:40")
        I("s_memrealtime s[50:51]")
        I("s_waitcnt lgkmcnt(0)")
        I("v_mov_b32 v1, s50")
        I(f"buffer_store_dword v1, v0, s[28:31], s46 offen offset:44")
        I("v_mov_b32 v1, s86")
        I(f"buffer_store_dword v1, v0, s[28:31], s46 offen offset:48")
    L("L_k2_end")
    L("L_k2_last")
    I("s_endpgm")

def kd(name, vgpr, sgpr, accum):
    emit(f".amdhsa_kernel {name}")
    emit(f"  .amdhsa_next_free_vgpr {vgpr}")
    emit(f"  .amdhsa_next_free_sgpr {sgpr}")
    emit(f"  .amdhsa_accum_offset {accum}")
    emit("  .amdhsa_group_segment_fixed_size 0")
    emit("  .amdhsa_kernarg_size 80")
    emit("  .amdhsa_user_sgpr_count 2")
    emit("  .amdhsa_user_sgpr_kernarg_segment_ptr 1")
    emit("  .amdhsa_system_sgpr_workgroup_id_x 1")
    emit(".end_amdhsa_kernel")

def main():
    emit(HEADER.rstrip("\n"))
    emit(f"; @launch kernel=egc_bin_kernel grid=({NC},1,1) block=(1024,1,1) lds={K1_LDS}")
    emit(f"; @launch kernel=egc_main_kernel grid=(256,1,1) block=(512,1,1) lds={K2_LDS}")
    emit('.amdgcn_target "amdgcn-amd-amdhsa--gfx950"')
    emit(".text")
    gen_k1()
    gen_k2()
    emit('.section .rodata,"a"')
    emit(".p2align 6")
    kd("egc_bin_kernel", 84 if PERM else 56, 72, 84 if PERM else 56)
    emit(".p2align 6")
    kd("egc_main_kernel", 248, 96, 128)
    path = sys.argv[1] if len(sys.argv) > 1 else "standalone__edge_featured_mpnn_egc__graph.s"
    open(path, "w").write("\n".join(out) + "\n")

main()
```

```python
import sys, os

N = 50000; E = 800000
WN = 25; NWIN = 2000; NB = 250; CH = 3200; NC = 250
WS_WF = 0; WS_TAB = 0x10000; TABROW = 8192; WS_REC = 0x400000; RECROW = CH * 8
PRESCALE = int(os.environ.get('PRESCALE', '0')) if 'os' in globals() else 0
PERM = int(os.environ.get('PERM', '0'))
WS_EAS = 0x2000000
K1PF = int(os.environ.get('K1PF', '0'))
K2PF = int(os.environ.get('K2PF', '0'))
PAIR = int(os.environ.get('PAIR', '1'))
CODEPF = int(os.environ.get('CODEPF', '0'))
M25 = 171798692
NEGLOG2E = 0xBFB8AA3B

import os
STAMP = int(os.environ.get("STAMP", "0"))
def stamp(k):
    if STAMP:
        I(f"s_memtime s[{70+2*k}:{71+2*k}]")
        I("s_waitcnt lgkmcnt(0)")
out = []
def emit(s=""):
    out.append(s)
DROP = os.environ.get("DROP", "").split(",")
INLOOP = [False]
def I(s):
    if INLOOP[0]:
        op = s.split()[0]
        if "mfma" in DROP and op.startswith("v_mfma"): return
        if "msparse" in DROP and op.startswith("v_mfma") and (s.split()[1].startswith("a[") or s.split()[2] in ("v[80:83],", "v[84:87],")): return
        if "mh" in DROP and op.startswith("v_mfma") and s.split()[1] in ("v[16:31],", "v[48:63],"): return
        if "trans" in DROP and op in ("v_exp_f32", "v_rcp_f32"): return
        if "valu" in DROP and op in ("v_exp_f32", "v_rcp_f32", "v_mul_f32", "v_add_f32", "v_cvt_pk_bf16_f32"): return
        if "dma" in DROP and op.startswith("buffer_load"): return
        if "lds" in DROP and op.startswith("ds_read_b128"): return
    out.append("    " + s)
def L(s):
    out.append(s + ":")

HEADER = """; Kernarg layout for this problem (80 bytes, ptrs only, base s[0:1]):
"""

def srd(d, lo, hi, size, add=0):
    if add:
        I(f"s_add_u32 s{d}, s{lo}, {add}")
        I(f"s_addc_u32 s{d+1}, s{hi}, 0")
    else:
        I(f"s_mov_b32 s{d}, s{lo}")
        I(f"s_mov_b32 s{d+1}, s{hi}")
    I(f"s_mov_b32 s{d+2}, {size}")
    I(f"s_mov_b32 s{d+3}, 0x00020000")

def wave_scan(regs):
    steps = ["row_shr:1 row_mask:0xf bank_mask:0xf", "row_shr:2 row_mask:0xf bank_mask:0xf",
             "row_shr:4 row_mask:0xf bank_mask:0xf", "row_shr:8 row_mask:0xf bank_mask:0xf",
             "row_bcast:15 row_mask:0xa bank_mask:0xf", "row_bcast:31 row_mask:0xc bank_mask:0xf"]
    I("s_nop 1")
    for st in steps:
        for r in regs:
            I(f"v_add_u32_dpp v{r}, v{r}, v{r} {st}")
        if len(regs) < 3:
            I(f"s_nop {2 - len(regs)}")

K1_HIST = 0
K1_WTOT = 8192
K1_STG = 8448
K1_POS = K1_STG + RECROW
K1_LDS = K1_POS + (CH * 4 if PERM else 0)

def gen_k1():
    emit(".globl egc_bin_kernel")
    emit(".p2align 8")
    emit(".type egc_bin_kernel,@function")
    L("egc_bin_kernel")
    I(f"s_cmp_ge_u32 s2, {NC}")
    I("s_cbranch_scc1 L_k1_end")
    I("s_load_dwordx4 s[4:7], s[0:1], 16")
    I("s_load_dwordx4 s[8:11], s[0:1], 32")
    I("s_load_dwordx2 s[12:13], s[0:1], 48")
    I("s_load_dwordx2 s[14:15], s[0:1], 72")
    if PERM:
        I("s_load_dwordx2 s[60:61], s[0:1], 8")
    if K1PF:
        I("s_load_dwordx2 s[64:65], s[0:1], 0")
    I("v_lshlrev_b32 v1, 3, v0")
    I("v_mov_b32 v2, 0")
    I("v_mov_b32 v3, 0")
    I(f"ds_write_b64 v1, v[2:3] offset:{K1_HIST}")
    I("v_lshlrev_b32 v4, 4, v0")
    I("v_lshrrev_b32 v5, 6, v0")
    I(f"s_mul_i32 s32, s2, {CH*4}")
    I("v_readfirstlane_b32 s3, v5")
    I(f"s_mov_b32 s33, {M25}")
    I("s_mov_b32 s36, -25")
    I(f"s_mul_i32 s37, s2, {CH*32}")
    I("s_waitcnt lgkmcnt(0)")
    srd(16, 4, 5, E * 4)
    srd(20, 6, 7, E * 4)
    srd(24, 14, 15, 0x1000000)
    if PERM:
        srd(52, 60, 61, E * 32)
        srd(56, 14, 15, E * 32, WS_EAS)
    I(f"v_cmp_gt_u32 vcc, {CH//4}, v0")
    I("s_and_saveexec_b64 s[34:35], vcc")
    I("s_cbranch_execz L_k1_noload")
    I("buffer_load_dwordx4 v[8:11], v4, s[20:23], s32 offen")
    I("buffer_load_dwordx4 v[12:15], v4, s[16:19], s32 offen")
    L("L_k1_noload")
    I("s_mov_b64 exec, s[34:35]")
    if CODEPF:
        I("s_cmp_lg_u32 s3, 14")
        I("s_cbranch_scc1 L_k1_nocpf")
        I("s_getpc_b64 s[62:63]")
        L("L_k1_pc")
        I("s_add_u32 s62, s62, egc_main_kernel-L_k1_pc")
        I("s_addc_u32 s63, s63, 0")
        I("v_and_b32 v40, 63, v0")
        I("v_lshlrev_b32 v40, 7, v40")
        I("v_min_u32 v41, L_k2_last-egc_main_kernel-8192, v40")
        I("v_add_u32 v41, 8192, v41")
        I("global_load_dword v42, v40, s[62:63]")
        I("global_load_dword v43, v41, s[62:63]")
        L("L_k1_nocpf")
    I("s_mov_b32 s40, 0")
    I("s_cmp_lg_u32 s3, 15")
    I("s_cbranch_scc1 L_k1_nowf")
    I("s_cmp_ge_u32 s2, 34")
    I("s_cbranch_scc1 L_k1_nowf")
    I("s_mov_b32 s40, 1")
    I("s_mov_b32 s28, s12")
    I("s_mov_b32 s29, s13")
    I(f"s_mov_b32 s30, {144*128}")
    I("s_mov_b32 s31, 0x00020000")
    I("s_mov_b32 s41, s2")
    I("s_cmp_lt_u32 s2, 18")
    I("s_cbranch_scc1 L_k1_wsel")
    I("s_mov_b32 s28, s10")
    I("s_mov_b32 s29, s11")
    I(f"s_mov_b32 s30, {64*128}")
    I("s_sub_u32 s41, s2, 18")
    I("s_cmp_lt_u32 s2, 26")
    I("s_cbranch_scc1 L_k1_wsel")
    I("s_mov_b32 s28, s8")
    I("s_mov_b32 s29, s9")
    I("s_sub_u32 s41, s2, 26")
    L("L_k1_wsel")
    I("s_lshr_b32 s42, s41, 1")
    I("s_lshl_b32 s42, s42, 11")
    I("s_and_b32 s43, s41, 1")
    I("s_lshl_b32 s43, s43, 6")
    I("s_add_u32 s42, s42, s43")
    I("v_and_b32 v40, 31, v0")
    I("v_lshlrev_b32 v40, 1, v40")
    I("v_and_b32 v41, 32, v0")
    I("v_lshl_add_u32 v40, v41, 5, v40")
    for j in range(8):
        I(f"buffer_load_ushort v{44+j}, v40, s[28:31], s42 offen offset:{128*j}")
    L("L_k1_nowf")
    I("s_barrier")
    if K1PF:
        I("s_mov_b32 s66, s64")
        I("s_mov_b32 s67, s65")
        I("s_mov_b32 s64, s66")
        I("s_mov_b32 s65, s67")
        I(f"s_mov_b32 s66, {N*128}")
        I("s_mov_b32 s67, 0x00020000")
        I("s_lshr_b32 s62, s2, 3")
        I(f"s_mul_i32 s62, s62, {K1PF*128}")
        I("v_lshlrev_b32 v3, 7, v0")
        I(f"s_movk_i32 s63, {K1PF}")
        I("v_cmp_gt_u32 s[48:49], s63, v0")
        I("s_and_saveexec_b64 s[34:35], s[48:49]")
        I("s_cbranch_execz L_k1_nopf")
        I("buffer_load_dword v42, v3, s[64:67], s62 offen")
        L("L_k1_nopf")
        I("s_mov_b64 exec, s[34:35]")
    if PERM:
        for k in range(7):
            if k == 6:
                I("s_cmp_ge_u32 s3, 4")
                I("s_cbranch_scc1 L_k1_e6")
            I(f"s_add_u32 s62, s37, {16384*k}")
            I(f"buffer_load_dwordx4 v[{56+4*k}:{59+4*k}], v4, s[52:55], s62 offen" + os.environ.get("K1EPOL", ""))
        L("L_k1_e6")
    ne = 6 if PERM else 0
    if K1PF >= CH // 4 + 32: ne += 1
    I("s_and_saveexec_b64 s[34:35], vcc")
    I("s_cbranch_execz L_k1_nohist")
    I("v_mov_b32 v6, 1")
    if PERM:
        I("v_mov_b32 v7, s37")
    else:
        I("v_lshl_add_u32 v7, v0, 7, s37")
    I(f"s_waitcnt vmcnt({ne+1})")
    for i in range(4):
        I(f"v_mul_hi_u32 v{16+i}, v{8+i}, s33")
    for i in range(4):
        I(f"v_lshlrev_b32 v{20+i}, 2, v{16+i}")
    for i in range(4):
        I(f"ds_add_rtn_u32 v{24+i}, v{20+i}, v6 offset:{K1_HIST}")
    for i in range(4):
        I(f"v_mad_i32_i24 v{28+i}, v{16+i}, s36, v{8+i}")
    for i in range(4):
        I(f"v_lshlrev_b32 v{16+i}, 29, v{16+i}")
    for i in range(4):
        I(f"v_or3_b32 v{33+2*i}, v{16+i}, v7, v{28+i}")
    if not PERM:
        for i in range(1, 4):
            I(f"v_add_u32 v{33+2*i}, {32*i}, v{33+2*i}")
    I(f"s_waitcnt vmcnt({ne})")
    for i in range(4):
        I(f"v_lshlrev_b32 v{32+2*i}, 7, v{12+i}")
    L("L_k1_nohist")
    I("s_mov_b64 exec, s[34:35]")
    I("s_waitcnt lgkmcnt(0)")
    I("s_barrier")
    I(f"ds_read_b64 v[2:3], v1 offset:{K1_HIST}")
    I("s_waitcnt lgkmcnt(0)")
    I("v_add_u32 v8, v2, v3")
    I("v_mov_b32 v9, v8")
    wave_scan([9])
    I("s_lshl_b32 s44, s3, 2")
    I("v_mov_b32 v10, s44")
    I("s_mov_b32 exec_lo, 0")
    I("s_mov_b32 exec_hi, 0x80000000")
    I(f"ds_write_b32 v10, v9 offset:{K1_WTOT}")
    I("s_mov_b64 exec, -1")
    I("v_and_b32 v10, 15, v0")
    I("v_lshlrev_b32 v10, 2, v10")
    I("s_waitcnt lgkmcnt(0)")
    I("s_barrier")
    I(f"ds_read_b32 v11, v10 offset:{K1_WTOT}")
    I("s_waitcnt lgkmcnt(0)")
    I("v_mov_b32 v12, v11")
    I("s_nop 1")
    for sh in (1, 2, 4, 8):
        I(f"v_add_u32_dpp v12, v12, v12 row_shr:{sh} row_mask:0xf bank_mask:0xf")
        I("s_nop 1")
    I("v_sub_u32 v12, v12, v11")
    I("s_nop 0")
    I("v_readlane_b32 s45, v12, s3")
    I("v_sub_u32 v9, v9, v8")
    I("s_nop 1")
    I("v_add_u32 v9, s45, v9")
    I("v_add_u32 v10, v9, v2")
    I("v_mov_b32 v12, v9")
    I("v_mov_b32 v13, v10")
    I(f"ds_write_b64 v1, v[12:13] offset:{K1_HIST}")
    I("s_waitcnt lgkmcnt(0)")
    I("s_barrier")
    I(f"s_movk_i32 s50, {NB}")
    I("v_cmp_gt_u32 s[48:49], s50, v0")
    I("s_and_saveexec_b64 s[34:35], s[48:49]")
    I("s_cbranch_execz L_k1_notab")
    I("v_lshlrev_b32 v14, 5, v0")
    I(f"ds_read_b128 v[8:11], v14 offset:{K1_HIST}")
    I(f"ds_read_b128 v[16:19], v14 offset:{K1_HIST+16}")
    I(f"ds_read_b32 v12, v14 offset:{K1_HIST+32}")
    I("v_lshrrev_b32 v14, 2, v0")
    I("v_lshlrev_b32 v14, 14, v14")
    I("v_and_b32 v13, 3, v0")
    I("v_lshl_add_u32 v14, v13, 4, v14")
    I("s_lshl_b32 s46, s2, 6")
    I(f"s_add_u32 s46, s46, {WS_TAB}")
    I("s_waitcnt lgkmcnt(0)")
    I("v_lshl_or_b32 v8, v9, 16, v8")
    I("v_lshl_or_b32 v9, v11, 16, v10")
    I("v_lshl_or_b32 v10, v17, 16, v16")
    I("v_lshl_or_b32 v11, v19, 16, v18")
    I("v_and_b32 v13, 15, v12")
    I("v_lshl_or_b32 v8, v13, 12, v8")
    I("v_lshrrev_b32 v13, 4, v12")
    I("v_lshl_or_b32 v8, v13, 28, v8")
    I("v_lshrrev_b32 v13, 8, v12")
    I("v_lshl_or_b32 v9, v13, 12, v9")
    I("buffer_store_dwordx4 v[8:11], v14, s[24:27], s46 offen")
    L("L_k1_notab")
    I("s_mov_b64 exec, s[34:35]")
    I("s_and_saveexec_b64 s[34:35], vcc")
    I("s_cbranch_execz L_k1_noscat")
    for i in range(4):
        I(f"ds_read_b32 v{28+i}, v{20+i} offset:{K1_HIST}")
    for i in range(4):
        I(f"s_waitcnt lgkmcnt({3-i})")
        I(f"v_add_lshl_u32 v{28+i}, v{28+i}, v{24+i}, 3")
    if PERM:
        for i in range(4):
            I(f"v_lshlrev_b32 v{20+i}, 2, v{28+i}")
        for i in range(4):
            I(f"v_add_u32 v{33+2*i}, v{33+2*i}, v{20+i}")
        I(f"ds_write_b128 v4, v[20:23] offset:{K1_POS}")
    for i in range(4):
        I(f"ds_write_b64 v{28+i}, v[{32+2*i}:{33+2*i}] offset:{K1_STG}")
    L("L_k1_noscat")
    I("s_mov_b64 exec, s[34:35]")
    I("s_waitcnt lgkmcnt(0)")
    I("s_barrier")
    I(f"s_mul_i32 s46, s2, {RECROW}")
    I(f"s_add_u32 s46, s46, {WS_REC}")
    I(f"ds_read_b128 v[8:11], v4 offset:{K1_STG}")
    I(f"v_cmp_gt_u32 vcc, {RECROW//16 - 1024}, v0")
    I("s_and_saveexec_b64 s[34:35], vcc")
    I("s_cbranch_execz L_k1_no2")
    I(f"ds_read_b128 v[12:15], v4 offset:{K1_STG + 16384}")
    I("s_add_u32 s47, s46, 16384")
    I("s_waitcnt lgkmcnt(0)")
    I("buffer_store_dwordx4 v[12:15], v4, s[24:27], s47 offen")
    L("L_k1_no2")
    I("s_mov_b64 exec, s[34:35]")
    I("s_waitcnt lgkmcnt(0)")
    I("buffer_store_dwordx4 v[8:11], v4, s[24:27], s46 offen")
    if PERM:
        I("v_lshrrev_b32 v16, 1, v0")
        I("v_lshlrev_b32 v16, 2, v16")
        I("v_and_b32 v17, 1, v0")
        I("v_lshlrev_b32 v17, 4, v17")
        for k in range(7):
            I(f"ds_read_b32 v{20+k}, v16 offset:{K1_POS+2048*k}")
        for k in range(7):
            if k == 6:
                I("s_cmp_ge_u32 s3, 4")
                I("s_cbranch_scc1 L_k1_s6")
            I(f"s_waitcnt lgkmcnt({6-k})")
            I(f"v_add_u32 v{20+k}, v{20+k}, v17")
            if k == 0:
                I("s_waitcnt vmcnt(0)")
            I(f"buffer_store_dwordx4 v[{56+4*k}:{59+4*k}], v{20+k}, s[56:59], s37 offen" + os.environ.get("K1SPOL", ""))
        L("L_k1_s6")
    I("s_cmp_eq_u32 s40, 0")
    I("s_cbranch_scc1 L_k1_end")
    I("s_waitcnt vmcnt(0)")
    if PRESCALE:
        I("s_sub_u32 s46, s2, 8")
        I("s_cmp_lt_u32 s46, 10")
        I(f"s_cselect_b32 s47, {NEGLOG2E}, 1.0")
        for j in range(8):
            I(f"v_lshlrev_b32 v{44+j}, 16, v{44+j}")
        for j in range(8):
            I(f"v_mul_f32 v{44+j}, s47, v{44+j}")
        for j in range(4):
            I(f"v_cvt_pk_bf16_f32 v{52+j}, v{44+2*j}, v{45+2*j}")
    else:
        for j in range(4):
            I(f"v_lshl_or_b32 v{52+j}, v{45+2*j}, 16, v{44+2*j}")
    I("v_and_b32 v40, 63, v0")
    I("v_lshlrev_b32 v40, 4, v40")
    I("s_lshl_b32 s46, s2, 10")
    I("buffer_store_dwordx4 v[52:55], v40, s[24:27], s46 offen")
    L("L_k1_end")
    I("s_endpgm")

WSTG = 0
LCAP = 4352
TLIM = 3584
LIST_S = 34816
LIST_M = LIST_S + LCAP * 4
SM = LIST_M + LCAP * 4
SMW = 2000
OH = SM + 16576
BASET = OH + 2560
WTOT = BASET + 4096
STG = WTOT + 256
STGW = 8192
K2_LDS = STG + 8 * STGW
assert STG % 128 == 0 or True
EMASK = 0x01FFFFE0

G = [0, 32]; H = [16, 48]
AX = 64; ST = 80; S = 88; EB = [96, 100]; T = 104
VAX = 112; PC = 116; H16 = 117; LSA = 118; LMA = 119; K1C = 120; SRA = 121; OHC = 122; SW = 123; ONE = 124
A_WB = 0; A_WV = 40; A_XA = 72; A_AGG = 88

def wb(s, c): return A_WB + (2 * s + c) * 4
def wv(s, c): return A_WV + (2 * s + c) * 4
def xa(s, c): return A_XA + (2 * s + c) * 4
def vr(b, n): return f"v[{b}:{b+n-1}]"
def ar(b, n): return f"a[{b}:{b+n-1}]"

def mfma(d, a, b, c):
    return f"v_mfma_f32_32x32x16_bf16 {d}, {a}, {b}, {c}"

def mfma_group(c, par):
    m = []
    g = vr(G[c], 16); h = vr(H[c], 16)
    m.append(mfma(g, vr(EB[par], 4), ar(wb(4, c), 4), "0"))
    for s in range(2):
        m.append(mfma(g, vr(ST + 4 * s, 4), ar(xa(s, c), 4), g))
    for s in range(4):
        m.append(mfma(g, vr(AX + 4 * s, 4), ar(wb(s, c), 4), g))
    for s in range(4):
        m.append(mfma(h, vr(AX + 4 * s, 4), ar(wv(s, c), 4), "0" if s == 0 else h))
    return m

def valu_group(c):
    g = G[c]; h = H[c]
    stages = [
        lambda i: f"v_mul_f32 v{g+i}, s43, v{g+i}",
        lambda i: f"v_exp_f32 v{g+i}, v{g+i}",
        lambda i: f"v_add_f32 v{g+i}, 1.0, v{g+i}",
        lambda i: f"v_rcp_f32 v{g+i}, v{g+i}",
        lambda i: f"v_mul_f32 v{g+i}, v{g+i}, v{h+i}",
    ]
    if PRESCALE:
        stages = stages[1:]
    v = []
    D = 2
    nst = len(stages)
    for step in range(16 + D * nst + 2):
        for k in range(nst):
            i = step - D * k
            if 0 <= i < 16:
                v.append(stages[k](i))
        i = step - D * nst
        if 0 <= i < 16 and i % 2 == 1:
            p = i // 2
            v.append(f"v_cvt_pk_bf16_f32 v{g+p}, v{g+i-1}, v{g+i}")
    return v

def agg_group(c):
    a = ar(A_AGG + 16 * c, 16)
    return [mfma(a, vr(S, 4), vr(G[c], 4), a), mfma(a, vr(S + 4, 4), vr(G[c] + 4, 4), a)]

def put(lst):
    for x in lst:
        if x.endswith(":"):
            emit(x)
        else:
            I(x)

def interleave(mf, va, per, inserts):
    mi = 0
    for i, v in enumerate(va):
        if i % per == 0 and mi < len(mf):
            I(mf[mi])
            mi += 1
        if i in inserts:
            put(inserts[i])
        I(v)
    assert mi == len(mf)

NOMEM = int(os.environ.get("NOMEM", "0"))
def x_dma(par):
    r = []
    if NOMEM:
        for k in range(4):
            r.append(f"v_and_b32 v{T+k}, 0x3f80, v{T+k}")
    r.append(f"v_add_u32 v{T+0}, v{PC}, v{T+0}")
    r.append(f"v_xad_u32 v{T+1}, v{PC}, 64, v{T+1}")
    r.append(f"v_add_u32 v{T+2}, v{PC}, v{T+2}")
    r.append(f"v_xad_u32 v{T+3}, v{PC}, 64, v{T+3}")
    for k in range(4):
        r.append(f"s_add_u32 m0, s37, {par*4096 + k*1024}")
        r.append("s_nop 0")
        r.append(f"buffer_load_dwordx4 v{T+k}, s[12:15], 0 offen lds")
    return r

def e_load(par, meta):
    r = []
    if NOMEM:
        r.append(f"v_and_b32 v{meta}, 0x3fff, v{meta}")
    r.append(f"v_and_or_b32 v{T+6}, v{meta}, s40, v{H16}")
    r.append(f"buffer_load_dwordx4 {vr(EB[par],4)}, v{T+6}, s[16:19], 0 offen" + os.environ.get("EPOL", ""))
    return r

def a_reads(par):
    r = []
    for s in range(2):
        r.append(f"ds_read_b128 {vr(ST+4*s,4)}, v{T+7} offset:{16*s}")
    for s in range(4):
        r.append(f"ds_read_b128 {vr(AX+4*s,4)}, v{VAX+s} offset:{par*4096}")
    return r

PRIO = int(os.environ.get("PRIO", "1"))
PTH = [int(x) for x in os.environ.get("PTH", "10,7,4").split(",")]
def prio_code(par):
    r = []
    for lim, p in zip(PTH, (2, 1, 0)):
        r += [f"s_cmp_lt_u32 s36, {lim}",
              f"s_cbranch_scc0 L_pr_done_{par}",
              f"s_setprio {p}"]
    r += [f"L_pr_done_{par}:"]
    return r

def gen_k2():
    emit(".globl egc_main_kernel")
    emit(".p2align 8")
    emit(".type egc_main_kernel,@function")
    L("egc_main_kernel")
    I("s_cmp_ge_u32 s2, 256")
    I("s_cbranch_scc1 L_k2_end")
    I("s_load_dwordx2 s[10:11], s[0:1], 72")
    I("s_load_dwordx4 s[4:7], s[0:1], 0")
    I("s_load_dwordx2 s[8:9], s[0:1], 56")
    I("s_and_b32 s38, s2, 7")
    I("s_lshr_b32 s39, s2, 3")
    I(f"s_mul_i32 s44, s38, {NB}")
    I(f"s_add_u32 s45, s44, {NB}")
    I("s_lshr_b32 s44, s44, 3")
    I("s_lshr_b32 s45, s45, 3")
    I("s_add_u32 s32, s44, s39")
    I("s_cmp_ge_u32 s32, s45")
    I("s_cbranch_scc1 L_k2_end")
    stamp(0)
    if STAMP:
        I("s_memrealtime s[86:87]")
    I("v_lshrrev_b32 v1, 6, v0")
    I("v_and_b32 v67, 63, v0")
    I("v_readfirstlane_b32 s3, v1")
    I("s_mov_b32 s33, 0")
    I(f"s_movk_i32 s34, {NC}")
    I("s_mov_b32 s47, 1")
    I("s_lshr_b32 s48, s32, 2")
    I("s_lshl_b32 s48, s48, 14")
    I("s_and_b32 s46, s32, 3")
    I("s_lshl_b32 s46, s46, 4")
    I("s_add_u32 s48, s48, s46")
    I(f"s_add_u32 s48, s48, {WS_TAB}")
    I("s_waitcnt lgkmcnt(0)")
    I("s_add_u32 s20, s10, s48")
    I("s_addc_u32 s21, s11, 0")
    I(f"s_mov_b32 s22, {(NC-1)*64+16}")
    I("s_mov_b32 s23, 0x00020000")
    L("L_round")
    I("s_lshl_b32 s46, s3, 5")
    I("v_lshrrev_b32 v66, 1, v67")
    I("v_add_u32 v66, s46, v66")
    I("v_lshlrev_b32 v65, 6, v66")
    I("buffer_load_dwordx4 v[48:51], v65, s[20:23], 0 offen")
    I("s_cmp_eq_u32 s47, 0")
    I("s_cbranch_scc1 L_noconst")
    srd(12, 4, 5, N * 128)
    if PERM:
        srd(16, 10, 11, E * 32, WS_EAS)
    else:
        srd(16, 6, 7, E * 32)
    srd(24, 10, 11, NC * RECROW, WS_REC)
    srd(28, 10, 11, 34 * 1024)
    I(f"s_mov_b32 s40, {EMASK}")
    I("s_movk_i32 s42, 80")
    I(f"s_mov_b32 s43, {NEGLOG2E}")
    I(f"s_lshl_b32 s37, s3, 13")
    I(f"s_add_u32 s37, s37, {STG}")
    I("v_and_b32 v3, 31, v67")
    I("v_lshrrev_b32 v4, 5, v67")
    I("v_bfe_u32 v5, v3, 1, 3")
    I("v_xor_b32 v5, v5, v4")
    I("v_lshlrev_b32 v5, 4, v5")
    I("v_lshl_add_u32 v5, v3, 7, v5")
    I(f"v_add_u32 v{VAX}, s37, v5")
    for s in range(1, 4):
        I(f"v_xor_b32 v6, {32*s}, v5")
        I(f"v_add_u32 v{VAX+s}, s37, v6")
    I("v_lshrrev_b32 v5, 4, v67")
    I("v_and_b32 v6, 7, v67")
    I("v_xor_b32 v5, v5, v6")
    I(f"v_lshlrev_b32 v{PC}, 4, v5")
    I(f"v_lshlrev_b32 v{H16}, 4, v4")
    I(f"s_mul_i32 s46, s3, {SMW}")
    I(f"s_add_u32 s46, s46, {SM}")
    I("v_lshrrev_b32 v5, 4, v3")
    I("v_lshlrev_b32 v5, 5, v5")
    I("v_bfe_u32 v6, v3, 2, 1")
    I("v_lshl_add_u32 v5, v6, 4, v5")
    I("v_bfe_u32 v6, v3, 3, 1")
    I("v_lshl_add_u32 v5, v6, 3, v5")
    I("v_and_b32 v6, 3, v3")
    I("v_lshl_add_u32 v5, v6, 1, v5")
    I(f"v_add_u32 v{K1C}, s46, v5")
    I(f"v_add_u32 v6, s46, v{H16}")
    I(f"v_mad_u32_u24 v{SRA}, v3, s42, v6")
    I("v_lshlrev_b32 v6, 5, v4")
    I(f"v_add_u32 v{OHC}, {OH}, v6")
    I(f"v_mov_b32 v{ONE}, 1.0")
    for i in range(4):
        I(f"v_mov_b32 v{8+i}, 0")
    I("v_lshlrev_b32 v70, 4, v67")
    I("v_add_u32 v7, s46, v70")
    I("ds_write_b128 v7, v[8:11]")
    I("v_cmp_gt_u32 vcc, 61, v67")
    I("s_and_saveexec_b64 s[50:51], vcc")
    I("ds_write_b128 v7, v[8:11] offset:1024")
    I("s_mov_b64 exec, -1")
    I("s_cmp_lg_u32 s3, 0")
    I("s_cbranch_scc1 L_noconst")
    I(f"v_add_u32 v7, {OH}, v70")
    I("ds_write_b128 v7, v[8:11]")
    I("ds_write_b128 v7, v[8:11] offset:1024")
    I("s_mov_b32 exec_hi, 0")
    I("ds_write_b128 v7, v[8:11] offset:2048")
    I("v_bfe_u32 v6, v3, 2, 1")
    I("v_lshlrev_b32 v6, 5, v6")
    I("v_lshrrev_b32 v7, 4, v3")
    I("v_lshl_add_u32 v6, v7, 4, v6")
    I("v_and_b32 v7, 15, v5")
    I("v_add_u32 v6, v6, v7")
    I("v_mad_u32_u24 v6, v3, s42, v6")
    I(f"v_add_u32 v6, {OH}, v6")
    I(f"ds_write_b16_d16_hi v6, v{ONE}")
    I("s_mov_b64 exec, -1")
    L("L_noconst")
    I("s_waitcnt vmcnt(0)")
    stamp(1)
    I("v_bfe_u32 v52, v48, 12, 4")
    I("v_lshrrev_b32 v53, 28, v48")
    I("v_lshl_or_b32 v52, v53, 4, v52")
    I("v_bfe_u32 v53, v49, 12, 4")
    I("v_lshl_or_b32 v52, v53, 8, v52")
    I("v_and_b32 v48, 0x0fff0fff, v48")
    I("v_and_b32 v49, 0xffff0fff, v49")
    I("v_and_b32 v53, 0xffff, v48")
    I("v_subrev_u32 v54, s33, v66")
    I("s_sub_u32 s46, s34, s33")
    I("v_cmp_gt_u32 s[52:53], s46, v54")
    I("v_and_b32 v55, 1, v67")
    I("v_lshl_add_u32 v64, v55, 1, v53")
    I("v_cndmask_b32 v54, v53, v52, s[52:53]")
    I(f"s_movk_i32 s46, {RECROW}")
    I("v_mul_u32_u24 v65, s46, v66")
    I("v_lshl_add_u32 v65, v64, 3, v65")
    I("v_sub_u32 v68, v54, v64")
    def rec_loads(tag):
        for i in range(8):
            I(f"v_cmpx_lt_i32 vcc, {4*i}, v68")
            I("s_nop 0")
            I(f"s_cbranch_execz L_rl_{tag}")
            I(f"buffer_load_dwordx4 v[{4*i}:{4*i+3}], v65, s[24:27], 0 offen offset:{32*i}")
        L(f"L_rl_{tag}")
        I("s_mov_b64 exec, -1")
    rec_loads("a")
    if K2PF:
        I("s_cmp_eq_u32 s47, 0")
        I("s_cbranch_scc1 L_nopf")
        I("s_lshl_b32 s46, s39, 3")
        I("s_add_u32 s46, s46, s3")
        I(f"s_mul_i32 s46, s46, {K2PF*64*128}")
        I("v_lshlrev_b32 v71, 7, v67")
        for k in range(K2PF):
            I(f"s_add_u32 s50, s46, {k*8192}")
            I(f"buffer_load_dword v{T+k}, v71, s[12:15], s50 offen")
        L("L_nopf")
    I("v_cmp_eq_u32 vcc, 0, v55")
    I("s_and_b64 vcc, vcc, s[52:53]")
    I("v_alignbit_b32 v72, v49, v48, 16")
    I("v_alignbit_b32 v73, v50, v49, 16")
    I("v_alignbit_b32 v74, v51, v50, 16")
    I("v_alignbit_b32 v75, v52, v51, 16")
    for i in range(4):
        I(f"v_sub_u32 v{72+i}, v{72+i}, v{48+i}")
    I("v_sub_u32 v76, v52, v53")
    for i in range(5):
        I(f"v_cndmask_b32 v{72+i}, 0, v{72+i}, vcc")
    for i in range(5):
        I(f"v_mov_b32 v{80+i}, v{72+i}")
    wave_scan([80, 81, 82, 83, 84])
    I("s_lshl_b32 s46, s3, 5")
    I(f"s_add_u32 s46, s46, {WTOT}")
    I("v_mov_b32 v69, s46")
    I("s_mov_b32 exec_lo, 0")
    I("s_mov_b32 exec_hi, 0x80000000")
    I("ds_write_b128 v69, v[80:83]")
    I("ds_write_b32 v69, v84 offset:16")
    I("s_mov_b64 exec, -1")
    I("v_and_b32 v69, 7, v67")
    I("v_lshlrev_b32 v69, 5, v69")
    I(f"v_add_u32 v69, {WTOT}, v69")
    I("s_waitcnt lgkmcnt(0)")
    I("s_barrier")
    stamp(2)
    I("ds_read_b128 v[88:91], v69")
    I("ds_read_b32 v92, v69 offset:16")
    I("s_waitcnt lgkmcnt(0)")
    for i in range(5):
        I(f"v_mov_b32 v{56+i}, v{88+i}")
    I("s_nop 1")
    for sh in (1, 2, 4):
        for i in range(5):
            I(f"v_add_u32_dpp v{56+i}, v{56+i}, v{56+i} row_shr:{sh} row_mask:0xf bank_mask:0xf")
    I("s_nop 1")
    for i in range(4):
        I(f"v_sub_u32 v{88+i}, v{56+i}, v{88+i}")
    I("v_readlane_b32 s60, v60, 7")
    for i in range(4):
        I(f"v_readlane_b32 s{56+i}, v{56+i}, 7")
    for i in range(4):
        I(f"v_readlane_b32 s{52+i}, v{88+i}, s3")
    I(f"s_cmp_le_u32 s60, {TLIM}")
    I("s_cbranch_scc1 L_fits")
    I("s_sub_u32 s46, s34, s33")
    I("s_cmp_eq_u32 s46, 1")
    I("s_cselect_b32 s34, s34, s33")
    for i in range(4):
        I(f"s_mov_b32 s{56+i}, 0")
    I("v_mov_b32 v68, 0")
    L("L_fits")
    I("s_cmp_eq_u32 s47, 0")
    I("s_cbranch_scc1 L_paired")
    if PAIR:
        for i in range(4):
            I(f"v_mov_b32 v{56+i}, s{56+i}")
        I("v_and_b32 v60, 7, v67")
        I("v_lshrrev_b32 v61, 3, v67")
        for (src, dst) in ((60, 62), (61, 63)):
            I(f"v_bfe_u32 v93, v{src}, 1, 1")
            I(f"v_cmp_eq_u32 vcc, 1, v93")
            I(f"v_bfe_u32 v93, v{src}, 2, 1")
            I(f"v_cmp_eq_u32 s[50:51], 1, v93")
            I("v_cndmask_b32 v94, v56, v57, vcc")
            I("v_cndmask_b32 v95, v58, v59, vcc")
            I(f"v_and_b32 v93, 1, v{src}")
            I("v_cndmask_b32 v94, v94, v95, s[50:51]")
            I("v_lshlrev_b32 v93, 4, v93")
            I("v_bfe_u32 v94, v94, v93, 16")
            I(f"v_lshl_add_u32 v{dst}, v94, 3, v{src}")
        I("v_cmp_gt_u32 vcc, v62, v63")
        I("s_sub_u32 s64, 11, s3")
        I("s_cmp_lt_u32 s3, 4")
        I("s_cselect_b32 s64, s3, s64")
        I("s_mov_b32 s41, 0")
        for i in range(8):
            I(f"s_bfe_u32 s65, {'vcc_lo' if i < 4 else 'vcc_hi'}, {(8*(i%4)) | (8 << 16)}")
            I("s_bcnt1_i32_b32 s65, s65")
            I("s_cmp_eq_u32 s65, s64")
            I(f"s_cselect_b32 s41, {i}, s41")
    else:
        I("s_mov_b32 s41, s3")
    L("L_paired")
    I("s_mov_b32 s61, 0")
    I("s_mov_b32 s62, 0")
    I("s_mov_b32 s63, 0")
    for i in range(4):
        I(f"s_add_u32 s64, s{56+i}, 0x005f005f")
        I("s_and_b32 s64, s64, 0xffe0ffe0")
        I("s_and_b32 s65, s64, 0xffff")
        I("s_lshr_b32 s66, s64, 16")
        I("s_add_u32 s67, s61, s65")
        I(f"s_and_b32 s68, s{56+i}, 0xffff")
        I(f"s_cmp_eq_u32 s41, {2*i}")
        I("s_cselect_b32 s62, s61, s62")
        I("s_cselect_b32 s63, s68, s63")
        I(f"s_lshr_b32 s68, s{56+i}, 16")
        I(f"s_cmp_eq_u32 s41, {2*i+1}")
        I("s_cselect_b32 s62, s67, s62")
        I("s_cselect_b32 s63, s68, s63")
        I("s_lshl_b32 s68, s67, 16")
        I("s_or_b32 s68, s68, s61")
        I(f"s_add_u32 s{52+i}, s{52+i}, s68")
        I(f"s_add_u32 s{52+i}, s{52+i}, 0x10001000")
        I("s_add_u32 s61, s67, s66")
    for i in range(4):
        I(f"v_sub_u32 v{80+i}, v{80+i}, v{72+i}")
    for i in range(4):
        I(f"v_add_u32 v{80+i}, s{52+i}, v{80+i}")
    for i in range(4):
        I(f"v_sub_u32 v{80+i}, v{80+i}, v{48+i}")
    I("v_lshlrev_b32 v69, 4, v66")
    I(f"v_add_u32 v69, {BASET}, v69")
    I("s_mov_b32 exec_lo, 0x55555555")
    I("s_mov_b32 exec_hi, 0x55555555")
    I("ds_write_b128 v69, v[80:83]")
    I("s_mov_b64 exec, -1")
    I("s_add_u32 s64, s63, 31")
    I("s_lshr_b32 s35, s64, 5")
    I("s_lshl_b32 s64, s35, 5")
    I("s_sub_u32 s64, s64, s63")
    I("s_add_u32 s65, s62, s63")
    I("v_add_lshl_u32 v72, v67, s65, 2")
    I("v_mov_b32 v73, 0xffffff00")
    I(f"v_mov_b32 v74, {EMASK}")
    I(f"ds_write2st64_b32 v72, v73, v74 offset0:{LIST_S//256} offset1:{LIST_M//256}")
    I("v_cmp_gt_u32 vcc, s64, v67")
    I("s_and_saveexec_b64 s[50:51], vcc")
    I(f"ds_write2st64_b32 v72, v73, v74 offset0:{LIST_S//256+1} offset1:{LIST_M//256+1}")
    I("s_mov_b64 exec, -1")
    I("s_lshl_b32 s64, s62, 2")
    I("v_lshrrev_b32 v72, 3, v67")
    I("v_lshlrev_b32 v72, 4, v72")
    I(f"s_add_u32 s65, s64, {LIST_S}")
    I(f"v_add_u32 v{LSA}, s65, v72")
    I("v_and_b32 v72, 7, v67")
    I("v_bfe_u32 v73, v67, 3, 2")
    I("v_lshl_add_u32 v72, v72, 2, v73")
    I("v_lshlrev_b32 v72, 2, v72")
    I(f"s_add_u32 s65, s64, {LIST_M}")
    I(f"v_add_u32 v{LMA}, s65, v72")
    I("s_cmp_eq_u32 s47, 0")
    I("s_cbranch_scc1 L_scat")
    for k in range(5):
        I(f"s_add_u32 s46, s3, {8*k}")
        if k == 4:
            I("s_min_u32 s46, s46, 33")
        I("s_lshl_b32 s46, s46, 10")
        I(f"s_add_u32 m0, s46, {WSTG}")
        I("s_nop 0")
        I("buffer_load_dwordx4 v70, s[28:31], s46 offen lds")
    for i in range(16):
        I(f"v_mov_b32 v{80+i}, 0")
    I("v_and_b32 v72, 31, v67")
    I(f"v_lshl_add_u32 v72, v72, 7, v{H16}")
    I("s_lshl_b32 s46, s32, 3")
    I("s_add_u32 s46, s46, s41")
    I(f"s_mul_i32 s49, s46, {WN*128}")
    I("s_mov_b32 exec_lo, 0x1ffffff")
    I("s_mov_b32 exec_hi, 0x1ffffff")
    for s in range(4):
        I(f"buffer_load_dwordx4 {vr(80+4*s,4)}, v72, s[12:15], s49 offen offset:{32*s}")
    I("s_mov_b64 exec, -1")
    I(f"s_waitcnt vmcnt({9+K2PF})")
    I("s_branch L_scat1")
    L("L_scat")
    I("s_waitcnt vmcnt(0)")
    L("L_scat1")
    stamp(3)
    o0 = (LIST_S - 16384) // 256; o1 = (LIST_M - 16384) // 256
    for half in range(2):
        R = range(8 * half, 8 * half + 8)
        if half:
            I("v_cmpx_lt_i32 vcc, 16, v68")
            I("s_nop 0")
            I("s_cbranch_execz L_scat_done")
        for r in R:
            I(f"v_lshrrev_b32 v{32+r}, 28, v{2*r+1}")
        for r in R:
            I(f"v_add_u32 v{32+r}, v{32+r}, v69")
        for r in R:
            I(f"ds_read_u16 v{32+r}, v{32+r}")
        for r in R:
            i, k = r // 2, r % 2
            I(f"v_cmpx_lt_i32 vcc, {4*i+k}, v68")
            I("s_waitcnt lgkmcnt(7)")
            I("s_cbranch_execz L_scat_done")
            I(f"v_add3_u32 v{32+r}, v{32+r}, v64, {4*i+k}")
            I(f"v_lshlrev_b32 v{32+r}, 2, v{32+r}")
            I(f"ds_write2st64_b32 v{32+r}, v{2*r}, v{2*r+1} offset0:{o0} offset1:{o1}")
    I("v_cmpx_lt_i32 vcc, 32, v68")
    I("s_nop 0")
    I("s_cbranch_execz L_scat_done")
    I("s_mov_b64 exec, -1")
    I("v_add_u32 v64, 32, v64")
    I("v_subrev_u32 v68, 32, v68")
    I("v_add_u32 v65, 256, v65")
    I("s_waitcnt lgkmcnt(0)")
    rec_loads("b")
    I("s_branch L_scat")
    L("L_scat_done")
    I("s_mov_b64 exec, -1")
    I("s_waitcnt lgkmcnt(0)")
    I("s_barrier")
    stamp(4)
    I(f"ds_read_b128 {vr(T,4)}, v{LSA}")
    I(f"ds_read2_b32 {vr(T+4,2)}, v{LMA} offset0:0 offset1:32")
    I("s_waitcnt lgkmcnt(0)")
    put(x_dma(0))
    put(e_load(0, T + 4))
    I(f"ds_read_b128 {vr(T,4)}, v{LSA} offset:128")
    I("s_cmp_eq_u32 s47, 0")
    I("s_cbranch_scc1 L_noinit")
    I("s_waitcnt vmcnt(5)")
    I("s_barrier")
    for f in range(8):
        I(f"ds_read_b128 {vr(4*f,4)}, v70 offset:{WSTG+1024*f}")
    for f in range(8):
        I(f"ds_read_b128 {ar(4*f,4)}, v70 offset:{WSTG+1024*(26+f)}")
    for f in range(8):
        I(f"ds_read_b128 {ar(A_WV+4*f,4)}, v70 offset:{WSTG+1024*(18+f)}")
    I("s_waitcnt lgkmcnt(15)")
    I("s_waitcnt lgkmcnt(8)")
    for c in range(2):
        d = vr(32 + 16 * c, 16)
        for s in range(4):
            I(mfma(d, vr(80 + 4 * s, 4), vr((2 * s + c) * 4, 4), "0" if s == 0 else d))
    for c in range(2):
        a = ar(A_AGG + 16 * c, 16)
        for s in range(4):
            I(mfma(a, vr(80 + 4 * s, 4), ar((2 * s + c) * 4, 4), "0" if s == 0 else a))
    for f in range(10):
        I(f"ds_read_b128 {ar(A_WB+4*f,4)}, v70 offset:{WSTG+1024*(8+f)}")
    if PRESCALE:
        for i in range(32):
            I(f"v_mul_f32 v{32+i}, s43, v{32+i}")
    for c in range(2):
        for p in range(8):
            I(f"v_cvt_pk_bf16_f32 v{8*c+p}, v{32+16*c+2*p}, v{32+16*c+2*p+1}")
    for c in range(2):
        for p in range(8):
            I(f"v_accvgpr_write_b32 a{xa(p//4, c) + p%4}, v{8*c+p}")
    I("s_mov_b32 s47, 0")
    L("L_noinit")
    I("s_cmp_eq_u32 s35, 0")
    I("s_cbranch_scc1 L_round_end")
    I(f"v_and_b32 v{T+4}, 31, v{T+4}")
    I(f"v_mad_u32_u24 v{T+7}, v{T+4}, s42, v{OHC}")
    I(f"v_mad_u32_u24 v{SW}, v{T+4}, s42, v{K1C}")
    I(f"ds_write_b16_d16_hi v{SW}, v{ONE}")
    I("s_waitcnt lgkmcnt(0)")
    put(x_dma(1))
    put(e_load(1, T + 5))
    for i in range(8):
        I(f"v_mov_b32 v{G[1]+i}, 0")
    for i in range(8):
        I(f"v_mov_b32 v{S+i}, 0")
    I("s_waitcnt vmcnt(5)")
    put(a_reads(0))
    I(f"ds_read_b128 {vr(T,4)}, v{LSA} offset:256")
    I("s_mov_b32 s36, s35")
    if PRIO:
        I("s_setprio 3")
    stamp(5)
    m0 = mfma_group(0, 0)
    I(m0[0])
    I("s_waitcnt lgkmcnt(0)")
    I(m0[1])
    put(x_dma(0))
    put(m0[2:])
    I("s_nop 7")
    I("s_branch L_p1_0")
    L("L_loop")
    INLOOP[0] = True
    nv = len(valu_group(0))
    pos = [2 + (k * (nv - 4)) // 13 for k in range(13)]
    def sched(mf, va, inserts):
        pend = []
        mi = 0
        for i, v in enumerate(va):
            if mi < len(mf) and i == pos[mi]:
                put(inserts.get(('b', mi), []))
                I(mf[mi])
                put(inserts.get(('m', mi), []))
                pend += inserts.get(('s', mi), [])
                mi += 1
            I(v)
            if pend:
                put([pend.pop(0)])
        assert mi == len(mf)
        put(pend)
    def nonop(lst):
        return [x for x in lst if x != "s_nop 0"]
    for par in range(2):
        ins = {('b', 3): ["s_waitcnt lgkmcnt(1)"],
               ('m', 4): ["s_waitcnt lgkmcnt(0)"],
               ('s', 4): nonop(x_dma(par))}
        if PRIO:
            ins[('m', 0)] = prio_code(par)
        sched(agg_group(0) + mfma_group(0, par), valu_group(1), ins)
        L(f"L_p1_{par}")
        ins = {('m', 0): [f"ds_read2_b32 {vr(T+4,2)}, v{LMA} offset0:32 offset1:64"],
               ('s', 1): [f"ds_read_b128 {vr(S,4)}, v{SRA}",
                          f"ds_read_b128 {vr(S+4,4)}, v{SRA} offset:32",
                          f"ds_write_b16 v{SW}, v{ONE}"],
               ('m', 3): ["s_waitcnt lgkmcnt(3)"] + e_load(par, T + 5),
               ('s', 3): [f"v_and_b32 v{T+4}, 31, v{T+4}",
                          f"v_add_u32 v{LSA}, 128, v{LSA}",
                          f"v_mad_u32_u24 v{T+7}, v{T+4}, s42, v{OHC}",
                          f"v_mad_u32_u24 v{SW}, v{T+4}, s42, v{K1C}",
                          f"v_add_u32 v{LMA}, 128, v{LMA}",
                          f"ds_write_b16_d16_hi v{SW}, v{ONE}",
                          "s_sub_u32 s36, s36, 1"],
               ('m', 4): [f"v_mov_b32 v{T+6}, v{T+6}"] * int(os.environ.get("EXTRAV", "0")),
               ('m', 12): ["s_waitcnt vmcnt(5) lgkmcnt(0)"] + a_reads(par ^ 1) + [f"ds_read_b128 {vr(T,4)}, v{LSA} offset:256"]}
        sched(agg_group(1) + mfma_group(1, par), valu_group(0), ins)
        I("s_cmp_eq_u32 s36, 0")
        if par == 0:
            I("s_cbranch_scc1 L_tail")
        else:
            I("s_cbranch_scc0 L_loop")
    L("L_tail")
    INLOOP[0] = False
    I(f"ds_write_b16 v{SW}, v{ONE}")
    I("s_nop 0")
    put(agg_group(0))
    put(valu_group(1))
    I("s_nop 1")
    put(agg_group(1))
    L("L_round_end")
    I(f"s_cmp_ge_u32 s34, {NC}")
    I("s_cbranch_scc1 L_epi")
    I("s_mov_b32 s33, s34")
    I("s_add_u32 s34, s34, 1")
    I("v_mbcnt_lo_u32_b32 v67, -1, 0")
    I("v_mbcnt_hi_u32_b32 v67, -1, v67")
    I("s_waitcnt vmcnt(0) lgkmcnt(0)")
    I("s_barrier")
    I("s_branch L_round")
    L("L_epi")
    I("s_waitcnt vmcnt(0) lgkmcnt(0)")
    stamp(6)
    srd(28, 8, 9, N * 128)
    I("v_mbcnt_lo_u32_b32 v67, -1, 0")
    I("v_mbcnt_hi_u32_b32 v67, -1, v67")
    I("v_and_b32 v68, 31, v67")
    I("v_lshrrev_b32 v69, 5, v67")
    I("v_lshlrev_b32 v68, 1, v68")
    I("v_lshl_add_u32 v68, v69, 9, v68")
    I("v_add_u32 v68, s37, v68")
    I("v_lshlrev_b32 v70, 4, v67")
    I("v_add_u32 v71, s37, v70")
    I("s_nop 7")
    I("s_nop 7")
    regs = [i for i in range(13)]
    for c in range(2):
        for i in regs:
            I(f"v_accvgpr_read_b32 v{16*c+i}, a{A_AGG+16*c+i}")
    ids = [16 * c + i for c in range(2) for i in regs]
    for r in ids:
        I(f"v_mul_f32 v{32+r}, s43, v{r}")
    for r in ids:
        I(f"v_exp_f32 v{32+r}, v{32+r}")
    for r in ids:
        I(f"v_add_f32 v{32+r}, 1.0, v{32+r}")
    for r in ids:
        I(f"v_rcp_f32 v{32+r}, v{32+r}")
    for r in ids:
        I(f"v_mul_f32 v{r}, v{r}, v{32+r}")
    for i in regs:
        I(f"v_cvt_pk_bf16_f32 v{32+i}, v{i}, v{16+i}")
    for i in regs:
        row = 8 * (i >> 2) + (i & 3)
        I(f"ds_write_b16 v68, v{32+i} offset:{row*128}")
        I(f"ds_write_b16_d16_hi v68, v{32+i} offset:{row*128+64}")
    I("s_waitcnt lgkmcnt(0)")
    for k in range(4):
        I(f"ds_read_b128 {vr(4*k,4)}, v71 offset:{1024*k}")
    for k in range(3):
        I(f"s_waitcnt lgkmcnt({3-k})")
        I(f"buffer_store_dwordx4 {vr(4*k,4)}, v70, s[28:31], s49 offen offset:{1024*k}")
    I("s_waitcnt lgkmcnt(0)")
    I("s_mov_b64 exec, 0xff")
    I(f"buffer_store_dwordx4 {vr(12,4)}, v70, s[28:31], s49 offen offset:3072")
    if STAMP:
        I("s_waitcnt vmcnt(0)")
        stamp(7)
        srd(28, 10, 11, 0x100000, 0x1000000)
        I("s_mov_b64 exec, 1")
        I("s_lshl_b32 s46, s2, 3")
        I("s_add_u32 s46, s46, s3")
        I("s_lshl_b32 s46, s46, 6")
        I("v_mov_b32 v0, 0")
        for k in range(8):
            I(f"v_mov_b32 v1, s{70+2*k}")
            I(f"buffer_store_dword v1, v0, s[28:31], s46 offen offset:{4*k}")
        I("v_mov_b32 v1, s35")
        I(f"buffer_store_dword v1, v0, s[28:31], s46 offen offset:32")
        I("s_getreg_b32 s47, hwreg(HW_REG_XCC_ID)")
        I("v_mov_b32 v1, s47")
        I(f"buffer_store_dword v1, v0, s[28:31], s46 offen offset:36")
        I("s_getreg_b32 s47, hwreg(HW_REG_HW_ID)")
        I("v_mov_b32 v1, s47")
        I(f"buffer_store_dword v1, v0, s[28:31], s46 offen offset:40")
        I("s_memrealtime s[50:51]")
        I("s_waitcnt lgkmcnt(0)")
        I("v_mov_b32 v1, s50")
        I(f"buffer_store_dword v1, v0, s[28:31], s46 offen offset:44")
        I("v_mov_b32 v1, s86")
        I(f"buffer_store_dword v1, v0, s[28:31], s46 offen offset:48")
    L("L_k2_end")
    L("L_k2_last")
    I("s_endpgm")

def kd(name, vgpr, sgpr, accum):
    emit(f".amdhsa_kernel {name}")
    emit(f"  .amdhsa_next_free_vgpr {vgpr}")
    emit(f"  .amdhsa_next_free_sgpr {sgpr}")
    emit(f"  .amdhsa_accum_offset {accum}")
    emit("  .amdhsa_group_segment_fixed_size 0")
    emit("  .amdhsa_kernarg_size 80")
    emit("  .amdhsa_user_sgpr_count 2")
    emit("  .amdhsa_user_sgpr_kernarg_segment_ptr 1")
    emit("  .amdhsa_system_sgpr_workgroup_id_x 1")
    emit(".end_amdhsa_kernel")

def main():
    emit(HEADER.rstrip("\n"))
    emit(f"; @launch kernel=egc_bin_kernel grid=({NC},1,1) block=(1024,1,1) lds={K1_LDS}")
    emit(f"; @launch kernel=egc_main_kernel grid=(256,1,1) block=(512,1,1) lds={K2_LDS}")
    emit('.amdgcn_target "amdgcn-amd-amdhsa--gfx950"')
    emit(".text")
    gen_k1()
    gen_k2()
    emit('.section .rodata,"a"')
    emit(".p2align 6")
    kd("egc_bin_kernel", 84 if PERM else 56, 72, 84 if PERM else 56)
    emit(".p2align 6")
    kd("egc_main_kernel", 248, 96, 128)
    path = sys.argv[1] if len(sys.argv) > 1 else "standalone__edge_featured_mpnn_egc__graph.s"
    open(path, "w").write("\n".join(out) + "\n")

main()
```

```python
import sys, os

N = 50000; E = 800000
WN = 25; NWIN = 2048; NB = 256; CH = 3200; NC = 250
WS_WF = 0; WS_TAB = 0x10000; TABROW = 8192; WS_REC = 0x400000; RECROW = CH * 8
PRESCALE = int(os.environ.get('PRESCALE', '0')) if 'os' in globals() else 0
PERM = int(os.environ.get('PERM', '0'))
WS_EAS = 0x2000000
K1PF = int(os.environ.get('K1PF', '0'))
K2PF = int(os.environ.get('K2PF', '0'))
PAIR = int(os.environ.get('PAIR', '1'))
CODEPF = int(os.environ.get('CODEPF', '0'))
STAMP1 = int(os.environ.get('STAMP1', '0'))
M25 = 175921861
NEGLOG2E = 0xBFB8AA3B

import os
STAMP = int(os.environ.get("STAMP", "0"))
def stamp(k):
    if STAMP:
        I(f"s_memtime s[{70+2*k}:{71+2*k}]")
        I("s_waitcnt lgkmcnt(0)")
out = []
def emit(s=""):
    out.append(s)
DROP = os.environ.get("DROP", "").split(",")
INLOOP = [False]
def I(s):
    if INLOOP[0]:
        op = s.split()[0]
        if "mfma" in DROP and op.startswith("v_mfma"): return
        if "msparse" in DROP and op.startswith("v_mfma") and (s.split()[1].startswith("a[") or s.split()[2] in ("v[80:83],", "v[84:87],")): return
        if "mh" in DROP and op.startswith("v_mfma") and s.split()[1] in ("v[16:31],", "v[48:63],"): return
        if "trans" in DROP and op in ("v_exp_f32", "v_rcp_f32"): return
        if "valu" in DROP and op in ("v_exp_f32", "v_rcp_f32", "v_mul_f32", "v_add_f32", "v_cvt_pk_bf16_f32"): return
        if "dma" in DROP and op.startswith("buffer_load"): return
        if "lds" in DROP and op.startswith("ds_read_b128"): return
    out.append("    " + s)
def L(s):
    out.append(s + ":")

HEADER = """; Kernarg layout for this problem (80 bytes, ptrs only, base s[0:1]):
"""

def srd(d, lo, hi, size, add=0):
    if add:
        I(f"s_add_u32 s{d}, s{lo}, {add}")
        I(f"s_addc_u32 s{d+1}, s{hi}, 0")
    else:
        I(f"s_mov_b32 s{d}, s{lo}")
        I(f"s_mov_b32 s{d+1}, s{hi}")
    I(f"s_mov_b32 s{d+2}, {size}")
    I(f"s_mov_b32 s{d+3}, 0x00020000")

def wave_scan(regs):
    steps = ["row_shr:1 row_mask:0xf bank_mask:0xf", "row_shr:2 row_mask:0xf bank_mask:0xf",
             "row_shr:4 row_mask:0xf bank_mask:0xf", "row_shr:8 row_mask:0xf bank_mask:0xf",
             "row_bcast:15 row_mask:0xa bank_mask:0xf", "row_bcast:31 row_mask:0xc bank_mask:0xf"]
    I("s_nop 1")
    for st in steps:
        for r in regs:
            I(f"v_add_u32_dpp v{r}, v{r}, v{r} {st}")
        if len(regs) < 3:
            I(f"s_nop {2 - len(regs)}")

K1_HIST = 0
K1_WTOT = 8256
K1_STG = 8448
K1_POS = K1_STG + RECROW
K1_LDS = K1_POS + (CH * 4 if PERM else 0)

def gen_k1():
    emit(".globl egc_bin_kernel")
    emit(".p2align 8")
    emit(".type egc_bin_kernel,@function")
    L("egc_bin_kernel")
    I(f"s_cmp_ge_u32 s2, {NC}")
    I("s_cbranch_scc1 L_k1_end")
    if STAMP1:
        I("s_memtime s[70:71]")
        I("s_waitcnt lgkmcnt(0)")
    I("s_load_dwordx4 s[4:7], s[0:1], 16")
    I("s_load_dwordx4 s[8:11], s[0:1], 32")
    I("s_load_dwordx2 s[12:13], s[0:1], 48")
    I("s_load_dwordx2 s[14:15], s[0:1], 72")
    if PERM:
        I("s_load_dwordx2 s[60:61], s[0:1], 8")
    if K1PF:
        I("s_load_dwordx2 s[64:65], s[0:1], 0")
    I("v_lshlrev_b32 v1, 3, v0")
    I("v_mov_b32 v2, 0")
    I("v_mov_b32 v3, 0")
    I(f"ds_write_b64 v1, v[2:3] offset:{K1_HIST}")
    I(f"v_mov_b32 v3, {CH}")
    I(f"ds_write_b32 v2, v3 offset:{K1_HIST+8192}")
    I("v_lshlrev_b32 v4, 4, v0")
    I("v_lshrrev_b32 v5, 6, v0")
    I(f"s_mul_i32 s32, s2, {CH*4}")
    I("v_readfirstlane_b32 s3, v5")
    I(f"s_mov_b32 s33, {M25}")
    I("s_movk_i32 s36, 3125")
    I(f"s_mul_i32 s37, s2, {CH*32}")
    I("s_waitcnt lgkmcnt(0)")
    if STAMP1:
        I("s_memtime s[72:73]")
        I("s_waitcnt lgkmcnt(0)")
    srd(16, 4, 5, E * 4)
    srd(20, 6, 7, E * 4)
    srd(24, 14, 15, 0x1000000)
    if PERM:
        srd(52, 60, 61, E * 32)
        srd(56, 14, 15, E * 32, WS_EAS)
    I(f"v_cmp_gt_u32 vcc, {CH//4}, v0")
    I("s_and_saveexec_b64 s[34:35], vcc")
    I("s_cbranch_execz L_k1_noload")
    I("buffer_load_dwordx4 v[8:11], v4, s[20:23], s32 offen")
    I("buffer_load_dwordx4 v[12:15], v4, s[16:19], s32 offen")
    L("L_k1_noload")
    I("s_mov_b64 exec, s[34:35]")
    if CODEPF:
        I("s_cmp_lg_u32 s3, 14")
        I("s_cbranch_scc1 L_k1_nocpf")
        I("s_getpc_b64 s[62:63]")
        L("L_k1_pc")
        I("s_add_u32 s62, s62, egc_main_kernel-L_k1_pc")
        I("s_addc_u32 s63, s63, 0")
        I("v_and_b32 v40, 63, v0")
        I("v_lshlrev_b32 v40, 7, v40")
        I("v_min_u32 v41, L_k2_last-egc_main_kernel-8192, v40")
        I("v_add_u32 v41, 8192, v41")
        I("global_load_dword v42, v40, s[62:63]")
        I("global_load_dword v43, v41, s[62:63]")
        L("L_k1_nocpf")
    I("s_mov_b32 s40, 0")
    I("s_cmp_lg_u32 s3, 15")
    I("s_cbranch_scc1 L_k1_nowf")
    I("s_cmp_ge_u32 s2, 34")
    I("s_cbranch_scc1 L_k1_nowf")
    I("s_mov_b32 s40, 1")
    I("s_mov_b32 s28, s12")
    I("s_mov_b32 s29, s13")
    I(f"s_mov_b32 s30, {144*128}")
    I("s_mov_b32 s31, 0x00020000")
    I("s_mov_b32 s41, s2")
    I("s_cmp_lt_u32 s2, 18")
    I("s_cbranch_scc1 L_k1_wsel")
    I("s_mov_b32 s28, s10")
    I("s_mov_b32 s29, s11")
    I(f"s_mov_b32 s30, {64*128}")
    I("s_sub_u32 s41, s2, 18")
    I("s_cmp_lt_u32 s2, 26")
    I("s_cbranch_scc1 L_k1_wsel")
    I("s_mov_b32 s28, s8")
    I("s_mov_b32 s29, s9")
    I("s_sub_u32 s41, s2, 26")
    L("L_k1_wsel")
    I("s_lshr_b32 s42, s41, 1")
    I("s_lshl_b32 s42, s42, 11")
    I("s_and_b32 s43, s41, 1")
    I("s_lshl_b32 s43, s43, 6")
    I("s_add_u32 s42, s42, s43")
    I("v_and_b32 v40, 31, v0")
    I("v_lshlrev_b32 v40, 1, v40")
    I("v_and_b32 v41, 32, v0")
    I("v_lshl_add_u32 v40, v41, 5, v40")
    for j in range(8):
        I(f"buffer_load_ushort v{44+j}, v40, s[28:31], s42 offen offset:{128*j}")
    L("L_k1_nowf")
    I("s_barrier")
    if K1PF:
        I("s_mov_b32 s66, s64")
        I("s_mov_b32 s67, s65")
        I("s_mov_b32 s64, s66")
        I("s_mov_b32 s65, s67")
        I(f"s_mov_b32 s66, {N*128}")
        I("s_mov_b32 s67, 0x00020000")
        I("s_lshr_b32 s62, s2, 3")
        I(f"s_mul_i32 s62, s62, {K1PF*128}")
        I("v_lshlrev_b32 v3, 7, v0")
        I(f"s_movk_i32 s63, {K1PF}")
        I("v_cmp_gt_u32 s[48:49], s63, v0")
        I("s_and_saveexec_b64 s[34:35], s[48:49]")
        I("s_cbranch_execz L_k1_nopf")
        I("buffer_load_dword v42, v3, s[64:67], s62 offen")
        L("L_k1_nopf")
        I("s_mov_b64 exec, s[34:35]")
    if PERM:
        for k in range(7):
            if k == 6:
                I("s_cmp_ge_u32 s3, 4")
                I("s_cbranch_scc1 L_k1_e6")
            I(f"s_add_u32 s62, s37, {16384*k}")
            I(f"buffer_load_dwordx4 v[{56+4*k}:{59+4*k}], v4, s[52:55], s62 offen" + os.environ.get("K1EPOL", ""))
        L("L_k1_e6")
    ne = 6 if PERM else 0
    if K1PF >= CH // 4 + 32: ne += 1
    I("s_and_saveexec_b64 s[34:35], vcc")
    I("s_cbranch_execz L_k1_nohist")
    I("v_mov_b32 v6, 1")
    if PERM:
        I("v_mov_b32 v7, s37")
    else:
        I("v_lshl_add_u32 v7, v0, 7, s37")
    I(f"s_waitcnt vmcnt({ne+1})")
    if STAMP1:
        I("s_memtime s[74:75]")
        I("s_waitcnt lgkmcnt(0)")
    for i in range(4):
        I(f"v_mul_hi_u32 v{16+i}, v{8+i}, s33")
    for i in range(4):
        I(f"v_lshlrev_b32 v{20+i}, 2, v{16+i}")
    for i in range(4):
        I(f"ds_add_rtn_u32 v{24+i}, v{20+i}, v6 offset:{K1_HIST}")
    I("v_mov_b32 v5, 0x7f")
    for i in range(4):
        I(f"v_mad_u32_u24 v{28+i}, v{16+i}, s36, v5")
    for i in range(4):
        I(f"v_lshrrev_b32 v{28+i}, 7, v{28+i}")
    for i in range(4):
        I(f"v_sub_u32 v{28+i}, v{8+i}, v{28+i}")
    for i in range(4):
        I(f"v_lshlrev_b32 v{16+i}, 29, v{16+i}")
    for i in range(4):
        I(f"v_or3_b32 v{33+2*i}, v{16+i}, v7, v{28+i}")
    if not PERM:
        for i in range(1, 4):
            I(f"v_add_u32 v{33+2*i}, {32*i}, v{33+2*i}")
    I(f"s_waitcnt vmcnt({ne})")
    for i in range(4):
        I(f"v_lshlrev_b32 v{32+2*i}, 7, v{12+i}")
    L("L_k1_nohist")
    I("s_mov_b64 exec, s[34:35]")
    I("s_waitcnt lgkmcnt(0)")
    I("s_barrier")
    if STAMP1:
        I("s_memtime s[76:77]")
        I("s_waitcnt lgkmcnt(0)")
    I(f"ds_read_b64 v[2:3], v1 offset:{K1_HIST}")
    I("s_waitcnt lgkmcnt(0)")
    I("v_add_u32 v8, v2, v3")
    I("v_mov_b32 v9, v8")
    wave_scan([9])
    I("s_lshl_b32 s44, s3, 2")
    I("v_mov_b32 v10, s44")
    I("s_mov_b32 exec_lo, 0")
    I("s_mov_b32 exec_hi, 0x80000000")
    I(f"ds_write_b32 v10, v9 offset:{K1_WTOT}")
    I("s_mov_b64 exec, -1")
    I("v_and_b32 v10, 15, v0")
    I("v_lshlrev_b32 v10, 2, v10")
    I("s_waitcnt lgkmcnt(0)")
    I("s_barrier")
    I(f"ds_read_b32 v11, v10 offset:{K1_WTOT}")
    I("s_waitcnt lgkmcnt(0)")
    I("v_mov_b32 v12, v11")
    I("s_nop 1")
    for sh in (1, 2, 4, 8):
        I(f"v_add_u32_dpp v12, v12, v12 row_shr:{sh} row_mask:0xf bank_mask:0xf")
        I("s_nop 1")
    I("v_sub_u32 v12, v12, v11")
    I("s_nop 0")
    I("v_readlane_b32 s45, v12, s3")
    I("v_sub_u32 v9, v9, v8")
    I("s_nop 1")
    I("v_add_u32 v9, s45, v9")
    I("v_add_u32 v10, v9, v2")
    I("v_mov_b32 v12, v9")
    I("v_mov_b32 v13, v10")
    I(f"ds_write_b64 v1, v[12:13] offset:{K1_HIST}")
    I("s_waitcnt lgkmcnt(0)")
    I("s_barrier")
    if STAMP1:
        I("s_memtime s[78:79]")
        I("s_waitcnt lgkmcnt(0)")
    I(f"s_movk_i32 s50, {NB}")
    I("v_subrev_u32 v15, 0x300, v0")
    I("v_cmp_gt_u32 s[48:49], s50, v15")
    I("s_and_saveexec_b64 s[34:35], s[48:49]")
    I("s_cbranch_execz L_k1_notab")
    I("v_lshlrev_b32 v14, 5, v15")
    I(f"ds_read_b128 v[8:11], v14 offset:{K1_HIST}")
    I(f"ds_read_b128 v[16:19], v14 offset:{K1_HIST+16}")
    I(f"ds_read_b32 v12, v14 offset:{K1_HIST+32}")
    I("v_lshrrev_b32 v14, 2, v15")
    I("v_lshlrev_b32 v14, 14, v14")
    I("v_and_b32 v13, 3, v15")
    I("v_lshl_add_u32 v14, v13, 4, v14")
    I("s_lshl_b32 s46, s2, 6")
    I(f"s_add_u32 s46, s46, {WS_TAB}")
    I("s_waitcnt lgkmcnt(0)")
    I("v_lshl_or_b32 v8, v9, 16, v8")
    I("v_lshl_or_b32 v9, v11, 16, v10")
    I("v_lshl_or_b32 v10, v17, 16, v16")
    I("v_lshl_or_b32 v11, v19, 16, v18")
    I("v_and_b32 v13, 15, v12")
    I("v_lshl_or_b32 v8, v13, 12, v8")
    I("v_lshrrev_b32 v13, 4, v12")
    I("v_lshl_or_b32 v8, v13, 28, v8")
    I("v_lshrrev_b32 v13, 8, v12")
    I("v_lshl_or_b32 v9, v13, 12, v9")
    I("buffer_store_dwordx4 v[8:11], v14, s[24:27], s46 offen")
    L("L_k1_notab")
    I("s_mov_b64 exec, s[34:35]")
    I("s_and_saveexec_b64 s[34:35], vcc")
    I("s_cbranch_execz L_k1_noscat")
    for i in range(4):
        I(f"ds_read_b32 v{28+i}, v{20+i} offset:{K1_HIST}")
    for i in range(4):
        I(f"s_waitcnt lgkmcnt({3-i})")
        I(f"v_add_lshl_u32 v{28+i}, v{28+i}, v{24+i}, 3")
    if PERM:
        for i in range(4):
            I(f"v_lshlrev_b32 v{20+i}, 2, v{28+i}")
        for i in range(4):
            I(f"v_add_u32 v{33+2*i}, v{33+2*i}, v{20+i}")
        I(f"ds_write_b128 v4, v[20:23] offset:{K1_POS}")
    for i in range(4):
        I(f"ds_write_b64 v{28+i}, v[{32+2*i}:{33+2*i}] offset:{K1_STG}")
    L("L_k1_noscat")
    I("s_mov_b64 exec, s[34:35]")
    I("s_waitcnt lgkmcnt(0)")
    I("s_barrier")
    if STAMP1:
        I("s_memtime s[80:81]")
        I("s_waitcnt lgkmcnt(0)")
    I(f"s_mul_i32 s46, s2, {RECROW}")
    I(f"s_add_u32 s46, s46, {WS_REC}")
    I(f"ds_read_b128 v[8:11], v4 offset:{K1_STG}")
    I(f"v_cmp_gt_u32 vcc, {RECROW//16 - 1024}, v0")
    I("s_and_saveexec_b64 s[34:35], vcc")
    I("s_cbranch_execz L_k1_no2")
    I(f"ds_read_b128 v[12:15], v4 offset:{K1_STG + 16384}")
    I("s_add_u32 s47, s46, 16384")
    I("s_waitcnt lgkmcnt(0)")
    I("buffer_store_dwordx4 v[12:15], v4, s[24:27], s47 offen")
    L("L_k1_no2")
    I("s_mov_b64 exec, s[34:35]")
    I("s_waitcnt lgkmcnt(0)")
    I("buffer_store_dwordx4 v[8:11], v4, s[24:27], s46 offen")
    if PERM:
        I("v_lshrrev_b32 v16, 1, v0")
        I("v_lshlrev_b32 v16, 2, v16")
        I("v_and_b32 v17, 1, v0")
        I("v_lshlrev_b32 v17, 4, v17")
        for k in range(7):
            I(f"ds_read_b32 v{20+k}, v16 offset:{K1_POS+2048*k}")
        for k in range(7):
            if k == 6:
                I("s_cmp_ge_u32 s3, 4")
                I("s_cbranch_scc1 L_k1_s6")
            I(f"s_waitcnt lgkmcnt({6-k})")
            I(f"v_add_u32 v{20+k}, v{20+k}, v17")
            if k == 0:
                I("s_waitcnt vmcnt(0)")
            I(f"buffer_store_dwordx4 v[{56+4*k}:{59+4*k}], v{20+k}, s[56:59], s37 offen" + os.environ.get("K1SPOL", ""))
        L("L_k1_s6")
    if STAMP1:
        I("s_memtime s[82:83]")
        I("s_waitcnt lgkmcnt(0)")
    if STAMP1:
        I("s_waitcnt vmcnt(0)")
        I("s_memtime s[84:85]")
        I("s_waitcnt lgkmcnt(0)")
        srd(64, 14, 15, 0x100000, 0x1000000)
        I("s_mov_b64 s[34:35], exec")
        I("s_mov_b64 exec, 1")
        I("s_lshl_b32 s46, s2, 4")
        I("s_add_u32 s46, s46, s3")
        I("s_lshl_b32 s46, s46, 6")
        I("v_mov_b32 v2, 0")
        for k in range(8):
            I(f"v_mov_b32 v1, s{70+2*k}")
            I(f"buffer_store_dword v1, v2, s[64:67], s46 offen offset:{4*k}")
        I("s_mov_b64 exec, s[34:35]")
    I("s_cmp_eq_u32 s40, 0")
    I("s_cbranch_scc1 L_k1_end")
    I("s_waitcnt vmcnt(0)")
    if PRESCALE:
        I("s_sub_u32 s46, s2, 8")
        I("s_cmp_lt_u32 s46, 10")
        I(f"s_cselect_b32 s47, {NEGLOG2E}, 1.0")
        for j in range(8):
            I(f"v_lshlrev_b32 v{44+j}, 16, v{44+j}")
        for j in range(8):
            I(f"v_mul_f32 v{44+j}, s47, v{44+j}")
        for j in range(4):
            I(f"v_cvt_pk_bf16_f32 v{52+j}, v{44+2*j}, v{45+2*j}")
    else:
        for j in range(4):
            I(f"v_lshl_or_b32 v{52+j}, v{45+2*j}, 16, v{44+2*j}")
    I("v_and_b32 v40, 63, v0")
    I("v_lshlrev_b32 v40, 4, v40")
    I("s_lshl_b32 s46, s2, 10")
    I("buffer_store_dwordx4 v[52:55], v40, s[24:27], s46 offen")
    L("L_k1_end")
    I("s_endpgm")

WSTG = 0
LCAP = 4352
TLIM = 3584
LIST_S = 34816
LIST_M = LIST_S + LCAP * 4
SM = LIST_M + LCAP * 4
SMW = 2000
OH = SM + 16576
BASET = OH + 2560
WTOT = BASET + 4096
STG = WTOT + 256
STGW = 8192
K2_LDS = STG + 8 * STGW
assert STG % 128 == 0 or True
EMASK = 0x01FFFFE0

G = [0, 32]; H = [16, 48]
AX = 64; ST = 80; S = 88; EB = [96, 100]; T = 104
VAX = 112; PC = 116; H16 = 117; LSA = 118; LMA = 119; K1C = 120; SRA = 121; OHC = 122; SW = 123; ONE = 124
A_WB = 0; A_WV = 40; A_XA = 72; A_AGG = 88

def wb(s, c): return A_WB + (2 * s + c) * 4
def wv(s, c): return A_WV + (2 * s + c) * 4
def xa(s, c): return A_XA + (2 * s + c) * 4
def vr(b, n): return f"v[{b}:{b+n-1}]"
def ar(b, n): return f"a[{b}:{b+n-1}]"

def mfma(d, a, b, c):
    return f"v_mfma_f32_32x32x16_bf16 {d}, {a}, {b}, {c}"

def mfma_group(c, par):
    m = []
    g = vr(G[c], 16); h = vr(H[c], 16)
    m.append(mfma(g, vr(EB[par], 4), ar(wb(4, c), 4), "0"))
    for s in range(2):
        m.append(mfma(g, vr(ST + 4 * s, 4), ar(xa(s, c), 4), g))
    for s in range(4):
        m.append(mfma(g, vr(AX + 4 * s, 4), ar(wb(s, c), 4), g))
    for s in range(4):
        m.append(mfma(h, vr(AX + 4 * s, 4), ar(wv(s, c), 4), "0" if s == 0 else h))
    return m

def valu_group(c):
    g = G[c]; h = H[c]
    stages = [
        lambda i: f"v_mul_f32 v{g+i}, s43, v{g+i}",
        lambda i: f"v_exp_f32 v{g+i}, v{g+i}",
        lambda i: f"v_add_f32 v{g+i}, 1.0, v{g+i}",
        lambda i: f"v_rcp_f32 v{g+i}, v{g+i}",
        lambda i: f"v_mul_f32 v{g+i}, v{g+i}, v{h+i}",
    ]
    if PRESCALE:
        stages = stages[1:]
    v = []
    D = 2
    nst = len(stages)
    for step in range(16 + D * nst + 2):
        for k in range(nst):
            i = step - D * k
            if 0 <= i < 16:
                v.append(stages[k](i))
        i = step - D * nst
        if 0 <= i < 16 and i % 2 == 1:
            p = i // 2
            v.append(f"v_cvt_pk_bf16_f32 v{g+p}, v{g+i-1}, v{g+i}")
    return v

def agg_group(c):
    a = ar(A_AGG + 16 * c, 16)
    return [mfma(a, vr(S, 4), vr(G[c], 4), a), mfma(a, vr(S + 4, 4), vr(G[c] + 4, 4), a)]

def put(lst):
    for x in lst:
        if x.endswith(":"):
            emit(x)
        else:
            I(x)

def interleave(mf, va, per, inserts):
    mi = 0
    for i, v in enumerate(va):
        if i % per == 0 and mi < len(mf):
            I(mf[mi])
            mi += 1
        if i in inserts:
            put(inserts[i])
        I(v)
    assert mi == len(mf)

NOMEM = int(os.environ.get("NOMEM", "0"))
def x_dma(par):
    r = []
    if NOMEM:
        for k in range(4):
            r.append(f"v_and_b32 v{T+k}, 0x3f80, v{T+k}")
    r.append(f"v_add_u32 v{T+0}, v{PC}, v{T+0}")
    r.append(f"v_xad_u32 v{T+1}, v{PC}, 64, v{T+1}")
    r.append(f"v_add_u32 v{T+2}, v{PC}, v{T+2}")
    r.append(f"v_xad_u32 v{T+3}, v{PC}, 64, v{T+3}")
    for k in range(4):
        r.append(f"s_add_u32 m0, s37, {par*4096 + k*1024}")
        r.append("s_nop 0")
        r.append(f"buffer_load_dwordx4 v{T+k}, s[12:15], 0 offen lds")
    return r

def e_load(par, meta):
    r = []
    if NOMEM:
        r.append(f"v_and_b32 v{meta}, 0x3fff, v{meta}")
    r.append(f"v_and_or_b32 v{T+6}, v{meta}, s40, v{H16}")
    r.append(f"buffer_load_dwordx4 {vr(EB[par],4)}, v{T+6}, s[16:19], 0 offen" + (os.environ.get("EPOL", "") if (par == 0 or not int(os.environ.get("EHALF", "0"))) else ""))
    return r

def a_reads(par):
    r = []
    for s in range(2):
        r.append(f"ds_read_b128 {vr(ST+4*s,4)}, v{T+7} offset:{16*s}")
    for s in range(4):
        r.append(f"ds_read_b128 {vr(AX+4*s,4)}, v{VAX+s} offset:{par*4096}")
    return r

PRIO = int(os.environ.get("PRIO", "1"))
PTH = [int(x) for x in os.environ.get("PTH", "10,7,4").split(",")]
def prio_code(par):
    r = []
    for lim, p in zip(PTH, (2, 1, 0)):
        r += [f"s_cmp_lt_u32 s36, {lim}",
              f"s_cbranch_scc0 L_pr_done_{par}",
              f"s_setprio {p}"]
    r += [f"L_pr_done_{par}:"]
    return r

def gen_k2():
    emit(".globl egc_main_kernel")
    emit(".p2align 8")
    emit(".type egc_main_kernel,@function")
    L("egc_main_kernel")
    I("s_cmp_ge_u32 s2, 256")
    I("s_cbranch_scc1 L_k2_end")
    I("s_load_dwordx2 s[10:11], s[0:1], 72")
    I("s_load_dwordx4 s[4:7], s[0:1], 0")
    I("s_load_dwordx2 s[8:9], s[0:1], 56")
    I("s_and_b32 s38, s2, 7")
    I("s_lshr_b32 s39, s2, 3")
    I("s_lshl_b32 s32, s38, 5")
    I("s_add_u32 s32, s32, s39")
    stamp(0)
    if STAMP:
        I("s_memrealtime s[86:87]")
    I("v_lshrrev_b32 v1, 6, v0")
    I("v_and_b32 v67, 63, v0")
    I("v_readfirstlane_b32 s3, v1")
    I("s_mov_b32 s33, 0")
    I(f"s_movk_i32 s34, {NC}")
    I("s_mov_b32 s47, 1")
    I("s_lshr_b32 s48, s32, 2")
    I("s_lshl_b32 s48, s48, 14")
    I("s_and_b32 s46, s32, 3")
    I("s_lshl_b32 s46, s46, 4")
    I("s_add_u32 s48, s48, s46")
    I(f"s_add_u32 s48, s48, {WS_TAB}")
    I("s_waitcnt lgkmcnt(0)")
    I("s_add_u32 s20, s10, s48")
    I("s_addc_u32 s21, s11, 0")
    I(f"s_mov_b32 s22, {(NC-1)*64+16}")
    I("s_mov_b32 s23, 0x00020000")
    L("L_round")
    I("s_lshl_b32 s46, s3, 5")
    I("v_lshrrev_b32 v66, 1, v67")
    I("v_add_u32 v66, s46, v66")
    I("v_lshlrev_b32 v65, 6, v66")
    I("buffer_load_dwordx4 v[48:51], v65, s[20:23], 0 offen")
    I("s_cmp_eq_u32 s47, 0")
    I("s_cbranch_scc1 L_noconst")
    srd(28, 10, 11, 34 * 1024)
    I("v_lshlrev_b32 v70, 4, v67")
    for k in range(5):
        I(f"s_add_u32 s46, s3, {8*k}")
        if k == 4:
            I("s_min_u32 s46, s46, 33")
        I("s_lshl_b32 s46, s46, 10")
        I(f"s_add_u32 m0, s46, {WSTG}")
        I("s_nop 0")
        I("buffer_load_dwordx4 v70, s[28:31], s46 offen lds")
    srd(12, 4, 5, N * 128)
    if PERM:
        srd(16, 10, 11, E * 32, WS_EAS)
    else:
        srd(16, 6, 7, E * 32)
    srd(24, 10, 11, NC * RECROW, WS_REC)
    I(f"s_mov_b32 s40, {EMASK}")
    I("s_movk_i32 s42, 80")
    I(f"s_mov_b32 s43, {NEGLOG2E}")
    I(f"s_lshl_b32 s37, s3, 13")
    I(f"s_add_u32 s37, s37, {STG}")
    I("v_and_b32 v3, 31, v67")
    I("v_lshrrev_b32 v4, 5, v67")
    I("v_bfe_u32 v5, v3, 1, 3")
    I("v_xor_b32 v5, v5, v4")
    I("v_lshlrev_b32 v5, 4, v5")
    I("v_lshl_add_u32 v5, v3, 7, v5")
    I(f"v_add_u32 v{VAX}, s37, v5")
    for s in range(1, 4):
        I(f"v_xor_b32 v6, {32*s}, v5")
        I(f"v_add_u32 v{VAX+s}, s37, v6")
    I("v_lshrrev_b32 v5, 4, v67")
    I("v_and_b32 v6, 7, v67")
    I("v_xor_b32 v5, v5, v6")
    I(f"v_lshlrev_b32 v{PC}, 4, v5")
    I(f"v_lshlrev_b32 v{H16}, 4, v4")
    I(f"s_mul_i32 s46, s3, {SMW}")
    I(f"s_add_u32 s46, s46, {SM}")
    I("v_lshrrev_b32 v5, 4, v3")
    I("v_lshlrev_b32 v5, 5, v5")
    I("v_bfe_u32 v6, v3, 2, 1")
    I("v_lshl_add_u32 v5, v6, 4, v5")
    I("v_bfe_u32 v6, v3, 3, 1")
    I("v_lshl_add_u32 v5, v6, 3, v5")
    I("v_and_b32 v6, 3, v3")
    I("v_lshl_add_u32 v5, v6, 1, v5")
    I(f"v_add_u32 v{K1C}, s46, v5")
    I(f"v_add_u32 v6, s46, v{H16}")
    I(f"v_mad_u32_u24 v{SRA}, v3, s42, v6")
    I("v_lshlrev_b32 v6, 5, v4")
    I(f"v_add_u32 v{OHC}, {OH}, v6")
    I(f"v_mov_b32 v{ONE}, 1.0")
    for i in range(4):
        I(f"v_mov_b32 v{8+i}, 0")
    I("v_add_u32 v7, s46, v70")
    I("ds_write_b128 v7, v[8:11]")
    I("v_cmp_gt_u32 vcc, 61, v67")
    I("s_and_saveexec_b64 s[50:51], vcc")
    I("ds_write_b128 v7, v[8:11] offset:1024")
    I("s_mov_b64 exec, -1")
    I("s_cmp_lg_u32 s3, 0")
    I("s_cbranch_scc1 L_noconst")
    I(f"v_add_u32 v7, {OH}, v70")
    I("ds_write_b128 v7, v[8:11]")
    I("ds_write_b128 v7, v[8:11] offset:1024")
    I("s_mov_b32 exec_hi, 0")
    I("ds_write_b128 v7, v[8:11] offset:2048")
    I("v_bfe_u32 v6, v3, 2, 1")
    I("v_lshlrev_b32 v6, 5, v6")
    I("v_lshrrev_b32 v7, 4, v3")
    I("v_lshl_add_u32 v6, v7, 4, v6")
    I("v_and_b32 v7, 15, v5")
    I("v_add_u32 v6, v6, v7")
    I("v_mad_u32_u24 v6, v3, s42, v6")
    I(f"v_add_u32 v6, {OH}, v6")
    I(f"ds_write_b16_d16_hi v6, v{ONE}")
    I("s_mov_b64 exec, -1")
    L("L_noconst")
    I("s_waitcnt vmcnt(0)")
    stamp(1)
    I("v_bfe_u32 v52, v48, 12, 4")
    I("v_lshrrev_b32 v53, 28, v48")
    I("v_lshl_or_b32 v52, v53, 4, v52")
    I("v_bfe_u32 v53, v49, 12, 4")
    I("v_lshl_or_b32 v52, v53, 8, v52")
    I("v_and_b32 v48, 0x0fff0fff, v48")
    I("v_and_b32 v49, 0xffff0fff, v49")
    I("v_and_b32 v53, 0xffff, v48")
    I("v_subrev_u32 v54, s33, v66")
    I("s_sub_u32 s46, s34, s33")
    I("v_cmp_gt_u32 s[52:53], s46, v54")
    I("v_and_b32 v55, 1, v67")
    I("v_lshl_add_u32 v64, v55, 1, v53")
    I("v_cndmask_b32 v54, v53, v52, s[52:53]")
    I(f"s_movk_i32 s46, {RECROW}")
    I("v_mul_u32_u24 v65, s46, v66")
    I("v_lshl_add_u32 v65, v64, 3, v65")
    I("v_sub_u32 v68, v54, v64")
    def rec_loads(tag):
        for i in range(8):
            I(f"v_cmpx_lt_i32 vcc, {4*i}, v68")
            I("s_nop 0")
            I(f"s_cbranch_execz L_rl_{tag}")
            I(f"buffer_load_dwordx4 v[{4*i}:{4*i+3}], v65, s[24:27], 0 offen offset:{32*i}")
        L(f"L_rl_{tag}")
        I("s_mov_b64 exec, -1")
    rec_loads("a")
    if K2PF:
        I("s_cmp_eq_u32 s47, 0")
        I("s_cbranch_scc1 L_nopf")
        I("s_lshl_b32 s46, s39, 3")
        I("s_add_u32 s46, s46, s3")
        I(f"s_mul_i32 s46, s46, {K2PF*64*128}")
        I("v_lshlrev_b32 v71, 7, v67")
        for k in range(K2PF):
            I(f"s_add_u32 s50, s46, {k*8192}")
            I(f"buffer_load_dword v{T+k}, v71, s[12:15], s50 offen")
        L("L_nopf")
    I("v_cmp_eq_u32 vcc, 0, v55")
    I("s_and_b64 vcc, vcc, s[52:53]")
    I("v_alignbit_b32 v72, v49, v48, 16")
    I("v_alignbit_b32 v73, v50, v49, 16")
    I("v_alignbit_b32 v74, v51, v50, 16")
    I("v_alignbit_b32 v75, v52, v51, 16")
    for i in range(4):
        I(f"v_sub_u32 v{72+i}, v{72+i}, v{48+i}")
    I("v_sub_u32 v76, v52, v53")
    for i in range(5):
        I(f"v_cndmask_b32 v{72+i}, 0, v{72+i}, vcc")
    for i in range(5):
        I(f"v_mov_b32 v{80+i}, v{72+i}")
    wave_scan([80, 81, 82, 83, 84])
    I("s_lshl_b32 s46, s3, 5")
    I(f"s_add_u32 s46, s46, {WTOT}")
    I("v_mov_b32 v69, s46")
    I("s_mov_b32 exec_lo, 0")
    I("s_mov_b32 exec_hi, 0x80000000")
    I("ds_write_b128 v69, v[80:83]")
    I("ds_write_b32 v69, v84 offset:16")
    I("s_mov_b64 exec, -1")
    I("v_and_b32 v69, 7, v67")
    I("v_lshlrev_b32 v69, 5, v69")
    I(f"v_add_u32 v69, {WTOT}, v69")
    I("s_waitcnt lgkmcnt(0)")
    I("s_barrier")
    stamp(2)
    I("ds_read_b128 v[88:91], v69")
    I("ds_read_b32 v92, v69 offset:16")
    I("s_waitcnt lgkmcnt(0)")
    I("s_cmp_eq_u32 s47, 0")
    I("s_cbranch_scc1 L_now")
    for f in range(18):
        I(f"ds_read_b128 {ar(4*f,4)}, v70 offset:{WSTG+1024*(8+f)}")
    L("L_now")
    for i in range(5):
        I(f"v_mov_b32 v{56+i}, v{88+i}")
    I("s_nop 1")
    for sh in (1, 2, 4):
        for i in range(5):
            I(f"v_add_u32_dpp v{56+i}, v{56+i}, v{56+i} row_shr:{sh} row_mask:0xf bank_mask:0xf")
    I("s_nop 1")
    for i in range(4):
        I(f"v_sub_u32 v{88+i}, v{56+i}, v{88+i}")
    I("v_readlane_b32 s60, v60, 7")
    for i in range(4):
        I(f"v_readlane_b32 s{56+i}, v{56+i}, 7")
    for i in range(4):
        I(f"v_readlane_b32 s{52+i}, v{88+i}, s3")
    I(f"s_cmp_le_u32 s60, {TLIM}")
    I("s_cbranch_scc1 L_fits")
    I("s_sub_u32 s46, s34, s33")
    I("s_cmp_eq_u32 s46, 1")
    I("s_cselect_b32 s34, s34, s33")
    for i in range(4):
        I(f"s_mov_b32 s{56+i}, 0")
    I("v_mov_b32 v68, 0")
    L("L_fits")
    I("s_cmp_eq_u32 s47, 0")
    I("s_cbranch_scc1 L_paired")
    if PAIR:
        for i in range(4):
            I(f"v_mov_b32 v{56+i}, s{56+i}")
        I("v_and_b32 v60, 7, v67")
        I("v_lshrrev_b32 v61, 3, v67")
        for (src, dst) in ((60, 62), (61, 63)):
            I(f"v_bfe_u32 v93, v{src}, 1, 1")
            I(f"v_cmp_eq_u32 vcc, 1, v93")
            I(f"v_bfe_u32 v93, v{src}, 2, 1")
            I(f"v_cmp_eq_u32 s[50:51], 1, v93")
            I("v_cndmask_b32 v94, v56, v57, vcc")
            I("v_cndmask_b32 v95, v58, v59, vcc")
            I(f"v_and_b32 v93, 1, v{src}")
            I("v_cndmask_b32 v94, v94, v95, s[50:51]")
            I("v_lshlrev_b32 v93, 4, v93")
            I("v_bfe_u32 v94, v94, v93, 16")
            I(f"v_lshl_add_u32 v{dst}, v94, 3, v{src}")
        I("v_cmp_gt_u32 vcc, v62, v63")
        I("s_sub_u32 s64, 11, s3")
        I("s_cmp_lt_u32 s3, 4")
        I("s_cselect_b32 s64, s3, s64")
        I("s_mov_b32 s41, 0")
        for i in range(8):
            I(f"s_bfe_u32 s65, {'vcc_lo' if i < 4 else 'vcc_hi'}, {(8*(i%4)) | (8 << 16)}")
            I("s_bcnt1_i32_b32 s65, s65")
            I("s_cmp_eq_u32 s65, s64")
            I(f"s_cselect_b32 s41, {i}, s41")
    else:
        I("s_mov_b32 s41, s3")
    L("L_paired")
    I("s_mov_b32 s61, 0")
    I("s_mov_b32 s62, 0")
    I("s_mov_b32 s63, 0")
    for i in range(4):
        I(f"s_add_u32 s64, s{56+i}, 0x005f005f")
        I("s_and_b32 s64, s64, 0xffe0ffe0")
        I("s_and_b32 s65, s64, 0xffff")
        I("s_lshr_b32 s66, s64, 16")
        I("s_add_u32 s67, s61, s65")
        I(f"s_and_b32 s68, s{56+i}, 0xffff")
        I(f"s_cmp_eq_u32 s41, {2*i}")
        I("s_cselect_b32 s62, s61, s62")
        I("s_cselect_b32 s63, s68, s63")
        I(f"s_lshr_b32 s68, s{56+i}, 16")
        I(f"s_cmp_eq_u32 s41, {2*i+1}")
        I("s_cselect_b32 s62, s67, s62")
        I("s_cselect_b32 s63, s68, s63")
        I("s_lshl_b32 s68, s67, 16")
        I("s_or_b32 s68, s68, s61")
        I(f"s_add_u32 s{52+i}, s{52+i}, s68")
        I(f"s_add_u32 s{52+i}, s{52+i}, 0x10001000")
        I("s_add_u32 s61, s67, s66")
    for i in range(4):
        I(f"v_sub_u32 v{80+i}, v{80+i}, v{72+i}")
    for i in range(4):
        I(f"v_add_u32 v{80+i}, s{52+i}, v{80+i}")
    for i in range(4):
        I(f"v_sub_u32 v{80+i}, v{80+i}, v{48+i}")
    I("v_lshlrev_b32 v69, 4, v66")
    I(f"v_add_u32 v69, {BASET}, v69")
    I("s_mov_b32 exec_lo, 0x55555555")
    I("s_mov_b32 exec_hi, 0x55555555")
    I("ds_write_b128 v69, v[80:83]")
    I("s_mov_b64 exec, -1")
    I("s_add_u32 s64, s63, 31")
    I("s_lshr_b32 s35, s64, 5")
    I("s_lshl_b32 s64, s35, 5")
    I("s_sub_u32 s64, s64, s63")
    I("s_add_u32 s65, s62, s63")
    I("v_add_lshl_u32 v72, v67, s65, 2")
    I("v_mov_b32 v73, 0xffffff00")
    I(f"v_mov_b32 v74, {EMASK}")
    I(f"ds_write2st64_b32 v72, v73, v74 offset0:{LIST_S//256} offset1:{LIST_M//256}")
    I("v_cmp_gt_u32 vcc, s64, v67")
    I("s_and_saveexec_b64 s[50:51], vcc")
    I(f"ds_write2st64_b32 v72, v73, v74 offset0:{LIST_S//256+1} offset1:{LIST_M//256+1}")
    I("s_mov_b64 exec, -1")
    I("s_lshl_b32 s64, s62, 2")
    I("v_lshrrev_b32 v72, 3, v67")
    I("v_lshlrev_b32 v72, 4, v72")
    I(f"s_add_u32 s65, s64, {LIST_S}")
    I(f"v_add_u32 v{LSA}, s65, v72")
    I("v_and_b32 v72, 7, v67")
    I("v_bfe_u32 v73, v67, 3, 2")
    I("v_lshl_add_u32 v72, v72, 2, v73")
    I("v_lshlrev_b32 v72, 2, v72")
    I(f"s_add_u32 s65, s64, {LIST_M}")
    I(f"v_add_u32 v{LMA}, s65, v72")
    I("s_cmp_eq_u32 s47, 0")
    I("s_cbranch_scc1 L_scat")
    for i in range(16):
        I(f"v_mov_b32 v{80+i}, 0")
    I("v_and_b32 v72, 31, v67")
    I(f"v_lshl_add_u32 v72, v72, 7, v{H16}")
    I("s_lshl_b32 s46, s32, 3")
    I("s_add_u32 s46, s46, s41")
    I("s_mul_i32 s46, s46, 3125")
    I("s_add_u32 s49, s46, 127")
    I("s_lshr_b32 s49, s49, 7")
    I(f"s_add_u32 s44, s46, {3125+127}")
    I("s_lshr_b32 s44, s44, 7")
    I("s_sub_u32 s44, s44, s49")
    I("s_lshl_b32 s49, s49, 7")
    I("s_bfm_b32 s46, s44, 0")
    I("s_mov_b32 exec_lo, s46")
    I("s_mov_b32 exec_hi, s46")
    for s in range(4):
        I(f"buffer_load_dwordx4 {vr(80+4*s,4)}, v72, s[12:15], s49 offen offset:{32*s}")
    I("s_mov_b64 exec, -1")
    I(f"s_waitcnt vmcnt({4+K2PF})")
    I("s_branch L_scat1")
    L("L_scat")
    I("s_waitcnt vmcnt(0)")
    L("L_scat1")
    stamp(3)
    o0 = (LIST_S - 16384) // 256; o1 = (LIST_M - 16384) // 256
    for half in range(2):
        R = range(8 * half, 8 * half + 8)
        if half:
            I("v_cmpx_lt_i32 vcc, 16, v68")
            I("s_nop 0")
            I("s_cbranch_execz L_scat_done")
        for r in R:
            I(f"v_lshrrev_b32 v{32+r}, 28, v{2*r+1}")
        for r in R:
            I(f"v_add_u32 v{32+r}, v{32+r}, v69")
        for r in R:
            I(f"ds_read_u16 v{32+r}, v{32+r}")
        for r in R:
            i, k = r // 2, r % 2
            I(f"v_cmpx_lt_i32 vcc, {4*i+k}, v68")
            I("s_waitcnt lgkmcnt(7)")
            I("s_cbranch_execz L_scat_done")
            I(f"v_add3_u32 v{32+r}, v{32+r}, v64, {4*i+k}")
            I(f"v_lshlrev_b32 v{32+r}, 2, v{32+r}")
            I(f"ds_write2st64_b32 v{32+r}, v{2*r}, v{2*r+1} offset0:{o0} offset1:{o1}")
    I("v_cmpx_lt_i32 vcc, 32, v68")
    I("s_nop 0")
    I("s_cbranch_execz L_scat_done")
    I("s_mov_b64 exec, -1")
    I("v_add_u32 v64, 32, v64")
    I("v_subrev_u32 v68, 32, v68")
    I("v_add_u32 v65, 256, v65")
    I("s_waitcnt lgkmcnt(0)")
    rec_loads("b")
    I("s_branch L_scat")
    L("L_scat_done")
    I("s_mov_b64 exec, -1")
    I("s_waitcnt lgkmcnt(0)")
    I("s_barrier")
    stamp(4)
    I(f"ds_read_b128 {vr(T,4)}, v{LSA}")
    I(f"ds_read2_b32 {vr(T+4,2)}, v{LMA} offset0:0 offset1:32")
    I("s_waitcnt lgkmcnt(0)")
    put(x_dma(0))
    put(e_load(0, T + 4))
    I(f"ds_read_b128 {vr(T,4)}, v{LSA} offset:128")
    I("s_cmp_eq_u32 s47, 0")
    I("s_cbranch_scc1 L_noinit")
    for f in range(8):
        I(f"ds_read_b128 {vr(4*f,4)}, v70 offset:{WSTG+1024*f}")
    I("s_waitcnt vmcnt(5) lgkmcnt(0)")
    for c in range(2):
        d = vr(32 + 16 * c, 16)
        for s in range(4):
            I(mfma(d, vr(80 + 4 * s, 4), vr((2 * s + c) * 4, 4), "0" if s == 0 else d))
    for f in range(8):
        I(f"ds_read_b128 {vr(4*f,4)}, v70 offset:{WSTG+1024*(26+f)}")
    I("s_nop 7")
    if PRESCALE:
        for i in range(32):
            I(f"v_mul_f32 v{32+i}, s43, v{32+i}")
    I("s_waitcnt lgkmcnt(0)")
    k = 0
    for c in range(2):
        a = ar(A_AGG + 16 * c, 16)
        for s in range(4):
            I(mfma(a, vr(80 + 4 * s, 4), vr((2 * s + c) * 4, 4), "0" if s == 0 else a))
            for p in (k, k + 1):
                I(f"v_cvt_pk_bf16_f32 v{64+p}, v{32+2*p}, v{32+2*p+1}")
            k += 2
    for c in range(2):
        for p in range(8):
            I(f"v_accvgpr_write_b32 a{xa(p//4, c) + p%4}, v{64+8*c+p}")
    I("s_mov_b32 s47, 0")
    L("L_noinit")
    I("s_cmp_eq_u32 s35, 0")
    I("s_cbranch_scc1 L_round_end")
    I(f"v_and_b32 v{T+4}, 31, v{T+4}")
    I(f"v_mad_u32_u24 v{T+7}, v{T+4}, s42, v{OHC}")
    I(f"v_mad_u32_u24 v{SW}, v{T+4}, s42, v{K1C}")
    I(f"ds_write_b16_d16_hi v{SW}, v{ONE}")
    I("s_waitcnt lgkmcnt(0)")
    put(x_dma(1))
    put(e_load(1, T + 5))
    for i in range(8):
        I(f"v_mov_b32 v{G[1]+i}, 0")
    for i in range(8):
        I(f"v_mov_b32 v{S+i}, 0")
    I("s_waitcnt vmcnt(5)")
    put(a_reads(0))
    I(f"ds_read_b128 {vr(T,4)}, v{LSA} offset:256")
    I("s_mov_b32 s36, s35")
    if PRIO:
        I("s_setprio 3")
    stamp(5)
    m0 = mfma_group(0, 0)
    I(m0[0])
    I("s_waitcnt lgkmcnt(0)")
    I(m0[1])
    put(x_dma(0))
    put(m0[2:])
    I("s_nop 7")
    I("s_branch L_p1_0")
    L("L_loop")
    INLOOP[0] = True
    nv = len(valu_group(0))
    pos = [2 + (k * (nv - 4)) // 13 for k in range(13)]
    def sched(mf, va, inserts):
        pend = []
        mi = 0
        for i, v in enumerate(va):
            if mi < len(mf) and i == pos[mi]:
                put(inserts.get(('b', mi), []))
                I(mf[mi])
                put(inserts.get(('m', mi), []))
                pend += inserts.get(('s', mi), [])
                mi += 1
            I(v)
            if pend:
                put([pend.pop(0)])
        assert mi == len(mf)
        put(pend)
    def nonop(lst):
        return [x for x in lst if x != "s_nop 0"]
    for par in range(2):
        ins = {('b', 3): ["s_waitcnt lgkmcnt(1)"],
               ('m', 4): ["s_waitcnt lgkmcnt(0)"],
               ('s', 4): nonop(x_dma(par))}
        if PRIO:
            ins[('m', 0)] = prio_code(par)
        if int(os.environ.get("DUPH", "0")):
            ins[('s', 5)] = [mfma_group(0, par)[7]] + ["s_nop 0"] * 2 + [mfma_group(0, par)[8]] + ["s_nop 0"] * 2 + [mfma_group(0, par)[9]] + ["s_nop 0"] * 2 + [mfma_group(0, par)[10]]
        sched(agg_group(0) + mfma_group(0, par), valu_group(1), ins)
        L(f"L_p1_{par}")
        ins = {('m', 0): [f"ds_read2_b32 {vr(T+4,2)}, v{LMA} offset0:32 offset1:64"],
               ('s', 1): [f"ds_read_b128 {vr(S,4)}, v{SRA}",
                          f"ds_read_b128 {vr(S+4,4)}, v{SRA} offset:32",
                          f"ds_write_b16 v{SW}, v{ONE}"],
               ('m', 3): ["s_waitcnt lgkmcnt(3)"] + e_load(par, T + 5),
               ('s', 3): [f"v_and_b32 v{T+4}, 31, v{T+4}",
                          f"v_add_u32 v{LSA}, 128, v{LSA}",
                          f"v_mad_u32_u24 v{T+7}, v{T+4}, s42, v{OHC}",
                          f"v_mad_u32_u24 v{SW}, v{T+4}, s42, v{K1C}",
                          f"v_add_u32 v{LMA}, 128, v{LMA}",
                          f"ds_write_b16_d16_hi v{SW}, v{ONE}",
                          "s_sub_u32 s36, s36, 1"],
               ('m', 4): [f"v_mov_b32 v{T+6}, v{T+6}"] * int(os.environ.get("EXTRAV", "0")),
               ('m', 12): ["s_waitcnt vmcnt(5) lgkmcnt(0)"] + a_reads(par ^ 1) + [f"ds_read_b128 {vr(T,4)}, v{LSA} offset:256"]}
        sched(agg_group(1) + mfma_group(1, par), valu_group(0), ins)
        I("s_cmp_eq_u32 s36, 0")
        if par == 0:
            I("s_cbranch_scc1 L_tail")
        else:
            I("s_cbranch_scc0 L_loop")
    L("L_tail")
    INLOOP[0] = False
    I(f"ds_write_b16 v{SW}, v{ONE}")
    I("s_nop 0")
    put(agg_group(0))
    put(valu_group(1))
    I("s_nop 1")
    put(agg_group(1))
    L("L_round_end")
    I(f"s_cmp_ge_u32 s34, {NC}")
    I("s_cbranch_scc1 L_epi")
    I("s_mov_b32 s33, s34")
    I("s_add_u32 s34, s34, 1")
    I("v_mbcnt_lo_u32_b32 v67, -1, 0")
    I("v_mbcnt_hi_u32_b32 v67, -1, v67")
    I("s_waitcnt vmcnt(0) lgkmcnt(0)")
    I("s_barrier")
    I("s_branch L_round")
    L("L_epi")
    I("s_waitcnt vmcnt(0) lgkmcnt(0)")
    stamp(6)
    srd(28, 8, 9, N * 128)
    I("v_mbcnt_lo_u32_b32 v67, -1, 0")
    I("v_mbcnt_hi_u32_b32 v67, -1, v67")
    I("v_and_b32 v68, 31, v67")
    I("v_lshrrev_b32 v69, 5, v67")
    I("v_lshlrev_b32 v68, 1, v68")
    I("v_lshl_add_u32 v68, v69, 9, v68")
    I("v_add_u32 v68, s37, v68")
    I("v_lshlrev_b32 v70, 4, v67")
    I("v_add_u32 v71, s37, v70")
    I("s_nop 7")
    I("s_nop 7")
    regs = [i for i in range(13)]
    for c in range(2):
        for i in regs:
            I(f"v_accvgpr_read_b32 v{16*c+i}, a{A_AGG+16*c+i}")
    ids = [16 * c + i for c in range(2) for i in regs]
    for r in ids:
        I(f"v_mul_f32 v{32+r}, s43, v{r}")
    for r in ids:
        I(f"v_exp_f32 v{32+r}, v{32+r}")
    for r in ids:
        I(f"v_add_f32 v{32+r}, 1.0, v{32+r}")
    for r in ids:
        I(f"v_rcp_f32 v{32+r}, v{32+r}")
    for r in ids:
        I(f"v_mul_f32 v{r}, v{r}, v{32+r}")
    for i in regs:
        I(f"v_cvt_pk_bf16_f32 v{32+i}, v{i}, v{16+i}")
    for i in regs:
        row = 8 * (i >> 2) + (i & 3)
        I(f"ds_write_b16 v68, v{32+i} offset:{row*128}")
        I(f"ds_write_b16_d16_hi v68, v{32+i} offset:{row*128+64}")
    I("s_waitcnt lgkmcnt(0)")
    for k in range(4):
        I(f"ds_read_b128 {vr(4*k,4)}, v71 offset:{1024*k}")
    for k in range(3):
        I(f"s_waitcnt lgkmcnt({3-k})")
        I(f"buffer_store_dwordx4 {vr(4*k,4)}, v70, s[28:31], s49 offen offset:{1024*k}")
    I("s_cmp_lt_u32 s44, 25")
    I("s_cbranch_scc1 L_k2_fin")
    I("s_waitcnt lgkmcnt(0)")
    I("s_mov_b64 exec, 0xff")
    I(f"buffer_store_dwordx4 {vr(12,4)}, v70, s[28:31], s49 offen offset:3072")
    L("L_k2_fin")
    if STAMP:
        I("s_waitcnt vmcnt(0)")
        stamp(7)
        srd(28, 10, 11, 0x100000, 0x1000000)
        I("s_mov_b64 exec, 1")
        I("s_lshl_b32 s46, s2, 3")
        I("s_add_u32 s46, s46, s3")
        I("s_lshl_b32 s46, s46, 6")
        I("v_mov_b32 v0, 0")
        for k in range(8):
            I(f"v_mov_b32 v1, s{70+2*k}")
            I(f"buffer_store_dword v1, v0, s[28:31], s46 offen offset:{4*k}")
        I("v_mov_b32 v1, s35")
        I(f"buffer_store_dword v1, v0, s[28:31], s46 offen offset:32")
        I("s_getreg_b32 s47, hwreg(HW_REG_XCC_ID)")
        I("v_mov_b32 v1, s47")
        I(f"buffer_store_dword v1, v0, s[28:31], s46 offen offset:36")
        I("s_getreg_b32 s47, hwreg(HW_REG_HW_ID)")
        I("v_mov_b32 v1, s47")
        I(f"buffer_store_dword v1, v0, s[28:31], s46 offen offset:40")
        I("s_memrealtime s[50:51]")
        I("s_waitcnt lgkmcnt(0)")
        I("v_mov_b32 v1, s50")
        I(f"buffer_store_dword v1, v0, s[28:31], s46 offen offset:44")
        I("v_mov_b32 v1, s86")
        I(f"buffer_store_dword v1, v0, s[28:31], s46 offen offset:48")
    L("L_k2_end")
    L("L_k2_last")
    I("s_endpgm")

def kd(name, vgpr, sgpr, accum):
    emit(f".amdhsa_kernel {name}")
    emit(f"  .amdhsa_next_free_vgpr {vgpr}")
    emit(f"  .amdhsa_next_free_sgpr {sgpr}")
    emit(f"  .amdhsa_accum_offset {accum}")
    emit("  .amdhsa_group_segment_fixed_size 0")
    emit("  .amdhsa_kernarg_size 80")
    emit("  .amdhsa_user_sgpr_count 2")
    emit("  .amdhsa_user_sgpr_kernarg_segment_ptr 1")
    emit("  .amdhsa_system_sgpr_workgroup_id_x 1")
    emit(".end_amdhsa_kernel")

def main():
    emit(HEADER.rstrip("\n"))
    emit(f"; @launch kernel=egc_bin_kernel grid=({NC},1,1) block=(1024,1,1) lds={K1_LDS}")
    emit(f"; @launch kernel=egc_main_kernel grid=(256,1,1) block=(512,1,1) lds={K2_LDS}")
    emit('.amdgcn_target "amdgcn-amd-amdhsa--gfx950"')
    emit(".text")
    gen_k1()
    gen_k2()
    emit('.section .rodata,"a"')
    emit(".p2align 6")
    kd("egc_bin_kernel", 84 if PERM else 56, 96 if STAMP1 else 72, 84 if PERM else 56)
    emit(".p2align 6")
    kd("egc_main_kernel", 248, 96, 128)
    path = sys.argv[1] if len(sys.argv) > 1 else "standalone__edge_featured_mpnn_egc__graph.s"
    open(path, "w").write("\n".join(out) + "\n")

main()
```

```python
import sys, os

N = 50000; E = 800000
WN = 25; NWIN = 2048; NB = 256; CH = 3200; NC = 250
WS_WF = 0; WS_TAB = 0x10000; TABROW = 8192; WS_REC = 0x400000; RECROW = CH * 8
PRESCALE = int(os.environ.get('PRESCALE', '0')) if 'os' in globals() else 0
PERM = int(os.environ.get('PERM', '0'))
WS_EAS = 0x2000000
K1PF = int(os.environ.get('K1PF', '0'))
K2PF = int(os.environ.get('K2PF', '0'))
PAIR = int(os.environ.get('PAIR', '1'))
CODEPF = int(os.environ.get('CODEPF', '0'))
STAMP1 = int(os.environ.get('STAMP1', '0'))
FUSED = int(os.environ.get('FUSED', '0'))
SC = ' sc1' if FUSED else ''
MAIN = 'standalone__edge_featured_mpnn_egc__graph_kernel' if FUSED == 1 else 'egc_main_kernel'
TLBPF = int(os.environ.get('TLBPF', '0'))
M25 = 175921861
NEGLOG2E = 0xBFB8AA3B

import os
STAMP = int(os.environ.get("STAMP", "0"))
def stamp(k):
    if STAMP:
        I(f"s_memtime s[{70+2*k}:{71+2*k}]")
        I("s_waitcnt lgkmcnt(0)")
out = []
def emit(s=""):
    out.append(s)
DROP = os.environ.get("DROP", "").split(",")
INLOOP = [False]
def I(s):
    if INLOOP[0]:
        op = s.split()[0]
        if "mfma" in DROP and op.startswith("v_mfma"): return
        if "msparse" in DROP and op.startswith("v_mfma") and (s.split()[1].startswith("a[") or s.split()[2] in ("v[80:83],", "v[84:87],")): return
        if "mh" in DROP and op.startswith("v_mfma") and s.split()[1] in ("v[16:31],", "v[48:63],"): return
        if "trans" in DROP and op in ("v_exp_f32", "v_rcp_f32"): return
        if "valu" in DROP and op in ("v_exp_f32", "v_rcp_f32", "v_mul_f32", "v_add_f32", "v_cvt_pk_bf16_f32"): return
        if "dma" in DROP and op.startswith("buffer_load"): return
        if "lds" in DROP and op.startswith("ds_read_b128"): return
    out.append("    " + s)
def L(s):
    out.append(s + ":")

HEADER = """; Kernarg layout for this problem (80 bytes, ptrs only, base s[0:1]):
"""

def srd(d, lo, hi, size, add=0):
    if add:
        I(f"s_add_u32 s{d}, s{lo}, {add}")
        I(f"s_addc_u32 s{d+1}, s{hi}, 0")
    else:
        I(f"s_mov_b32 s{d}, s{lo}")
        I(f"s_mov_b32 s{d+1}, s{hi}")
    I(f"s_mov_b32 s{d+2}, {size}")
    I(f"s_mov_b32 s{d+3}, 0x00020000")

def wave_scan(regs):
    steps = ["row_shr:1 row_mask:0xf bank_mask:0xf", "row_shr:2 row_mask:0xf bank_mask:0xf",
             "row_shr:4 row_mask:0xf bank_mask:0xf", "row_shr:8 row_mask:0xf bank_mask:0xf",
             "row_bcast:15 row_mask:0xa bank_mask:0xf", "row_bcast:31 row_mask:0xc bank_mask:0xf"]
    I("s_nop 1")
    for st in steps:
        for r in regs:
            I(f"v_add_u32_dpp v{r}, v{r}, v{r} {st}")
        if len(regs) < 3:
            I(f"s_nop {2 - len(regs)}")

K1_HIST = 0
K1_WTOT = 8256
K1_STG = 8448
K1_POS = K1_STG + RECROW
K1_LDS = K1_POS + (CH * 4 if PERM else 0)

def gen_k1():
    emit(".globl egc_bin_kernel")
    emit(".p2align 8")
    emit(".type egc_bin_kernel,@function")
    L("egc_bin_kernel")
    I(f"s_cmp_ge_u32 s2, {NC}")
    I("s_cbranch_scc1 L_k1_end")
    if STAMP1:
        I("s_memtime s[70:71]")
        I("s_waitcnt lgkmcnt(0)")
    I("s_load_dwordx4 s[4:7], s[0:1], 16")
    I("s_load_dwordx4 s[8:11], s[0:1], 32")
    I("s_load_dwordx2 s[12:13], s[0:1], 48")
    I("s_load_dwordx2 s[14:15], s[0:1], 72")
    if PERM:
        I("s_load_dwordx2 s[60:61], s[0:1], 8")
    if K1PF:
        I("s_load_dwordx2 s[64:65], s[0:1], 0")
    I("v_lshlrev_b32 v1, 3, v0")
    I("v_mov_b32 v2, 0")
    I("v_mov_b32 v3, 0")
    I(f"ds_write_b64 v1, v[2:3] offset:{K1_HIST}")
    I(f"v_mov_b32 v3, {CH}")
    I(f"ds_write_b32 v2, v3 offset:{K1_HIST+8192}")
    I("v_lshlrev_b32 v4, 4, v0")
    I("v_lshrrev_b32 v5, 6, v0")
    I(f"s_mul_i32 s32, s2, {CH*4}")
    I("v_readfirstlane_b32 s3, v5")
    I(f"s_mov_b32 s33, {M25}")
    I("s_movk_i32 s36, 3125")
    I(f"s_mul_i32 s37, s2, {CH*32}")
    I("s_waitcnt lgkmcnt(0)")
    if STAMP1:
        I("s_memtime s[72:73]")
        I("s_waitcnt lgkmcnt(0)")
    srd(16, 4, 5, E * 4)
    srd(20, 6, 7, E * 4)
    srd(24, 14, 15, 0x1000000)
    if PERM:
        srd(52, 60, 61, E * 32)
        srd(56, 14, 15, E * 32, WS_EAS)
    I(f"v_cmp_gt_u32 vcc, {CH//4}, v0")
    I("s_and_saveexec_b64 s[34:35], vcc")
    I("s_cbranch_execz L_k1_noload")
    I("buffer_load_dwordx4 v[8:11], v4, s[20:23], s32 offen")
    I("buffer_load_dwordx4 v[12:15], v4, s[16:19], s32 offen")
    L("L_k1_noload")
    I("s_mov_b64 exec, s[34:35]")
    if CODEPF:
        I("s_cmp_lg_u32 s3, 14")
        I("s_cbranch_scc1 L_k1_nocpf")
        I("s_getpc_b64 s[62:63]")
        L("L_k1_pc")
        I("s_add_u32 s62, s62, egc_main_kernel-L_k1_pc")
        I("s_addc_u32 s63, s63, 0")
        I("v_and_b32 v40, 63, v0")
        I("v_lshlrev_b32 v40, 7, v40")
        I("v_min_u32 v41, L_k2_last-egc_main_kernel-8192, v40")
        I("v_add_u32 v41, 8192, v41")
        I("global_load_dword v42, v40, s[62:63]")
        I("global_load_dword v43, v41, s[62:63]")
        L("L_k1_nocpf")
    if TLBPF:
        I("s_cmp_lg_u32 s3, 13")
        I("s_cbranch_scc1 L_k1_notlb")
        I("s_load_dwordx4 s[52:55], s[0:1], 0")
        I("s_load_dwordx2 s[56:57], s[0:1], 56")
        I("s_lshr_b32 s62, s2, 3")
        I("v_and_b32 v40, 63, v0")
        ne_ = -(-(E * 32) // (TLBPF * 32)); nx_ = -(-(N * 128) // (TLBPF * 32))
        I(f"s_mul_i32 s63, s62, {ne_ * TLBPF}")
        I(f"s_mul_i32 s62, s62, {nx_ * TLBPF}")
        I(f"s_mov_b32 s58, {TLBPF}")
        I("v_mul_lo_u32 v41, v40, s58")
        I("s_waitcnt lgkmcnt(0)")
        srd(64, 54, 55, E * 32)
        I(f"s_bfm_b64 exec, {ne_}, 0")
        I("buffer_load_dword v42, v41, s[64:67], s63 offen")
        srd(64, 52, 53, N * 128)
        I(f"s_bfm_b64 exec, {nx_}, 0")
        I("buffer_load_dword v43, v41, s[64:67], s62 offen")
        srd(64, 56, 57, N * 128)
        I("buffer_load_dword v44, v41, s[64:67], s62 offen")
        I("s_mov_b64 exec, -1")
        L("L_k1_notlb")
    I("s_mov_b32 s40, 0")
    I("s_cmp_lg_u32 s3, 15")
    I("s_cbranch_scc1 L_k1_nowf")
    I("s_cmp_ge_u32 s2, 34")
    I("s_cbranch_scc1 L_k1_nowf")
    I("s_mov_b32 s40, 1")
    I("s_mov_b32 s28, s12")
    I("s_mov_b32 s29, s13")
    I(f"s_mov_b32 s30, {144*128}")
    I("s_mov_b32 s31, 0x00020000")
    I("s_mov_b32 s41, s2")
    I("s_cmp_lt_u32 s2, 18")
    I("s_cbranch_scc1 L_k1_wsel")
    I("s_mov_b32 s28, s10")
    I("s_mov_b32 s29, s11")
    I(f"s_mov_b32 s30, {64*128}")
    I("s_sub_u32 s41, s2, 18")
    I("s_cmp_lt_u32 s2, 26")
    I("s_cbranch_scc1 L_k1_wsel")
    I("s_mov_b32 s28, s8")
    I("s_mov_b32 s29, s9")
    I("s_sub_u32 s41, s2, 26")
    L("L_k1_wsel")
    I("s_lshr_b32 s42, s41, 1")
    I("s_lshl_b32 s42, s42, 11")
    I("s_and_b32 s43, s41, 1")
    I("s_lshl_b32 s43, s43, 6")
    I("s_add_u32 s42, s42, s43")
    I("v_and_b32 v40, 31, v0")
    I("v_lshlrev_b32 v40, 1, v40")
    I("v_and_b32 v41, 32, v0")
    I("v_lshl_add_u32 v40, v41, 5, v40")
    for j in range(8):
        I(f"buffer_load_ushort v{44+j}, v40, s[28:31], s42 offen offset:{128*j}")
    L("L_k1_nowf")
    I("s_barrier")
    if K1PF:
        I("s_mov_b32 s66, s64")
        I("s_mov_b32 s67, s65")
        I("s_mov_b32 s64, s66")
        I("s_mov_b32 s65, s67")
        I(f"s_mov_b32 s66, {N*128}")
        I("s_mov_b32 s67, 0x00020000")
        I("s_lshr_b32 s62, s2, 3")
        I(f"s_mul_i32 s62, s62, {K1PF*128}")
        I("v_lshlrev_b32 v3, 7, v0")
        I(f"s_movk_i32 s63, {K1PF}")
        I("v_cmp_gt_u32 s[48:49], s63, v0")
        I("s_and_saveexec_b64 s[34:35], s[48:49]")
        I("s_cbranch_execz L_k1_nopf")
        I("buffer_load_dword v42, v3, s[64:67], s62 offen")
        L("L_k1_nopf")
        I("s_mov_b64 exec, s[34:35]")
    if PERM:
        for k in range(7):
            if k == 6:
                I("s_cmp_ge_u32 s3, 4")
                I("s_cbranch_scc1 L_k1_e6")
            I(f"s_add_u32 s62, s37, {16384*k}")
            I(f"buffer_load_dwordx4 v[{56+4*k}:{59+4*k}], v4, s[52:55], s62 offen" + os.environ.get("K1EPOL", ""))
        L("L_k1_e6")
    ne = 6 if PERM else 0
    if K1PF >= CH // 4 + 32: ne += 1
    I("s_and_saveexec_b64 s[34:35], vcc")
    I("s_cbranch_execz L_k1_nohist")
    I("v_mov_b32 v6, 1")
    if PERM:
        I("v_mov_b32 v7, s37")
    else:
        I("v_lshl_add_u32 v7, v0, 7, s37")
    I(f"s_waitcnt vmcnt({ne+1})")
    if STAMP1:
        I("s_memtime s[74:75]")
        I("s_waitcnt lgkmcnt(0)")
    for i in range(4):
        I(f"v_mul_hi_u32 v{16+i}, v{8+i}, s33")
    for i in range(4):
        I(f"v_lshlrev_b32 v{20+i}, 2, v{16+i}")
    for i in range(4):
        I(f"ds_add_rtn_u32 v{24+i}, v{20+i}, v6 offset:{K1_HIST}")
    I("v_mov_b32 v5, 0x7f")
    for i in range(4):
        I(f"v_mad_u32_u24 v{28+i}, v{16+i}, s36, v5")
    for i in range(4):
        I(f"v_lshrrev_b32 v{28+i}, 7, v{28+i}")
    for i in range(4):
        I(f"v_sub_u32 v{28+i}, v{8+i}, v{28+i}")
    for i in range(4):
        I(f"v_lshlrev_b32 v{16+i}, 29, v{16+i}")
    for i in range(4):
        I(f"v_or3_b32 v{33+2*i}, v{16+i}, v7, v{28+i}")
    if not PERM:
        for i in range(1, 4):
            I(f"v_add_u32 v{33+2*i}, {32*i}, v{33+2*i}")
    I(f"s_waitcnt vmcnt({ne})")
    for i in range(4):
        I(f"v_lshlrev_b32 v{32+2*i}, 7, v{12+i}")
    L("L_k1_nohist")
    I("s_mov_b64 exec, s[34:35]")
    I("s_waitcnt lgkmcnt(0)")
    I("s_barrier")
    if STAMP1:
        I("s_memtime s[76:77]")
        I("s_waitcnt lgkmcnt(0)")
    I(f"ds_read_b64 v[2:3], v1 offset:{K1_HIST}")
    I("s_waitcnt lgkmcnt(0)")
    I("v_add_u32 v8, v2, v3")
    I("v_mov_b32 v9, v8")
    wave_scan([9])
    I("s_lshl_b32 s44, s3, 2")
    I("v_mov_b32 v10, s44")
    I("s_mov_b32 exec_lo, 0")
    I("s_mov_b32 exec_hi, 0x80000000")
    I(f"ds_write_b32 v10, v9 offset:{K1_WTOT}")
    I("s_mov_b64 exec, -1")
    I("v_and_b32 v10, 15, v0")
    I("v_lshlrev_b32 v10, 2, v10")
    I("s_waitcnt lgkmcnt(0)")
    I("s_barrier")
    I(f"ds_read_b32 v11, v10 offset:{K1_WTOT}")
    I("s_waitcnt lgkmcnt(0)")
    I("v_mov_b32 v12, v11")
    I("s_nop 1")
    for sh in (1, 2, 4, 8):
        I(f"v_add_u32_dpp v12, v12, v12 row_shr:{sh} row_mask:0xf bank_mask:0xf")
        I("s_nop 1")
    I("v_sub_u32 v12, v12, v11")
    I("s_nop 0")
    I("v_readlane_b32 s45, v12, s3")
    I("v_sub_u32 v9, v9, v8")
    I("s_nop 1")
    I("v_add_u32 v9, s45, v9")
    I("v_add_u32 v10, v9, v2")
    I("v_mov_b32 v12, v9")
    I("v_mov_b32 v13, v10")
    I(f"ds_write_b64 v1, v[12:13] offset:{K1_HIST}")
    I("s_waitcnt lgkmcnt(0)")
    I("s_barrier")
    if STAMP1:
        I("s_memtime s[78:79]")
        I("s_waitcnt lgkmcnt(0)")
    I(f"s_movk_i32 s50, {NB}")
    I("v_subrev_u32 v15, 0x300, v0")
    I("v_cmp_gt_u32 s[48:49], s50, v15")
    I("s_and_saveexec_b64 s[34:35], s[48:49]")
    I("s_cbranch_execz L_k1_notab")
    I("v_lshlrev_b32 v14, 5, v15")
    I(f"ds_read_b128 v[8:11], v14 offset:{K1_HIST}")
    I(f"ds_read_b128 v[16:19], v14 offset:{K1_HIST+16}")
    I(f"ds_read_b32 v12, v14 offset:{K1_HIST+32}")
    I("v_lshrrev_b32 v14, 2, v15")
    I("v_lshlrev_b32 v14, 14, v14")
    I("v_and_b32 v13, 3, v15")
    I("v_lshl_add_u32 v14, v13, 4, v14")
    I("s_lshl_b32 s46, s2, 6")
    I(f"s_add_u32 s46, s46, {WS_TAB}")
    I("s_waitcnt lgkmcnt(0)")
    I("v_lshl_or_b32 v8, v9, 16, v8")
    I("v_lshl_or_b32 v9, v11, 16, v10")
    I("v_lshl_or_b32 v10, v17, 16, v16")
    I("v_lshl_or_b32 v11, v19, 16, v18")
    I("v_and_b32 v13, 15, v12")
    I("v_lshl_or_b32 v8, v13, 12, v8")
    I("v_lshrrev_b32 v13, 4, v12")
    I("v_lshl_or_b32 v8, v13, 28, v8")
    I("v_lshrrev_b32 v13, 8, v12")
    I("v_lshl_or_b32 v9, v13, 12, v9")
    I("buffer_store_dwordx4 v[8:11], v14, s[24:27], s46 offen")
    L("L_k1_notab")
    I("s_mov_b64 exec, s[34:35]")
    I("s_and_saveexec_b64 s[34:35], vcc")
    I("s_cbranch_execz L_k1_noscat")
    for i in range(4):
        I(f"ds_read_b32 v{28+i}, v{20+i} offset:{K1_HIST}")
    for i in range(4):
        I(f"s_waitcnt lgkmcnt({3-i})")
        I(f"v_add_lshl_u32 v{28+i}, v{28+i}, v{24+i}, 3")
    if PERM:
        for i in range(4):
            I(f"v_lshlrev_b32 v{20+i}, 2, v{28+i}")
        for i in range(4):
            I(f"v_add_u32 v{33+2*i}, v{33+2*i}, v{20+i}")
        I(f"ds_write_b128 v4, v[20:23] offset:{K1_POS}")
    for i in range(4):
        I(f"ds_write_b64 v{28+i}, v[{32+2*i}:{33+2*i}] offset:{K1_STG}")
    L("L_k1_noscat")
    I("s_mov_b64 exec, s[34:35]")
    I("s_waitcnt lgkmcnt(0)")
    I("s_barrier")
    if STAMP1:
        I("s_memtime s[80:81]")
        I("s_waitcnt lgkmcnt(0)")
    I(f"s_mul_i32 s46, s2, {RECROW}")
    I(f"s_add_u32 s46, s46, {WS_REC}")
    I(f"ds_read_b128 v[8:11], v4 offset:{K1_STG}")
    I(f"v_cmp_gt_u32 vcc, {RECROW//16 - 1024}, v0")
    I("s_and_saveexec_b64 s[34:35], vcc")
    I("s_cbranch_execz L_k1_no2")
    I(f"ds_read_b128 v[12:15], v4 offset:{K1_STG + 16384}")
    I("s_add_u32 s47, s46, 16384")
    I("s_waitcnt lgkmcnt(0)")
    I("buffer_store_dwordx4 v[12:15], v4, s[24:27], s47 offen")
    L("L_k1_no2")
    I("s_mov_b64 exec, s[34:35]")
    I("s_waitcnt lgkmcnt(0)")
    I("buffer_store_dwordx4 v[8:11], v4, s[24:27], s46 offen")
    if PERM:
        I("v_lshrrev_b32 v16, 1, v0")
        I("v_lshlrev_b32 v16, 2, v16")
        I("v_and_b32 v17, 1, v0")
        I("v_lshlrev_b32 v17, 4, v17")
        for k in range(7):
            I(f"ds_read_b32 v{20+k}, v16 offset:{K1_POS+2048*k}")
        for k in range(7):
            if k == 6:
                I("s_cmp_ge_u32 s3, 4")
                I("s_cbranch_scc1 L_k1_s6")
            I(f"s_waitcnt lgkmcnt({6-k})")
            I(f"v_add_u32 v{20+k}, v{20+k}, v17")
            if k == 0:
                I("s_waitcnt vmcnt(0)")
            I(f"buffer_store_dwordx4 v[{56+4*k}:{59+4*k}], v{20+k}, s[56:59], s37 offen" + os.environ.get("K1SPOL", ""))
        L("L_k1_s6")
    if STAMP1:
        I("s_memtime s[82:83]")
        I("s_waitcnt lgkmcnt(0)")
    if STAMP1:
        I("s_waitcnt vmcnt(0)")
        I("s_memtime s[84:85]")
        I("s_waitcnt lgkmcnt(0)")
        srd(64, 14, 15, 0x100000, 0x1000000)
        I("s_mov_b64 s[34:35], exec")
        I("s_mov_b64 exec, 1")
        I("s_lshl_b32 s46, s2, 4")
        I("s_add_u32 s46, s46, s3")
        I("s_lshl_b32 s46, s46, 6")
        I("v_mov_b32 v2, 0")
        for k in range(8):
            I(f"v_mov_b32 v1, s{70+2*k}")
            I(f"buffer_store_dword v1, v2, s[64:67], s46 offen offset:{4*k}")
        I("s_mov_b64 exec, s[34:35]")
    I("s_cmp_eq_u32 s40, 0")
    I("s_cbranch_scc1 L_k1_end")
    I("s_waitcnt vmcnt(0)")
    if PRESCALE:
        I("s_sub_u32 s46, s2, 8")
        I("s_cmp_lt_u32 s46, 10")
        I(f"s_cselect_b32 s47, {NEGLOG2E}, 1.0")
        for j in range(8):
            I(f"v_lshlrev_b32 v{44+j}, 16, v{44+j}")
        for j in range(8):
            I(f"v_mul_f32 v{44+j}, s47, v{44+j}")
        for j in range(4):
            I(f"v_cvt_pk_bf16_f32 v{52+j}, v{44+2*j}, v{45+2*j}")
    else:
        for j in range(4):
            I(f"v_lshl_or_b32 v{52+j}, v{45+2*j}, 16, v{44+2*j}")
    I("v_and_b32 v40, 63, v0")
    I("v_lshlrev_b32 v40, 4, v40")
    I("s_lshl_b32 s46, s2, 10")
    I("buffer_store_dwordx4 v[52:55], v40, s[24:27], s46 offen")
    L("L_k1_end")
    I("s_endpgm")

WSTG = 0
LCAP = 4352
TLIM = 3584
LIST_S = 34816
LIST_M = LIST_S + LCAP * 4
SM = LIST_M + LCAP * 4
SMW = 2000
OH = SM + 16576
BASET = OH + 2560
WTOT = BASET + 4096
STG = WTOT + 256
STGW = 8192
K2_LDS = STG + 8 * STGW
assert STG % 128 == 0 or True
EMASK = 0x01FFFFE0

G = [0, 32]; H = [16, 48]
AX = 64; ST = 80; S = 88; EB = [96, 100]; T = 104
VAX = 112; PC = 116; H16 = 117; LSA = 118; LMA = 119; K1C = 120; SRA = 121; OHC = 122; SW = 123; ONE = 124
A_WB = 0; A_WV = 40; A_XA = 72; A_AGG = 88

def wb(s, c): return A_WB + (2 * s + c) * 4
def wv(s, c): return A_WV + (2 * s + c) * 4
def xa(s, c): return A_XA + (2 * s + c) * 4
def vr(b, n): return f"v[{b}:{b+n-1}]"
def ar(b, n): return f"a[{b}:{b+n-1}]"

def mfma(d, a, b, c):
    return f"v_mfma_f32_32x32x16_bf16 {d}, {a}, {b}, {c}"

def mfma_group(c, par):
    m = []
    g = vr(G[c], 16); h = vr(H[c], 16)
    m.append(mfma(g, vr(EB[par], 4), ar(wb(4, c), 4), "0"))
    for s in range(2):
        m.append(mfma(g, vr(ST + 4 * s, 4), ar(xa(s, c), 4), g))
    for s in range(4):
        m.append(mfma(g, vr(AX + 4 * s, 4), ar(wb(s, c), 4), g))
    for s in range(4):
        m.append(mfma(h, vr(AX + 4 * s, 4), ar(wv(s, c), 4), "0" if s == 0 else h))
    return m

def valu_group(c):
    g = G[c]; h = H[c]
    stages = [
        lambda i: f"v_mul_f32 v{g+i}, s43, v{g+i}",
        lambda i: f"v_exp_f32 v{g+i}, v{g+i}",
        lambda i: f"v_add_f32 v{g+i}, 1.0, v{g+i}",
        lambda i: f"v_rcp_f32 v{g+i}, v{g+i}",
        lambda i: f"v_mul_f32 v{g+i}, v{g+i}, v{h+i}",
    ]
    if PRESCALE:
        stages = stages[1:]
    v = []
    D = 2
    nst = len(stages)
    for step in range(16 + D * nst + 2):
        for k in range(nst):
            i = step - D * k
            if 0 <= i < 16:
                v.append(stages[k](i))
        i = step - D * nst
        if 0 <= i < 16 and i % 2 == 1:
            p = i // 2
            v.append(f"v_cvt_pk_bf16_f32 v{g+p}, v{g+i-1}, v{g+i}")
    return v

def agg_group(c):
    a = ar(A_AGG + 16 * c, 16)
    return [mfma(a, vr(S, 4), vr(G[c], 4), a), mfma(a, vr(S + 4, 4), vr(G[c] + 4, 4), a)]

def put(lst):
    for x in lst:
        if x.endswith(":"):
            emit(x)
        else:
            I(x)

def interleave(mf, va, per, inserts):
    mi = 0
    for i, v in enumerate(va):
        if i % per == 0 and mi < len(mf):
            I(mf[mi])
            mi += 1
        if i in inserts:
            put(inserts[i])
        I(v)
    assert mi == len(mf)

NOMEM = int(os.environ.get("NOMEM", "0"))
def x_dma(par):
    r = []
    if NOMEM:
        for k in range(4):
            r.append(f"v_and_b32 v{T+k}, 0x3f80, v{T+k}")
    r.append(f"v_add_u32 v{T+0}, v{PC}, v{T+0}")
    r.append(f"v_xad_u32 v{T+1}, v{PC}, 64, v{T+1}")
    r.append(f"v_add_u32 v{T+2}, v{PC}, v{T+2}")
    r.append(f"v_xad_u32 v{T+3}, v{PC}, 64, v{T+3}")
    for k in range(4):
        r.append(f"s_add_u32 m0, s37, {par*4096 + k*1024}")
        r.append("s_nop 0")
        r.append(f"buffer_load_dwordx4 v{T+k}, s[12:15], 0 offen lds")
    return r

def e_load(par, meta):
    r = []
    if NOMEM:
        r.append(f"v_and_b32 v{meta}, 0x3fff, v{meta}")
    r.append(f"v_and_or_b32 v{T+6}, v{meta}, s40, v{H16}")
    r.append(f"buffer_load_dwordx4 {vr(EB[par],4)}, v{T+6}, s[16:19], 0 offen" + (os.environ.get("EPOL", "") if (par == 0 or not int(os.environ.get("EHALF", "0"))) else ""))
    return r

def a_reads(par):
    r = []
    for s in range(2):
        r.append(f"ds_read_b128 {vr(ST+4*s,4)}, v{T+7} offset:{16*s}")
    for s in range(4):
        r.append(f"ds_read_b128 {vr(AX+4*s,4)}, v{VAX+s} offset:{par*4096}")
    return r

PRIO = int(os.environ.get("PRIO", "1"))
PTH = [int(x) for x in os.environ.get("PTH", "10,7,4").split(",")]
def prio_code(par):
    r = []
    for lim, p in zip(PTH, (2, 1, 0)):
        r += [f"s_cmp_lt_u32 s36, {lim}",
              f"s_cbranch_scc0 L_pr_done_{par}",
              f"s_setprio {p}"]
    r += [f"L_pr_done_{par}:"]
    return r


def gen_role1():
    FH = STG; FW = STG + 8256; FS = STG + 8448
    I(f"s_cmp_ge_u32 s2, {NC}")
    I("s_cbranch_scc1 L_f_done")
    I("v_lshlrev_b32 v1, 4, v0")
    for i in range(4):
        I(f"v_mov_b32 v{2+i}, 0")
    I(f"v_add_u32 v64, {FH}, v1")
    I("ds_write_b128 v64, v[2:5]")
    I(f"v_mov_b32 v6, {CH}")
    I(f"v_mov_b32 v7, {FH+8192}")
    I("ds_write_b32 v7, v6")
    I("v_lshlrev_b32 v65, 5, v0")
    I(f"s_mul_i32 s60, s2, {CH*4}")
    I(f"s_mov_b32 s61, {M25}")
    I("s_movk_i32 s62, 3125")
    I(f"s_mul_i32 s63, s2, {CH*32}")
    I("s_waitcnt lgkmcnt(0)")
    srd(12, 52, 53, E * 4)
    srd(16, 54, 55, E * 4)
    srd(24, 10, 11, 0x1000000)
    I(f"v_cmp_gt_u32 vcc, {CH//8}, v0")
    I("s_and_saveexec_b64 s[50:51], vcc")
    I("s_cbranch_execz L_f_noload")
    I("buffer_load_dwordx4 v[8:11], v65, s[16:19], s60 offen")
    I("buffer_load_dwordx4 v[12:15], v65, s[16:19], s60 offen offset:16")
    I("buffer_load_dwordx4 v[16:19], v65, s[12:15], s60 offen")
    I("buffer_load_dwordx4 v[20:23], v65, s[12:15], s60 offen offset:16")
    L("L_f_noload")
    I("s_mov_b64 exec, -1")
    I("s_barrier")
    I("s_and_saveexec_b64 s[50:51], vcc")
    I("s_cbranch_execz L_f_nohist")
    I("v_mov_b32 v6, 1")
    I("v_mov_b32 v5, 0x7f")
    I("v_lshl_add_u32 v7, v0, 8, s63")
    I("s_waitcnt vmcnt(2)")
    for i in range(8):
        I(f"v_mul_hi_u32 v{24+i}, v{8+i}, s61")
    for i in range(8):
        I(f"v_lshlrev_b32 v{32+i}, 2, v{24+i}")
    for i in range(8):
        I(f"v_add_u32 v{32+i}, {FH}, v{32+i}")
    for i in range(8):
        I(f"ds_add_rtn_u32 v{40+i}, v{32+i}, v6")
    for i in range(8):
        I(f"v_mad_u32_u24 v{72+i}, v{24+i}, s62, v5")
    for i in range(8):
        I(f"v_lshrrev_b32 v{72+i}, 7, v{72+i}")
    for i in range(8):
        I(f"v_sub_u32 v{72+i}, v{8+i}, v{72+i}")
    for i in range(8):
        I(f"v_lshlrev_b32 v{24+i}, 29, v{24+i}")
    for i in range(8):
        I(f"v_or3_b32 v{49+2*i}, v{24+i}, v7, v{72+i}")
    for i in range(1, 8):
        I(f"v_add_u32 v{49+2*i}, {32*i}, v{49+2*i}")
    I("s_waitcnt vmcnt(0)")
    for i in range(8):
        I(f"v_lshlrev_b32 v{48+2*i}, 7, v{16+i}")
    L("L_f_nohist")
    I("s_mov_b64 exec, -1")
    I("s_waitcnt lgkmcnt(0)")
    I("s_barrier")
    I("ds_read_b128 v[8:11], v64")
    I("s_waitcnt lgkmcnt(0)")
    I("v_add_u32 v12, v8, v9")
    I("v_add_u32 v13, v12, v10")
    I("v_add_u32 v14, v13, v11")
    I("v_mov_b32 v15, v14")
    wave_scan([15])
    I("s_lshl_b32 s46, s3, 2")
    I(f"s_add_u32 s46, s46, {FW}")
    I("v_mov_b32 v16, s46")
    I("s_mov_b32 exec_lo, 0")
    I("s_mov_b32 exec_hi, 0x80000000")
    I("ds_write_b32 v16, v15")
    I("s_mov_b64 exec, -1")
    I("v_and_b32 v16, 7, v0")
    I("v_lshlrev_b32 v16, 2, v16")
    I(f"v_add_u32 v16, {FW}, v16")
    I("s_waitcnt lgkmcnt(0)")
    I("s_barrier")
    I("ds_read_b32 v17, v16")
    I("s_waitcnt lgkmcnt(0)")
    I("v_mov_b32 v18, v17")
    I("s_nop 1")
    for sh in (1, 2, 4):
        I(f"v_add_u32_dpp v18, v18, v18 row_shr:{sh} row_mask:0xf bank_mask:0xf")
        I("s_nop 1")
    I("v_sub_u32 v18, v18, v17")
    I("s_nop 0")
    I("v_readlane_b32 s46, v18, s3")
    I("v_sub_u32 v15, v15, v14")
    I("s_nop 1")
    I("v_add_u32 v20, s46, v15")
    I("v_add_u32 v21, v20, v8")
    I("v_add_u32 v22, v20, v12")
    I("v_add_u32 v23, v20, v13")
    I("ds_write_b128 v64, v[20:23]")
    I("s_waitcnt lgkmcnt(0)")
    I("s_barrier")
    I("s_cmp_lt_u32 s3, 4")
    I("s_cbranch_scc1 L_f_notab")
    I("v_subrev_u32 v15, 0x100, v0")
    I("v_lshlrev_b32 v14, 5, v15")
    I(f"v_add_u32 v14, {FH}, v14")
    I("ds_read_b128 v[8:11], v14")
    I("ds_read_b128 v[16:19], v14 offset:16")
    I("ds_read_b32 v12, v14 offset:32")
    I("v_lshrrev_b32 v14, 2, v15")
    I("v_lshlrev_b32 v14, 14, v14")
    I("v_and_b32 v13, 3, v15")
    I("v_lshl_add_u32 v14, v13, 4, v14")
    I("s_lshl_b32 s46, s2, 6")
    I(f"s_add_u32 s46, s46, {WS_TAB}")
    I("s_waitcnt lgkmcnt(0)")
    I("v_lshl_or_b32 v8, v9, 16, v8")
    I("v_lshl_or_b32 v9, v11, 16, v10")
    I("v_lshl_or_b32 v10, v17, 16, v16")
    I("v_lshl_or_b32 v11, v19, 16, v18")
    I("v_and_b32 v13, 15, v12")
    I("v_lshl_or_b32 v8, v13, 12, v8")
    I("v_lshrrev_b32 v13, 4, v12")
    I("v_lshl_or_b32 v8, v13, 28, v8")
    I("v_lshrrev_b32 v13, 8, v12")
    I("v_lshl_or_b32 v9, v13, 12, v9")
    I("buffer_store_dwordx4 v[8:11], v14, s[24:27], s46 offen sc1")
    L("L_f_notab")
    I("s_and_saveexec_b64 s[50:51], vcc")
    I("s_cbranch_execz L_f_noscat")
    for i in range(8):
        I(f"ds_read_b32 v{72+i}, v{32+i}")
    for i in range(8):
        I(f"s_waitcnt lgkmcnt({7-i})")
        I(f"v_add_lshl_u32 v{72+i}, v{72+i}, v{40+i}, 3")
    for i in range(8):
        I(f"v_add_u32 v{72+i}, {FS}, v{72+i}")
    for i in range(8):
        I(f"ds_write_b64 v{72+i}, v[{48+2*i}:{49+2*i}]")
    L("L_f_noscat")
    I("s_mov_b64 exec, -1")
    I("s_waitcnt lgkmcnt(0)")
    I("s_barrier")
    I(f"s_mul_i32 s46, s2, {RECROW}")
    I(f"s_add_u32 s46, s46, {WS_REC}")
    I(f"v_add_u32 v64, {FS}, v1")
    for k in range(4):
        I(f"ds_read_b128 v[{16+4*k}:{19+4*k}], v64 offset:{8192*k}")
    for k in range(4):
        if k == 3:
            I("s_cmp_lg_u32 s3, 0")
            I("s_cbranch_scc1 L_f_st3")
        I(f"s_waitcnt lgkmcnt({3-k})")
        I(f"s_add_u32 s60, s46, {8192*k}")
        I(f"buffer_store_dwordx4 v[{16+4*k}:{19+4*k}], v1, s[24:27], s60 offen sc1")
    L("L_f_st3")
    I("s_waitcnt vmcnt(0) lgkmcnt(0)")
    I("s_barrier")
    I("s_cmp_lg_u32 s3, 0")
    I("s_cbranch_scc1 L_f_done")
    I("v_mov_b32 v2, 1")
    I("v_mov_b32 v3, s2")
    I("s_mov_b64 exec, 1")
    I("buffer_store_byte v2, v3, s[64:67], 0 offen sc1")
    I("s_mov_b64 exec, -1")
    L("L_f_done")

def gen_wprep():
    I("v_and_b32 v2, 31, v67")
    I("v_lshlrev_b32 v2, 1, v2")
    I("v_and_b32 v3, 32, v67")
    I("v_lshl_add_u32 v2, v3, 5, v2")
    for k in range(5):
        I(f"s_add_u32 s46, s3, {8*k}")
        if k == 4:
            I("s_min_u32 s46, s46, 33")
        I("s_cmp_lt_u32 s46, 26")
        I("s_cselect_b32 s28, s90, s88")
        I("s_cselect_b32 s29, s91, s89")
        I("s_cselect_b32 s60, 18, 26")
        I("s_cmp_lt_u32 s46, 18")
        I("s_cselect_b32 s28, s58, s28")
        I("s_cselect_b32 s29, s59, s29")
        I("s_cselect_b32 s60, 0, s60")
        I(f"s_mov_b32 s30, {64*128}")
        I(f"s_cselect_b32 s30, {144*128}, s30")
        I("s_mov_b32 s31, 0x00020000")
        I("s_sub_u32 s60, s46, s60")
        I("s_lshr_b32 s61, s60, 1")
        I("s_lshl_b32 s61, s61, 11")
        I("s_and_b32 s60, s60, 1")
        I("s_lshl_b32 s60, s60, 6")
        I("s_add_u32 s61, s61, s60")
        for j in range(8):
            I(f"buffer_load_ushort v{12+8*k+j}, v2, s[28:31], s61 offen offset:{128*j}")

def gen_wpack():
    for k in range(5):
        I(f"s_add_u32 s46, s3, {8*k}")
        if k == 4:
            I("s_min_u32 s46, s46, 33")
        I(f"s_waitcnt vmcnt({8*(4-k)})")
        b = 12 + 8 * k
        if PRESCALE:
            I("s_sub_u32 s60, s46, 8")
            I("s_cmp_lt_u32 s60, 10")
            I(f"s_cselect_b32 s61, {NEGLOG2E}, 1.0")
            for j in range(8):
                I(f"v_lshlrev_b32 v{b+j}, 16, v{b+j}")
            for j in range(8):
                I(f"v_mul_f32 v{b+j}, s61, v{b+j}")
            for j in range(4):
                I(f"v_cvt_pk_bf16_f32 v{52+j}, v{b+2*j}, v{b+2*j+1}")
        else:
            for j in range(4):
                I(f"v_lshl_or_b32 v{52+j}, v{b+2*j+1}, 16, v{b+2*j}")
        I("s_lshl_b32 s46, s46, 10")
        I("v_add_u32 v56, s46, v70")
        I(f"ds_write_b128 v56, v[52:55] offset:{WSTG}")

def gen_wait():
    I("s_cmp_lg_u32 s3, 0")
    I("s_cbranch_scc1 L_w_done")
    I("v_lshlrev_b32 v2, 2, v67")
    I("v_mov_b32 v3, 0x01010101")
    I("v_cmp_eq_u32 vcc, 62, v67")
    I("v_mov_b32 v4, 0x00000101")
    I("s_nop 0")
    I("v_cndmask_b32 v3, v3, v4, vcc")
    I("v_cmp_eq_u32 vcc, 63, v67")
    I("s_mov_b32 s60, 0")
    I("s_nop 0")
    I("v_cndmask_b32 v3, v3, 0, vcc")
    L("L_w_loop")
    I("buffer_load_dword v4, v2, s[64:67], 0 offen sc1")
    I("s_add_u32 s60, s60, 1")
    I("s_waitcnt vmcnt(0)")
    I("v_cmp_ne_u32 vcc, v3, v4")
    I("s_cmp_gt_u32 s60, 0x40000")
    I("s_cbranch_scc1 L_w_done")
    I("s_cmp_eq_u64 vcc, 0")
    I("s_cbranch_scc1 L_w_done")
    I("s_sleep 1")
    I("s_branch L_w_loop")
    L("L_w_done")
    I("s_waitcnt lgkmcnt(0)")
    I("s_barrier")

def gen_round_head():
    L("L_round")
    I("s_lshl_b32 s46, s3, 5")
    I("v_lshrrev_b32 v66, 1, v67")
    I("v_add_u32 v66, s46, v66")
    I("v_lshlrev_b32 v65, 6, v66")
    I("buffer_load_dwordx4 v[48:51], v65, s[20:23], 0 offen" + SC)

def gen_k2():
    emit(f".globl {MAIN}")
    emit(".p2align 8")
    emit(f".type {MAIN},@function")
    L(MAIN)
    I("s_cmp_ge_u32 s2, 256")
    I("s_cbranch_scc1 L_k2_end")
    I("s_load_dwordx2 s[10:11], s[0:1], 72")
    I("s_load_dwordx4 s[4:7], s[0:1], 0")
    I("s_load_dwordx2 s[8:9], s[0:1], 56")
    if FUSED:
        I("s_load_dwordx4 s[52:55], s[0:1], 16")
        I("s_load_dwordx4 s[88:91], s[0:1], 32")
        I("s_load_dwordx2 s[58:59], s[0:1], 48")
        I("s_load_dwordx2 s[64:65], s[0:1], 64")
    I("s_and_b32 s38, s2, 7")
    I("s_lshr_b32 s39, s2, 3")
    I("s_lshl_b32 s32, s38, 5")
    I("s_add_u32 s32, s32, s39")
    stamp(0)
    if STAMP:
        I("s_memrealtime s[86:87]")
    I("v_lshrrev_b32 v1, 6, v0")
    I("v_and_b32 v67, 63, v0")
    I("v_readfirstlane_b32 s3, v1")
    I("s_mov_b32 s33, 0")
    I(f"s_movk_i32 s34, {NC}")
    I("s_mov_b32 s47, 1")
    I("s_lshr_b32 s48, s32, 2")
    I("s_lshl_b32 s48, s48, 14")
    I("s_and_b32 s46, s32, 3")
    I("s_lshl_b32 s46, s46, 4")
    I("s_add_u32 s48, s48, s46")
    I(f"s_add_u32 s48, s48, {WS_TAB}")
    I("s_waitcnt lgkmcnt(0)")
    I("s_add_u32 s20, s10, s48")
    I("s_addc_u32 s21, s11, 0")
    I(f"s_mov_b32 s22, {(NC-1)*64+16}")
    I("s_mov_b32 s23, 0x00020000")
    if FUSED:
        I("s_movk_i32 s66, 256")
        I("s_mov_b32 s67, 0x00020000")
        gen_role1()
        I("v_lshlrev_b32 v70, 4, v67")
        gen_wprep()
    else:
        gen_round_head()
        I("s_cmp_eq_u32 s47, 0")
        I("s_cbranch_scc1 L_noconst")
        srd(28, 10, 11, 34 * 1024)
        I("v_lshlrev_b32 v70, 4, v67")
        for k in range(5):
            I(f"s_add_u32 s46, s3, {8*k}")
            if k == 4:
                I("s_min_u32 s46, s46, 33")
            I("s_lshl_b32 s46, s46, 10")
            I(f"s_add_u32 m0, s46, {WSTG}")
            I("s_nop 0")
            I("buffer_load_dwordx4 v70, s[28:31], s46 offen lds")
    srd(12, 4, 5, N * 128)
    if PERM:
        srd(16, 10, 11, E * 32, WS_EAS)
    else:
        srd(16, 6, 7, E * 32)
    srd(24, 10, 11, NC * RECROW, WS_REC)
    I(f"s_mov_b32 s40, {EMASK}")
    I("s_movk_i32 s42, 80")
    I(f"s_mov_b32 s43, {NEGLOG2E}")
    I(f"s_lshl_b32 s37, s3, 13")
    I(f"s_add_u32 s37, s37, {STG}")
    I("v_and_b32 v3, 31, v67")
    I("v_lshrrev_b32 v4, 5, v67")
    I("v_bfe_u32 v5, v3, 1, 3")
    I("v_xor_b32 v5, v5, v4")
    I("v_lshlrev_b32 v5, 4, v5")
    I("v_lshl_add_u32 v5, v3, 7, v5")
    I(f"v_add_u32 v{VAX}, s37, v5")
    for s in range(1, 4):
        I(f"v_xor_b32 v6, {32*s}, v5")
        I(f"v_add_u32 v{VAX+s}, s37, v6")
    I("v_lshrrev_b32 v5, 4, v67")
    I("v_and_b32 v6, 7, v67")
    I("v_xor_b32 v5, v5, v6")
    I(f"v_lshlrev_b32 v{PC}, 4, v5")
    I(f"v_lshlrev_b32 v{H16}, 4, v4")
    I(f"s_mul_i32 s46, s3, {SMW}")
    I(f"s_add_u32 s46, s46, {SM}")
    I("v_lshrrev_b32 v5, 4, v3")
    I("v_lshlrev_b32 v5, 5, v5")
    I("v_bfe_u32 v6, v3, 2, 1")
    I("v_lshl_add_u32 v5, v6, 4, v5")
    I("v_bfe_u32 v6, v3, 3, 1")
    I("v_lshl_add_u32 v5, v6, 3, v5")
    I("v_and_b32 v6, 3, v3")
    I("v_lshl_add_u32 v5, v6, 1, v5")
    I(f"v_add_u32 v{K1C}, s46, v5")
    I(f"v_add_u32 v6, s46, v{H16}")
    I(f"v_mad_u32_u24 v{SRA}, v3, s42, v6")
    I("v_lshlrev_b32 v6, 5, v4")
    I(f"v_add_u32 v{OHC}, {OH}, v6")
    I(f"v_mov_b32 v{ONE}, 1.0")
    for i in range(4):
        I(f"v_mov_b32 v{8+i}, 0")
    I("v_add_u32 v7, s46, v70")
    I("ds_write_b128 v7, v[8:11]")
    I("v_cmp_gt_u32 vcc, 61, v67")
    I("s_and_saveexec_b64 s[50:51], vcc")
    I("ds_write_b128 v7, v[8:11] offset:1024")
    I("s_mov_b64 exec, -1")
    I("s_cmp_lg_u32 s3, 0")
    I("s_cbranch_scc1 L_noconst")
    I(f"v_add_u32 v7, {OH}, v70")
    I("ds_write_b128 v7, v[8:11]")
    I("ds_write_b128 v7, v[8:11] offset:1024")
    I("s_mov_b32 exec_hi, 0")
    I("ds_write_b128 v7, v[8:11] offset:2048")
    I("v_bfe_u32 v6, v3, 2, 1")
    I("v_lshlrev_b32 v6, 5, v6")
    I("v_lshrrev_b32 v7, 4, v3")
    I("v_lshl_add_u32 v6, v7, 4, v6")
    I("v_and_b32 v7, 15, v5")
    I("v_add_u32 v6, v6, v7")
    I("v_mad_u32_u24 v6, v3, s42, v6")
    I(f"v_add_u32 v6, {OH}, v6")
    I(f"ds_write_b16_d16_hi v6, v{ONE}")
    I("s_mov_b64 exec, -1")
    L("L_noconst")
    if FUSED:
        gen_wpack()
        gen_wait()
        gen_round_head()
    I("s_waitcnt vmcnt(0)")
    stamp(1)
    I("v_bfe_u32 v52, v48, 12, 4")
    I("v_lshrrev_b32 v53, 28, v48")
    I("v_lshl_or_b32 v52, v53, 4, v52")
    I("v_bfe_u32 v53, v49, 12, 4")
    I("v_lshl_or_b32 v52, v53, 8, v52")
    I("v_and_b32 v48, 0x0fff0fff, v48")
    I("v_and_b32 v49, 0xffff0fff, v49")
    I("v_and_b32 v53, 0xffff, v48")
    I("v_subrev_u32 v54, s33, v66")
    I("s_sub_u32 s46, s34, s33")
    I("v_cmp_gt_u32 s[52:53], s46, v54")
    I("v_and_b32 v55, 1, v67")
    I("v_lshl_add_u32 v64, v55, 1, v53")
    I("v_cndmask_b32 v54, v53, v52, s[52:53]")
    I(f"s_movk_i32 s46, {RECROW}")
    I("v_mul_u32_u24 v65, s46, v66")
    I("v_lshl_add_u32 v65, v64, 3, v65")
    I("v_sub_u32 v68, v54, v64")
    def rec_loads(tag):
        for i in range(8):
            I(f"v_cmpx_lt_i32 vcc, {4*i}, v68")
            I("s_nop 0")
            I(f"s_cbranch_execz L_rl_{tag}")
            I(f"buffer_load_dwordx4 v[{4*i}:{4*i+3}], v65, s[24:27], 0 offen offset:{32*i}" + SC)
        L(f"L_rl_{tag}")
        I("s_mov_b64 exec, -1")
    rec_loads("a")
    if K2PF:
        I("s_cmp_eq_u32 s47, 0")
        I("s_cbranch_scc1 L_nopf")
        I("s_lshl_b32 s46, s39, 3")
        I("s_add_u32 s46, s46, s3")
        I(f"s_mul_i32 s46, s46, {K2PF*64*128}")
        I("v_lshlrev_b32 v71, 7, v67")
        for k in range(K2PF):
            I(f"s_add_u32 s50, s46, {k*8192}")
            I(f"buffer_load_dword v{T+k}, v71, s[12:15], s50 offen")
        L("L_nopf")
    I("v_cmp_eq_u32 vcc, 0, v55")
    I("s_and_b64 vcc, vcc, s[52:53]")
    I("v_alignbit_b32 v72, v49, v48, 16")
    I("v_alignbit_b32 v73, v50, v49, 16")
    I("v_alignbit_b32 v74, v51, v50, 16")
    I("v_alignbit_b32 v75, v52, v51, 16")
    for i in range(4):
        I(f"v_sub_u32 v{72+i}, v{72+i}, v{48+i}")
    I("v_sub_u32 v76, v52, v53")
    for i in range(5):
        I(f"v_cndmask_b32 v{72+i}, 0, v{72+i}, vcc")
    for i in range(5):
        I(f"v_mov_b32 v{80+i}, v{72+i}")
    wave_scan([80, 81, 82, 83, 84])
    I("s_lshl_b32 s46, s3, 5")
    I(f"s_add_u32 s46, s46, {WTOT}")
    I("v_mov_b32 v69, s46")
    I("s_mov_b32 exec_lo, 0")
    I("s_mov_b32 exec_hi, 0x80000000")
    I("ds_write_b128 v69, v[80:83]")
    I("ds_write_b32 v69, v84 offset:16")
    I("s_mov_b64 exec, -1")
    I("v_and_b32 v69, 7, v67")
    I("v_lshlrev_b32 v69, 5, v69")
    I(f"v_add_u32 v69, {WTOT}, v69")
    I("s_waitcnt lgkmcnt(0)")
    I("s_barrier")
    stamp(2)
    I("ds_read_b128 v[88:91], v69")
    I("ds_read_b32 v92, v69 offset:16")
    I("s_waitcnt lgkmcnt(0)")
    I("s_cmp_eq_u32 s47, 0")
    I("s_cbranch_scc1 L_now")
    for f in range(18):
        I(f"ds_read_b128 {ar(4*f,4)}, v70 offset:{WSTG+1024*(8+f)}")
    L("L_now")
    for i in range(5):
        I(f"v_mov_b32 v{56+i}, v{88+i}")
    I("s_nop 1")
    for sh in (1, 2, 4):
        for i in range(5):
            I(f"v_add_u32_dpp v{56+i}, v{56+i}, v{56+i} row_shr:{sh} row_mask:0xf bank_mask:0xf")
    I("s_nop 1")
    for i in range(4):
        I(f"v_sub_u32 v{88+i}, v{56+i}, v{88+i}")
    I("v_readlane_b32 s60, v60, 7")
    for i in range(4):
        I(f"v_readlane_b32 s{56+i}, v{56+i}, 7")
    for i in range(4):
        I(f"v_readlane_b32 s{52+i}, v{88+i}, s3")
    I(f"s_cmp_le_u32 s60, {TLIM}")
    I("s_cbranch_scc1 L_fits")
    I("s_sub_u32 s46, s34, s33")
    I("s_cmp_eq_u32 s46, 1")
    I("s_cselect_b32 s34, s34, s33")
    for i in range(4):
        I(f"s_mov_b32 s{56+i}, 0")
    I("v_mov_b32 v68, 0")
    L("L_fits")
    I("s_cmp_eq_u32 s47, 0")
    I("s_cbranch_scc1 L_paired")
    if PAIR:
        for i in range(4):
            I(f"v_mov_b32 v{56+i}, s{56+i}")
        I("v_and_b32 v60, 7, v67")
        I("v_lshrrev_b32 v61, 3, v67")
        for (src, dst) in ((60, 62), (61, 63)):
            I(f"v_bfe_u32 v93, v{src}, 1, 1")
            I(f"v_cmp_eq_u32 vcc, 1, v93")
            I(f"v_bfe_u32 v93, v{src}, 2, 1")
            I(f"v_cmp_eq_u32 s[50:51], 1, v93")
            I("v_cndmask_b32 v94, v56, v57, vcc")
            I("v_cndmask_b32 v95, v58, v59, vcc")
            I(f"v_and_b32 v93, 1, v{src}")
            I("v_cndmask_b32 v94, v94, v95, s[50:51]")
            I("v_lshlrev_b32 v93, 4, v93")
            I("v_bfe_u32 v94, v94, v93, 16")
            I(f"v_lshl_add_u32 v{dst}, v94, 3, v{src}")
        I("v_cmp_gt_u32 vcc, v62, v63")
        I("s_sub_u32 s64, 11, s3")
        I("s_cmp_lt_u32 s3, 4")
        I("s_cselect_b32 s64, s3, s64")
        I("s_mov_b32 s41, 0")
        for i in range(8):
            I(f"s_bfe_u32 s65, {'vcc_lo' if i < 4 else 'vcc_hi'}, {(8*(i%4)) | (8 << 16)}")
            I("s_bcnt1_i32_b32 s65, s65")
            I("s_cmp_eq_u32 s65, s64")
            I(f"s_cselect_b32 s41, {i}, s41")
    else:
        I("s_mov_b32 s41, s3")
    L("L_paired")
    I("s_mov_b32 s61, 0")
    I("s_mov_b32 s62, 0")
    I("s_mov_b32 s63, 0")
    for i in range(4):
        I(f"s_add_u32 s64, s{56+i}, 0x005f005f")
        I("s_and_b32 s64, s64, 0xffe0ffe0")
        I("s_and_b32 s65, s64, 0xffff")
        I("s_lshr_b32 s66, s64, 16")
        I("s_add_u32 s67, s61, s65")
        I(f"s_and_b32 s68, s{56+i}, 0xffff")
        I(f"s_cmp_eq_u32 s41, {2*i}")
        I("s_cselect_b32 s62, s61, s62")
        I("s_cselect_b32 s63, s68, s63")
        I(f"s_lshr_b32 s68, s{56+i}, 16")
        I(f"s_cmp_eq_u32 s41, {2*i+1}")
        I("s_cselect_b32 s62, s67, s62")
        I("s_cselect_b32 s63, s68, s63")
        I("s_lshl_b32 s68, s67, 16")
        I("s_or_b32 s68, s68, s61")
        I(f"s_add_u32 s{52+i}, s{52+i}, s68")
        I(f"s_add_u32 s{52+i}, s{52+i}, 0x10001000")
        I("s_add_u32 s61, s67, s66")
    for i in range(4):
        I(f"v_sub_u32 v{80+i}, v{80+i}, v{72+i}")
    for i in range(4):
        I(f"v_add_u32 v{80+i}, s{52+i}, v{80+i}")
    for i in range(4):
        I(f"v_sub_u32 v{80+i}, v{80+i}, v{48+i}")
    I("v_lshlrev_b32 v69, 4, v66")
    I(f"v_add_u32 v69, {BASET}, v69")
    I("s_mov_b32 exec_lo, 0x55555555")
    I("s_mov_b32 exec_hi, 0x55555555")
    I("ds_write_b128 v69, v[80:83]")
    I("s_mov_b64 exec, -1")
    I("s_add_u32 s64, s63, 31")
    I("s_lshr_b32 s35, s64, 5")
    I("s_lshl_b32 s64, s35, 5")
    I("s_sub_u32 s64, s64, s63")
    I("s_add_u32 s65, s62, s63")
    I("v_add_lshl_u32 v72, v67, s65, 2")
    I("v_mov_b32 v73, 0xffffff00")
    I(f"v_mov_b32 v74, {EMASK}")
    I(f"ds_write2st64_b32 v72, v73, v74 offset0:{LIST_S//256} offset1:{LIST_M//256}")
    I("v_cmp_gt_u32 vcc, s64, v67")
    I("s_and_saveexec_b64 s[50:51], vcc")
    I(f"ds_write2st64_b32 v72, v73, v74 offset0:{LIST_S//256+1} offset1:{LIST_M//256+1}")
    I("s_mov_b64 exec, -1")
    I("s_lshl_b32 s64, s62, 2")
    I("v_lshrrev_b32 v72, 3, v67")
    I("v_lshlrev_b32 v72, 4, v72")
    I(f"s_add_u32 s65, s64, {LIST_S}")
    I(f"v_add_u32 v{LSA}, s65, v72")
    I("v_and_b32 v72, 7, v67")
    I("v_bfe_u32 v73, v67, 3, 2")
    I("v_lshl_add_u32 v72, v72, 2, v73")
    I("v_lshlrev_b32 v72, 2, v72")
    I(f"s_add_u32 s65, s64, {LIST_M}")
    I(f"v_add_u32 v{LMA}, s65, v72")
    I("s_cmp_eq_u32 s47, 0")
    I("s_cbranch_scc1 L_scat")
    for i in range(16):
        I(f"v_mov_b32 v{80+i}, 0")
    I("v_and_b32 v72, 31, v67")
    I(f"v_lshl_add_u32 v72, v72, 7, v{H16}")
    I("s_lshl_b32 s46, s32, 3")
    I("s_add_u32 s46, s46, s41")
    I("s_mul_i32 s46, s46, 3125")
    I("s_add_u32 s49, s46, 127")
    I("s_lshr_b32 s49, s49, 7")
    I(f"s_add_u32 s44, s46, {3125+127}")
    I("s_lshr_b32 s44, s44, 7")
    I("s_sub_u32 s44, s44, s49")
    I("s_lshl_b32 s49, s49, 7")
    I("s_bfm_b32 s46, s44, 0")
    I("s_mov_b32 exec_lo, s46")
    I("s_mov_b32 exec_hi, s46")
    for s in range(4):
        I(f"buffer_load_dwordx4 {vr(80+4*s,4)}, v72, s[12:15], s49 offen offset:{32*s}")
    I("s_mov_b64 exec, -1")
    I(f"s_waitcnt vmcnt({4+K2PF})")
    I("s_branch L_scat1")
    L("L_scat")
    I("s_waitcnt vmcnt(0)")
    L("L_scat1")
    stamp(3)
    o0 = (LIST_S - 16384) // 256; o1 = (LIST_M - 16384) // 256
    for half in range(2):
        R = range(8 * half, 8 * half + 8)
        if half:
            I("v_cmpx_lt_i32 vcc, 16, v68")
            I("s_nop 0")
            I("s_cbranch_execz L_scat_done")
        for r in R:
            I(f"v_lshrrev_b32 v{32+r}, 28, v{2*r+1}")
        for r in R:
            I(f"v_add_u32 v{32+r}, v{32+r}, v69")
        for r in R:
            I(f"ds_read_u16 v{32+r}, v{32+r}")
        for r in R:
            i, k = r // 2, r % 2
            I(f"v_cmpx_lt_i32 vcc, {4*i+k}, v68")
            I("s_waitcnt lgkmcnt(7)")
            I("s_cbranch_execz L_scat_done")
            I(f"v_add3_u32 v{32+r}, v{32+r}, v64, {4*i+k}")
            I(f"v_lshlrev_b32 v{32+r}, 2, v{32+r}")
            I(f"ds_write2st64_b32 v{32+r}, v{2*r}, v{2*r+1} offset0:{o0} offset1:{o1}")
    I("v_cmpx_lt_i32 vcc, 32, v68")
    I("s_nop 0")
    I("s_cbranch_execz L_scat_done")
    I("s_mov_b64 exec, -1")
    I("v_add_u32 v64, 32, v64")
    I("v_subrev_u32 v68, 32, v68")
    I("v_add_u32 v65, 256, v65")
    I("s_waitcnt lgkmcnt(0)")
    rec_loads("b")
    I("s_branch L_scat")
    L("L_scat_done")
    I("s_mov_b64 exec, -1")
    I("s_waitcnt lgkmcnt(0)")
    I("s_barrier")
    stamp(4)
    I(f"ds_read_b128 {vr(T,4)}, v{LSA}")
    I(f"ds_read2_b32 {vr(T+4,2)}, v{LMA} offset0:0 offset1:32")
    I("s_waitcnt lgkmcnt(0)")
    put(x_dma(0))
    put(e_load(0, T + 4))
    I(f"ds_read_b128 {vr(T,4)}, v{LSA} offset:128")
    I("s_cmp_eq_u32 s47, 0")
    I("s_cbranch_scc1 L_noinit")
    for f in range(8):
        I(f"ds_read_b128 {vr(4*f,4)}, v70 offset:{WSTG+1024*f}")
    I("s_waitcnt vmcnt(5) lgkmcnt(0)")
    for c in range(2):
        d = vr(32 + 16 * c, 16)
        for s in range(4):
            I(mfma(d, vr(80 + 4 * s, 4), vr((2 * s + c) * 4, 4), "0" if s == 0 else d))
    for f in range(8):
        I(f"ds_read_b128 {vr(4*f,4)}, v70 offset:{WSTG+1024*(26+f)}")
    I("s_nop 7")
    if PRESCALE:
        for i in range(32):
            I(f"v_mul_f32 v{32+i}, s43, v{32+i}")
    I("s_waitcnt lgkmcnt(0)")
    k = 0
    for c in range(2):
        a = ar(A_AGG + 16 * c, 16)
        for s in range(4):
            I(mfma(a, vr(80 + 4 * s, 4), vr((2 * s + c) * 4, 4), "0" if s == 0 else a))
            for p in (k, k + 1):
                I(f"v_cvt_pk_bf16_f32 v{64+p}, v{32+2*p}, v{32+2*p+1}")
            k += 2
    for c in range(2):
        for p in range(8):
            I(f"v_accvgpr_write_b32 a{xa(p//4, c) + p%4}, v{64+8*c+p}")
    I("s_mov_b32 s47, 0")
    L("L_noinit")
    I("s_cmp_eq_u32 s35, 0")
    I("s_cbranch_scc1 L_round_end")
    I(f"v_and_b32 v{T+4}, 31, v{T+4}")
    I(f"v_mad_u32_u24 v{T+7}, v{T+4}, s42, v{OHC}")
    I(f"v_mad_u32_u24 v{SW}, v{T+4}, s42, v{K1C}")
    I(f"ds_write_b16_d16_hi v{SW}, v{ONE}")
    I("s_waitcnt lgkmcnt(0)")
    put(x_dma(1))
    put(e_load(1, T + 5))
    for i in range(8):
        I(f"v_mov_b32 v{G[1]+i}, 0")
    for i in range(8):
        I(f"v_mov_b32 v{S+i}, 0")
    I("s_waitcnt vmcnt(5)")
    put(a_reads(0))
    I(f"ds_read_b128 {vr(T,4)}, v{LSA} offset:256")
    I("s_mov_b32 s36, s35")
    if PRIO:
        I("s_setprio 3")
    stamp(5)
    m0 = mfma_group(0, 0)
    I(m0[0])
    I("s_waitcnt lgkmcnt(0)")
    I(m0[1])
    put(x_dma(0))
    put(m0[2:])
    I("s_nop 7")
    I("s_branch L_p1_0")
    L("L_loop")
    INLOOP[0] = True
    nv = len(valu_group(0))
    pos = [2 + (k * (nv - 4)) // 13 for k in range(13)]
    def sched(mf, va, inserts):
        pend = []
        mi = 0
        for i, v in enumerate(va):
            if mi < len(mf) and i == pos[mi]:
                put(inserts.get(('b', mi), []))
                I(mf[mi])
                put(inserts.get(('m', mi), []))
                pend += inserts.get(('s', mi), [])
                mi += 1
            I(v)
            if pend:
                put([pend.pop(0)])
        assert mi == len(mf)
        put(pend)
    def nonop(lst):
        return [x for x in lst if x != "s_nop 0"]
    for par in range(2):
        ins = {('b', 3): ["s_waitcnt lgkmcnt(1)"],
               ('m', 4): ["s_waitcnt lgkmcnt(0)"],
               ('s', 4): nonop(x_dma(par))}
        if PRIO:
            ins[('m', 0)] = prio_code(par)
        if int(os.environ.get("DUPH", "0")):
            ins[('s', 5)] = [mfma_group(0, par)[7]] + ["s_nop 0"] * 2 + [mfma_group(0, par)[8]] + ["s_nop 0"] * 2 + [mfma_group(0, par)[9]] + ["s_nop 0"] * 2 + [mfma_group(0, par)[10]]
        sched(agg_group(0) + mfma_group(0, par), valu_group(1), ins)
        L(f"L_p1_{par}")
        ins = {('m', 0): [f"ds_read2_b32 {vr(T+4,2)}, v{LMA} offset0:32 offset1:64"],
               ('s', 1): [f"ds_read_b128 {vr(S,4)}, v{SRA}",
                          f"ds_read_b128 {vr(S+4,4)}, v{SRA} offset:32",
                          f"ds_write_b16 v{SW}, v{ONE}"],
               ('m', 3): ["s_waitcnt lgkmcnt(3)"] + e_load(par, T + 5),
               ('s', 3): [f"v_and_b32 v{T+4}, 31, v{T+4}",
                          f"v_add_u32 v{LSA}, 128, v{LSA}",
                          f"v_mad_u32_u24 v{T+7}, v{T+4}, s42, v{OHC}",
                          f"v_mad_u32_u24 v{SW}, v{T+4}, s42, v{K1C}",
                          f"v_add_u32 v{LMA}, 128, v{LMA}",
                          f"ds_write_b16_d16_hi v{SW}, v{ONE}",
                          "s_sub_u32 s36, s36, 1"],
               ('m', 4): [f"v_mov_b32 v{T+6}, v{T+6}"] * int(os.environ.get("EXTRAV", "0")),
               ('m', 12): ["s_waitcnt vmcnt(5) lgkmcnt(0)"] + a_reads(par ^ 1) + [f"ds_read_b128 {vr(T,4)}, v{LSA} offset:256"]}
        sched(agg_group(1) + mfma_group(1, par), valu_group(0), ins)
        I("s_cmp_eq_u32 s36, 0")
        if par == 0:
            I("s_cbranch_scc1 L_tail")
        else:
            I("s_cbranch_scc0 L_loop")
    L("L_tail")
    INLOOP[0] = False
    I(f"ds_write_b16 v{SW}, v{ONE}")
    I("s_nop 0")
    put(agg_group(0))
    put(valu_group(1))
    I("s_nop 1")
    put(agg_group(1))
    L("L_round_end")
    I(f"s_cmp_ge_u32 s34, {NC}")
    I("s_cbranch_scc1 L_epi")
    I("s_mov_b32 s33, s34")
    I("s_add_u32 s34, s34, 1")
    I("v_mbcnt_lo_u32_b32 v67, -1, 0")
    I("v_mbcnt_hi_u32_b32 v67, -1, v67")
    I("s_waitcnt vmcnt(0) lgkmcnt(0)")
    I("s_barrier")
    I("s_branch L_round")
    L("L_epi")
    I("s_waitcnt vmcnt(0) lgkmcnt(0)")
    stamp(6)
    srd(28, 8, 9, N * 128)
    I("v_mbcnt_lo_u32_b32 v67, -1, 0")
    I("v_mbcnt_hi_u32_b32 v67, -1, v67")
    I("v_and_b32 v68, 31, v67")
    I("v_lshrrev_b32 v69, 5, v67")
    I("v_lshlrev_b32 v68, 1, v68")
    I("v_lshl_add_u32 v68, v69, 9, v68")
    I("v_add_u32 v68, s37, v68")
    I("v_lshlrev_b32 v70, 4, v67")
    I("v_add_u32 v71, s37, v70")
    I("s_nop 7")
    I("s_nop 7")
    regs = [i for i in range(13)]
    for c in range(2):
        for i in regs:
            I(f"v_accvgpr_read_b32 v{16*c+i}, a{A_AGG+16*c+i}")
    ids = [16 * c + i for c in range(2) for i in regs]
    for r in ids:
        I(f"v_mul_f32 v{32+r}, s43, v{r}")
    for r in ids:
        I(f"v_exp_f32 v{32+r}, v{32+r}")
    for r in ids:
        I(f"v_add_f32 v{32+r}, 1.0, v{32+r}")
    for r in ids:
        I(f"v_rcp_f32 v{32+r}, v{32+r}")
    for r in ids:
        I(f"v_mul_f32 v{r}, v{r}, v{32+r}")
    for i in regs:
        I(f"v_cvt_pk_bf16_f32 v{32+i}, v{i}, v{16+i}")
    for i in regs:
        row = 8 * (i >> 2) + (i & 3)
        I(f"ds_write_b16 v68, v{32+i} offset:{row*128}")
        I(f"ds_write_b16_d16_hi v68, v{32+i} offset:{row*128+64}")
    I("s_waitcnt lgkmcnt(0)")
    for k in range(4):
        I(f"ds_read_b128 {vr(4*k,4)}, v71 offset:{1024*k}")
    for k in range(3):
        I(f"s_waitcnt lgkmcnt({3-k})")
        I(f"buffer_store_dwordx4 {vr(4*k,4)}, v70, s[28:31], s49 offen offset:{1024*k}")
    I("s_cmp_lt_u32 s44, 25")
    I("s_cbranch_scc1 L_k2_fin")
    I("s_waitcnt lgkmcnt(0)")
    I("s_mov_b64 exec, 0xff")
    I(f"buffer_store_dwordx4 {vr(12,4)}, v70, s[28:31], s49 offen offset:3072")
    L("L_k2_fin")
    if STAMP:
        I("s_waitcnt vmcnt(0)")
        stamp(7)
        srd(28, 10, 11, 0x100000, 0x1000000)
        I("s_mov_b64 exec, 1")
        I("s_lshl_b32 s46, s2, 3")
        I("s_add_u32 s46, s46, s3")
        I("s_lshl_b32 s46, s46, 6")
        I("v_mov_b32 v0, 0")
        for k in range(8):
            I(f"v_mov_b32 v1, s{70+2*k}")
            I(f"buffer_store_dword v1, v0, s[28:31], s46 offen offset:{4*k}")
        I("v_mov_b32 v1, s35")
        I(f"buffer_store_dword v1, v0, s[28:31], s46 offen offset:32")
        I("s_getreg_b32 s47, hwreg(HW_REG_XCC_ID)")
        I("v_mov_b32 v1, s47")
        I(f"buffer_store_dword v1, v0, s[28:31], s46 offen offset:36")
        I("s_getreg_b32 s47, hwreg(HW_REG_HW_ID)")
        I("v_mov_b32 v1, s47")
        I(f"buffer_store_dword v1, v0, s[28:31], s46 offen offset:40")
        I("s_memrealtime s[50:51]")
        I("s_waitcnt lgkmcnt(0)")
        I("v_mov_b32 v1, s50")
        I(f"buffer_store_dword v1, v0, s[28:31], s46 offen offset:44")
        I("v_mov_b32 v1, s86")
        I(f"buffer_store_dword v1, v0, s[28:31], s46 offen offset:48")
    L("L_k2_end")
    L("L_k2_last")
    I("s_endpgm")

def kd(name, vgpr, sgpr, accum):
    emit(f".amdhsa_kernel {name}")
    emit(f"  .amdhsa_next_free_vgpr {vgpr}")
    emit(f"  .amdhsa_next_free_sgpr {sgpr}")
    emit(f"  .amdhsa_accum_offset {accum}")
    emit("  .amdhsa_group_segment_fixed_size 0")
    emit("  .amdhsa_kernarg_size 80")
    emit("  .amdhsa_user_sgpr_count 2")
    emit("  .amdhsa_user_sgpr_kernarg_segment_ptr 1")
    emit("  .amdhsa_system_sgpr_workgroup_id_x 1")
    emit(".end_amdhsa_kernel")

def main():
    emit(HEADER.rstrip("\n"))
    if FUSED == 1:
        emit(f"; @launch grid=(256,1,1) block=(512,1,1) lds={K2_LDS}")
    elif FUSED == 2:
        emit(f"; @launch kernel=egc_main_kernel grid=(256,1,1) block=(512,1,1) lds={K2_LDS}")
    else:
        emit(f"; @launch kernel=egc_bin_kernel grid=({NC},1,1) block=(1024,1,1) lds={K1_LDS}")
        emit(f"; @launch kernel=egc_main_kernel grid=(256,1,1) block=(512,1,1) lds={K2_LDS}")
    emit('.amdgcn_target "amdgcn-amd-amdhsa--gfx950"')
    emit(".text")
    if not FUSED:
        gen_k1()
    gen_k2()
    emit('.section .rodata,"a"')
    if not FUSED:
        emit(".p2align 6")
        kd("egc_bin_kernel", 84 if PERM else 56, 96 if STAMP1 else 72, 84 if PERM else 56)
    emit(".p2align 6")
    kd(MAIN, 248, 96, 128)
    path = sys.argv[1] if len(sys.argv) > 1 else "standalone__edge_featured_mpnn_egc__graph.s"
    open(path, "w").write("\n".join(out) + "\n")

main()
```

```python
import sys, os

N = 50000; E = 800000
WN = 25; NWIN = 2048; NB = 256; CH = 3200; NC = 250
WS_WF = 0; WS_TAB = 0x10000; TABROW = 8192; WS_REC = 0x400000; RECROW = CH * 8
PRESCALE = int(os.environ.get('PRESCALE', '0')) if 'os' in globals() else 0
PERM = int(os.environ.get('PERM', '0'))
WS_EAS = 0x2000000
K1PF = int(os.environ.get('K1PF', '0'))
K2PF = int(os.environ.get('K2PF', '0'))
PAIR = int(os.environ.get('PAIR', '1'))
CODEPF = int(os.environ.get('CODEPF', '0'))
STAMP1 = int(os.environ.get('STAMP1', '0'))
FUSED = int(os.environ.get('FUSED', '0'))
SC = ' sc1' if FUSED else ''
MAIN = 'standalone__edge_featured_mpnn_egc__graph_kernel' if FUSED == 1 else 'egc_main_kernel'
TLBPF = int(os.environ.get('TLBPF', '0'))
M25 = 175921861
NEGLOG2E = 0xBFB8AA3B

import os
STAMP = int(os.environ.get("STAMP", "0"))
RT = int(os.environ.get("RT", "-1"))
def stamp(k):
    if RT >= 0 and k in (0, RT):
        r = 70 if k == 0 else 72
        I(f"s_memrealtime s[{r}:{r+1}]")
        I("s_waitcnt lgkmcnt(0)")
    if STAMP:
        I(f"s_memtime s[{70+2*k}:{71+2*k}]")
        I("s_waitcnt lgkmcnt(0)")
out = []
def emit(s=""):
    out.append(s)
DROP = os.environ.get("DROP", "").split(",")
INLOOP = [False]
def I(s):
    if INLOOP[0]:
        op = s.split()[0]
        if "mfma" in DROP and op.startswith("v_mfma"): return
        if "msparse" in DROP and op.startswith("v_mfma") and (s.split()[1].startswith("a[") or s.split()[2] in ("v[80:83],", "v[84:87],")): return
        if "mh" in DROP and op.startswith("v_mfma") and s.split()[1] in ("v[16:31],", "v[48:63],"): return
        if "trans" in DROP and op in ("v_exp_f32", "v_rcp_f32"): return
        if "valu" in DROP and op in ("v_exp_f32", "v_rcp_f32", "v_mul_f32", "v_add_f32", "v_cvt_pk_bf16_f32"): return
        if "dma" in DROP and op.startswith("buffer_load"): return
        if "lds" in DROP and op.startswith("ds_read_b128"): return
    out.append("    " + s)
def L(s):
    out.append(s + ":")

HEADER = """; Kernarg layout for this problem (80 bytes, ptrs only, base s[0:1]):
"""

def srd(d, lo, hi, size, add=0):
    if add:
        I(f"s_add_u32 s{d}, s{lo}, {add}")
        I(f"s_addc_u32 s{d+1}, s{hi}, 0")
    else:
        I(f"s_mov_b32 s{d}, s{lo}")
        I(f"s_mov_b32 s{d+1}, s{hi}")
    I(f"s_mov_b32 s{d+2}, {size}")
    I(f"s_mov_b32 s{d+3}, 0x00020000")

def wave_scan(regs):
    steps = ["row_shr:1 row_mask:0xf bank_mask:0xf", "row_shr:2 row_mask:0xf bank_mask:0xf",
             "row_shr:4 row_mask:0xf bank_mask:0xf", "row_shr:8 row_mask:0xf bank_mask:0xf",
             "row_bcast:15 row_mask:0xa bank_mask:0xf", "row_bcast:31 row_mask:0xc bank_mask:0xf"]
    I("s_nop 1")
    for st in steps:
        for r in regs:
            I(f"v_add_u32_dpp v{r}, v{r}, v{r} {st}")
        if len(regs) < 3:
            I(f"s_nop {2 - len(regs)}")

K1_HIST = 0
K1_WTOT = 8256
K1_STG = 8448
K1_POS = K1_STG + RECROW
K1_LDS = K1_POS + (CH * 4 if PERM else 0)

def gen_k1():
    emit(".globl egc_bin_kernel")
    emit(".p2align 8")
    emit(".type egc_bin_kernel,@function")
    L("egc_bin_kernel")
    I(f"s_cmp_ge_u32 s2, {NC}")
    I("s_cbranch_scc1 L_k1_end")
    if STAMP1:
        I("s_memtime s[70:71]")
        I("s_waitcnt lgkmcnt(0)")
    I("s_load_dwordx4 s[4:7], s[0:1], 16")
    I("s_load_dwordx4 s[8:11], s[0:1], 32")
    I("s_load_dwordx2 s[12:13], s[0:1], 48")
    I("s_load_dwordx2 s[14:15], s[0:1], 72")
    if PERM:
        I("s_load_dwordx2 s[60:61], s[0:1], 8")
    if K1PF:
        I("s_load_dwordx2 s[64:65], s[0:1], 0")
    I("v_lshlrev_b32 v1, 3, v0")
    I("v_mov_b32 v2, 0")
    I("v_mov_b32 v3, 0")
    I(f"ds_write_b64 v1, v[2:3] offset:{K1_HIST}")
    I(f"v_mov_b32 v3, {CH}")
    I(f"ds_write_b32 v2, v3 offset:{K1_HIST+8192}")
    I("v_lshlrev_b32 v4, 4, v0")
    I("v_lshrrev_b32 v5, 6, v0")
    I(f"s_mul_i32 s32, s2, {CH*4}")
    I("v_readfirstlane_b32 s3, v5")
    I(f"s_mov_b32 s33, {M25}")
    I("s_movk_i32 s36, 3125")
    I(f"s_mul_i32 s37, s2, {CH*32}")
    I("s_waitcnt lgkmcnt(0)")
    if STAMP1:
        I("s_memtime s[72:73]")
        I("s_waitcnt lgkmcnt(0)")
    srd(16, 4, 5, E * 4)
    srd(20, 6, 7, E * 4)
    srd(24, 14, 15, 0x1000000)
    if PERM:
        srd(52, 60, 61, E * 32)
        srd(56, 14, 15, E * 32, WS_EAS)
    I(f"v_cmp_gt_u32 vcc, {CH//4}, v0")
    I("s_and_saveexec_b64 s[34:35], vcc")
    I("s_cbranch_execz L_k1_noload")
    I("buffer_load_dwordx4 v[8:11], v4, s[20:23], s32 offen")
    I("buffer_load_dwordx4 v[12:15], v4, s[16:19], s32 offen")
    L("L_k1_noload")
    I("s_mov_b64 exec, s[34:35]")
    if CODEPF:
        I("s_cmp_lg_u32 s3, 14")
        I("s_cbranch_scc1 L_k1_nocpf")
        I("s_getpc_b64 s[62:63]")
        L("L_k1_pc")
        I("s_add_u32 s62, s62, egc_main_kernel-L_k1_pc")
        I("s_addc_u32 s63, s63, 0")
        I("v_and_b32 v40, 63, v0")
        I("v_lshlrev_b32 v40, 7, v40")
        I("v_min_u32 v41, L_k2_last-egc_main_kernel-8192, v40")
        I("v_add_u32 v41, 8192, v41")
        I("global_load_dword v42, v40, s[62:63]")
        I("global_load_dword v43, v41, s[62:63]")
        L("L_k1_nocpf")
    if TLBPF:
        I("s_cmp_lg_u32 s3, 13")
        I("s_cbranch_scc1 L_k1_notlb")
        I("s_load_dwordx4 s[52:55], s[0:1], 0")
        I("s_load_dwordx2 s[56:57], s[0:1], 56")
        I("s_lshr_b32 s62, s2, 3")
        I("v_and_b32 v40, 63, v0")
        ne_ = -(-(E * 32) // (TLBPF * 32)); nx_ = -(-(N * 128) // (TLBPF * 32))
        I(f"s_mul_i32 s63, s62, {ne_ * TLBPF}")
        I(f"s_mul_i32 s62, s62, {nx_ * TLBPF}")
        I(f"s_mov_b32 s58, {TLBPF}")
        I("v_mul_lo_u32 v41, v40, s58")
        I("s_waitcnt lgkmcnt(0)")
        srd(64, 54, 55, E * 32)
        I(f"s_bfm_b64 exec, {ne_}, 0")
        I("buffer_load_dword v42, v41, s[64:67], s63 offen")
        srd(64, 52, 53, N * 128)
        I(f"s_bfm_b64 exec, {nx_}, 0")
        I("buffer_load_dword v43, v41, s[64:67], s62 offen")
        srd(64, 56, 57, N * 128)
        I("buffer_load_dword v44, v41, s[64:67], s62 offen")
        I("s_mov_b64 exec, -1")
        L("L_k1_notlb")
    I("s_mov_b32 s40, 0")
    I("s_cmp_lg_u32 s3, 15")
    I("s_cbranch_scc1 L_k1_nowf")
    I("s_cmp_ge_u32 s2, 34")
    I("s_cbranch_scc1 L_k1_nowf")
    I("s_mov_b32 s40, 1")
    I("s_mov_b32 s28, s12")
    I("s_mov_b32 s29, s13")
    I(f"s_mov_b32 s30, {144*128}")
    I("s_mov_b32 s31, 0x00020000")
    I("s_mov_b32 s41, s2")
    I("s_cmp_lt_u32 s2, 18")
    I("s_cbranch_scc1 L_k1_wsel")
    I("s_mov_b32 s28, s10")
    I("s_mov_b32 s29, s11")
    I(f"s_mov_b32 s30, {64*128}")
    I("s_sub_u32 s41, s2, 18")
    I("s_cmp_lt_u32 s2, 26")
    I("s_cbranch_scc1 L_k1_wsel")
    I("s_mov_b32 s28, s8")
    I("s_mov_b32 s29, s9")
    I("s_sub_u32 s41, s2, 26")
    L("L_k1_wsel")
    I("s_lshr_b32 s42, s41, 1")
    I("s_lshl_b32 s42, s42, 11")
    I("s_and_b32 s43, s41, 1")
    I("s_lshl_b32 s43, s43, 6")
    I("s_add_u32 s42, s42, s43")
    I("v_and_b32 v40, 31, v0")
    I("v_lshlrev_b32 v40, 1, v40")
    I("v_and_b32 v41, 32, v0")
    I("v_lshl_add_u32 v40, v41, 5, v40")
    for j in range(8):
        I(f"buffer_load_ushort v{44+j}, v40, s[28:31], s42 offen offset:{128*j}")
    L("L_k1_nowf")
    I("s_barrier")
    if K1PF:
        I("s_mov_b32 s66, s64")
        I("s_mov_b32 s67, s65")
        I("s_mov_b32 s64, s66")
        I("s_mov_b32 s65, s67")
        I(f"s_mov_b32 s66, {N*128}")
        I("s_mov_b32 s67, 0x00020000")
        I("s_lshr_b32 s62, s2, 3")
        I(f"s_mul_i32 s62, s62, {K1PF*128}")
        I("v_lshlrev_b32 v3, 7, v0")
        I(f"s_movk_i32 s63, {K1PF}")
        I("v_cmp_gt_u32 s[48:49], s63, v0")
        I("s_and_saveexec_b64 s[34:35], s[48:49]")
        I("s_cbranch_execz L_k1_nopf")
        I("buffer_load_dword v42, v3, s[64:67], s62 offen")
        L("L_k1_nopf")
        I("s_mov_b64 exec, s[34:35]")
    if PERM:
        for k in range(7):
            if k == 6:
                I("s_cmp_ge_u32 s3, 4")
                I("s_cbranch_scc1 L_k1_e6")
            I(f"s_add_u32 s62, s37, {16384*k}")
            I(f"buffer_load_dwordx4 v[{56+4*k}:{59+4*k}], v4, s[52:55], s62 offen" + os.environ.get("K1EPOL", ""))
        L("L_k1_e6")
    ne = 6 if PERM else 0
    if K1PF >= CH // 4 + 32: ne += 1
    I("s_and_saveexec_b64 s[34:35], vcc")
    I("s_cbranch_execz L_k1_nohist")
    I("v_mov_b32 v6, 1")
    if PERM:
        I("v_mov_b32 v7, s37")
    else:
        I("v_lshl_add_u32 v7, v0, 7, s37")
    I(f"s_waitcnt vmcnt({ne+1})")
    if STAMP1:
        I("s_memtime s[74:75]")
        I("s_waitcnt lgkmcnt(0)")
    for i in range(4):
        I(f"v_mul_hi_u32 v{16+i}, v{8+i}, s33")
    for i in range(4):
        I(f"v_lshlrev_b32 v{20+i}, 2, v{16+i}")
    for i in range(4):
        I(f"ds_add_rtn_u32 v{24+i}, v{20+i}, v6 offset:{K1_HIST}")
    I("v_mov_b32 v5, 0x7f")
    for i in range(4):
        I(f"v_mad_u32_u24 v{28+i}, v{16+i}, s36, v5")
    for i in range(4):
        I(f"v_lshrrev_b32 v{28+i}, 7, v{28+i}")
    for i in range(4):
        I(f"v_sub_u32 v{28+i}, v{8+i}, v{28+i}")
    for i in range(4):
        I(f"v_lshlrev_b32 v{16+i}, 29, v{16+i}")
    for i in range(4):
        I(f"v_or3_b32 v{33+2*i}, v{16+i}, v7, v{28+i}")
    if not PERM:
        for i in range(1, 4):
            I(f"v_add_u32 v{33+2*i}, {32*i}, v{33+2*i}")
    I(f"s_waitcnt vmcnt({ne})")
    for i in range(4):
        I(f"v_lshlrev_b32 v{32+2*i}, 7, v{12+i}")
    L("L_k1_nohist")
    I("s_mov_b64 exec, s[34:35]")
    I("s_waitcnt lgkmcnt(0)")
    I("s_barrier")
    if STAMP1:
        I("s_memtime s[76:77]")
        I("s_waitcnt lgkmcnt(0)")
    I(f"ds_read_b64 v[2:3], v1 offset:{K1_HIST}")
    I("s_waitcnt lgkmcnt(0)")
    I("v_add_u32 v8, v2, v3")
    I("v_mov_b32 v9, v8")
    wave_scan([9])
    I("s_lshl_b32 s44, s3, 2")
    I("v_mov_b32 v10, s44")
    I("s_mov_b32 exec_lo, 0")
    I("s_mov_b32 exec_hi, 0x80000000")
    I(f"ds_write_b32 v10, v9 offset:{K1_WTOT}")
    I("s_mov_b64 exec, -1")
    I("v_and_b32 v10, 15, v0")
    I("v_lshlrev_b32 v10, 2, v10")
    I("s_waitcnt lgkmcnt(0)")
    I("s_barrier")
    I(f"ds_read_b32 v11, v10 offset:{K1_WTOT}")
    I("s_waitcnt lgkmcnt(0)")
    I("v_mov_b32 v12, v11")
    I("s_nop 1")
    for sh in (1, 2, 4, 8):
        I(f"v_add_u32_dpp v12, v12, v12 row_shr:{sh} row_mask:0xf bank_mask:0xf")
        I("s_nop 1")
    I("v_sub_u32 v12, v12, v11")
    I("s_nop 0")
    I("v_readlane_b32 s45, v12, s3")
    I("v_sub_u32 v9, v9, v8")
    I("s_nop 1")
    I("v_add_u32 v9, s45, v9")
    I("v_add_u32 v10, v9, v2")
    I("v_mov_b32 v12, v9")
    I("v_mov_b32 v13, v10")
    I(f"ds_write_b64 v1, v[12:13] offset:{K1_HIST}")
    I("s_waitcnt lgkmcnt(0)")
    I("s_barrier")
    if STAMP1:
        I("s_memtime s[78:79]")
        I("s_waitcnt lgkmcnt(0)")
    I(f"s_movk_i32 s50, {NB}")
    I("v_subrev_u32 v15, 0x300, v0")
    I("v_cmp_gt_u32 s[48:49], s50, v15")
    I("s_and_saveexec_b64 s[34:35], s[48:49]")
    I("s_cbranch_execz L_k1_notab")
    I("v_lshlrev_b32 v14, 5, v15")
    I(f"ds_read_b128 v[8:11], v14 offset:{K1_HIST}")
    I(f"ds_read_b128 v[16:19], v14 offset:{K1_HIST+16}")
    I(f"ds_read_b32 v12, v14 offset:{K1_HIST+32}")
    I("v_lshrrev_b32 v14, 2, v15")
    I("v_lshlrev_b32 v14, 14, v14")
    I("v_and_b32 v13, 3, v15")
    I("v_lshl_add_u32 v14, v13, 4, v14")
    I("s_lshl_b32 s46, s2, 6")
    I(f"s_add_u32 s46, s46, {WS_TAB}")
    I("s_waitcnt lgkmcnt(0)")
    I("v_lshl_or_b32 v8, v9, 16, v8")
    I("v_lshl_or_b32 v9, v11, 16, v10")
    I("v_lshl_or_b32 v10, v17, 16, v16")
    I("v_lshl_or_b32 v11, v19, 16, v18")
    I("v_and_b32 v13, 15, v12")
    I("v_lshl_or_b32 v8, v13, 12, v8")
    I("v_lshrrev_b32 v13, 4, v12")
    I("v_lshl_or_b32 v8, v13, 28, v8")
    I("v_lshrrev_b32 v13, 8, v12")
    I("v_lshl_or_b32 v9, v13, 12, v9")
    I("buffer_store_dwordx4 v[8:11], v14, s[24:27], s46 offen" + os.environ.get("K1ST", ""))
    L("L_k1_notab")
    I("s_mov_b64 exec, s[34:35]")
    I("s_and_saveexec_b64 s[34:35], vcc")
    I("s_cbranch_execz L_k1_noscat")
    for i in range(4):
        I(f"ds_read_b32 v{28+i}, v{20+i} offset:{K1_HIST}")
    for i in range(4):
        I(f"s_waitcnt lgkmcnt({3-i})")
        I(f"v_add_lshl_u32 v{28+i}, v{28+i}, v{24+i}, 3")
    if PERM:
        for i in range(4):
            I(f"v_lshlrev_b32 v{20+i}, 2, v{28+i}")
        for i in range(4):
            I(f"v_add_u32 v{33+2*i}, v{33+2*i}, v{20+i}")
        I(f"ds_write_b128 v4, v[20:23] offset:{K1_POS}")
    for i in range(4):
        I(f"ds_write_b64 v{28+i}, v[{32+2*i}:{33+2*i}] offset:{K1_STG}")
    L("L_k1_noscat")
    I("s_mov_b64 exec, s[34:35]")
    I("s_waitcnt lgkmcnt(0)")
    I("s_barrier")
    if STAMP1:
        I("s_memtime s[80:81]")
        I("s_waitcnt lgkmcnt(0)")
    I(f"s_mul_i32 s46, s2, {RECROW}")
    I(f"s_add_u32 s46, s46, {WS_REC}")
    I(f"ds_read_b128 v[8:11], v4 offset:{K1_STG}")
    I(f"v_cmp_gt_u32 vcc, {RECROW//16 - 1024}, v0")
    I("s_and_saveexec_b64 s[34:35], vcc")
    I("s_cbranch_execz L_k1_no2")
    I(f"ds_read_b128 v[12:15], v4 offset:{K1_STG + 16384}")
    I("s_add_u32 s47, s46, 16384")
    I("s_waitcnt lgkmcnt(0)")
    I("buffer_store_dwordx4 v[12:15], v4, s[24:27], s47 offen" + os.environ.get("K1ST", ""))
    L("L_k1_no2")
    I("s_mov_b64 exec, s[34:35]")
    I("s_waitcnt lgkmcnt(0)")
    I("buffer_store_dwordx4 v[8:11], v4, s[24:27], s46 offen" + os.environ.get("K1ST", ""))
    if PERM:
        I("v_lshrrev_b32 v16, 1, v0")
        I("v_lshlrev_b32 v16, 2, v16")
        I("v_and_b32 v17, 1, v0")
        I("v_lshlrev_b32 v17, 4, v17")
        for k in range(7):
            I(f"ds_read_b32 v{20+k}, v16 offset:{K1_POS+2048*k}")
        for k in range(7):
            if k == 6:
                I("s_cmp_ge_u32 s3, 4")
                I("s_cbranch_scc1 L_k1_s6")
            I(f"s_waitcnt lgkmcnt({6-k})")
            I(f"v_add_u32 v{20+k}, v{20+k}, v17")
            if k == 0:
                I("s_waitcnt vmcnt(0)")
            I(f"buffer_store_dwordx4 v[{56+4*k}:{59+4*k}], v{20+k}, s[56:59], s37 offen" + os.environ.get("K1SPOL", ""))
        L("L_k1_s6")
    if STAMP1:
        I("s_memtime s[82:83]")
        I("s_waitcnt lgkmcnt(0)")
    if STAMP1:
        I("s_waitcnt vmcnt(0)")
        I("s_memtime s[84:85]")
        I("s_waitcnt lgkmcnt(0)")
        srd(64, 14, 15, 0x100000, 0x1000000)
        I("s_mov_b64 s[34:35], exec")
        I("s_mov_b64 exec, 1")
        I("s_lshl_b32 s46, s2, 4")
        I("s_add_u32 s46, s46, s3")
        I("s_lshl_b32 s46, s46, 6")
        I("v_mov_b32 v2, 0")
        for k in range(8):
            I(f"v_mov_b32 v1, s{70+2*k}")
            I(f"buffer_store_dword v1, v2, s[64:67], s46 offen offset:{4*k}")
        I("s_mov_b64 exec, s[34:35]")
    I("s_cmp_eq_u32 s40, 0")
    I("s_cbranch_scc1 L_k1_end")
    I("s_waitcnt vmcnt(0)")
    if PRESCALE:
        I("s_sub_u32 s46, s2, 8")
        I("s_cmp_lt_u32 s46, 10")
        I(f"s_cselect_b32 s47, {NEGLOG2E}, 1.0")
        for j in range(8):
            I(f"v_lshlrev_b32 v{44+j}, 16, v{44+j}")
        for j in range(8):
            I(f"v_mul_f32 v{44+j}, s47, v{44+j}")
        for j in range(4):
            I(f"v_cvt_pk_bf16_f32 v{52+j}, v{44+2*j}, v{45+2*j}")
    else:
        for j in range(4):
            I(f"v_lshl_or_b32 v{52+j}, v{45+2*j}, 16, v{44+2*j}")
    I("v_and_b32 v40, 63, v0")
    I("v_lshlrev_b32 v40, 4, v40")
    I("s_lshl_b32 s46, s2, 10")
    I("buffer_store_dwordx4 v[52:55], v40, s[24:27], s46 offen")
    L("L_k1_end")
    I("s_endpgm")

WSTG = 0
LCAP = 4352
TLIM = 3584
LIST_S = 34816
LIST_M = LIST_S + LCAP * 4
SM = LIST_M + LCAP * 4
SMW = 2000
OH = SM + 16576
BASET = OH + 2560
WTOT = BASET + 4096
STG = WTOT + 256
STGW = 8192
K2_LDS = STG + 8 * STGW
assert STG % 128 == 0 or True
EMASK = 0x01FFFFE0

G = [0, 32]; H = [16, 48]
AX = 64; ST = 80; S = 88; EB = [96, 100]; T = 104
VAX = 112; PC = 116; H16 = 117; LSA = 118; LMA = 119; K1C = 120; SRA = 121; OHC = 122; SW = 123; ONE = 124
A_WB = 0; A_WV = 40; A_XA = 72; A_AGG = 88

def wb(s, c): return A_WB + (2 * s + c) * 4
def wv(s, c): return A_WV + (2 * s + c) * 4
def xa(s, c): return A_XA + (2 * s + c) * 4
def vr(b, n): return f"v[{b}:{b+n-1}]"
def ar(b, n): return f"a[{b}:{b+n-1}]"

def mfma(d, a, b, c):
    return f"v_mfma_f32_32x32x16_bf16 {d}, {a}, {b}, {c}"

def mfma_group(c, par):
    m = []
    g = vr(G[c], 16); h = vr(H[c], 16)
    m.append(mfma(g, vr(EB[par], 4), ar(wb(4, c), 4), "0"))
    for s in range(2):
        m.append(mfma(g, vr(ST + 4 * s, 4), ar(xa(s, c), 4), g))
    for s in range(4):
        m.append(mfma(g, vr(AX + 4 * s, 4), ar(wb(s, c), 4), g))
    for s in range(4):
        m.append(mfma(h, vr(AX + 4 * s, 4), ar(wv(s, c), 4), "0" if s == 0 else h))
    return m

def valu_group(c):
    g = G[c]; h = H[c]
    stages = [
        lambda i: f"v_mul_f32 v{g+i}, s43, v{g+i}",
        lambda i: f"v_exp_f32 v{g+i}, v{g+i}",
        lambda i: f"v_add_f32 v{g+i}, 1.0, v{g+i}",
        lambda i: f"v_rcp_f32 v{g+i}, v{g+i}",
        lambda i: f"v_mul_f32 v{g+i}, v{g+i}, v{h+i}",
    ]
    if PRESCALE:
        stages = stages[1:]
    v = []
    D = 2
    nst = len(stages)
    for step in range(16 + D * nst + 2):
        for k in range(nst):
            i = step - D * k
            if 0 <= i < 16:
                v.append(stages[k](i))
        i = step - D * nst
        if 0 <= i < 16 and i % 2 == 1:
            p = i // 2
            v.append(f"v_cvt_pk_bf16_f32 v{g+p}, v{g+i-1}, v{g+i}")
    return v

def agg_group(c):
    a = ar(A_AGG + 16 * c, 16)
    return [mfma(a, vr(S, 4), vr(G[c], 4), a), mfma(a, vr(S + 4, 4), vr(G[c] + 4, 4), a)]

def put(lst):
    for x in lst:
        if x.endswith(":"):
            emit(x)
        else:
            I(x)

def interleave(mf, va, per, inserts):
    mi = 0
    for i, v in enumerate(va):
        if i % per == 0 and mi < len(mf):
            I(mf[mi])
            mi += 1
        if i in inserts:
            put(inserts[i])
        I(v)
    assert mi == len(mf)

NOMEM = int(os.environ.get("NOMEM", "0"))
def x_dma(par):
    r = []
    if NOMEM:
        for k in range(4):
            r.append(f"v_and_b32 v{T+k}, 0x3f80, v{T+k}")
    r.append(f"v_add_u32 v{T+0}, v{PC}, v{T+0}")
    r.append(f"v_xad_u32 v{T+1}, v{PC}, 64, v{T+1}")
    r.append(f"v_add_u32 v{T+2}, v{PC}, v{T+2}")
    r.append(f"v_xad_u32 v{T+3}, v{PC}, 64, v{T+3}")
    for k in range(4):
        r.append(f"s_add_u32 m0, s37, {par*4096 + k*1024}")
        r.append("s_nop 0")
        r.append(f"buffer_load_dwordx4 v{T+k}, s[12:15], 0 offen lds")
    return r

def e_load(par, meta):
    r = []
    if NOMEM:
        r.append(f"v_and_b32 v{meta}, 0x3fff, v{meta}")
    r.append(f"v_and_or_b32 v{T+6}, v{meta}, s40, v{H16}")
    r.append(f"buffer_load_dwordx4 {vr(EB[par],4)}, v{T+6}, s[16:19], 0 offen" + (os.environ.get("EPOL", "") if (par == 0 or not int(os.environ.get("EHALF", "0"))) else ""))
    return r

def a_reads(par):
    r = []
    for s in range(2):
        r.append(f"ds_read_b128 {vr(ST+4*s,4)}, v{T+7} offset:{16*s}")
    for s in range(4):
        r.append(f"ds_read_b128 {vr(AX+4*s,4)}, v{VAX+s} offset:{par*4096}")
    return r

PRIO = int(os.environ.get("PRIO", "1"))
PTH = [int(x) for x in os.environ.get("PTH", "10,7,4").split(",")]
def prio_code(par):
    r = []
    for lim, p in zip(PTH, (2, 1, 0)):
        r += [f"s_cmp_lt_u32 s36, {lim}",
              f"s_cbranch_scc0 L_pr_done_{par}",
              f"s_setprio {p}"]
    r += [f"L_pr_done_{par}:"]
    return r


def gen_role1():
    FH = STG; FW = STG + 8256; FS = STG + 8448
    I(f"s_cmp_ge_u32 s2, {NC}")
    I("s_cbranch_scc1 L_f_done")
    I("v_lshlrev_b32 v1, 4, v0")
    for i in range(4):
        I(f"v_mov_b32 v{2+i}, 0")
    I(f"v_add_u32 v64, {FH}, v1")
    I("ds_write_b128 v64, v[2:5]")
    I(f"v_mov_b32 v6, {CH}")
    I(f"v_mov_b32 v7, {FH+8192}")
    I("ds_write_b32 v7, v6")
    I("v_lshlrev_b32 v65, 5, v0")
    I(f"s_mul_i32 s60, s2, {CH*4}")
    I(f"s_mov_b32 s61, {M25}")
    I("s_movk_i32 s62, 3125")
    I(f"s_mul_i32 s63, s2, {CH*32}")
    I("s_waitcnt lgkmcnt(0)")
    srd(12, 52, 53, E * 4)
    srd(16, 54, 55, E * 4)
    srd(24, 10, 11, 0x1000000)
    I(f"v_cmp_gt_u32 vcc, {CH//8}, v0")
    I("s_and_saveexec_b64 s[50:51], vcc")
    I("s_cbranch_execz L_f_noload")
    I("buffer_load_dwordx4 v[8:11], v65, s[16:19], s60 offen")
    I("buffer_load_dwordx4 v[12:15], v65, s[16:19], s60 offen offset:16")
    I("buffer_load_dwordx4 v[16:19], v65, s[12:15], s60 offen")
    I("buffer_load_dwordx4 v[20:23], v65, s[12:15], s60 offen offset:16")
    L("L_f_noload")
    I("s_mov_b64 exec, -1")
    I("s_barrier")
    I("s_and_saveexec_b64 s[50:51], vcc")
    I("s_cbranch_execz L_f_nohist")
    I("v_mov_b32 v6, 1")
    I("v_mov_b32 v5, 0x7f")
    I("v_lshl_add_u32 v7, v0, 8, s63")
    I("s_waitcnt vmcnt(2)")
    for i in range(8):
        I(f"v_mul_hi_u32 v{24+i}, v{8+i}, s61")
    for i in range(8):
        I(f"v_lshlrev_b32 v{32+i}, 2, v{24+i}")
    for i in range(8):
        I(f"v_add_u32 v{32+i}, {FH}, v{32+i}")
    for i in range(8):
        I(f"ds_add_rtn_u32 v{40+i}, v{32+i}, v6")
    for i in range(8):
        I(f"v_mad_u32_u24 v{72+i}, v{24+i}, s62, v5")
    for i in range(8):
        I(f"v_lshrrev_b32 v{72+i}, 7, v{72+i}")
    for i in range(8):
        I(f"v_sub_u32 v{72+i}, v{8+i}, v{72+i}")
    for i in range(8):
        I(f"v_lshlrev_b32 v{24+i}, 29, v{24+i}")
    for i in range(8):
        I(f"v_or3_b32 v{49+2*i}, v{24+i}, v7, v{72+i}")
    for i in range(1, 8):
        I(f"v_add_u32 v{49+2*i}, {32*i}, v{49+2*i}")
    I("s_waitcnt vmcnt(0)")
    for i in range(8):
        I(f"v_lshlrev_b32 v{48+2*i}, 7, v{16+i}")
    L("L_f_nohist")
    I("s_mov_b64 exec, -1")
    I("s_waitcnt lgkmcnt(0)")
    I("s_barrier")
    I("ds_read_b128 v[8:11], v64")
    I("s_waitcnt lgkmcnt(0)")
    I("v_add_u32 v12, v8, v9")
    I("v_add_u32 v13, v12, v10")
    I("v_add_u32 v14, v13, v11")
    I("v_mov_b32 v15, v14")
    wave_scan([15])
    I("s_lshl_b32 s46, s3, 2")
    I(f"s_add_u32 s46, s46, {FW}")
    I("v_mov_b32 v16, s46")
    I("s_mov_b32 exec_lo, 0")
    I("s_mov_b32 exec_hi, 0x80000000")
    I("ds_write_b32 v16, v15")
    I("s_mov_b64 exec, -1")
    I("v_and_b32 v16, 7, v0")
    I("v_lshlrev_b32 v16, 2, v16")
    I(f"v_add_u32 v16, {FW}, v16")
    I("s_waitcnt lgkmcnt(0)")
    I("s_barrier")
    I("ds_read_b32 v17, v16")
    I("s_waitcnt lgkmcnt(0)")
    I("v_mov_b32 v18, v17")
    I("s_nop 1")
    for sh in (1, 2, 4):
        I(f"v_add_u32_dpp v18, v18, v18 row_shr:{sh} row_mask:0xf bank_mask:0xf")
        I("s_nop 1")
    I("v_sub_u32 v18, v18, v17")
    I("s_nop 0")
    I("v_readlane_b32 s46, v18, s3")
    I("v_sub_u32 v15, v15, v14")
    I("s_nop 1")
    I("v_add_u32 v20, s46, v15")
    I("v_add_u32 v21, v20, v8")
    I("v_add_u32 v22, v20, v12")
    I("v_add_u32 v23, v20, v13")
    I("ds_write_b128 v64, v[20:23]")
    I("s_waitcnt lgkmcnt(0)")
    I("s_barrier")
    I("s_cmp_lt_u32 s3, 4")
    I("s_cbranch_scc1 L_f_notab")
    I("v_subrev_u32 v15, 0x100, v0")
    I("v_lshlrev_b32 v14, 5, v15")
    I(f"v_add_u32 v14, {FH}, v14")
    I("ds_read_b128 v[8:11], v14")
    I("ds_read_b128 v[16:19], v14 offset:16")
    I("ds_read_b32 v12, v14 offset:32")
    I("v_lshrrev_b32 v14, 2, v15")
    I("v_lshlrev_b32 v14, 14, v14")
    I("v_and_b32 v13, 3, v15")
    I("v_lshl_add_u32 v14, v13, 4, v14")
    I("s_lshl_b32 s46, s2, 6")
    I(f"s_add_u32 s46, s46, {WS_TAB}")
    I("s_waitcnt lgkmcnt(0)")
    I("v_lshl_or_b32 v8, v9, 16, v8")
    I("v_lshl_or_b32 v9, v11, 16, v10")
    I("v_lshl_or_b32 v10, v17, 16, v16")
    I("v_lshl_or_b32 v11, v19, 16, v18")
    I("v_and_b32 v13, 15, v12")
    I("v_lshl_or_b32 v8, v13, 12, v8")
    I("v_lshrrev_b32 v13, 4, v12")
    I("v_lshl_or_b32 v8, v13, 28, v8")
    I("v_lshrrev_b32 v13, 8, v12")
    I("v_lshl_or_b32 v9, v13, 12, v9")
    I("buffer_store_dwordx4 v[8:11], v14, s[24:27], s46 offen sc1")
    L("L_f_notab")
    I("s_and_saveexec_b64 s[50:51], vcc")
    I("s_cbranch_execz L_f_noscat")
    for i in range(8):
        I(f"ds_read_b32 v{72+i}, v{32+i}")
    for i in range(8):
        I(f"s_waitcnt lgkmcnt({7-i})")
        I(f"v_add_lshl_u32 v{72+i}, v{72+i}, v{40+i}, 3")
    for i in range(8):
        I(f"v_add_u32 v{72+i}, {FS}, v{72+i}")
    for i in range(8):
        I(f"ds_write_b64 v{72+i}, v[{48+2*i}:{49+2*i}]")
    L("L_f_noscat")
    I("s_mov_b64 exec, -1")
    I("s_waitcnt lgkmcnt(0)")
    I("s_barrier")
    I(f"s_mul_i32 s46, s2, {RECROW}")
    I(f"s_add_u32 s46, s46, {WS_REC}")
    I(f"v_add_u32 v64, {FS}, v1")
    for k in range(4):
        I(f"ds_read_b128 v[{16+4*k}:{19+4*k}], v64 offset:{8192*k}")
    for k in range(4):
        if k == 3:
            I("s_cmp_lg_u32 s3, 0")
            I("s_cbranch_scc1 L_f_st3")
        I(f"s_waitcnt lgkmcnt({3-k})")
        I(f"s_add_u32 s60, s46, {8192*k}")
        I(f"buffer_store_dwordx4 v[{16+4*k}:{19+4*k}], v1, s[24:27], s60 offen sc1")
    L("L_f_st3")
    I("s_waitcnt vmcnt(0) lgkmcnt(0)")
    I("s_barrier")
    I("s_cmp_lg_u32 s3, 0")
    I("s_cbranch_scc1 L_f_done")
    I("v_mov_b32 v2, 1")
    I("v_mov_b32 v3, s2")
    I("s_mov_b64 exec, 1")
    I("buffer_store_byte v2, v3, s[64:67], 0 offen sc1")
    I("s_mov_b64 exec, -1")
    L("L_f_done")

def gen_wprep():
    I("v_and_b32 v2, 31, v67")
    I("v_lshlrev_b32 v2, 1, v2")
    I("v_and_b32 v3, 32, v67")
    I("v_lshl_add_u32 v2, v3, 5, v2")
    for k in range(5):
        I(f"s_add_u32 s46, s3, {8*k}")
        if k == 4:
            I("s_min_u32 s46, s46, 33")
        I("s_cmp_lt_u32 s46, 26")
        I("s_cselect_b32 s28, s90, s88")
        I("s_cselect_b32 s29, s91, s89")
        I("s_cselect_b32 s60, 18, 26")
        I("s_cmp_lt_u32 s46, 18")
        I("s_cselect_b32 s28, s58, s28")
        I("s_cselect_b32 s29, s59, s29")
        I("s_cselect_b32 s60, 0, s60")
        I(f"s_mov_b32 s30, {64*128}")
        I(f"s_cselect_b32 s30, {144*128}, s30")
        I("s_mov_b32 s31, 0x00020000")
        I("s_sub_u32 s60, s46, s60")
        I("s_lshr_b32 s61, s60, 1")
        I("s_lshl_b32 s61, s61, 11")
        I("s_and_b32 s60, s60, 1")
        I("s_lshl_b32 s60, s60, 6")
        I("s_add_u32 s61, s61, s60")
        for j in range(8):
            I(f"buffer_load_ushort v{12+8*k+j}, v2, s[28:31], s61 offen offset:{128*j}")

def gen_wpack():
    for k in range(5):
        I(f"s_add_u32 s46, s3, {8*k}")
        if k == 4:
            I("s_min_u32 s46, s46, 33")
        I(f"s_waitcnt vmcnt({8*(4-k)})")
        b = 12 + 8 * k
        if PRESCALE:
            I("s_sub_u32 s60, s46, 8")
            I("s_cmp_lt_u32 s60, 10")
            I(f"s_cselect_b32 s61, {NEGLOG2E}, 1.0")
            for j in range(8):
                I(f"v_lshlrev_b32 v{b+j}, 16, v{b+j}")
            for j in range(8):
                I(f"v_mul_f32 v{b+j}, s61, v{b+j}")
            for j in range(4):
                I(f"v_cvt_pk_bf16_f32 v{52+j}, v{b+2*j}, v{b+2*j+1}")
        else:
            for j in range(4):
                I(f"v_lshl_or_b32 v{52+j}, v{b+2*j+1}, 16, v{b+2*j}")
        I("s_lshl_b32 s46, s46, 10")
        I("v_add_u32 v56, s46, v70")
        I(f"ds_write_b128 v56, v[52:55] offset:{WSTG}")

def gen_wait():
    I("s_cmp_lg_u32 s3, 0")
    I("s_cbranch_scc1 L_w_done")
    I("v_lshlrev_b32 v2, 2, v67")
    I("v_mov_b32 v3, 0x01010101")
    I("v_cmp_eq_u32 vcc, 62, v67")
    I("v_mov_b32 v4, 0x00000101")
    I("s_nop 0")
    I("v_cndmask_b32 v3, v3, v4, vcc")
    I("v_cmp_eq_u32 vcc, 63, v67")
    I("s_mov_b32 s60, 0")
    I("s_nop 0")
    I("v_cndmask_b32 v3, v3, 0, vcc")
    L("L_w_loop")
    I("buffer_load_dword v4, v2, s[64:67], 0 offen sc1")
    I("s_add_u32 s60, s60, 1")
    I("s_waitcnt vmcnt(0)")
    I("v_cmp_ne_u32 vcc, v3, v4")
    I("s_cmp_gt_u32 s60, 0x40000")
    I("s_cbranch_scc1 L_w_done")
    I("s_cmp_eq_u64 vcc, 0")
    I("s_cbranch_scc1 L_w_done")
    I("s_sleep 1")
    I("s_branch L_w_loop")
    L("L_w_done")
    I("s_waitcnt lgkmcnt(0)")
    I("s_barrier")

def gen_round_head():
    L("L_round")
    I("s_lshl_b32 s46, s3, 5")
    I("v_lshrrev_b32 v66, 1, v67")
    I("v_add_u32 v66, s46, v66")
    I("v_lshlrev_b32 v65, 6, v66")
    I("buffer_load_dwordx4 v[48:51], v65, s[20:23], 0 offen" + SC)

def gen_k2():
    emit(f".globl {MAIN}")
    emit(".p2align 8")
    emit(f".type {MAIN},@function")
    L(MAIN)
    I("s_cmp_ge_u32 s2, 256")
    I("s_cbranch_scc1 L_k2_end")
    I("s_load_dwordx2 s[10:11], s[0:1], 72")
    I("s_load_dwordx4 s[4:7], s[0:1], 0")
    I("s_load_dwordx2 s[8:9], s[0:1], 56")
    if FUSED:
        I("s_load_dwordx4 s[52:55], s[0:1], 16")
        I("s_load_dwordx4 s[88:91], s[0:1], 32")
        I("s_load_dwordx2 s[58:59], s[0:1], 48")
        I("s_load_dwordx2 s[64:65], s[0:1], 64")
    I("s_and_b32 s38, s2, 7")
    I("s_lshr_b32 s39, s2, 3")
    I("s_lshl_b32 s32, s38, 5")
    I("s_add_u32 s32, s32, s39")
    stamp(0)
    if STAMP:
        I("s_memrealtime s[86:87]")
    I("v_lshrrev_b32 v1, 6, v0")
    I("v_and_b32 v67, 63, v0")
    I("v_readfirstlane_b32 s3, v1")
    I("s_mov_b32 s33, 0")
    I(f"s_movk_i32 s34, {NC}")
    I("s_mov_b32 s47, 1")
    I("s_lshr_b32 s48, s32, 2")
    I("s_lshl_b32 s48, s48, 14")
    I("s_and_b32 s46, s32, 3")
    I("s_lshl_b32 s46, s46, 4")
    I("s_add_u32 s48, s48, s46")
    I(f"s_add_u32 s48, s48, {WS_TAB}")
    I("s_waitcnt lgkmcnt(0)")
    I("s_add_u32 s20, s10, s48")
    I("s_addc_u32 s21, s11, 0")
    I(f"s_mov_b32 s22, {(NC-1)*64+16}")
    I("s_mov_b32 s23, 0x00020000")
    if FUSED:
        I("s_movk_i32 s66, 256")
        I("s_mov_b32 s67, 0x00020000")
        gen_role1()
        I("v_lshlrev_b32 v70, 4, v67")
        gen_wprep()
    else:
        gen_round_head()
        I("s_cmp_eq_u32 s47, 0")
        I("s_cbranch_scc1 L_noconst")
        srd(28, 10, 11, 34 * 1024)
        I("v_lshlrev_b32 v70, 4, v67")
        for k in range(5):
            I(f"s_add_u32 s46, s3, {8*k}")
            if k == 4:
                I("s_min_u32 s46, s46, 33")
            I("s_lshl_b32 s46, s46, 10")
            I(f"s_add_u32 m0, s46, {WSTG}")
            I("s_nop 0")
            I("buffer_load_dwordx4 v70, s[28:31], s46 offen lds")
    srd(12, 4, 5, N * 128)
    if PERM:
        srd(16, 10, 11, E * 32, WS_EAS)
    else:
        srd(16, 6, 7, E * 32)
    srd(24, 10, 11, NC * RECROW, WS_REC)
    I(f"s_mov_b32 s40, {EMASK}")
    I("s_movk_i32 s42, 80")
    I(f"s_mov_b32 s43, {NEGLOG2E}")
    I(f"s_lshl_b32 s37, s3, 13")
    I(f"s_add_u32 s37, s37, {STG}")
    I("v_and_b32 v3, 31, v67")
    I("v_lshrrev_b32 v4, 5, v67")
    I("v_bfe_u32 v5, v3, 1, 3")
    I("v_xor_b32 v5, v5, v4")
    I("v_lshlrev_b32 v5, 4, v5")
    I("v_lshl_add_u32 v5, v3, 7, v5")
    I(f"v_add_u32 v{VAX}, s37, v5")
    for s in range(1, 4):
        I(f"v_xor_b32 v6, {32*s}, v5")
        I(f"v_add_u32 v{VAX+s}, s37, v6")
    I("v_lshrrev_b32 v5, 4, v67")
    I("v_and_b32 v6, 7, v67")
    I("v_xor_b32 v5, v5, v6")
    I(f"v_lshlrev_b32 v{PC}, 4, v5")
    I(f"v_lshlrev_b32 v{H16}, 4, v4")
    I(f"s_mul_i32 s46, s3, {SMW}")
    I(f"s_add_u32 s46, s46, {SM}")
    I("v_lshrrev_b32 v5, 4, v3")
    I("v_lshlrev_b32 v5, 5, v5")
    I("v_bfe_u32 v6, v3, 2, 1")
    I("v_lshl_add_u32 v5, v6, 4, v5")
    I("v_bfe_u32 v6, v3, 3, 1")
    I("v_lshl_add_u32 v5, v6, 3, v5")
    I("v_and_b32 v6, 3, v3")
    I("v_lshl_add_u32 v5, v6, 1, v5")
    I(f"v_add_u32 v{K1C}, s46, v5")
    I(f"v_add_u32 v6, s46, v{H16}")
    I(f"v_mad_u32_u24 v{SRA}, v3, s42, v6")
    I("v_lshlrev_b32 v6, 5, v4")
    I(f"v_add_u32 v{OHC}, {OH}, v6")
    I(f"v_mov_b32 v{ONE}, 1.0")
    for i in range(4):
        I(f"v_mov_b32 v{8+i}, 0")
    I("v_add_u32 v7, s46, v70")
    I("ds_write_b128 v7, v[8:11]")
    I("v_cmp_gt_u32 vcc, 61, v67")
    I("s_and_saveexec_b64 s[50:51], vcc")
    I("ds_write_b128 v7, v[8:11] offset:1024")
    I("s_mov_b64 exec, -1")
    I("s_cmp_lg_u32 s3, 0")
    I("s_cbranch_scc1 L_noconst")
    I(f"v_add_u32 v7, {OH}, v70")
    I("ds_write_b128 v7, v[8:11]")
    I("ds_write_b128 v7, v[8:11] offset:1024")
    I("s_mov_b32 exec_hi, 0")
    I("ds_write_b128 v7, v[8:11] offset:2048")
    I("v_bfe_u32 v6, v3, 2, 1")
    I("v_lshlrev_b32 v6, 5, v6")
    I("v_lshrrev_b32 v7, 4, v3")
    I("v_lshl_add_u32 v6, v7, 4, v6")
    I("v_and_b32 v7, 15, v5")
    I("v_add_u32 v6, v6, v7")
    I("v_mad_u32_u24 v6, v3, s42, v6")
    I(f"v_add_u32 v6, {OH}, v6")
    I(f"ds_write_b16_d16_hi v6, v{ONE}")
    I("s_mov_b64 exec, -1")
    L("L_noconst")
    if FUSED:
        gen_wpack()
        gen_wait()
        gen_round_head()
    I("s_waitcnt vmcnt(0)")
    stamp(1)
    I("v_bfe_u32 v52, v48, 12, 4")
    I("v_lshrrev_b32 v53, 28, v48")
    I("v_lshl_or_b32 v52, v53, 4, v52")
    I("v_bfe_u32 v53, v49, 12, 4")
    I("v_lshl_or_b32 v52, v53, 8, v52")
    I("v_and_b32 v48, 0x0fff0fff, v48")
    I("v_and_b32 v49, 0xffff0fff, v49")
    I("v_and_b32 v53, 0xffff, v48")
    I("v_subrev_u32 v54, s33, v66")
    I("s_sub_u32 s46, s34, s33")
    I("v_cmp_gt_u32 s[52:53], s46, v54")
    I("v_and_b32 v55, 1, v67")
    I("v_lshl_add_u32 v64, v55, 1, v53")
    I("v_cndmask_b32 v54, v53, v52, s[52:53]")
    I(f"s_movk_i32 s46, {RECROW}")
    I("v_mul_u32_u24 v65, s46, v66")
    I("v_lshl_add_u32 v65, v64, 3, v65")
    I("v_sub_u32 v68, v54, v64")
    def rec_loads(tag):
        for i in range(8):
            I(f"v_cmpx_lt_i32 vcc, {4*i}, v68")
            I("s_nop 0")
            I(f"s_cbranch_execz L_rl_{tag}")
            I(f"buffer_load_dwordx4 v[{4*i}:{4*i+3}], v65, s[24:27], 0 offen offset:{32*i}" + SC)
        L(f"L_rl_{tag}")
        I("s_mov_b64 exec, -1")
    rec_loads("a")
    if K2PF:
        I("s_cmp_eq_u32 s47, 0")
        I("s_cbranch_scc1 L_nopf")
        I("s_lshl_b32 s46, s39, 3")
        I("s_add_u32 s46, s46, s3")
        I(f"s_mul_i32 s46, s46, {K2PF*64*128}")
        I("v_lshlrev_b32 v71, 7, v67")
        for k in range(K2PF):
            I(f"s_add_u32 s50, s46, {k*8192}")
            I(f"buffer_load_dword v{T+k}, v71, s[12:15], s50 offen")
        L("L_nopf")
    I("v_cmp_eq_u32 vcc, 0, v55")
    I("s_and_b64 vcc, vcc, s[52:53]")
    I("v_alignbit_b32 v72, v49, v48, 16")
    I("v_alignbit_b32 v73, v50, v49, 16")
    I("v_alignbit_b32 v74, v51, v50, 16")
    I("v_alignbit_b32 v75, v52, v51, 16")
    for i in range(4):
        I(f"v_sub_u32 v{72+i}, v{72+i}, v{48+i}")
    I("v_sub_u32 v76, v52, v53")
    for i in range(5):
        I(f"v_cndmask_b32 v{72+i}, 0, v{72+i}, vcc")
    for i in range(5):
        I(f"v_mov_b32 v{80+i}, v{72+i}")
    wave_scan([80, 81, 82, 83, 84])
    I("s_lshl_b32 s46, s3, 5")
    I(f"s_add_u32 s46, s46, {WTOT}")
    I("v_mov_b32 v69, s46")
    I("s_mov_b32 exec_lo, 0")
    I("s_mov_b32 exec_hi, 0x80000000")
    I("ds_write_b128 v69, v[80:83]")
    I("ds_write_b32 v69, v84 offset:16")
    I("s_mov_b64 exec, -1")
    I("v_and_b32 v69, 7, v67")
    I("v_lshlrev_b32 v69, 5, v69")
    I(f"v_add_u32 v69, {WTOT}, v69")
    I("s_waitcnt lgkmcnt(0)")
    I("s_barrier")
    stamp(2)
    I("ds_read_b128 v[88:91], v69")
    I("ds_read_b32 v92, v69 offset:16")
    I("s_waitcnt lgkmcnt(0)")
    I("s_cmp_eq_u32 s47, 0")
    I("s_cbranch_scc1 L_now")
    for f in range(18):
        I(f"ds_read_b128 {ar(4*f,4)}, v70 offset:{WSTG+1024*(8+f)}")
    L("L_now")
    for i in range(5):
        I(f"v_mov_b32 v{56+i}, v{88+i}")
    I("s_nop 1")
    for sh in (1, 2, 4):
        for i in range(5):
            I(f"v_add_u32_dpp v{56+i}, v{56+i}, v{56+i} row_shr:{sh} row_mask:0xf bank_mask:0xf")
    I("s_nop 1")
    for i in range(4):
        I(f"v_sub_u32 v{88+i}, v{56+i}, v{88+i}")
    I("v_readlane_b32 s60, v60, 7")
    for i in range(4):
        I(f"v_readlane_b32 s{56+i}, v{56+i}, 7")
    for i in range(4):
        I(f"v_readlane_b32 s{52+i}, v{88+i}, s3")
    I(f"s_cmp_le_u32 s60, {TLIM}")
    I("s_cbranch_scc1 L_fits")
    I("s_sub_u32 s46, s34, s33")
    I("s_cmp_eq_u32 s46, 1")
    I("s_cselect_b32 s34, s34, s33")
    for i in range(4):
        I(f"s_mov_b32 s{56+i}, 0")
    I("v_mov_b32 v68, 0")
    L("L_fits")
    I("s_cmp_eq_u32 s47, 0")
    I("s_cbranch_scc1 L_paired")
    if PAIR:
        for i in range(4):
            I(f"v_mov_b32 v{56+i}, s{56+i}")
        I("v_and_b32 v60, 7, v67")
        I("v_lshrrev_b32 v61, 3, v67")
        for (src, dst) in ((60, 62), (61, 63)):
            I(f"v_bfe_u32 v93, v{src}, 1, 1")
            I(f"v_cmp_eq_u32 vcc, 1, v93")
            I(f"v_bfe_u32 v93, v{src}, 2, 1")
            I(f"v_cmp_eq_u32 s[50:51], 1, v93")
            I("v_cndmask_b32 v94, v56, v57, vcc")
            I("v_cndmask_b32 v95, v58, v59, vcc")
            I(f"v_and_b32 v93, 1, v{src}")
            I("v_cndmask_b32 v94, v94, v95, s[50:51]")
            I("v_lshlrev_b32 v93, 4, v93")
            I("v_bfe_u32 v94, v94, v93, 16")
            I(f"v_lshl_add_u32 v{dst}, v94, 3, v{src}")
        I("v_cmp_gt_u32 vcc, v62, v63")
        I("s_sub_u32 s64, 11, s3")
        I("s_cmp_lt_u32 s3, 4")
        I("s_cselect_b32 s64, s3, s64")
        I("s_mov_b32 s41, 0")
        for i in range(8):
            I(f"s_bfe_u32 s65, {'vcc_lo' if i < 4 else 'vcc_hi'}, {(8*(i%4)) | (8 << 16)}")
            I("s_bcnt1_i32_b32 s65, s65")
            I("s_cmp_eq_u32 s65, s64")
            I(f"s_cselect_b32 s41, {i}, s41")
    else:
        I("s_mov_b32 s41, s3")
    L("L_paired")
    I("s_mov_b32 s61, 0")
    I("s_mov_b32 s62, 0")
    I("s_mov_b32 s63, 0")
    for i in range(4):
        I(f"s_add_u32 s64, s{56+i}, 0x005f005f")
        I("s_and_b32 s64, s64, 0xffe0ffe0")
        I("s_and_b32 s65, s64, 0xffff")
        I("s_lshr_b32 s66, s64, 16")
        I("s_add_u32 s67, s61, s65")
        I(f"s_and_b32 s68, s{56+i}, 0xffff")
        I(f"s_cmp_eq_u32 s41, {2*i}")
        I("s_cselect_b32 s62, s61, s62")
        I("s_cselect_b32 s63, s68, s63")
        I(f"s_lshr_b32 s68, s{56+i}, 16")
        I(f"s_cmp_eq_u32 s41, {2*i+1}")
        I("s_cselect_b32 s62, s67, s62")
        I("s_cselect_b32 s63, s68, s63")
        I("s_lshl_b32 s68, s67, 16")
        I("s_or_b32 s68, s68, s61")
        I(f"s_add_u32 s{52+i}, s{52+i}, s68")
        I(f"s_add_u32 s{52+i}, s{52+i}, 0x10001000")
        I("s_add_u32 s61, s67, s66")
    for i in range(4):
        I(f"v_sub_u32 v{80+i}, v{80+i}, v{72+i}")
    for i in range(4):
        I(f"v_add_u32 v{80+i}, s{52+i}, v{80+i}")
    for i in range(4):
        I(f"v_sub_u32 v{80+i}, v{80+i}, v{48+i}")
    I("v_lshlrev_b32 v69, 4, v66")
    I(f"v_add_u32 v69, {BASET}, v69")
    I("s_mov_b32 exec_lo, 0x55555555")
    I("s_mov_b32 exec_hi, 0x55555555")
    I("ds_write_b128 v69, v[80:83]")
    I("s_mov_b64 exec, -1")
    I("s_add_u32 s64, s63, 31")
    I("s_lshr_b32 s35, s64, 5")
    I("s_lshl_b32 s64, s35, 5")
    I("s_sub_u32 s64, s64, s63")
    I("s_add_u32 s65, s62, s63")
    I("v_add_lshl_u32 v72, v67, s65, 2")
    I("v_mov_b32 v73, 0xffffff00")
    I(f"v_mov_b32 v74, {EMASK}")
    I(f"ds_write2st64_b32 v72, v73, v74 offset0:{LIST_S//256} offset1:{LIST_M//256}")
    I("v_cmp_gt_u32 vcc, s64, v67")
    I("s_and_saveexec_b64 s[50:51], vcc")
    I(f"ds_write2st64_b32 v72, v73, v74 offset0:{LIST_S//256+1} offset1:{LIST_M//256+1}")
    I("s_mov_b64 exec, -1")
    I("s_lshl_b32 s64, s62, 2")
    I("v_lshrrev_b32 v72, 3, v67")
    I("v_lshlrev_b32 v72, 4, v72")
    I(f"s_add_u32 s65, s64, {LIST_S}")
    I(f"v_add_u32 v{LSA}, s65, v72")
    I("v_and_b32 v72, 7, v67")
    I("v_bfe_u32 v73, v67, 3, 2")
    I("v_lshl_add_u32 v72, v72, 2, v73")
    I("v_lshlrev_b32 v72, 2, v72")
    I(f"s_add_u32 s65, s64, {LIST_M}")
    I(f"v_add_u32 v{LMA}, s65, v72")
    I("s_cmp_eq_u32 s47, 0")
    I("s_cbranch_scc1 L_scat")
    for i in range(16):
        I(f"v_mov_b32 v{80+i}, 0")
    I("v_and_b32 v72, 31, v67")
    I(f"v_lshl_add_u32 v72, v72, 7, v{H16}")
    I("s_lshl_b32 s46, s32, 3")
    I("s_add_u32 s46, s46, s41")
    I("s_mul_i32 s46, s46, 3125")
    I("s_add_u32 s49, s46, 127")
    I("s_lshr_b32 s49, s49, 7")
    I(f"s_add_u32 s44, s46, {3125+127}")
    I("s_lshr_b32 s44, s44, 7")
    I("s_sub_u32 s44, s44, s49")
    I("s_lshl_b32 s49, s49, 7")
    I("s_bfm_b32 s46, s44, 0")
    I("s_mov_b32 exec_lo, s46")
    I("s_mov_b32 exec_hi, s46")
    for s in range(4):
        I(f"buffer_load_dwordx4 {vr(80+4*s,4)}, v72, s[12:15], s49 offen offset:{32*s}")
    I("s_mov_b64 exec, -1")
    I(f"s_waitcnt vmcnt({4+K2PF})")
    I("s_branch L_scat1")
    L("L_scat")
    I("s_waitcnt vmcnt(0)")
    L("L_scat1")
    stamp(3)
    o0 = (LIST_S - 16384) // 256; o1 = (LIST_M - 16384) // 256
    for half in range(2):
        R = range(8 * half, 8 * half + 8)
        if half:
            I("v_cmpx_lt_i32 vcc, 16, v68")
            I("s_nop 0")
            I("s_cbranch_execz L_scat_done")
        for r in R:
            I(f"v_lshrrev_b32 v{32+r}, 28, v{2*r+1}")
        for r in R:
            I(f"v_add_u32 v{32+r}, v{32+r}, v69")
        for r in R:
            I(f"ds_read_u16 v{32+r}, v{32+r}")
        for r in R:
            i, k = r // 2, r % 2
            I(f"v_cmpx_lt_i32 vcc, {4*i+k}, v68")
            I("s_waitcnt lgkmcnt(7)")
            I("s_cbranch_execz L_scat_done")
            I(f"v_add3_u32 v{32+r}, v{32+r}, v64, {4*i+k}")
            I(f"v_lshlrev_b32 v{32+r}, 2, v{32+r}")
            I(f"ds_write2st64_b32 v{32+r}, v{2*r}, v{2*r+1} offset0:{o0} offset1:{o1}")
    I("v_cmpx_lt_i32 vcc, 32, v68")
    I("s_nop 0")
    I("s_cbranch_execz L_scat_done")
    I("s_mov_b64 exec, -1")
    I("v_add_u32 v64, 32, v64")
    I("v_subrev_u32 v68, 32, v68")
    I("v_add_u32 v65, 256, v65")
    I("s_waitcnt lgkmcnt(0)")
    rec_loads("b")
    I("s_branch L_scat")
    L("L_scat_done")
    I("s_mov_b64 exec, -1")
    I("s_waitcnt lgkmcnt(0)")
    I("s_barrier")
    stamp(4)
    I(f"ds_read_b128 {vr(T,4)}, v{LSA}")
    I(f"ds_read2_b32 {vr(T+4,2)}, v{LMA} offset0:0 offset1:32")
    I("s_waitcnt lgkmcnt(0)")
    put(x_dma(0))
    put(e_load(0, T + 4))
    I(f"ds_read_b128 {vr(T,4)}, v{LSA} offset:128")
    I("s_cmp_eq_u32 s47, 0")
    I("s_cbranch_scc1 L_noinit")
    for f in range(8):
        I(f"ds_read_b128 {vr(4*f,4)}, v70 offset:{WSTG+1024*f}")
    I("s_waitcnt vmcnt(5) lgkmcnt(0)")
    for c in range(2):
        d = vr(32 + 16 * c, 16)
        for s in range(4):
            I(mfma(d, vr(80 + 4 * s, 4), vr((2 * s + c) * 4, 4), "0" if s == 0 else d))
    for f in range(8):
        I(f"ds_read_b128 {vr(4*f,4)}, v70 offset:{WSTG+1024*(26+f)}")
    I("s_nop 7")
    if PRESCALE:
        for i in range(32):
            I(f"v_mul_f32 v{32+i}, s43, v{32+i}")
    I("s_waitcnt lgkmcnt(0)")
    k = 0
    for c in range(2):
        a = ar(A_AGG + 16 * c, 16)
        for s in range(4):
            I(mfma(a, vr(80 + 4 * s, 4), vr((2 * s + c) * 4, 4), "0" if s == 0 else a))
            for p in (k, k + 1):
                I(f"v_cvt_pk_bf16_f32 v{64+p}, v{32+2*p}, v{32+2*p+1}")
            k += 2
    for c in range(2):
        for p in range(8):
            I(f"v_accvgpr_write_b32 a{xa(p//4, c) + p%4}, v{64+8*c+p}")
    I("s_mov_b32 s47, 0")
    L("L_noinit")
    I("s_cmp_eq_u32 s35, 0")
    I("s_cbranch_scc1 L_round_end")
    I(f"v_and_b32 v{T+4}, 31, v{T+4}")
    I(f"v_mad_u32_u24 v{T+7}, v{T+4}, s42, v{OHC}")
    I(f"v_mad_u32_u24 v{SW}, v{T+4}, s42, v{K1C}")
    I(f"ds_write_b16_d16_hi v{SW}, v{ONE}")
    I("s_waitcnt lgkmcnt(0)")
    put(x_dma(1))
    put(e_load(1, T + 5))
    for i in range(8):
        I(f"v_mov_b32 v{G[1]+i}, 0")
    for i in range(8):
        I(f"v_mov_b32 v{S+i}, 0")
    I("s_waitcnt vmcnt(5)")
    put(a_reads(0))
    I(f"ds_read_b128 {vr(T,4)}, v{LSA} offset:256")
    I("s_mov_b32 s36, s35")
    if PRIO:
        I("s_setprio 3")
    stamp(5)
    m0 = mfma_group(0, 0)
    I(m0[0])
    I("s_waitcnt lgkmcnt(0)")
    I(m0[1])
    put(x_dma(0))
    put(m0[2:])
    I("s_nop 7")
    I("s_branch L_p1_0")
    L("L_loop")
    INLOOP[0] = True
    nv = len(valu_group(0))
    pos = [2 + (k * (nv - 4)) // 13 for k in range(13)]
    def sched(mf, va, inserts):
        pend = []
        mi = 0
        for i, v in enumerate(va):
            if mi < len(mf) and i == pos[mi]:
                put(inserts.get(('b', mi), []))
                I(mf[mi])
                put(inserts.get(('m', mi), []))
                pend += inserts.get(('s', mi), [])
                mi += 1
            I(v)
            if pend:
                put([pend.pop(0)])
        assert mi == len(mf)
        put(pend)
    def nonop(lst):
        return [x for x in lst if x != "s_nop 0"]
    for par in range(2):
        ins = {('b', 3): ["s_waitcnt lgkmcnt(1)"],
               ('m', 4): ["s_waitcnt lgkmcnt(0)"],
               ('s', 4): nonop(x_dma(par))}
        if PRIO:
            ins[('m', 0)] = prio_code(par)
        if int(os.environ.get("DUPH", "0")):
            ins[('s', 5)] = [mfma_group(0, par)[7]] + ["s_nop 0"] * 2 + [mfma_group(0, par)[8]] + ["s_nop 0"] * 2 + [mfma_group(0, par)[9]] + ["s_nop 0"] * 2 + [mfma_group(0, par)[10]]
        sched(agg_group(0) + mfma_group(0, par), valu_group(1), ins)
        L(f"L_p1_{par}")
        ins = {('m', 0): [f"ds_read2_b32 {vr(T+4,2)}, v{LMA} offset0:32 offset1:64"],
               ('s', 1): [f"ds_read_b128 {vr(S,4)}, v{SRA}",
                          f"ds_read_b128 {vr(S+4,4)}, v{SRA} offset:32",
                          f"ds_write_b16 v{SW}, v{ONE}"],
               ('m', 3): ["s_waitcnt lgkmcnt(3)"] + e_load(par, T + 5),
               ('s', 3): [f"v_and_b32 v{T+4}, 31, v{T+4}",
                          f"v_add_u32 v{LSA}, 128, v{LSA}",
                          f"v_mad_u32_u24 v{T+7}, v{T+4}, s42, v{OHC}",
                          f"v_mad_u32_u24 v{SW}, v{T+4}, s42, v{K1C}",
                          f"v_add_u32 v{LMA}, 128, v{LMA}",
                          f"ds_write_b16_d16_hi v{SW}, v{ONE}",
                          "s_sub_u32 s36, s36, 1"],
               ('m', 4): [f"v_mov_b32 v{T+6}, v{T+6}"] * int(os.environ.get("EXTRAV", "0")),
               ('m', 12): ["s_waitcnt vmcnt(5) lgkmcnt(0)"] + a_reads(par ^ 1) + [f"ds_read_b128 {vr(T,4)}, v{LSA} offset:256"]}
        sched(agg_group(1) + mfma_group(1, par), valu_group(0), ins)
        I("s_cmp_eq_u32 s36, 0")
        if par == 0:
            I("s_cbranch_scc1 L_tail")
        else:
            I("s_cbranch_scc0 L_loop")
    L("L_tail")
    INLOOP[0] = False
    I(f"ds_write_b16 v{SW}, v{ONE}")
    I("s_nop 0")
    put(agg_group(0))
    put(valu_group(1))
    I("s_nop 1")
    put(agg_group(1))
    L("L_round_end")
    I(f"s_cmp_ge_u32 s34, {NC}")
    I("s_cbranch_scc1 L_epi")
    I("s_mov_b32 s33, s34")
    I("s_add_u32 s34, s34, 1")
    I("v_mbcnt_lo_u32_b32 v67, -1, 0")
    I("v_mbcnt_hi_u32_b32 v67, -1, v67")
    I("s_waitcnt vmcnt(0) lgkmcnt(0)")
    I("s_barrier")
    I("s_branch L_round")
    L("L_epi")
    I("s_waitcnt vmcnt(0) lgkmcnt(0)")
    stamp(6)
    srd(28, 8, 9, N * 128)
    I("v_mbcnt_lo_u32_b32 v67, -1, 0")
    I("v_mbcnt_hi_u32_b32 v67, -1, v67")
    I("v_and_b32 v68, 31, v67")
    I("v_lshrrev_b32 v69, 5, v67")
    I("v_lshlrev_b32 v68, 1, v68")
    I("v_lshl_add_u32 v68, v69, 9, v68")
    I("v_add_u32 v68, s37, v68")
    I("v_lshlrev_b32 v70, 4, v67")
    I("v_add_u32 v71, s37, v70")
    I("s_nop 7")
    I("s_nop 7")
    regs = [i for i in range(13)]
    for c in range(2):
        for i in regs:
            I(f"v_accvgpr_read_b32 v{16*c+i}, a{A_AGG+16*c+i}")
    ids = [16 * c + i for c in range(2) for i in regs]
    for r in ids:
        I(f"v_mul_f32 v{32+r}, s43, v{r}")
    for r in ids:
        I(f"v_exp_f32 v{32+r}, v{32+r}")
    for r in ids:
        I(f"v_add_f32 v{32+r}, 1.0, v{32+r}")
    for r in ids:
        I(f"v_rcp_f32 v{32+r}, v{32+r}")
    for r in ids:
        I(f"v_mul_f32 v{r}, v{r}, v{32+r}")
    for i in regs:
        I(f"v_cvt_pk_bf16_f32 v{32+i}, v{i}, v{16+i}")
    for i in regs:
        row = 8 * (i >> 2) + (i & 3)
        I(f"ds_write_b16 v68, v{32+i} offset:{row*128}")
        I(f"ds_write_b16_d16_hi v68, v{32+i} offset:{row*128+64}")
    I("s_waitcnt lgkmcnt(0)")
    for k in range(4):
        I(f"ds_read_b128 {vr(4*k,4)}, v71 offset:{1024*k}")
    for k in range(3):
        I(f"s_waitcnt lgkmcnt({3-k})")
        I(f"buffer_store_dwordx4 {vr(4*k,4)}, v70, s[28:31], s49 offen offset:{1024*k}" + os.environ.get("OST", ""))
    I("s_cmp_lt_u32 s44, 25")
    I("s_cbranch_scc1 L_k2_fin")
    I("s_waitcnt lgkmcnt(0)")
    I("s_mov_b64 exec, 0xff")
    I(f"buffer_store_dwordx4 {vr(12,4)}, v70, s[28:31], s49 offen offset:3072" + os.environ.get("OST", ""))
    L("L_k2_fin")
    if STAMP:
        I("s_waitcnt vmcnt(0)")
        stamp(7)
        srd(28, 10, 11, 0x100000, 0x1000000)
        I("s_mov_b64 exec, 1")
        I("s_lshl_b32 s46, s2, 3")
        I("s_add_u32 s46, s46, s3")
        I("s_lshl_b32 s46, s46, 6")
        I("v_mov_b32 v0, 0")
        for k in range(8):
            I(f"v_mov_b32 v1, s{70+2*k}")
            I(f"buffer_store_dword v1, v0, s[28:31], s46 offen offset:{4*k}")
        I("v_mov_b32 v1, s35")
        I(f"buffer_store_dword v1, v0, s[28:31], s46 offen offset:32")
        I("s_getreg_b32 s47, hwreg(HW_REG_XCC_ID)")
        I("v_mov_b32 v1, s47")
        I(f"buffer_store_dword v1, v0, s[28:31], s46 offen offset:36")
        I("s_getreg_b32 s47, hwreg(HW_REG_HW_ID)")
        I("v_mov_b32 v1, s47")
        I(f"buffer_store_dword v1, v0, s[28:31], s46 offen offset:40")
        I("s_memrealtime s[50:51]")
        I("s_waitcnt lgkmcnt(0)")
        I("v_mov_b32 v1, s50")
        I(f"buffer_store_dword v1, v0, s[28:31], s46 offen offset:44")
        I("v_mov_b32 v1, s86")
        I(f"buffer_store_dword v1, v0, s[28:31], s46 offen offset:48")
    if RT >= 0:
        I("s_waitcnt vmcnt(0)")
        stamp(7)
        I("s_add_u32 s46, s2, s3")
        I("s_cmp_lg_u32 s46, 0")
        I("s_cbranch_scc1 L_k2_end")
        srd(28, 10, 11, 64, 0x1800000)
        I("s_mov_b64 exec, 1")
        I("v_mov_b32 v0, 0")
        I("v_mov_b32 v1, s70")
        I("v_mov_b32 v2, s72")
        I("buffer_store_dword v1, v0, s[28:31], 0 offen")
        I("buffer_store_dword v2, v0, s[28:31], 0 offen offset:4")
    L("L_k2_end")
    L("L_k2_last")
    I("s_endpgm")

def kd(name, vgpr, sgpr, accum):
    emit(f".amdhsa_kernel {name}")
    emit(f"  .amdhsa_next_free_vgpr {vgpr}")
    emit(f"  .amdhsa_next_free_sgpr {sgpr}")
    emit(f"  .amdhsa_accum_offset {accum}")
    emit("  .amdhsa_group_segment_fixed_size 0")
    emit("  .amdhsa_kernarg_size 80")
    emit("  .amdhsa_user_sgpr_count 2")
    emit("  .amdhsa_user_sgpr_kernarg_segment_ptr 1")
    emit("  .amdhsa_system_sgpr_workgroup_id_x 1")
    emit(".end_amdhsa_kernel")

def main():
    emit(HEADER.rstrip("\n"))
    if FUSED == 1:
        emit(f"; @launch grid=(256,1,1) block=(512,1,1) lds={K2_LDS}")
    elif FUSED == 2:
        emit(f"; @launch kernel=egc_main_kernel grid=(256,1,1) block=(512,1,1) lds={K2_LDS}")
    else:
        emit(f"; @launch kernel=egc_bin_kernel grid=({NC},1,1) block=(1024,1,1) lds={K1_LDS}")
        emit(f"; @launch kernel=egc_main_kernel grid=(256,1,1) block=(512,1,1) lds={K2_LDS}")
    emit('.amdgcn_target "amdgcn-amd-amdhsa--gfx950"')
    emit(".text")
    if not FUSED:
        gen_k1()
    gen_k2()
    emit('.section .rodata,"a"')
    if not FUSED:
        emit(".p2align 6")
        kd("egc_bin_kernel", 84 if PERM else 56, 96 if STAMP1 else 72, 84 if PERM else 56)
    emit(".p2align 6")
    kd(MAIN, 248, 96, 128)
    path = sys.argv[1] if len(sys.argv) > 1 else "standalone__edge_featured_mpnn_egc__graph.s"
    open(path, "w").write("\n".join(out) + "\n")

main()
```

```python
import sys, os

N = 50000; E = 800000
WN = 25; NWIN = 2048; NB = 256; CH = 3200; NC = 250
WS_WF = 0; WS_TAB = 0x10000; TABROW = 8192; WS_REC = 0x400000; RECROW = CH * 8
PRESCALE = int(os.environ.get('PRESCALE', '0')) if 'os' in globals() else 0
PERM = int(os.environ.get('PERM', '0'))
WS_EAS = 0x2000000
K1PF = int(os.environ.get('K1PF', '0'))
K2PF = int(os.environ.get('K2PF', '0'))
PAIR = int(os.environ.get('PAIR', '1'))
CODEPF = int(os.environ.get('CODEPF', '0'))
STAMP1 = int(os.environ.get('STAMP1', '0'))
FUSED = int(os.environ.get('FUSED', '0'))
SC = ' sc1' if FUSED else ''
MAIN = 'standalone__edge_featured_mpnn_egc__graph_kernel' if FUSED == 1 else 'egc_main_kernel'
TLBPF = int(os.environ.get('TLBPF', '0'))
M25 = 175921861
NEGLOG2E = 0xBFB8AA3B

import os
STAMP = int(os.environ.get("STAMP", "0"))
RT = int(os.environ.get("RT", "-1"))
def stamp(k):
    if RT >= 0 and k in (0, RT):
        r = 70 if k == 0 else 72
        I(f"s_memrealtime s[{r}:{r+1}]")
        I("s_waitcnt lgkmcnt(0)")
    if STAMP:
        I(f"s_memtime s[{70+2*k}:{71+2*k}]")
        I("s_waitcnt lgkmcnt(0)")
out = []
def emit(s=""):
    out.append(s)
DROP = os.environ.get("DROP", "").split(",")
INLOOP = [False]
def I(s):
    if INLOOP[0]:
        op = s.split()[0]
        if "mfma" in DROP and op.startswith("v_mfma"): return
        if "msparse" in DROP and op.startswith("v_mfma") and (s.split()[1].startswith("a[") or s.split()[2] in ("v[80:83],", "v[84:87],")): return
        if "mh" in DROP and op.startswith("v_mfma") and s.split()[1] in ("v[16:31],", "v[48:63],"): return
        if "trans" in DROP and op in ("v_exp_f32", "v_rcp_f32"): return
        if "valu" in DROP and op in ("v_exp_f32", "v_rcp_f32", "v_mul_f32", "v_add_f32", "v_cvt_pk_bf16_f32"): return
        if "dma" in DROP and op.startswith("buffer_load"): return
        if "lds" in DROP and op.startswith("ds_read_b128"): return
    out.append("    " + s)
def L(s):
    out.append(s + ":")

HEADER = """; Kernarg layout for this problem (80 bytes, ptrs only, base s[0:1]):
"""

def srd(d, lo, hi, size, add=0):
    if add:
        I(f"s_add_u32 s{d}, s{lo}, {add}")
        I(f"s_addc_u32 s{d+1}, s{hi}, 0")
    else:
        I(f"s_mov_b32 s{d}, s{lo}")
        I(f"s_mov_b32 s{d+1}, s{hi}")
    I(f"s_mov_b32 s{d+2}, {size}")
    I(f"s_mov_b32 s{d+3}, 0x00020000")

def wave_scan(regs):
    steps = ["row_shr:1 row_mask:0xf bank_mask:0xf", "row_shr:2 row_mask:0xf bank_mask:0xf",
             "row_shr:4 row_mask:0xf bank_mask:0xf", "row_shr:8 row_mask:0xf bank_mask:0xf",
             "row_bcast:15 row_mask:0xa bank_mask:0xf", "row_bcast:31 row_mask:0xc bank_mask:0xf"]
    I("s_nop 1")
    for st in steps:
        for r in regs:
            I(f"v_add_u32_dpp v{r}, v{r}, v{r} {st}")
        if len(regs) < 3:
            I(f"s_nop {2 - len(regs)}")

K1_HIST = 0
K1_WTOT = 8256
K1_STG = 8448
K1_POS = K1_STG + RECROW
K1_LDS = K1_POS + (CH * 4 if PERM else 0)

def gen_k1():
    emit(".globl egc_bin_kernel")
    emit(".p2align 8")
    emit(".type egc_bin_kernel,@function")
    L("egc_bin_kernel")
    I(f"s_cmp_ge_u32 s2, {NC}")
    I("s_cbranch_scc1 L_k1_end")
    if STAMP1:
        I("s_memtime s[70:71]")
        I("s_waitcnt lgkmcnt(0)")
    I("s_load_dwordx4 s[4:7], s[0:1], 16")
    I("s_load_dwordx4 s[8:11], s[0:1], 32")
    I("s_load_dwordx2 s[12:13], s[0:1], 48")
    I("s_load_dwordx2 s[14:15], s[0:1], 72")
    if PERM:
        I("s_load_dwordx2 s[60:61], s[0:1], 8")
    if K1PF:
        I("s_load_dwordx2 s[68:69], s[0:1], 0")
    I("v_lshlrev_b32 v1, 3, v0")
    I("v_mov_b32 v2, 0")
    I("v_mov_b32 v3, 0")
    I(f"ds_write_b64 v1, v[2:3] offset:{K1_HIST}")
    I(f"v_mov_b32 v3, {CH}")
    I(f"ds_write_b32 v2, v3 offset:{K1_HIST+8192}")
    I("v_lshlrev_b32 v4, 4, v0")
    I("v_lshrrev_b32 v5, 6, v0")
    I(f"s_mul_i32 s32, s2, {CH*4}")
    I("v_readfirstlane_b32 s3, v5")
    I(f"s_mov_b32 s33, {M25}")
    I("s_movk_i32 s36, 3125")
    I(f"s_mul_i32 s37, s2, {CH*32}")
    I("s_waitcnt lgkmcnt(0)")
    if STAMP1:
        I("s_memtime s[72:73]")
        I("s_waitcnt lgkmcnt(0)")
    srd(16, 4, 5, E * 4)
    srd(20, 6, 7, E * 4)
    srd(24, 14, 15, 0x1000000)
    if PERM:
        srd(52, 60, 61, E * 32)
        srd(56, 14, 15, E * 32, WS_EAS)
    I(f"v_cmp_gt_u32 vcc, {CH//4}, v0")
    I("s_and_saveexec_b64 s[34:35], vcc")
    I("s_cbranch_execz L_k1_noload")
    I("buffer_load_dwordx4 v[8:11], v4, s[20:23], s32 offen")
    I("buffer_load_dwordx4 v[12:15], v4, s[16:19], s32 offen")
    L("L_k1_noload")
    I("s_mov_b64 exec, s[34:35]")
    if CODEPF:
        I("s_cmp_lg_u32 s3, 14")
        I("s_cbranch_scc1 L_k1_nocpf")
        I("s_getpc_b64 s[62:63]")
        L("L_k1_pc")
        I("s_add_u32 s62, s62, egc_main_kernel-L_k1_pc")
        I("s_addc_u32 s63, s63, 0")
        I("v_and_b32 v40, 63, v0")
        I("v_lshlrev_b32 v40, 7, v40")
        I("v_min_u32 v41, L_k2_last-egc_main_kernel-8192, v40")
        I("v_add_u32 v41, 8192, v41")
        I("global_load_dword v42, v40, s[62:63]")
        I("global_load_dword v43, v41, s[62:63]")
        L("L_k1_nocpf")
    if TLBPF:
        I("s_cmp_lg_u32 s3, 13")
        I("s_cbranch_scc1 L_k1_notlb")
        I("s_load_dwordx4 s[52:55], s[0:1], 0")
        I("s_load_dwordx2 s[56:57], s[0:1], 56")
        I("s_lshr_b32 s62, s2, 3")
        I("v_and_b32 v40, 63, v0")
        ne_ = -(-(E * 32) // (TLBPF * 32)); nx_ = -(-(N * 128) // (TLBPF * 32))
        I(f"s_mul_i32 s63, s62, {ne_ * TLBPF}")
        I(f"s_mul_i32 s62, s62, {nx_ * TLBPF}")
        I(f"s_mov_b32 s58, {TLBPF}")
        I("v_mul_lo_u32 v41, v40, s58")
        I("s_waitcnt lgkmcnt(0)")
        srd(64, 54, 55, E * 32)
        I(f"s_bfm_b64 exec, {ne_}, 0")
        I("buffer_load_dword v42, v41, s[64:67], s63 offen")
        srd(64, 52, 53, N * 128)
        I(f"s_bfm_b64 exec, {nx_}, 0")
        I("buffer_load_dword v43, v41, s[64:67], s62 offen")
        srd(64, 56, 57, N * 128)
        I("buffer_load_dword v44, v41, s[64:67], s62 offen")
        I("s_mov_b64 exec, -1")
        L("L_k1_notlb")
    I("s_mov_b32 s40, 0")
    I("s_cmp_lg_u32 s3, 15")
    I("s_cbranch_scc1 L_k1_nowf")
    I("s_cmp_ge_u32 s2, 34")
    I("s_cbranch_scc1 L_k1_nowf")
    I("s_mov_b32 s40, 1")
    I("s_mov_b32 s28, s12")
    I("s_mov_b32 s29, s13")
    I(f"s_mov_b32 s30, {144*128}")
    I("s_mov_b32 s31, 0x00020000")
    I("s_mov_b32 s41, s2")
    I("s_cmp_lt_u32 s2, 18")
    I("s_cbranch_scc1 L_k1_wsel")
    I("s_mov_b32 s28, s10")
    I("s_mov_b32 s29, s11")
    I(f"s_mov_b32 s30, {64*128}")
    I("s_sub_u32 s41, s2, 18")
    I("s_cmp_lt_u32 s2, 26")
    I("s_cbranch_scc1 L_k1_wsel")
    I("s_mov_b32 s28, s8")
    I("s_mov_b32 s29, s9")
    I("s_sub_u32 s41, s2, 26")
    L("L_k1_wsel")
    I("s_lshr_b32 s42, s41, 1")
    I("s_lshl_b32 s42, s42, 11")
    I("s_and_b32 s43, s41, 1")
    I("s_lshl_b32 s43, s43, 6")
    I("s_add_u32 s42, s42, s43")
    I("v_and_b32 v40, 31, v0")
    I("v_lshlrev_b32 v40, 1, v40")
    I("v_and_b32 v41, 32, v0")
    I("v_lshl_add_u32 v40, v41, 5, v40")
    for j in range(8):
        I(f"buffer_load_ushort v{44+j}, v40, s[28:31], s42 offen offset:{128*j}")
    L("L_k1_nowf")
    I("s_barrier")
    if PERM:
        for k in range(7):
            if k == 6:
                I("s_cmp_ge_u32 s3, 4")
                I("s_cbranch_scc1 L_k1_e6")
            I(f"s_add_u32 s62, s37, {16384*k}")
            I(f"buffer_load_dwordx4 v[{56+4*k}:{59+4*k}], v4, s[52:55], s62 offen" + os.environ.get("K1EPOL", ""))
        L("L_k1_e6")
    ne = 6 if PERM else 0
    I("s_and_saveexec_b64 s[34:35], vcc")
    I("s_cbranch_execz L_k1_nohist")
    I("v_mov_b32 v6, 1")
    if PERM:
        I("v_mov_b32 v7, s37")
    else:
        I("v_lshl_add_u32 v7, v0, 7, s37")
    I(f"s_waitcnt vmcnt({ne+1})")
    if STAMP1:
        I("s_memtime s[74:75]")
        I("s_waitcnt lgkmcnt(0)")
    for i in range(4):
        I(f"v_mul_hi_u32 v{16+i}, v{8+i}, s33")
    for i in range(4):
        I(f"v_lshlrev_b32 v{20+i}, 2, v{16+i}")
    for i in range(4):
        I(f"ds_add_rtn_u32 v{24+i}, v{20+i}, v6 offset:{K1_HIST}")
    I("v_mov_b32 v5, 0x7f")
    for i in range(4):
        I(f"v_mad_u32_u24 v{28+i}, v{16+i}, s36, v5")
    for i in range(4):
        I(f"v_lshrrev_b32 v{28+i}, 7, v{28+i}")
    for i in range(4):
        I(f"v_sub_u32 v{28+i}, v{8+i}, v{28+i}")
    for i in range(4):
        I(f"v_lshlrev_b32 v{16+i}, 29, v{16+i}")
    for i in range(4):
        I(f"v_or3_b32 v{33+2*i}, v{16+i}, v7, v{28+i}")
    if not PERM:
        for i in range(1, 4):
            I(f"v_add_u32 v{33+2*i}, {32*i}, v{33+2*i}")
    I(f"s_waitcnt vmcnt({ne})")
    for i in range(4):
        I(f"v_lshlrev_b32 v{32+2*i}, 7, v{12+i}")
    L("L_k1_nohist")
    I("s_mov_b64 exec, s[34:35]")
    if K1PF:
        I(f"s_mov_b32 s70, {N*128}")
        I("s_mov_b32 s71, 0x00020000")
        I("s_lshr_b32 s62, s2, 3")
        I(f"s_mul_i32 s62, s62, {K1PF*128}")
        I("v_lshlrev_b32 v41, 7, v0")
        I(f"s_movk_i32 s63, {K1PF}")
        I("v_cmp_gt_u32 s[48:49], s63, v0")
        I("s_and_saveexec_b64 s[34:35], s[48:49]")
        I("s_cbranch_execz L_k1_nopf")
        I("buffer_load_dword v42, v41, s[68:71], s62 offen")
        L("L_k1_nopf")
        I("s_mov_b64 exec, s[34:35]")
    I("s_waitcnt lgkmcnt(0)")
    I("s_barrier")
    if STAMP1:
        I("s_memtime s[76:77]")
        I("s_waitcnt lgkmcnt(0)")
    I(f"ds_read_b64 v[2:3], v1 offset:{K1_HIST}")
    I("s_waitcnt lgkmcnt(0)")
    I("v_add_u32 v8, v2, v3")
    I("v_mov_b32 v9, v8")
    wave_scan([9])
    I("s_lshl_b32 s44, s3, 2")
    I("v_mov_b32 v10, s44")
    I("s_mov_b32 exec_lo, 0")
    I("s_mov_b32 exec_hi, 0x80000000")
    I(f"ds_write_b32 v10, v9 offset:{K1_WTOT}")
    I("s_mov_b64 exec, -1")
    I("v_and_b32 v10, 15, v0")
    I("v_lshlrev_b32 v10, 2, v10")
    I("s_waitcnt lgkmcnt(0)")
    I("s_barrier")
    I(f"ds_read_b32 v11, v10 offset:{K1_WTOT}")
    I("s_waitcnt lgkmcnt(0)")
    I("v_mov_b32 v12, v11")
    I("s_nop 1")
    for sh in (1, 2, 4, 8):
        I(f"v_add_u32_dpp v12, v12, v12 row_shr:{sh} row_mask:0xf bank_mask:0xf")
        I("s_nop 1")
    I("v_sub_u32 v12, v12, v11")
    I("s_nop 0")
    I("v_readlane_b32 s45, v12, s3")
    I("v_sub_u32 v9, v9, v8")
    I("s_nop 1")
    I("v_add_u32 v9, s45, v9")
    I("v_add_u32 v10, v9, v2")
    I("v_mov_b32 v12, v9")
    I("v_mov_b32 v13, v10")
    I(f"ds_write_b64 v1, v[12:13] offset:{K1_HIST}")
    I("s_waitcnt lgkmcnt(0)")
    I("s_barrier")
    if STAMP1:
        I("s_memtime s[78:79]")
        I("s_waitcnt lgkmcnt(0)")
    I(f"s_movk_i32 s50, {NB}")
    I("v_subrev_u32 v15, 0x300, v0")
    I("v_cmp_gt_u32 s[48:49], s50, v15")
    I("s_and_saveexec_b64 s[34:35], s[48:49]")
    I("s_cbranch_execz L_k1_notab")
    I("v_lshlrev_b32 v14, 5, v15")
    I(f"ds_read_b128 v[8:11], v14 offset:{K1_HIST}")
    I(f"ds_read_b128 v[16:19], v14 offset:{K1_HIST+16}")
    I(f"ds_read_b32 v12, v14 offset:{K1_HIST+32}")
    I("v_lshrrev_b32 v14, 2, v15")
    I("v_lshlrev_b32 v14, 14, v14")
    I("v_and_b32 v13, 3, v15")
    I("v_lshl_add_u32 v14, v13, 4, v14")
    I("s_lshl_b32 s46, s2, 6")
    I(f"s_add_u32 s46, s46, {WS_TAB}")
    I("s_waitcnt lgkmcnt(0)")
    I("v_lshl_or_b32 v8, v9, 16, v8")
    I("v_lshl_or_b32 v9, v11, 16, v10")
    I("v_lshl_or_b32 v10, v17, 16, v16")
    I("v_lshl_or_b32 v11, v19, 16, v18")
    I("v_and_b32 v13, 15, v12")
    I("v_lshl_or_b32 v8, v13, 12, v8")
    I("v_lshrrev_b32 v13, 4, v12")
    I("v_lshl_or_b32 v8, v13, 28, v8")
    I("v_lshrrev_b32 v13, 8, v12")
    I("v_lshl_or_b32 v9, v13, 12, v9")
    I("buffer_store_dwordx4 v[8:11], v14, s[24:27], s46 offen" + os.environ.get("K1ST", ""))
    L("L_k1_notab")
    I("s_mov_b64 exec, s[34:35]")
    I("s_and_saveexec_b64 s[34:35], vcc")
    I("s_cbranch_execz L_k1_noscat")
    for i in range(4):
        I(f"ds_read_b32 v{28+i}, v{20+i} offset:{K1_HIST}")
    for i in range(4):
        I(f"s_waitcnt lgkmcnt({3-i})")
        I(f"v_add_lshl_u32 v{28+i}, v{28+i}, v{24+i}, 3")
    if PERM:
        for i in range(4):
            I(f"v_lshlrev_b32 v{20+i}, 2, v{28+i}")
        for i in range(4):
            I(f"v_add_u32 v{33+2*i}, v{33+2*i}, v{20+i}")
        I(f"ds_write_b128 v4, v[20:23] offset:{K1_POS}")
    for i in range(4):
        I(f"ds_write_b64 v{28+i}, v[{32+2*i}:{33+2*i}] offset:{K1_STG}")
    L("L_k1_noscat")
    I("s_mov_b64 exec, s[34:35]")
    I("s_waitcnt lgkmcnt(0)")
    I("s_barrier")
    if STAMP1:
        I("s_memtime s[80:81]")
        I("s_waitcnt lgkmcnt(0)")
    I(f"s_mul_i32 s46, s2, {RECROW}")
    I(f"s_add_u32 s46, s46, {WS_REC}")
    I(f"ds_read_b128 v[8:11], v4 offset:{K1_STG}")
    I(f"v_cmp_gt_u32 vcc, {RECROW//16 - 1024}, v0")
    I("s_and_saveexec_b64 s[34:35], vcc")
    I("s_cbranch_execz L_k1_no2")
    I(f"ds_read_b128 v[12:15], v4 offset:{K1_STG + 16384}")
    I("s_add_u32 s47, s46, 16384")
    I("s_waitcnt lgkmcnt(0)")
    I("buffer_store_dwordx4 v[12:15], v4, s[24:27], s47 offen" + os.environ.get("K1ST", ""))
    L("L_k1_no2")
    I("s_mov_b64 exec, s[34:35]")
    I("s_waitcnt lgkmcnt(0)")
    I("buffer_store_dwordx4 v[8:11], v4, s[24:27], s46 offen" + os.environ.get("K1ST", ""))
    if PERM:
        I("v_lshrrev_b32 v16, 1, v0")
        I("v_lshlrev_b32 v16, 2, v16")
        I("v_and_b32 v17, 1, v0")
        I("v_lshlrev_b32 v17, 4, v17")
        for k in range(7):
            I(f"ds_read_b32 v{20+k}, v16 offset:{K1_POS+2048*k}")
        for k in range(7):
            if k == 6:
                I("s_cmp_ge_u32 s3, 4")
                I("s_cbranch_scc1 L_k1_s6")
            I(f"s_waitcnt lgkmcnt({6-k})")
            I(f"v_add_u32 v{20+k}, v{20+k}, v17")
            if k == 0:
                I("s_waitcnt vmcnt(0)")
            I(f"buffer_store_dwordx4 v[{56+4*k}:{59+4*k}], v{20+k}, s[56:59], s37 offen" + os.environ.get("K1SPOL", ""))
        L("L_k1_s6")
    if STAMP1:
        I("s_memtime s[82:83]")
        I("s_waitcnt lgkmcnt(0)")
    if STAMP1:
        I("s_waitcnt vmcnt(0)")
        I("s_memtime s[84:85]")
        I("s_waitcnt lgkmcnt(0)")
        srd(64, 14, 15, 0x100000, 0x1000000)
        I("s_mov_b64 s[34:35], exec")
        I("s_mov_b64 exec, 1")
        I("s_lshl_b32 s46, s2, 4")
        I("s_add_u32 s46, s46, s3")
        I("s_lshl_b32 s46, s46, 6")
        I("v_mov_b32 v2, 0")
        for k in range(8):
            I(f"v_mov_b32 v1, s{70+2*k}")
            I(f"buffer_store_dword v1, v2, s[64:67], s46 offen offset:{4*k}")
        I("s_mov_b64 exec, s[34:35]")
    I("s_cmp_eq_u32 s40, 0")
    I("s_cbranch_scc1 L_k1_end")
    I("s_waitcnt vmcnt(0)")
    if PRESCALE:
        I("s_sub_u32 s46, s2, 8")
        I("s_cmp_lt_u32 s46, 10")
        I(f"s_cselect_b32 s47, {NEGLOG2E}, 1.0")
        for j in range(8):
            I(f"v_lshlrev_b32 v{44+j}, 16, v{44+j}")
        for j in range(8):
            I(f"v_mul_f32 v{44+j}, s47, v{44+j}")
        for j in range(4):
            I(f"v_cvt_pk_bf16_f32 v{52+j}, v{44+2*j}, v{45+2*j}")
    else:
        for j in range(4):
            I(f"v_lshl_or_b32 v{52+j}, v{45+2*j}, 16, v{44+2*j}")
    I("v_and_b32 v40, 63, v0")
    I("v_lshlrev_b32 v40, 4, v40")
    I("s_lshl_b32 s46, s2, 10")
    I("buffer_store_dwordx4 v[52:55], v40, s[24:27], s46 offen")
    L("L_k1_end")
    I("s_endpgm")

WSTG = 0
LCAP = 4352
TLIM = 3584
LIST_S = 34816
LIST_M = LIST_S + LCAP * 4
SM = LIST_M + LCAP * 4
SMW = 2000
OH = SM + 16576
BASET = OH + 2560
WTOT = BASET + 4096
STG = WTOT + 256
STGW = 8192
K2_LDS = STG + 8 * STGW
assert STG % 128 == 0 or True
EMASK = 0x01FFFFE0

G = [0, 32]; H = [16, 48]
AX = 64; ST = 80; S = 88; EB = [96, 100]; T = 104
VAX = 112; PC = 116; H16 = 117; LSA = 118; LMA = 119; K1C = 120; SRA = 121; OHC = 122; SW = 123; ONE = 124
A_WB = 0; A_WV = 40; A_XA = 72; A_AGG = 88

def wb(s, c): return A_WB + (2 * s + c) * 4
def wv(s, c): return A_WV + (2 * s + c) * 4
def xa(s, c): return A_XA + (2 * s + c) * 4
def vr(b, n): return f"v[{b}:{b+n-1}]"
def ar(b, n): return f"a[{b}:{b+n-1}]"

def mfma(d, a, b, c):
    return f"v_mfma_f32_32x32x16_bf16 {d}, {a}, {b}, {c}"

def mfma_group(c, par):
    m = []
    g = vr(G[c], 16); h = vr(H[c], 16)
    m.append(mfma(g, vr(EB[par], 4), ar(wb(4, c), 4), "0"))
    for s in range(2):
        m.append(mfma(g, vr(ST + 4 * s, 4), ar(xa(s, c), 4), g))
    for s in range(4):
        m.append(mfma(g, vr(AX + 4 * s, 4), ar(wb(s, c), 4), g))
    for s in range(4):
        m.append(mfma(h, vr(AX + 4 * s, 4), ar(wv(s, c), 4), "0" if s == 0 else h))
    return m

def valu_group(c):
    g = G[c]; h = H[c]
    stages = [
        lambda i: f"v_mul_f32 v{g+i}, s43, v{g+i}",
        lambda i: f"v_exp_f32 v{g+i}, v{g+i}",
        lambda i: f"v_add_f32 v{g+i}, 1.0, v{g+i}",
        lambda i: f"v_rcp_f32 v{g+i}, v{g+i}",
        lambda i: f"v_mul_f32 v{g+i}, v{g+i}, v{h+i}",
    ]
    if PRESCALE:
        stages = stages[1:]
    v = []
    D = 2
    nst = len(stages)
    for step in range(16 + D * nst + 2):
        for k in range(nst):
            i = step - D * k
            if 0 <= i < 16:
                v.append(stages[k](i))
        i = step - D * nst
        if 0 <= i < 16 and i % 2 == 1:
            p = i // 2
            v.append(f"v_cvt_pk_bf16_f32 v{g+p}, v{g+i-1}, v{g+i}")
    return v

def agg_group(c):
    a = ar(A_AGG + 16 * c, 16)
    return [mfma(a, vr(S, 4), vr(G[c], 4), a), mfma(a, vr(S + 4, 4), vr(G[c] + 4, 4), a)]

def put(lst):
    for x in lst:
        if x.endswith(":"):
            emit(x)
        else:
            I(x)

def interleave(mf, va, per, inserts):
    mi = 0
    for i, v in enumerate(va):
        if i % per == 0 and mi < len(mf):
            I(mf[mi])
            mi += 1
        if i in inserts:
            put(inserts[i])
        I(v)
    assert mi == len(mf)

NOMEM = int(os.environ.get("NOMEM", "0"))
def x_dma(par):
    r = []
    if NOMEM:
        for k in range(4):
            r.append(f"v_and_b32 v{T+k}, 0x3f80, v{T+k}")
    r.append(f"v_add_u32 v{T+0}, v{PC}, v{T+0}")
    r.append(f"v_xad_u32 v{T+1}, v{PC}, 64, v{T+1}")
    r.append(f"v_add_u32 v{T+2}, v{PC}, v{T+2}")
    r.append(f"v_xad_u32 v{T+3}, v{PC}, 64, v{T+3}")
    for k in range(4):
        r.append(f"s_add_u32 m0, s37, {par*4096 + k*1024}")
        r.append("s_nop 0")
        r.append(f"buffer_load_dwordx4 v{T+k}, s[12:15], 0 offen lds")
    return r

def e_load(par, meta):
    r = []
    if NOMEM:
        r.append(f"v_and_b32 v{meta}, 0x3fff, v{meta}")
    r.append(f"v_and_or_b32 v{T+6}, v{meta}, s40, v{H16}")
    r.append(f"buffer_load_dwordx4 {vr(EB[par],4)}, v{T+6}, s[16:19], 0 offen" + (os.environ.get("EPOL", "") if (par == 0 or not int(os.environ.get("EHALF", "0"))) else ""))
    return r

def a_reads(par):
    r = []
    for s in range(2):
        r.append(f"ds_read_b128 {vr(ST+4*s,4)}, v{T+7} offset:{16*s}")
    for s in range(4):
        r.append(f"ds_read_b128 {vr(AX+4*s,4)}, v{VAX+s} offset:{par*4096}")
    return r

PRIO = int(os.environ.get("PRIO", "1"))
PTH = [int(x) for x in os.environ.get("PTH", "10,7,4").split(",")]
def prio_code(par):
    r = []
    for lim, p in zip(PTH, (2, 1, 0)):
        r += [f"s_cmp_lt_u32 s36, {lim}",
              f"s_cbranch_scc0 L_pr_done_{par}",
              f"s_setprio {p}"]
    r += [f"L_pr_done_{par}:"]
    return r


def gen_role1():
    FH = STG; FW = STG + 8256; FS = STG + 8448
    I(f"s_cmp_ge_u32 s2, {NC}")
    I("s_cbranch_scc1 L_f_done")
    I("v_lshlrev_b32 v1, 4, v0")
    for i in range(4):
        I(f"v_mov_b32 v{2+i}, 0")
    I(f"v_add_u32 v64, {FH}, v1")
    I("ds_write_b128 v64, v[2:5]")
    I(f"v_mov_b32 v6, {CH}")
    I(f"v_mov_b32 v7, {FH+8192}")
    I("ds_write_b32 v7, v6")
    I("v_lshlrev_b32 v65, 5, v0")
    I(f"s_mul_i32 s60, s2, {CH*4}")
    I(f"s_mov_b32 s61, {M25}")
    I("s_movk_i32 s62, 3125")
    I(f"s_mul_i32 s63, s2, {CH*32}")
    I("s_waitcnt lgkmcnt(0)")
    srd(12, 52, 53, E * 4)
    srd(16, 54, 55, E * 4)
    srd(24, 10, 11, 0x1000000)
    I(f"v_cmp_gt_u32 vcc, {CH//8}, v0")
    I("s_and_saveexec_b64 s[50:51], vcc")
    I("s_cbranch_execz L_f_noload")
    I("buffer_load_dwordx4 v[8:11], v65, s[16:19], s60 offen")
    I("buffer_load_dwordx4 v[12:15], v65, s[16:19], s60 offen offset:16")
    I("buffer_load_dwordx4 v[16:19], v65, s[12:15], s60 offen")
    I("buffer_load_dwordx4 v[20:23], v65, s[12:15], s60 offen offset:16")
    L("L_f_noload")
    I("s_mov_b64 exec, -1")
    I("s_barrier")
    I("s_and_saveexec_b64 s[50:51], vcc")
    I("s_cbranch_execz L_f_nohist")
    I("v_mov_b32 v6, 1")
    I("v_mov_b32 v5, 0x7f")
    I("v_lshl_add_u32 v7, v0, 8, s63")
    I("s_waitcnt vmcnt(2)")
    for i in range(8):
        I(f"v_mul_hi_u32 v{24+i}, v{8+i}, s61")
    for i in range(8):
        I(f"v_lshlrev_b32 v{32+i}, 2, v{24+i}")
    for i in range(8):
        I(f"v_add_u32 v{32+i}, {FH}, v{32+i}")
    for i in range(8):
        I(f"ds_add_rtn_u32 v{40+i}, v{32+i}, v6")
    for i in range(8):
        I(f"v_mad_u32_u24 v{72+i}, v{24+i}, s62, v5")
    for i in range(8):
        I(f"v_lshrrev_b32 v{72+i}, 7, v{72+i}")
    for i in range(8):
        I(f"v_sub_u32 v{72+i}, v{8+i}, v{72+i}")
    for i in range(8):
        I(f"v_lshlrev_b32 v{24+i}, 29, v{24+i}")
    for i in range(8):
        I(f"v_or3_b32 v{49+2*i}, v{24+i}, v7, v{72+i}")
    for i in range(1, 8):
        I(f"v_add_u32 v{49+2*i}, {32*i}, v{49+2*i}")
    I("s_waitcnt vmcnt(0)")
    for i in range(8):
        I(f"v_lshlrev_b32 v{48+2*i}, 7, v{16+i}")
    L("L_f_nohist")
    I("s_mov_b64 exec, -1")
    I("s_waitcnt lgkmcnt(0)")
    I("s_barrier")
    I("ds_read_b128 v[8:11], v64")
    I("s_waitcnt lgkmcnt(0)")
    I("v_add_u32 v12, v8, v9")
    I("v_add_u32 v13, v12, v10")
    I("v_add_u32 v14, v13, v11")
    I("v_mov_b32 v15, v14")
    wave_scan([15])
    I("s_lshl_b32 s46, s3, 2")
    I(f"s_add_u32 s46, s46, {FW}")
    I("v_mov_b32 v16, s46")
    I("s_mov_b32 exec_lo, 0")
    I("s_mov_b32 exec_hi, 0x80000000")
    I("ds_write_b32 v16, v15")
    I("s_mov_b64 exec, -1")
    I("v_and_b32 v16, 7, v0")
    I("v_lshlrev_b32 v16, 2, v16")
    I(f"v_add_u32 v16, {FW}, v16")
    I("s_waitcnt lgkmcnt(0)")
    I("s_barrier")
    I("ds_read_b32 v17, v16")
    I("s_waitcnt lgkmcnt(0)")
    I("v_mov_b32 v18, v17")
    I("s_nop 1")
    for sh in (1, 2, 4):
        I(f"v_add_u32_dpp v18, v18, v18 row_shr:{sh} row_mask:0xf bank_mask:0xf")
        I("s_nop 1")
    I("v_sub_u32 v18, v18, v17")
    I("s_nop 0")
    I("v_readlane_b32 s46, v18, s3")
    I("v_sub_u32 v15, v15, v14")
    I("s_nop 1")
    I("v_add_u32 v20, s46, v15")
    I("v_add_u32 v21, v20, v8")
    I("v_add_u32 v22, v20, v12")
    I("v_add_u32 v23, v20, v13")
    I("ds_write_b128 v64, v[20:23]")
    I("s_waitcnt lgkmcnt(0)")
    I("s_barrier")
    I("s_cmp_lt_u32 s3, 4")
    I("s_cbranch_scc1 L_f_notab")
    I("v_subrev_u32 v15, 0x100, v0")
    I("v_lshlrev_b32 v14, 5, v15")
    I(f"v_add_u32 v14, {FH}, v14")
    I("ds_read_b128 v[8:11], v14")
    I("ds_read_b128 v[16:19], v14 offset:16")
    I("ds_read_b32 v12, v14 offset:32")
    I("v_lshrrev_b32 v14, 2, v15")
    I("v_lshlrev_b32 v14, 14, v14")
    I("v_and_b32 v13, 3, v15")
    I("v_lshl_add_u32 v14, v13, 4, v14")
    I("s_lshl_b32 s46, s2, 6")
    I(f"s_add_u32 s46, s46, {WS_TAB}")
    I("s_waitcnt lgkmcnt(0)")
    I("v_lshl_or_b32 v8, v9, 16, v8")
    I("v_lshl_or_b32 v9, v11, 16, v10")
    I("v_lshl_or_b32 v10, v17, 16, v16")
    I("v_lshl_or_b32 v11, v19, 16, v18")
    I("v_and_b32 v13, 15, v12")
    I("v_lshl_or_b32 v8, v13, 12, v8")
    I("v_lshrrev_b32 v13, 4, v12")
    I("v_lshl_or_b32 v8, v13, 28, v8")
    I("v_lshrrev_b32 v13, 8, v12")
    I("v_lshl_or_b32 v9, v13, 12, v9")
    I("buffer_store_dwordx4 v[8:11], v14, s[24:27], s46 offen sc1")
    L("L_f_notab")
    I("s_and_saveexec_b64 s[50:51], vcc")
    I("s_cbranch_execz L_f_noscat")
    for i in range(8):
        I(f"ds_read_b32 v{72+i}, v{32+i}")
    for i in range(8):
        I(f"s_waitcnt lgkmcnt({7-i})")
        I(f"v_add_lshl_u32 v{72+i}, v{72+i}, v{40+i}, 3")
    for i in range(8):
        I(f"v_add_u32 v{72+i}, {FS}, v{72+i}")
    for i in range(8):
        I(f"ds_write_b64 v{72+i}, v[{48+2*i}:{49+2*i}]")
    L("L_f_noscat")
    I("s_mov_b64 exec, -1")
    I("s_waitcnt lgkmcnt(0)")
    I("s_barrier")
    I(f"s_mul_i32 s46, s2, {RECROW}")
    I(f"s_add_u32 s46, s46, {WS_REC}")
    I(f"v_add_u32 v64, {FS}, v1")
    for k in range(4):
        I(f"ds_read_b128 v[{16+4*k}:{19+4*k}], v64 offset:{8192*k}")
    for k in range(4):
        if k == 3:
            I("s_cmp_lg_u32 s3, 0")
            I("s_cbranch_scc1 L_f_st3")
        I(f"s_waitcnt lgkmcnt({3-k})")
        I(f"s_add_u32 s60, s46, {8192*k}")
        I(f"buffer_store_dwordx4 v[{16+4*k}:{19+4*k}], v1, s[24:27], s60 offen sc1")
    L("L_f_st3")
    I("s_waitcnt vmcnt(0) lgkmcnt(0)")
    I("s_barrier")
    I("s_cmp_lg_u32 s3, 0")
    I("s_cbranch_scc1 L_f_done")
    I("v_mov_b32 v2, 1")
    I("v_mov_b32 v3, s2")
    I("s_mov_b64 exec, 1")
    I("buffer_store_byte v2, v3, s[64:67], 0 offen sc1")
    I("s_mov_b64 exec, -1")
    L("L_f_done")

def gen_wprep():
    I("v_and_b32 v2, 31, v67")
    I("v_lshlrev_b32 v2, 1, v2")
    I("v_and_b32 v3, 32, v67")
    I("v_lshl_add_u32 v2, v3, 5, v2")
    for k in range(5):
        I(f"s_add_u32 s46, s3, {8*k}")
        if k == 4:
            I("s_min_u32 s46, s46, 33")
        I("s_cmp_lt_u32 s46, 26")
        I("s_cselect_b32 s28, s90, s88")
        I("s_cselect_b32 s29, s91, s89")
        I("s_cselect_b32 s60, 18, 26")
        I("s_cmp_lt_u32 s46, 18")
        I("s_cselect_b32 s28, s58, s28")
        I("s_cselect_b32 s29, s59, s29")
        I("s_cselect_b32 s60, 0, s60")
        I(f"s_mov_b32 s30, {64*128}")
        I(f"s_cselect_b32 s30, {144*128}, s30")
        I("s_mov_b32 s31, 0x00020000")
        I("s_sub_u32 s60, s46, s60")
        I("s_lshr_b32 s61, s60, 1")
        I("s_lshl_b32 s61, s61, 11")
        I("s_and_b32 s60, s60, 1")
        I("s_lshl_b32 s60, s60, 6")
        I("s_add_u32 s61, s61, s60")
        for j in range(8):
            I(f"buffer_load_ushort v{12+8*k+j}, v2, s[28:31], s61 offen offset:{128*j}")

def gen_wpack():
    for k in range(5):
        I(f"s_add_u32 s46, s3, {8*k}")
        if k == 4:
            I("s_min_u32 s46, s46, 33")
        I(f"s_waitcnt vmcnt({8*(4-k)})")
        b = 12 + 8 * k
        if PRESCALE:
            I("s_sub_u32 s60, s46, 8")
            I("s_cmp_lt_u32 s60, 10")
            I(f"s_cselect_b32 s61, {NEGLOG2E}, 1.0")
            for j in range(8):
                I(f"v_lshlrev_b32 v{b+j}, 16, v{b+j}")
            for j in range(8):
                I(f"v_mul_f32 v{b+j}, s61, v{b+j}")
            for j in range(4):
                I(f"v_cvt_pk_bf16_f32 v{52+j}, v{b+2*j}, v{b+2*j+1}")
        else:
            for j in range(4):
                I(f"v_lshl_or_b32 v{52+j}, v{b+2*j+1}, 16, v{b+2*j}")
        I("s_lshl_b32 s46, s46, 10")
        I("v_add_u32 v56, s46, v70")
        I(f"ds_write_b128 v56, v[52:55] offset:{WSTG}")

def gen_wait():
    I("s_cmp_lg_u32 s3, 0")
    I("s_cbranch_scc1 L_w_done")
    I("v_lshlrev_b32 v2, 2, v67")
    I("v_mov_b32 v3, 0x01010101")
    I("v_cmp_eq_u32 vcc, 62, v67")
    I("v_mov_b32 v4, 0x00000101")
    I("s_nop 0")
    I("v_cndmask_b32 v3, v3, v4, vcc")
    I("v_cmp_eq_u32 vcc, 63, v67")
    I("s_mov_b32 s60, 0")
    I("s_nop 0")
    I("v_cndmask_b32 v3, v3, 0, vcc")
    L("L_w_loop")
    I("buffer_load_dword v4, v2, s[64:67], 0 offen sc1")
    I("s_add_u32 s60, s60, 1")
    I("s_waitcnt vmcnt(0)")
    I("v_cmp_ne_u32 vcc, v3, v4")
    I("s_cmp_gt_u32 s60, 0x40000")
    I("s_cbranch_scc1 L_w_done")
    I("s_cmp_eq_u64 vcc, 0")
    I("s_cbranch_scc1 L_w_done")
    I("s_sleep 1")
    I("s_branch L_w_loop")
    L("L_w_done")
    I("s_waitcnt lgkmcnt(0)")
    I("s_barrier")

def gen_round_head():
    L("L_round")
    I("s_lshl_b32 s46, s3, 5")
    I("v_lshrrev_b32 v66, 1, v67")
    I("v_add_u32 v66, s46, v66")
    I("v_lshlrev_b32 v65, 6, v66")
    I("buffer_load_dwordx4 v[48:51], v65, s[20:23], 0 offen" + SC)

def gen_k2():
    emit(f".globl {MAIN}")
    emit(".p2align 8")
    emit(f".type {MAIN},@function")
    L(MAIN)
    I("s_cmp_ge_u32 s2, 256")
    I("s_cbranch_scc1 L_k2_end")
    I("s_load_dwordx2 s[10:11], s[0:1], 72")
    I("s_load_dwordx4 s[4:7], s[0:1], 0")
    I("s_load_dwordx2 s[8:9], s[0:1], 56")
    if FUSED:
        I("s_load_dwordx4 s[52:55], s[0:1], 16")
        I("s_load_dwordx4 s[88:91], s[0:1], 32")
        I("s_load_dwordx2 s[58:59], s[0:1], 48")
        I("s_load_dwordx2 s[64:65], s[0:1], 64")
    I("s_and_b32 s38, s2, 7")
    I("s_lshr_b32 s39, s2, 3")
    I("s_lshl_b32 s32, s38, 5")
    I("s_add_u32 s32, s32, s39")
    stamp(0)
    if STAMP:
        I("s_memrealtime s[86:87]")
    I("v_lshrrev_b32 v1, 6, v0")
    I("v_and_b32 v67, 63, v0")
    I("v_readfirstlane_b32 s3, v1")
    I("s_mov_b32 s33, 0")
    I(f"s_movk_i32 s34, {NC}")
    I("s_mov_b32 s47, 1")
    I("s_lshr_b32 s48, s32, 2")
    I("s_lshl_b32 s48, s48, 14")
    I("s_and_b32 s46, s32, 3")
    I("s_lshl_b32 s46, s46, 4")
    I("s_add_u32 s48, s48, s46")
    I(f"s_add_u32 s48, s48, {WS_TAB}")
    I("s_waitcnt lgkmcnt(0)")
    I("s_add_u32 s20, s10, s48")
    I("s_addc_u32 s21, s11, 0")
    I(f"s_mov_b32 s22, {(NC-1)*64+16}")
    I("s_mov_b32 s23, 0x00020000")
    if FUSED:
        I("s_movk_i32 s66, 256")
        I("s_mov_b32 s67, 0x00020000")
        gen_role1()
        I("v_lshlrev_b32 v70, 4, v67")
        gen_wprep()
    else:
        gen_round_head()
        I("s_cmp_eq_u32 s47, 0")
        I("s_cbranch_scc1 L_noconst")
        srd(28, 10, 11, 34 * 1024)
        I("v_lshlrev_b32 v70, 4, v67")
        for k in range(5):
            I(f"s_add_u32 s46, s3, {8*k}")
            if k == 4:
                I("s_min_u32 s46, s46, 33")
            I("s_lshl_b32 s46, s46, 10")
            I(f"s_add_u32 m0, s46, {WSTG}")
            I("s_nop 0")
            I("buffer_load_dwordx4 v70, s[28:31], s46 offen lds")
    srd(12, 4, 5, N * 128)
    if PERM:
        srd(16, 10, 11, E * 32, WS_EAS)
    else:
        srd(16, 6, 7, E * 32)
    srd(24, 10, 11, NC * RECROW, WS_REC)
    I(f"s_mov_b32 s40, {EMASK}")
    I("s_movk_i32 s42, 80")
    I(f"s_mov_b32 s43, {NEGLOG2E}")
    I(f"s_lshl_b32 s37, s3, 13")
    I(f"s_add_u32 s37, s37, {STG}")
    I("v_and_b32 v3, 31, v67")
    I("v_lshrrev_b32 v4, 5, v67")
    I("v_bfe_u32 v5, v3, 1, 3")
    I("v_xor_b32 v5, v5, v4")
    I("v_lshlrev_b32 v5, 4, v5")
    I("v_lshl_add_u32 v5, v3, 7, v5")
    I(f"v_add_u32 v{VAX}, s37, v5")
    for s in range(1, 4):
        I(f"v_xor_b32 v6, {32*s}, v5")
        I(f"v_add_u32 v{VAX+s}, s37, v6")
    I("v_lshrrev_b32 v5, 4, v67")
    I("v_and_b32 v6, 7, v67")
    I("v_xor_b32 v5, v5, v6")
    I(f"v_lshlrev_b32 v{PC}, 4, v5")
    I(f"v_lshlrev_b32 v{H16}, 4, v4")
    I(f"s_mul_i32 s46, s3, {SMW}")
    I(f"s_add_u32 s46, s46, {SM}")
    I("v_lshrrev_b32 v5, 4, v3")
    I("v_lshlrev_b32 v5, 5, v5")
    I("v_bfe_u32 v6, v3, 2, 1")
    I("v_lshl_add_u32 v5, v6, 4, v5")
    I("v_bfe_u32 v6, v3, 3, 1")
    I("v_lshl_add_u32 v5, v6, 3, v5")
    I("v_and_b32 v6, 3, v3")
    I("v_lshl_add_u32 v5, v6, 1, v5")
    I(f"v_add_u32 v{K1C}, s46, v5")
    I(f"v_add_u32 v6, s46, v{H16}")
    I(f"v_mad_u32_u24 v{SRA}, v3, s42, v6")
    I("v_lshlrev_b32 v6, 5, v4")
    I(f"v_add_u32 v{OHC}, {OH}, v6")
    I(f"v_mov_b32 v{ONE}, 1.0")
    for i in range(4):
        I(f"v_mov_b32 v{8+i}, 0")
    I("v_add_u32 v7, s46, v70")
    I("ds_write_b128 v7, v[8:11]")
    I("v_cmp_gt_u32 vcc, 61, v67")
    I("s_and_saveexec_b64 s[50:51], vcc")
    I("ds_write_b128 v7, v[8:11] offset:1024")
    I("s_mov_b64 exec, -1")
    I("s_cmp_lg_u32 s3, 0")
    I("s_cbranch_scc1 L_noconst")
    I(f"v_add_u32 v7, {OH}, v70")
    I("ds_write_b128 v7, v[8:11]")
    I("ds_write_b128 v7, v[8:11] offset:1024")
    I("s_mov_b32 exec_hi, 0")
    I("ds_write_b128 v7, v[8:11] offset:2048")
    I("v_bfe_u32 v6, v3, 2, 1")
    I("v_lshlrev_b32 v6, 5, v6")
    I("v_lshrrev_b32 v7, 4, v3")
    I("v_lshl_add_u32 v6, v7, 4, v6")
    I("v_and_b32 v7, 15, v5")
    I("v_add_u32 v6, v6, v7")
    I("v_mad_u32_u24 v6, v3, s42, v6")
    I(f"v_add_u32 v6, {OH}, v6")
    I(f"ds_write_b16_d16_hi v6, v{ONE}")
    I("s_mov_b64 exec, -1")
    L("L_noconst")
    if FUSED:
        gen_wpack()
        gen_wait()
        gen_round_head()
    I("s_waitcnt vmcnt(0)")
    stamp(1)
    I("v_bfe_u32 v52, v48, 12, 4")
    I("v_lshrrev_b32 v53, 28, v48")
    I("v_lshl_or_b32 v52, v53, 4, v52")
    I("v_bfe_u32 v53, v49, 12, 4")
    I("v_lshl_or_b32 v52, v53, 8, v52")
    I("v_and_b32 v48, 0x0fff0fff, v48")
    I("v_and_b32 v49, 0xffff0fff, v49")
    I("v_and_b32 v53, 0xffff, v48")
    I("v_subrev_u32 v54, s33, v66")
    I("s_sub_u32 s46, s34, s33")
    I("v_cmp_gt_u32 s[52:53], s46, v54")
    I("v_and_b32 v55, 1, v67")
    I("v_lshl_add_u32 v64, v55, 1, v53")
    I("v_cndmask_b32 v54, v53, v52, s[52:53]")
    I(f"s_movk_i32 s46, {RECROW}")
    I("v_mul_u32_u24 v65, s46, v66")
    I("v_lshl_add_u32 v65, v64, 3, v65")
    I("v_sub_u32 v68, v54, v64")
    def rec_loads(tag):
        for i in range(8):
            I(f"v_cmpx_lt_i32 vcc, {4*i}, v68")
            I("s_nop 0")
            I(f"s_cbranch_execz L_rl_{tag}")
            I(f"buffer_load_dwordx4 v[{4*i}:{4*i+3}], v65, s[24:27], 0 offen offset:{32*i}" + SC)
        L(f"L_rl_{tag}")
        I("s_mov_b64 exec, -1")
    rec_loads("a")
    if K2PF:
        I("s_cmp_eq_u32 s47, 0")
        I("s_cbranch_scc1 L_nopf")
        I("s_lshl_b32 s46, s39, 3")
        I("s_add_u32 s46, s46, s3")
        I(f"s_mul_i32 s46, s46, {K2PF*64*128}")
        I("v_lshlrev_b32 v71, 7, v67")
        for k in range(K2PF):
            I(f"s_add_u32 s50, s46, {k*8192}")
            I(f"buffer_load_dword v{T+k}, v71, s[12:15], s50 offen")
        L("L_nopf")
    I("v_cmp_eq_u32 vcc, 0, v55")
    I("s_and_b64 vcc, vcc, s[52:53]")
    I("v_alignbit_b32 v72, v49, v48, 16")
    I("v_alignbit_b32 v73, v50, v49, 16")
    I("v_alignbit_b32 v74, v51, v50, 16")
    I("v_alignbit_b32 v75, v52, v51, 16")
    for i in range(4):
        I(f"v_sub_u32 v{72+i}, v{72+i}, v{48+i}")
    I("v_sub_u32 v76, v52, v53")
    for i in range(5):
        I(f"v_cndmask_b32 v{72+i}, 0, v{72+i}, vcc")
    for i in range(5):
        I(f"v_mov_b32 v{80+i}, v{72+i}")
    wave_scan([80, 81, 82, 83, 84])
    I("s_lshl_b32 s46, s3, 5")
    I(f"s_add_u32 s46, s46, {WTOT}")
    I("v_mov_b32 v69, s46")
    I("s_mov_b32 exec_lo, 0")
    I("s_mov_b32 exec_hi, 0x80000000")
    I("ds_write_b128 v69, v[80:83]")
    I("ds_write_b32 v69, v84 offset:16")
    I("s_mov_b64 exec, -1")
    I("v_and_b32 v69, 7, v67")
    I("v_lshlrev_b32 v69, 5, v69")
    I(f"v_add_u32 v69, {WTOT}, v69")
    I("s_waitcnt lgkmcnt(0)")
    I("s_barrier")
    stamp(2)
    I("ds_read_b128 v[88:91], v69")
    I("ds_read_b32 v92, v69 offset:16")
    I("s_waitcnt lgkmcnt(0)")
    I("s_cmp_eq_u32 s47, 0")
    I("s_cbranch_scc1 L_now")
    for f in range(18):
        I(f"ds_read_b128 {ar(4*f,4)}, v70 offset:{WSTG+1024*(8+f)}")
    L("L_now")
    for i in range(5):
        I(f"v_mov_b32 v{56+i}, v{88+i}")
    I("s_nop 1")
    for sh in (1, 2, 4):
        for i in range(5):
            I(f"v_add_u32_dpp v{56+i}, v{56+i}, v{56+i} row_shr:{sh} row_mask:0xf bank_mask:0xf")
    I("s_nop 1")
    for i in range(4):
        I(f"v_sub_u32 v{88+i}, v{56+i}, v{88+i}")
    I("v_readlane_b32 s60, v60, 7")
    for i in range(4):
        I(f"v_readlane_b32 s{56+i}, v{56+i}, 7")
    for i in range(4):
        I(f"v_readlane_b32 s{52+i}, v{88+i}, s3")
    I(f"s_cmp_le_u32 s60, {TLIM}")
    I("s_cbranch_scc1 L_fits")
    I("s_sub_u32 s46, s34, s33")
    I("s_cmp_eq_u32 s46, 1")
    I("s_cselect_b32 s34, s34, s33")
    for i in range(4):
        I(f"s_mov_b32 s{56+i}, 0")
    I("v_mov_b32 v68, 0")
    L("L_fits")
    I("s_cmp_eq_u32 s47, 0")
    I("s_cbranch_scc1 L_paired")
    if PAIR:
        for i in range(4):
            I(f"v_mov_b32 v{56+i}, s{56+i}")
        I("v_and_b32 v60, 7, v67")
        I("v_lshrrev_b32 v61, 3, v67")
        for (src, dst) in ((60, 62), (61, 63)):
            I(f"v_bfe_u32 v93, v{src}, 1, 1")
            I(f"v_cmp_eq_u32 vcc, 1, v93")
            I(f"v_bfe_u32 v93, v{src}, 2, 1")
            I(f"v_cmp_eq_u32 s[50:51], 1, v93")
            I("v_cndmask_b32 v94, v56, v57, vcc")
            I("v_cndmask_b32 v95, v58, v59, vcc")
            I(f"v_and_b32 v93, 1, v{src}")
            I("v_cndmask_b32 v94, v94, v95, s[50:51]")
            I("v_lshlrev_b32 v93, 4, v93")
            I("v_bfe_u32 v94, v94, v93, 16")
            I(f"v_lshl_add_u32 v{dst}, v94, 3, v{src}")
        I("v_cmp_gt_u32 vcc, v62, v63")
        I("s_sub_u32 s64, 11, s3")
        I("s_cmp_lt_u32 s3, 4")
        I("s_cselect_b32 s64, s3, s64")
        I("s_mov_b32 s41, 0")
        for i in range(8):
            I(f"s_bfe_u32 s65, {'vcc_lo' if i < 4 else 'vcc_hi'}, {(8*(i%4)) | (8 << 16)}")
            I("s_bcnt1_i32_b32 s65, s65")
            I("s_cmp_eq_u32 s65, s64")
            I(f"s_cselect_b32 s41, {i}, s41")
    else:
        I("s_mov_b32 s41, s3")
    L("L_paired")
    I("s_mov_b32 s61, 0")
    I("s_mov_b32 s62, 0")
    I("s_mov_b32 s63, 0")
    for i in range(4):
        I(f"s_add_u32 s64, s{56+i}, 0x005f005f")
        I("s_and_b32 s64, s64, 0xffe0ffe0")
        I("s_and_b32 s65, s64, 0xffff")
        I("s_lshr_b32 s66, s64, 16")
        I("s_add_u32 s67, s61, s65")
        I(f"s_and_b32 s68, s{56+i}, 0xffff")
        I(f"s_cmp_eq_u32 s41, {2*i}")
        I("s_cselect_b32 s62, s61, s62")
        I("s_cselect_b32 s63, s68, s63")
        I(f"s_lshr_b32 s68, s{56+i}, 16")
        I(f"s_cmp_eq_u32 s41, {2*i+1}")
        I("s_cselect_b32 s62, s67, s62")
        I("s_cselect_b32 s63, s68, s63")
        I("s_lshl_b32 s68, s67, 16")
        I("s_or_b32 s68, s68, s61")
        I(f"s_add_u32 s{52+i}, s{52+i}, s68")
        I(f"s_add_u32 s{52+i}, s{52+i}, 0x10001000")
        I("s_add_u32 s61, s67, s66")
    for i in range(4):
        I(f"v_sub_u32 v{80+i}, v{80+i}, v{72+i}")
    for i in range(4):
        I(f"v_add_u32 v{80+i}, s{52+i}, v{80+i}")
    for i in range(4):
        I(f"v_sub_u32 v{80+i}, v{80+i}, v{48+i}")
    I("v_lshlrev_b32 v69, 4, v66")
    I(f"v_add_u32 v69, {BASET}, v69")
    I("s_mov_b32 exec_lo, 0x55555555")
    I("s_mov_b32 exec_hi, 0x55555555")
    I("ds_write_b128 v69, v[80:83]")
    I("s_mov_b64 exec, -1")
    I("s_add_u32 s64, s63, 31")
    I("s_lshr_b32 s35, s64, 5")
    I("s_lshl_b32 s64, s35, 5")
    I("s_sub_u32 s64, s64, s63")
    I("s_add_u32 s65, s62, s63")
    I("v_add_lshl_u32 v72, v67, s65, 2")
    I("v_mov_b32 v73, 0xffffff00")
    I(f"v_mov_b32 v74, {EMASK}")
    I(f"ds_write2st64_b32 v72, v73, v74 offset0:{LIST_S//256} offset1:{LIST_M//256}")
    I("v_cmp_gt_u32 vcc, s64, v67")
    I("s_and_saveexec_b64 s[50:51], vcc")
    I(f"ds_write2st64_b32 v72, v73, v74 offset0:{LIST_S//256+1} offset1:{LIST_M//256+1}")
    I("s_mov_b64 exec, -1")
    I("s_lshl_b32 s64, s62, 2")
    I("v_lshrrev_b32 v72, 3, v67")
    I("v_lshlrev_b32 v72, 4, v72")
    I(f"s_add_u32 s65, s64, {LIST_S}")
    I(f"v_add_u32 v{LSA}, s65, v72")
    I("v_and_b32 v72, 7, v67")
    I("v_bfe_u32 v73, v67, 3, 2")
    I("v_lshl_add_u32 v72, v72, 2, v73")
    I("v_lshlrev_b32 v72, 2, v72")
    I(f"s_add_u32 s65, s64, {LIST_M}")
    I(f"v_add_u32 v{LMA}, s65, v72")
    I("s_cmp_eq_u32 s47, 0")
    I("s_cbranch_scc1 L_scat")
    for i in range(16):
        I(f"v_mov_b32 v{80+i}, 0")
    I("v_and_b32 v72, 31, v67")
    I(f"v_lshl_add_u32 v72, v72, 7, v{H16}")
    I("s_lshl_b32 s46, s32, 3")
    I("s_add_u32 s46, s46, s41")
    I("s_mul_i32 s46, s46, 3125")
    I("s_add_u32 s49, s46, 127")
    I("s_lshr_b32 s49, s49, 7")
    I(f"s_add_u32 s44, s46, {3125+127}")
    I("s_lshr_b32 s44, s44, 7")
    I("s_sub_u32 s44, s44, s49")
    I("s_lshl_b32 s49, s49, 7")
    I("s_bfm_b32 s46, s44, 0")
    I("s_mov_b32 exec_lo, s46")
    I("s_mov_b32 exec_hi, s46")
    for s in range(4):
        I(f"buffer_load_dwordx4 {vr(80+4*s,4)}, v72, s[12:15], s49 offen offset:{32*s}")
    I("s_mov_b64 exec, -1")
    I(f"s_waitcnt vmcnt({4+K2PF})")
    I("s_branch L_scat1")
    L("L_scat")
    I("s_waitcnt vmcnt(0)")
    L("L_scat1")
    stamp(3)
    o0 = (LIST_S - 16384) // 256; o1 = (LIST_M - 16384) // 256
    for half in range(2):
        R = range(8 * half, 8 * half + 8)
        if half:
            I("v_cmpx_lt_i32 vcc, 16, v68")
            I("s_nop 0")
            I("s_cbranch_execz L_scat_done")
        for r in R:
            I(f"v_lshrrev_b32 v{32+r}, 28, v{2*r+1}")
        for r in R:
            I(f"v_add_u32 v{32+r}, v{32+r}, v69")
        for r in R:
            I(f"ds_read_u16 v{32+r}, v{32+r}")
        for r in R:
            i, k = r // 2, r % 2
            I(f"v_cmpx_lt_i32 vcc, {4*i+k}, v68")
            I("s_waitcnt lgkmcnt(7)")
            I("s_cbranch_execz L_scat_done")
            I(f"v_add3_u32 v{32+r}, v{32+r}, v64, {4*i+k}")
            I(f"v_lshlrev_b32 v{32+r}, 2, v{32+r}")
            I(f"ds_write2st64_b32 v{32+r}, v{2*r}, v{2*r+1} offset0:{o0} offset1:{o1}")
    I("v_cmpx_lt_i32 vcc, 32, v68")
    I("s_nop 0")
    I("s_cbranch_execz L_scat_done")
    I("s_mov_b64 exec, -1")
    I("v_add_u32 v64, 32, v64")
    I("v_subrev_u32 v68, 32, v68")
    I("v_add_u32 v65, 256, v65")
    I("s_waitcnt lgkmcnt(0)")
    rec_loads("b")
    I("s_branch L_scat")
    L("L_scat_done")
    I("s_mov_b64 exec, -1")
    I("s_waitcnt lgkmcnt(0)")
    I("s_barrier")
    stamp(4)
    I(f"ds_read_b128 {vr(T,4)}, v{LSA}")
    I(f"ds_read2_b32 {vr(T+4,2)}, v{LMA} offset0:0 offset1:32")
    I("s_waitcnt lgkmcnt(0)")
    put(x_dma(0))
    put(e_load(0, T + 4))
    I(f"ds_read_b128 {vr(T,4)}, v{LSA} offset:128")
    I("s_cmp_eq_u32 s47, 0")
    I("s_cbranch_scc1 L_noinit")
    for f in range(8):
        I(f"ds_read_b128 {vr(4*f,4)}, v70 offset:{WSTG+1024*f}")
    I("s_waitcnt vmcnt(5) lgkmcnt(0)")
    for c in range(2):
        d = vr(32 + 16 * c, 16)
        for s in range(4):
            I(mfma(d, vr(80 + 4 * s, 4), vr((2 * s + c) * 4, 4), "0" if s == 0 else d))
    for f in range(8):
        I(f"ds_read_b128 {vr(4*f,4)}, v70 offset:{WSTG+1024*(26+f)}")
    I("s_nop 7")
    if PRESCALE:
        for i in range(32):
            I(f"v_mul_f32 v{32+i}, s43, v{32+i}")
    I("s_waitcnt lgkmcnt(0)")
    k = 0
    for c in range(2):
        a = ar(A_AGG + 16 * c, 16)
        for s in range(4):
            I(mfma(a, vr(80 + 4 * s, 4), vr((2 * s + c) * 4, 4), "0" if s == 0 else a))
            for p in (k, k + 1):
                I(f"v_cvt_pk_bf16_f32 v{64+p}, v{32+2*p}, v{32+2*p+1}")
            k += 2
    for c in range(2):
        for p in range(8):
            I(f"v_accvgpr_write_b32 a{xa(p//4, c) + p%4}, v{64+8*c+p}")
    I("s_mov_b32 s47, 0")
    L("L_noinit")
    I("s_cmp_eq_u32 s35, 0")
    I("s_cbranch_scc1 L_round_end")
    I(f"v_and_b32 v{T+4}, 31, v{T+4}")
    I(f"v_mad_u32_u24 v{T+7}, v{T+4}, s42, v{OHC}")
    I(f"v_mad_u32_u24 v{SW}, v{T+4}, s42, v{K1C}")
    I(f"ds_write_b16_d16_hi v{SW}, v{ONE}")
    I("s_waitcnt lgkmcnt(0)")
    put(x_dma(1))
    put(e_load(1, T + 5))
    for i in range(8):
        I(f"v_mov_b32 v{G[1]+i}, 0")
    for i in range(8):
        I(f"v_mov_b32 v{S+i}, 0")
    I("s_waitcnt vmcnt(5)")
    put(a_reads(0))
    I(f"ds_read_b128 {vr(T,4)}, v{LSA} offset:256")
    I("s_mov_b32 s36, s35")
    if PRIO:
        I("s_setprio 3")
    stamp(5)
    m0 = mfma_group(0, 0)
    I(m0[0])
    I("s_waitcnt lgkmcnt(0)")
    I(m0[1])
    put(x_dma(0))
    put(m0[2:])
    I("s_nop 7")
    I("s_branch L_p1_0")
    L("L_loop")
    INLOOP[0] = True
    nv = len(valu_group(0))
    pos = [2 + (k * (nv - 4)) // 13 for k in range(13)]
    def sched(mf, va, inserts):
        pend = []
        mi = 0
        for i, v in enumerate(va):
            if mi < len(mf) and i == pos[mi]:
                put(inserts.get(('b', mi), []))
                I(mf[mi])
                put(inserts.get(('m', mi), []))
                pend += inserts.get(('s', mi), [])
                mi += 1
            I(v)
            if pend:
                put([pend.pop(0)])
        assert mi == len(mf)
        put(pend)
    def nonop(lst):
        return [x for x in lst if x != "s_nop 0"]
    for par in range(2):
        ins = {('b', 3): ["s_waitcnt lgkmcnt(1)"],
               ('m', 4): ["s_waitcnt lgkmcnt(0)"],
               ('s', 4): nonop(x_dma(par))}
        if PRIO:
            ins[('m', 0)] = prio_code(par)
        if int(os.environ.get("DUPH", "0")):
            ins[('s', 5)] = [mfma_group(0, par)[7]] + ["s_nop 0"] * 2 + [mfma_group(0, par)[8]] + ["s_nop 0"] * 2 + [mfma_group(0, par)[9]] + ["s_nop 0"] * 2 + [mfma_group(0, par)[10]]
        sched(agg_group(0) + mfma_group(0, par), valu_group(1), ins)
        L(f"L_p1_{par}")
        ins = {('m', 0): [f"ds_read2_b32 {vr(T+4,2)}, v{LMA} offset0:32 offset1:64"],
               ('s', 1): [f"ds_read_b128 {vr(S,4)}, v{SRA}",
                          f"ds_read_b128 {vr(S+4,4)}, v{SRA} offset:32",
                          f"ds_write_b16 v{SW}, v{ONE}"],
               ('m', 3): ["s_waitcnt lgkmcnt(3)"] + e_load(par, T + 5),
               ('s', 3): [f"v_and_b32 v{T+4}, 31, v{T+4}",
                          f"v_add_u32 v{LSA}, 128, v{LSA}",
                          f"v_mad_u32_u24 v{T+7}, v{T+4}, s42, v{OHC}",
                          f"v_mad_u32_u24 v{SW}, v{T+4}, s42, v{K1C}",
                          f"v_add_u32 v{LMA}, 128, v{LMA}",
                          f"ds_write_b16_d16_hi v{SW}, v{ONE}",
                          "s_sub_u32 s36, s36, 1"],
               ('m', 4): [f"v_mov_b32 v{T+6}, v{T+6}"] * int(os.environ.get("EXTRAV", "0")),
               ('m', 12): ["s_waitcnt vmcnt(5) lgkmcnt(0)"] + a_reads(par ^ 1) + [f"ds_read_b128 {vr(T,4)}, v{LSA} offset:256"]}
        sched(agg_group(1) + mfma_group(1, par), valu_group(0), ins)
        I("s_cmp_eq_u32 s36, 0")
        if par == 0:
            I("s_cbranch_scc1 L_tail")
        else:
            I("s_cbranch_scc0 L_loop")
    L("L_tail")
    INLOOP[0] = False
    I(f"ds_write_b16 v{SW}, v{ONE}")
    I("s_nop 0")
    put(agg_group(0))
    put(valu_group(1))
    I("s_nop 1")
    put(agg_group(1))
    L("L_round_end")
    I(f"s_cmp_ge_u32 s34, {NC}")
    I("s_cbranch_scc1 L_epi")
    I("s_mov_b32 s33, s34")
    I("s_add_u32 s34, s34, 1")
    I("v_mbcnt_lo_u32_b32 v67, -1, 0")
    I("v_mbcnt_hi_u32_b32 v67, -1, v67")
    I("s_waitcnt vmcnt(0) lgkmcnt(0)")
    I("s_barrier")
    I("s_branch L_round")
    L("L_epi")
    I("s_waitcnt vmcnt(0) lgkmcnt(0)")
    stamp(6)
    srd(28, 8, 9, N * 128)
    I("v_mbcnt_lo_u32_b32 v67, -1, 0")
    I("v_mbcnt_hi_u32_b32 v67, -1, v67")
    I("v_and_b32 v68, 31, v67")
    I("v_lshrrev_b32 v69, 5, v67")
    I("v_lshlrev_b32 v68, 1, v68")
    I("v_lshl_add_u32 v68, v69, 9, v68")
    I("v_add_u32 v68, s37, v68")
    I("v_lshlrev_b32 v70, 4, v67")
    I("v_add_u32 v71, s37, v70")
    I("s_nop 7")
    I("s_nop 7")
    regs = [i for i in range(13)]
    for c in range(2):
        for i in regs:
            I(f"v_accvgpr_read_b32 v{16*c+i}, a{A_AGG+16*c+i}")
    ids = [16 * c + i for c in range(2) for i in regs]
    for r in ids:
        I(f"v_mul_f32 v{32+r}, s43, v{r}")
    for r in ids:
        I(f"v_exp_f32 v{32+r}, v{32+r}")
    for r in ids:
        I(f"v_add_f32 v{32+r}, 1.0, v{32+r}")
    for r in ids:
        I(f"v_rcp_f32 v{32+r}, v{32+r}")
    for r in ids:
        I(f"v_mul_f32 v{r}, v{r}, v{32+r}")
    for i in regs:
        I(f"v_cvt_pk_bf16_f32 v{32+i}, v{i}, v{16+i}")
    for i in regs:
        row = 8 * (i >> 2) + (i & 3)
        I(f"ds_write_b16 v68, v{32+i} offset:{row*128}")
        I(f"ds_write_b16_d16_hi v68, v{32+i} offset:{row*128+64}")
    I("s_waitcnt lgkmcnt(0)")
    for k in range(4):
        I(f"ds_read_b128 {vr(4*k,4)}, v71 offset:{1024*k}")
    for k in range(3):
        I(f"s_waitcnt lgkmcnt({3-k})")
        I(f"buffer_store_dwordx4 {vr(4*k,4)}, v70, s[28:31], s49 offen offset:{1024*k}" + os.environ.get("OST", ""))
    I("s_cmp_lt_u32 s44, 25")
    I("s_cbranch_scc1 L_k2_fin")
    I("s_waitcnt lgkmcnt(0)")
    I("s_mov_b64 exec, 0xff")
    I(f"buffer_store_dwordx4 {vr(12,4)}, v70, s[28:31], s49 offen offset:3072" + os.environ.get("OST", ""))
    L("L_k2_fin")
    if STAMP:
        I("s_waitcnt vmcnt(0)")
        stamp(7)
        srd(28, 10, 11, 0x100000, 0x1000000)
        I("s_mov_b64 exec, 1")
        I("s_lshl_b32 s46, s2, 3")
        I("s_add_u32 s46, s46, s3")
        I("s_lshl_b32 s46, s46, 6")
        I("v_mov_b32 v0, 0")
        for k in range(8):
            I(f"v_mov_b32 v1, s{70+2*k}")
            I(f"buffer_store_dword v1, v0, s[28:31], s46 offen offset:{4*k}")
        I("v_mov_b32 v1, s35")
        I(f"buffer_store_dword v1, v0, s[28:31], s46 offen offset:32")
        I("s_getreg_b32 s47, hwreg(HW_REG_XCC_ID)")
        I("v_mov_b32 v1, s47")
        I(f"buffer_store_dword v1, v0, s[28:31], s46 offen offset:36")
        I("s_getreg_b32 s47, hwreg(HW_REG_HW_ID)")
        I("v_mov_b32 v1, s47")
        I(f"buffer_store_dword v1, v0, s[28:31], s46 offen offset:40")
        I("s_memrealtime s[50:51]")
        I("s_waitcnt lgkmcnt(0)")
        I("v_mov_b32 v1, s50")
        I(f"buffer_store_dword v1, v0, s[28:31], s46 offen offset:44")
        I("v_mov_b32 v1, s86")
        I(f"buffer_store_dword v1, v0, s[28:31], s46 offen offset:48")
    if RT >= 0:
        I("s_waitcnt vmcnt(0)")
        stamp(7)
        I("s_add_u32 s46, s2, s3")
        I("s_cmp_lg_u32 s46, 0")
        I("s_cbranch_scc1 L_k2_end")
        srd(28, 10, 11, 64, 0x1800000)
        I("s_mov_b64 exec, 1")
        I("v_mov_b32 v0, 0")
        I("v_mov_b32 v1, s70")
        I("v_mov_b32 v2, s72")
        I("buffer_store_dword v1, v0, s[28:31], 0 offen")
        I("buffer_store_dword v2, v0, s[28:31], 0 offen offset:4")
    L("L_k2_end")
    L("L_k2_last")
    I("s_endpgm")

def kd(name, vgpr, sgpr, accum):
    emit(f".amdhsa_kernel {name}")
    emit(f"  .amdhsa_next_free_vgpr {vgpr}")
    emit(f"  .amdhsa_next_free_sgpr {sgpr}")
    emit(f"  .amdhsa_accum_offset {accum}")
    emit("  .amdhsa_group_segment_fixed_size 0")
    emit("  .amdhsa_kernarg_size 80")
    emit("  .amdhsa_user_sgpr_count 2")
    emit("  .amdhsa_user_sgpr_kernarg_segment_ptr 1")
    emit("  .amdhsa_system_sgpr_workgroup_id_x 1")
    emit(".end_amdhsa_kernel")

def main():
    emit(HEADER.rstrip("\n"))
    if FUSED == 1:
        emit(f"; @launch grid=(256,1,1) block=(512,1,1) lds={K2_LDS}")
    elif FUSED == 2:
        emit(f"; @launch kernel=egc_main_kernel grid=(256,1,1) block=(512,1,1) lds={K2_LDS}")
    else:
        emit(f"; @launch kernel=egc_bin_kernel grid=({NC},1,1) block=(1024,1,1) lds={K1_LDS}")
        emit(f"; @launch kernel=egc_main_kernel grid=(256,1,1) block=(512,1,1) lds={K2_LDS}")
    emit('.amdgcn_target "amdgcn-amd-amdhsa--gfx950"')
    emit(".text")
    if not FUSED:
        gen_k1()
    gen_k2()
    emit('.section .rodata,"a"')
    if not FUSED:
        emit(".p2align 6")
        kd("egc_bin_kernel", 84 if PERM else 56, 96 if STAMP1 else 72, 84 if PERM else 56)
    emit(".p2align 6")
    kd(MAIN, 248, 96, 128)
    path = sys.argv[1] if len(sys.argv) > 1 else "standalone__edge_featured_mpnn_egc__graph.s"
    open(path, "w").write("\n".join(out) + "\n")

main()
```

```python
import sys, os

N = 50000; E = 800000
WN = 25; NWIN = 2048; NB = 256; CH = 3200; NC = 250
WS_WF = 0; WS_TAB = 0x10000; TABROW = 8192; WS_REC = 0x400000; RECROW = CH * 8
PRESCALE = int(os.environ.get('PRESCALE', '1')) if 'os' in globals() else 0
PERM = int(os.environ.get('PERM', '0'))
WS_EAS = 0x2000000
K1PF = int(os.environ.get('K1PF', '0'))
K2PF = int(os.environ.get('K2PF', '0'))
PAIR = int(os.environ.get('PAIR', '1'))
CODEPF = int(os.environ.get('CODEPF', '0'))
STAMP1 = int(os.environ.get('STAMP1', '0'))
FUSED = int(os.environ.get('FUSED', '0'))
SC = ' sc1' if FUSED else ''
MAIN = 'standalone__edge_featured_mpnn_egc__graph_kernel' if FUSED == 1 else 'egc_main_kernel'
TLBPF = int(os.environ.get('TLBPF', '65536'))
M25 = 175921861
NEGLOG2E = 0xBFB8AA3B

import os
STAMP = int(os.environ.get("STAMP", "0"))
RT = int(os.environ.get("RT", "-1"))
def stamp(k):
    if RT >= 0 and k in (0, RT):
        r = 70 if k == 0 else 72
        I(f"s_memrealtime s[{r}:{r+1}]")
        I("s_waitcnt lgkmcnt(0)")
    if STAMP:
        I(f"s_memtime s[{70+2*k}:{71+2*k}]")
        I("s_waitcnt lgkmcnt(0)")
out = []
def emit(s=""):
    out.append(s)
DROP = os.environ.get("DROP", "").split(",")
INLOOP = [False]
def I(s):
    if INLOOP[0]:
        op = s.split()[0]
        if "mfma" in DROP and op.startswith("v_mfma"): return
        if "msparse" in DROP and op.startswith("v_mfma") and (s.split()[1].startswith("a[") or s.split()[2] in ("v[80:83],", "v[84:87],")): return
        if "mh" in DROP and op.startswith("v_mfma") and s.split()[1] in ("v[16:31],", "v[48:63],"): return
        if "trans" in DROP and op in ("v_exp_f32", "v_rcp_f32"): return
        if "valu" in DROP and op in ("v_exp_f32", "v_rcp_f32", "v_mul_f32", "v_add_f32", "v_cvt_pk_bf16_f32"): return
        if "dma" in DROP and op.startswith("buffer_load"): return
        if "lds" in DROP and op.startswith("ds_read_b128"): return
    out.append("    " + s)
def L(s):
    out.append(s + ":")

HEADER = """; Kernarg layout for this problem (80 bytes, ptrs only, base s[0:1]):
"""

def srd(d, lo, hi, size, add=0):
    if add:
        I(f"s_add_u32 s{d}, s{lo}, {add}")
        I(f"s_addc_u32 s{d+1}, s{hi}, 0")
    else:
        I(f"s_mov_b32 s{d}, s{lo}")
        I(f"s_mov_b32 s{d+1}, s{hi}")
    I(f"s_mov_b32 s{d+2}, {size}")
    I(f"s_mov_b32 s{d+3}, 0x00020000")

def wave_scan(regs):
    steps = ["row_shr:1 row_mask:0xf bank_mask:0xf", "row_shr:2 row_mask:0xf bank_mask:0xf",
             "row_shr:4 row_mask:0xf bank_mask:0xf", "row_shr:8 row_mask:0xf bank_mask:0xf",
             "row_bcast:15 row_mask:0xa bank_mask:0xf", "row_bcast:31 row_mask:0xc bank_mask:0xf"]
    I("s_nop 1")
    for st in steps:
        for r in regs:
            I(f"v_add_u32_dpp v{r}, v{r}, v{r} {st}")
        if len(regs) < 3:
            I(f"s_nop {2 - len(regs)}")

K1_HIST = 0
K1_WTOT = 8256
K1_STG = 8448
K1_POS = K1_STG + RECROW
K1_LDS = K1_POS + (CH * 4 if PERM else 0)

def gen_k1():
    emit(".globl egc_bin_kernel")
    emit(".p2align 8")
    emit(".type egc_bin_kernel,@function")
    L("egc_bin_kernel")
    I(f"s_cmp_ge_u32 s2, {NC}")
    I("s_cbranch_scc1 L_k1_end")
    if STAMP1:
        I("s_memtime s[70:71]")
        I("s_waitcnt lgkmcnt(0)")
    I("s_load_dwordx4 s[4:7], s[0:1], 16")
    I("s_load_dwordx4 s[8:11], s[0:1], 32")
    I("s_load_dwordx2 s[12:13], s[0:1], 48")
    I("s_load_dwordx2 s[14:15], s[0:1], 72")
    if PERM:
        I("s_load_dwordx2 s[60:61], s[0:1], 8")
    if K1PF:
        I("s_load_dwordx2 s[68:69], s[0:1], 0")
    I("v_lshlrev_b32 v1, 3, v0")
    I("v_mov_b32 v2, 0")
    I("v_mov_b32 v3, 0")
    I(f"ds_write_b64 v1, v[2:3] offset:{K1_HIST}")
    I(f"v_mov_b32 v3, {CH}")
    I(f"ds_write_b32 v2, v3 offset:{K1_HIST+8192}")
    I("v_lshlrev_b32 v4, 4, v0")
    I("v_lshrrev_b32 v5, 6, v0")
    I(f"s_mul_i32 s32, s2, {CH*4}")
    I("v_readfirstlane_b32 s3, v5")
    I(f"s_mov_b32 s33, {M25}")
    I("s_movk_i32 s36, 3125")
    I(f"s_mul_i32 s37, s2, {CH*32}")
    I("s_waitcnt lgkmcnt(0)")
    if STAMP1:
        I("s_memtime s[72:73]")
        I("s_waitcnt lgkmcnt(0)")
    srd(16, 4, 5, E * 4)
    srd(20, 6, 7, E * 4)
    srd(24, 14, 15, 0x1000000)
    if PERM:
        srd(52, 60, 61, E * 32)
        srd(56, 14, 15, E * 32, WS_EAS)
    I(f"v_cmp_gt_u32 vcc, {CH//4}, v0")
    I("s_and_saveexec_b64 s[34:35], vcc")
    I("s_cbranch_execz L_k1_noload")
    I("buffer_load_dwordx4 v[8:11], v4, s[20:23], s32 offen")
    I("buffer_load_dwordx4 v[12:15], v4, s[16:19], s32 offen")
    L("L_k1_noload")
    I("s_mov_b64 exec, s[34:35]")
    if CODEPF:
        I("s_cmp_lg_u32 s3, 14")
        I("s_cbranch_scc1 L_k1_nocpf")
        I("s_getpc_b64 s[62:63]")
        L("L_k1_pc")
        I("s_add_u32 s62, s62, egc_main_kernel-L_k1_pc")
        I("s_addc_u32 s63, s63, 0")
        I("v_and_b32 v40, 63, v0")
        I("v_lshlrev_b32 v40, 7, v40")
        I("v_min_u32 v41, L_k2_last-egc_main_kernel-8192, v40")
        I("v_add_u32 v41, 8192, v41")
        I("global_load_dword v42, v40, s[62:63]")
        I("global_load_dword v43, v41, s[62:63]")
        L("L_k1_nocpf")
    if TLBPF:
        I("s_cmp_lg_u32 s3, 13")
        I("s_cbranch_scc1 L_k1_notlb")
        I("s_load_dwordx4 s[52:55], s[0:1], 0")
        I("s_load_dwordx2 s[56:57], s[0:1], 56")
        I("s_lshr_b32 s62, s2, 3")
        I("v_and_b32 v40, 63, v0")
        ne_ = -(-(E * 32) // (TLBPF * 32)); nx_ = -(-(N * 128) // (TLBPF * 32))
        I(f"s_mul_i32 s63, s62, {ne_ * TLBPF}")
        I(f"s_mul_i32 s62, s62, {nx_ * TLBPF}")
        I(f"s_mov_b32 s58, {TLBPF}")
        I("v_mul_lo_u32 v41, v40, s58")
        I("s_waitcnt lgkmcnt(0)")
        srd(64, 54, 55, E * 32)
        I(f"s_bfm_b64 exec, {ne_}, 0")
        I("buffer_load_dword v42, v41, s[64:67], s63 offen")
        srd(64, 52, 53, N * 128)
        I(f"s_bfm_b64 exec, {nx_}, 0")
        I("buffer_load_dword v43, v41, s[64:67], s62 offen")
        srd(64, 56, 57, N * 128)
        I("buffer_load_dword v44, v41, s[64:67], s62 offen")
        I("s_mov_b64 exec, -1")
        L("L_k1_notlb")
    I("s_mov_b32 s40, 0")
    I("s_cmp_lg_u32 s3, 15")
    I("s_cbranch_scc1 L_k1_nowf")
    I("s_cmp_ge_u32 s2, 34")
    I("s_cbranch_scc1 L_k1_nowf")
    I("s_mov_b32 s40, 1")
    I("s_mov_b32 s28, s12")
    I("s_mov_b32 s29, s13")
    I(f"s_mov_b32 s30, {144*128}")
    I("s_mov_b32 s31, 0x00020000")
    I("s_mov_b32 s41, s2")
    I("s_cmp_lt_u32 s2, 18")
    I("s_cbranch_scc1 L_k1_wsel")
    I("s_mov_b32 s28, s10")
    I("s_mov_b32 s29, s11")
    I(f"s_mov_b32 s30, {64*128}")
    I("s_sub_u32 s41, s2, 18")
    I("s_cmp_lt_u32 s2, 26")
    I("s_cbranch_scc1 L_k1_wsel")
    I("s_mov_b32 s28, s8")
    I("s_mov_b32 s29, s9")
    I("s_sub_u32 s41, s2, 26")
    L("L_k1_wsel")
    I("s_lshr_b32 s42, s41, 1")
    I("s_lshl_b32 s42, s42, 11")
    I("s_and_b32 s43, s41, 1")
    I("s_lshl_b32 s43, s43, 6")
    I("s_add_u32 s42, s42, s43")
    I("v_and_b32 v40, 31, v0")
    I("v_lshlrev_b32 v40, 1, v40")
    I("v_and_b32 v41, 32, v0")
    I("v_lshl_add_u32 v40, v41, 5, v40")
    for j in range(8):
        I(f"buffer_load_ushort v{44+j}, v40, s[28:31], s42 offen offset:{128*j}")
    L("L_k1_nowf")
    I("s_barrier")
    if PERM:
        for k in range(7):
            if k == 6:
                I("s_cmp_ge_u32 s3, 4")
                I("s_cbranch_scc1 L_k1_e6")
            I(f"s_add_u32 s62, s37, {16384*k}")
            I(f"buffer_load_dwordx4 v[{56+4*k}:{59+4*k}], v4, s[52:55], s62 offen" + os.environ.get("K1EPOL", ""))
        L("L_k1_e6")
    ne = 6 if PERM else 0
    I("s_and_saveexec_b64 s[34:35], vcc")
    I("s_cbranch_execz L_k1_nohist")
    I("v_mov_b32 v6, 1")
    if PERM:
        I("v_mov_b32 v7, s37")
    else:
        I("v_lshl_add_u32 v7, v0, 7, s37")
    I(f"s_waitcnt vmcnt({ne+1})")
    if STAMP1:
        I("s_memtime s[74:75]")
        I("s_waitcnt lgkmcnt(0)")
    for i in range(4):
        I(f"v_mul_hi_u32 v{16+i}, v{8+i}, s33")
    for i in range(4):
        I(f"v_lshlrev_b32 v{20+i}, 2, v{16+i}")
    for i in range(4):
        I(f"ds_add_rtn_u32 v{24+i}, v{20+i}, v6 offset:{K1_HIST}")
    I("v_mov_b32 v5, 0x7f")
    for i in range(4):
        I(f"v_mad_u32_u24 v{28+i}, v{16+i}, s36, v5")
    for i in range(4):
        I(f"v_lshrrev_b32 v{28+i}, 7, v{28+i}")
    for i in range(4):
        I(f"v_sub_u32 v{28+i}, v{8+i}, v{28+i}")
    for i in range(4):
        I(f"v_lshlrev_b32 v{16+i}, 29, v{16+i}")
    for i in range(4):
        I(f"v_or3_b32 v{33+2*i}, v{16+i}, v7, v{28+i}")
    if not PERM:
        for i in range(1, 4):
            I(f"v_add_u32 v{33+2*i}, {32*i}, v{33+2*i}")
    I(f"s_waitcnt vmcnt({ne})")
    for i in range(4):
        I(f"v_lshlrev_b32 v{32+2*i}, 7, v{12+i}")
    L("L_k1_nohist")
    I("s_mov_b64 exec, s[34:35]")
    if K1PF:
        I(f"s_mov_b32 s70, {N*128}")
        I("s_mov_b32 s71, 0x00020000")
        I("s_lshr_b32 s62, s2, 3")
        I(f"s_mul_i32 s62, s62, {K1PF*128}")
        I("s_and_b32 s63, s2, 7")
        I(f"s_mul_i32 s63, s63, {6250*128}")
        I("s_add_u32 s62, s62, s63")
        I("v_lshlrev_b32 v41, 7, v0")
        I(f"s_movk_i32 s63, {K1PF}")
        I("v_cmp_gt_u32 s[48:49], s63, v0")
        I("s_and_saveexec_b64 s[34:35], s[48:49]")
        I("s_cbranch_execz L_k1_nopf")
        I("buffer_load_dword v42, v41, s[68:71], s62 offen")
        L("L_k1_nopf")
        I("s_mov_b64 exec, s[34:35]")
    I("s_waitcnt lgkmcnt(0)")
    I("s_barrier")
    if STAMP1:
        I("s_memtime s[76:77]")
        I("s_waitcnt lgkmcnt(0)")
    I(f"ds_read_b64 v[2:3], v1 offset:{K1_HIST}")
    I("s_waitcnt lgkmcnt(0)")
    I("v_add_u32 v8, v2, v3")
    I("v_mov_b32 v9, v8")
    wave_scan([9])
    I("s_lshl_b32 s44, s3, 2")
    I("v_mov_b32 v10, s44")
    I("s_mov_b32 exec_lo, 0")
    I("s_mov_b32 exec_hi, 0x80000000")
    I(f"ds_write_b32 v10, v9 offset:{K1_WTOT}")
    I("s_mov_b64 exec, -1")
    I("v_and_b32 v10, 15, v0")
    I("v_lshlrev_b32 v10, 2, v10")
    I("s_waitcnt lgkmcnt(0)")
    I("s_barrier")
    I(f"ds_read_b32 v11, v10 offset:{K1_WTOT}")
    I("s_waitcnt lgkmcnt(0)")
    I("v_mov_b32 v12, v11")
    I("s_nop 1")
    for sh in (1, 2, 4, 8):
        I(f"v_add_u32_dpp v12, v12, v12 row_shr:{sh} row_mask:0xf bank_mask:0xf")
        I("s_nop 1")
    I("v_sub_u32 v12, v12, v11")
    I("s_nop 0")
    I("v_readlane_b32 s45, v12, s3")
    I("v_sub_u32 v9, v9, v8")
    I("s_nop 1")
    I("v_add_u32 v9, s45, v9")
    I("v_add_u32 v10, v9, v2")
    I("v_mov_b32 v12, v9")
    I("v_mov_b32 v13, v10")
    I(f"ds_write_b64 v1, v[12:13] offset:{K1_HIST}")
    I("s_waitcnt lgkmcnt(0)")
    I("s_barrier")
    if STAMP1:
        I("s_memtime s[78:79]")
        I("s_waitcnt lgkmcnt(0)")
    I(f"s_movk_i32 s50, {NB}")
    I("v_subrev_u32 v15, 0x300, v0")
    I("v_cmp_gt_u32 s[48:49], s50, v15")
    I("s_and_saveexec_b64 s[34:35], s[48:49]")
    I("s_cbranch_execz L_k1_notab")
    I("v_lshlrev_b32 v14, 5, v15")
    I(f"ds_read_b128 v[8:11], v14 offset:{K1_HIST}")
    I(f"ds_read_b128 v[16:19], v14 offset:{K1_HIST+16}")
    I(f"ds_read_b32 v12, v14 offset:{K1_HIST+32}")
    I("v_lshrrev_b32 v14, 2, v15")
    I("v_lshlrev_b32 v14, 14, v14")
    I("v_and_b32 v13, 3, v15")
    I("v_lshl_add_u32 v14, v13, 4, v14")
    I("s_lshl_b32 s46, s2, 6")
    I(f"s_add_u32 s46, s46, {WS_TAB}")
    I("s_waitcnt lgkmcnt(0)")
    I("v_lshl_or_b32 v8, v9, 16, v8")
    I("v_lshl_or_b32 v9, v11, 16, v10")
    I("v_lshl_or_b32 v10, v17, 16, v16")
    I("v_lshl_or_b32 v11, v19, 16, v18")
    I("v_and_b32 v13, 15, v12")
    I("v_lshl_or_b32 v8, v13, 12, v8")
    I("v_lshrrev_b32 v13, 4, v12")
    I("v_lshl_or_b32 v8, v13, 28, v8")
    I("v_lshrrev_b32 v13, 8, v12")
    I("v_lshl_or_b32 v9, v13, 12, v9")
    I("buffer_store_dwordx4 v[8:11], v14, s[24:27], s46 offen" + os.environ.get("K1ST", " sc1"))
    L("L_k1_notab")
    I("s_mov_b64 exec, s[34:35]")
    I("s_and_saveexec_b64 s[34:35], vcc")
    I("s_cbranch_execz L_k1_noscat")
    for i in range(4):
        I(f"ds_read_b32 v{28+i}, v{20+i} offset:{K1_HIST}")
    for i in range(4):
        I(f"s_waitcnt lgkmcnt({3-i})")
        I(f"v_add_lshl_u32 v{28+i}, v{28+i}, v{24+i}, 3")
    if PERM:
        for i in range(4):
            I(f"v_lshlrev_b32 v{20+i}, 2, v{28+i}")
        for i in range(4):
            I(f"v_add_u32 v{33+2*i}, v{33+2*i}, v{20+i}")
        I(f"ds_write_b128 v4, v[20:23] offset:{K1_POS}")
    for i in range(4):
        I(f"ds_write_b64 v{28+i}, v[{32+2*i}:{33+2*i}] offset:{K1_STG}")
    L("L_k1_noscat")
    I("s_mov_b64 exec, s[34:35]")
    I("s_waitcnt lgkmcnt(0)")
    I("s_barrier")
    if STAMP1:
        I("s_memtime s[80:81]")
        I("s_waitcnt lgkmcnt(0)")
    I(f"s_mul_i32 s46, s2, {RECROW}")
    I(f"s_add_u32 s46, s46, {WS_REC}")
    I(f"ds_read_b128 v[8:11], v4 offset:{K1_STG}")
    I(f"v_cmp_gt_u32 vcc, {RECROW//16 - 1024}, v0")
    I("s_and_saveexec_b64 s[34:35], vcc")
    I("s_cbranch_execz L_k1_no2")
    I(f"ds_read_b128 v[12:15], v4 offset:{K1_STG + 16384}")
    I("s_add_u32 s47, s46, 16384")
    I("s_waitcnt lgkmcnt(0)")
    I("buffer_store_dwordx4 v[12:15], v4, s[24:27], s47 offen" + os.environ.get("K1ST", " sc1"))
    L("L_k1_no2")
    I("s_mov_b64 exec, s[34:35]")
    I("s_waitcnt lgkmcnt(0)")
    I("buffer_store_dwordx4 v[8:11], v4, s[24:27], s46 offen" + os.environ.get("K1ST", " sc1"))
    if PERM:
        I("v_lshrrev_b32 v16, 1, v0")
        I("v_lshlrev_b32 v16, 2, v16")
        I("v_and_b32 v17, 1, v0")
        I("v_lshlrev_b32 v17, 4, v17")
        for k in range(7):
            I(f"ds_read_b32 v{20+k}, v16 offset:{K1_POS+2048*k}")
        for k in range(7):
            if k == 6:
                I("s_cmp_ge_u32 s3, 4")
                I("s_cbranch_scc1 L_k1_s6")
            I(f"s_waitcnt lgkmcnt({6-k})")
            I(f"v_add_u32 v{20+k}, v{20+k}, v17")
            if k == 0:
                I("s_waitcnt vmcnt(0)")
            I(f"buffer_store_dwordx4 v[{56+4*k}:{59+4*k}], v{20+k}, s[56:59], s37 offen" + os.environ.get("K1SPOL", ""))
        L("L_k1_s6")
    if STAMP1:
        I("s_memtime s[82:83]")
        I("s_waitcnt lgkmcnt(0)")
    if STAMP1:
        I("s_waitcnt vmcnt(0)")
        I("s_memtime s[84:85]")
        I("s_waitcnt lgkmcnt(0)")
        srd(64, 14, 15, 0x100000, 0x1000000)
        I("s_mov_b64 s[34:35], exec")
        I("s_mov_b64 exec, 1")
        I("s_lshl_b32 s46, s2, 4")
        I("s_add_u32 s46, s46, s3")
        I("s_lshl_b32 s46, s46, 6")
        I("v_mov_b32 v2, 0")
        for k in range(8):
            I(f"v_mov_b32 v1, s{70+2*k}")
            I(f"buffer_store_dword v1, v2, s[64:67], s46 offen offset:{4*k}")
        I("s_mov_b64 exec, s[34:35]")
    I("s_cmp_eq_u32 s40, 0")
    I("s_cbranch_scc1 L_k1_end")
    I("s_waitcnt vmcnt(0)")
    if PRESCALE:
        I("s_sub_u32 s46, s2, 8")
        I("s_cmp_lt_u32 s46, 10")
        I(f"s_cselect_b32 s47, {NEGLOG2E}, 1.0")
        for j in range(8):
            I(f"v_lshlrev_b32 v{44+j}, 16, v{44+j}")
        for j in range(8):
            I(f"v_mul_f32 v{44+j}, s47, v{44+j}")
        for j in range(4):
            I(f"v_cvt_pk_bf16_f32 v{52+j}, v{44+2*j}, v{45+2*j}")
    else:
        for j in range(4):
            I(f"v_lshl_or_b32 v{52+j}, v{45+2*j}, 16, v{44+2*j}")
    I("v_and_b32 v40, 63, v0")
    I("v_lshlrev_b32 v40, 4, v40")
    I("s_lshl_b32 s46, s2, 10")
    I("buffer_store_dwordx4 v[52:55], v40, s[24:27], s46 offen")
    L("L_k1_end")
    I("s_endpgm")

WSTG = 0
LCAP = 4352
TLIM = 3584
LIST_S = 34816
LIST_M = LIST_S + LCAP * 4
SM = LIST_M + LCAP * 4
SMW = 2000
OH = SM + 16576
BASET = OH + 2560
WTOT = BASET + 4096
STG = WTOT + 256
STGW = 8192
K2_LDS = STG + 8 * STGW
assert STG % 128 == 0 or True
EMASK = 0x01FFFFE0

G = [0, 32]; H = [16, 48]
AX = 64; ST = 80; S = 88; EB = [96, 100]; T = 104
VAX = 112; PC = 116; H16 = 117; LSA = 118; LMA = 119; K1C = 120; SRA = 121; OHC = 122; SW = 123; ONE = 124
A_WB = 0; A_WV = 40; A_XA = 72; A_AGG = 88

def wb(s, c): return A_WB + (2 * s + c) * 4
def wv(s, c): return A_WV + (2 * s + c) * 4
def xa(s, c): return A_XA + (2 * s + c) * 4
def vr(b, n): return f"v[{b}:{b+n-1}]"
def ar(b, n): return f"a[{b}:{b+n-1}]"

def mfma(d, a, b, c):
    return f"v_mfma_f32_32x32x16_bf16 {d}, {a}, {b}, {c}"

def mfma_group(c, par):
    m = []
    g = vr(G[c], 16); h = vr(H[c], 16)
    m.append(mfma(g, vr(EB[par], 4), ar(wb(4, c), 4), "0"))
    for s in range(2):
        m.append(mfma(g, vr(ST + 4 * s, 4), ar(xa(s, c), 4), g))
    for s in range(4):
        m.append(mfma(g, vr(AX + 4 * s, 4), ar(wb(s, c), 4), g))
    for s in range(4):
        m.append(mfma(h, vr(AX + 4 * s, 4), ar(wv(s, c), 4), "0" if s == 0 else h))
    return m

def valu_group(c):
    g = G[c]; h = H[c]
    stages = [
        lambda i: f"v_mul_f32 v{g+i}, s43, v{g+i}",
        lambda i: f"v_exp_f32 v{g+i}, v{g+i}",
        lambda i: f"v_add_f32 v{g+i}, 1.0, v{g+i}",
        lambda i: f"v_rcp_f32 v{g+i}, v{g+i}",
        lambda i: f"v_mul_f32 v{g+i}, v{g+i}, v{h+i}",
    ]
    if PRESCALE:
        stages = stages[1:]
    v = []
    D = 2
    nst = len(stages)
    for step in range(16 + D * nst + 2):
        for k in range(nst):
            i = step - D * k
            if 0 <= i < 16:
                v.append(stages[k](i))
        i = step - D * nst
        if 0 <= i < 16 and i % 2 == 1:
            p = i // 2
            v.append(f"v_cvt_pk_bf16_f32 v{g+p}, v{g+i-1}, v{g+i}")
    return v

def agg_group(c):
    a = ar(A_AGG + 16 * c, 16)
    return [mfma(a, vr(S, 4), vr(G[c], 4), a), mfma(a, vr(S + 4, 4), vr(G[c] + 4, 4), a)]

def put(lst):
    for x in lst:
        if x.endswith(":"):
            emit(x)
        else:
            I(x)

def interleave(mf, va, per, inserts):
    mi = 0
    for i, v in enumerate(va):
        if i % per == 0 and mi < len(mf):
            I(mf[mi])
            mi += 1
        if i in inserts:
            put(inserts[i])
        I(v)
    assert mi == len(mf)

NOMEM = int(os.environ.get("NOMEM", "0"))
def x_dma(par):
    r = []
    if NOMEM:
        for k in range(4):
            r.append(f"v_and_b32 v{T+k}, 0x3f80, v{T+k}")
    r.append(f"v_add_u32 v{T+0}, v{PC}, v{T+0}")
    r.append(f"v_xad_u32 v{T+1}, v{PC}, 64, v{T+1}")
    r.append(f"v_add_u32 v{T+2}, v{PC}, v{T+2}")
    r.append(f"v_xad_u32 v{T+3}, v{PC}, 64, v{T+3}")
    for k in range(4):
        r.append(f"s_add_u32 m0, s37, {par*4096 + k*1024}")
        r.append("s_nop 0")
        r.append(f"buffer_load_dwordx4 v{T+k}, s[12:15], 0 offen lds")
    return r

def e_load(par, meta):
    r = []
    if NOMEM:
        r.append(f"v_and_b32 v{meta}, 0x3fff, v{meta}")
    r.append(f"v_and_or_b32 v{T+6}, v{meta}, s40, v{H16}")
    r.append(f"buffer_load_dwordx4 {vr(EB[par],4)}, v{T+6}, s[16:19], 0 offen" + (os.environ.get("EPOL", " nt") if (par == 0 or not int(os.environ.get("EHALF", "1"))) else ""))
    return r

def a_reads(par):
    r = []
    for s in range(2):
        r.append(f"ds_read_b128 {vr(ST+4*s,4)}, v{T+7} offset:{16*s}")
    for s in range(4):
        r.append(f"ds_read_b128 {vr(AX+4*s,4)}, v{VAX+s} offset:{par*4096}")
    return r

PRIO = int(os.environ.get("PRIO", "1"))
PTH = [int(x) for x in os.environ.get("PTH", "4,3,2").split(",")]
def prio_code(par):
    r = []
    for lim, p in zip(PTH, (2, 1, 0)):
        r += [f"s_cmp_lt_u32 s36, {lim}",
              f"s_cbranch_scc0 L_pr_done_{par}",
              f"s_setprio {p}"]
    r += [f"L_pr_done_{par}:"]
    return r


def gen_role1():
    FH = STG; FW = STG + 8256; FS = STG + 8448
    I(f"s_cmp_ge_u32 s2, {NC}")
    I("s_cbranch_scc1 L_f_done")
    I("v_lshlrev_b32 v1, 4, v0")
    for i in range(4):
        I(f"v_mov_b32 v{2+i}, 0")
    I(f"v_add_u32 v64, {FH}, v1")
    I("ds_write_b128 v64, v[2:5]")
    I(f"v_mov_b32 v6, {CH}")
    I(f"v_mov_b32 v7, {FH+8192}")
    I("ds_write_b32 v7, v6")
    I("v_lshlrev_b32 v65, 5, v0")
    I(f"s_mul_i32 s60, s2, {CH*4}")
    I(f"s_mov_b32 s61, {M25}")
    I("s_movk_i32 s62, 3125")
    I(f"s_mul_i32 s63, s2, {CH*32}")
    I("s_waitcnt lgkmcnt(0)")
    srd(12, 52, 53, E * 4)
    srd(16, 54, 55, E * 4)
    srd(24, 10, 11, 0x1000000)
    I(f"v_cmp_gt_u32 vcc, {CH//8}, v0")
    I("s_and_saveexec_b64 s[50:51], vcc")
    I("s_cbranch_execz L_f_noload")
    I("buffer_load_dwordx4 v[8:11], v65, s[16:19], s60 offen")
    I("buffer_load_dwordx4 v[12:15], v65, s[16:19], s60 offen offset:16")
    I("buffer_load_dwordx4 v[16:19], v65, s[12:15], s60 offen")
    I("buffer_load_dwordx4 v[20:23], v65, s[12:15], s60 offen offset:16")
    L("L_f_noload")
    I("s_mov_b64 exec, -1")
    I("s_barrier")
    I("s_and_saveexec_b64 s[50:51], vcc")
    I("s_cbranch_execz L_f_nohist")
    I("v_mov_b32 v6, 1")
    I("v_mov_b32 v5, 0x7f")
    I("v_lshl_add_u32 v7, v0, 8, s63")
    I("s_waitcnt vmcnt(2)")
    for i in range(8):
        I(f"v_mul_hi_u32 v{24+i}, v{8+i}, s61")
    for i in range(8):
        I(f"v_lshlrev_b32 v{32+i}, 2, v{24+i}")
    for i in range(8):
        I(f"v_add_u32 v{32+i}, {FH}, v{32+i}")
    for i in range(8):
        I(f"ds_add_rtn_u32 v{40+i}, v{32+i}, v6")
    for i in range(8):
        I(f"v_mad_u32_u24 v{72+i}, v{24+i}, s62, v5")
    for i in range(8):
        I(f"v_lshrrev_b32 v{72+i}, 7, v{72+i}")
    for i in range(8):
        I(f"v_sub_u32 v{72+i}, v{8+i}, v{72+i}")
    for i in range(8):
        I(f"v_lshlrev_b32 v{24+i}, 29, v{24+i}")
    for i in range(8):
        I(f"v_or3_b32 v{49+2*i}, v{24+i}, v7, v{72+i}")
    for i in range(1, 8):
        I(f"v_add_u32 v{49+2*i}, {32*i}, v{49+2*i}")
    I("s_waitcnt vmcnt(0)")
    for i in range(8):
        I(f"v_lshlrev_b32 v{48+2*i}, 7, v{16+i}")
    L("L_f_nohist")
    I("s_mov_b64 exec, -1")
    I("s_waitcnt lgkmcnt(0)")
    I("s_barrier")
    I("ds_read_b128 v[8:11], v64")
    I("s_waitcnt lgkmcnt(0)")
    I("v_add_u32 v12, v8, v9")
    I("v_add_u32 v13, v12, v10")
    I("v_add_u32 v14, v13, v11")
    I("v_mov_b32 v15, v14")
    wave_scan([15])
    I("s_lshl_b32 s46, s3, 2")
    I(f"s_add_u32 s46, s46, {FW}")
    I("v_mov_b32 v16, s46")
    I("s_mov_b32 exec_lo, 0")
    I("s_mov_b32 exec_hi, 0x80000000")
    I("ds_write_b32 v16, v15")
    I("s_mov_b64 exec, -1")
    I("v_and_b32 v16, 7, v0")
    I("v_lshlrev_b32 v16, 2, v16")
    I(f"v_add_u32 v16, {FW}, v16")
    I("s_waitcnt lgkmcnt(0)")
    I("s_barrier")
    I("ds_read_b32 v17, v16")
    I("s_waitcnt lgkmcnt(0)")
    I("v_mov_b32 v18, v17")
    I("s_nop 1")
    for sh in (1, 2, 4):
        I(f"v_add_u32_dpp v18, v18, v18 row_shr:{sh} row_mask:0xf bank_mask:0xf")
        I("s_nop 1")
    I("v_sub_u32 v18, v18, v17")
    I("s_nop 0")
    I("v_readlane_b32 s46, v18, s3")
    I("v_sub_u32 v15, v15, v14")
    I("s_nop 1")
    I("v_add_u32 v20, s46, v15")
    I("v_add_u32 v21, v20, v8")
    I("v_add_u32 v22, v20, v12")
    I("v_add_u32 v23, v20, v13")
    I("ds_write_b128 v64, v[20:23]")
    I("s_waitcnt lgkmcnt(0)")
    I("s_barrier")
    I("s_cmp_lt_u32 s3, 4")
    I("s_cbranch_scc1 L_f_notab")
    I("v_subrev_u32 v15, 0x100, v0")
    I("v_lshlrev_b32 v14, 5, v15")
    I(f"v_add_u32 v14, {FH}, v14")
    I("ds_read_b128 v[8:11], v14")
    I("ds_read_b128 v[16:19], v14 offset:16")
    I("ds_read_b32 v12, v14 offset:32")
    I("v_lshrrev_b32 v14, 2, v15")
    I("v_lshlrev_b32 v14, 14, v14")
    I("v_and_b32 v13, 3, v15")
    I("v_lshl_add_u32 v14, v13, 4, v14")
    I("s_lshl_b32 s46, s2, 6")
    I(f"s_add_u32 s46, s46, {WS_TAB}")
    I("s_waitcnt lgkmcnt(0)")
    I("v_lshl_or_b32 v8, v9, 16, v8")
    I("v_lshl_or_b32 v9, v11, 16, v10")
    I("v_lshl_or_b32 v10, v17, 16, v16")
    I("v_lshl_or_b32 v11, v19, 16, v18")
    I("v_and_b32 v13, 15, v12")
    I("v_lshl_or_b32 v8, v13, 12, v8")
    I("v_lshrrev_b32 v13, 4, v12")
    I("v_lshl_or_b32 v8, v13, 28, v8")
    I("v_lshrrev_b32 v13, 8, v12")
    I("v_lshl_or_b32 v9, v13, 12, v9")
    I("buffer_store_dwordx4 v[8:11], v14, s[24:27], s46 offen sc1")
    L("L_f_notab")
    I("s_and_saveexec_b64 s[50:51], vcc")
    I("s_cbranch_execz L_f_noscat")
    for i in range(8):
        I(f"ds_read_b32 v{72+i}, v{32+i}")
    for i in range(8):
        I(f"s_waitcnt lgkmcnt({7-i})")
        I(f"v_add_lshl_u32 v{72+i}, v{72+i}, v{40+i}, 3")
    for i in range(8):
        I(f"v_add_u32 v{72+i}, {FS}, v{72+i}")
    for i in range(8):
        I(f"ds_write_b64 v{72+i}, v[{48+2*i}:{49+2*i}]")
    L("L_f_noscat")
    I("s_mov_b64 exec, -1")
    I("s_waitcnt lgkmcnt(0)")
    I("s_barrier")
    I(f"s_mul_i32 s46, s2, {RECROW}")
    I(f"s_add_u32 s46, s46, {WS_REC}")
    I(f"v_add_u32 v64, {FS}, v1")
    for k in range(4):
        I(f"ds_read_b128 v[{16+4*k}:{19+4*k}], v64 offset:{8192*k}")
    for k in range(4):
        if k == 3:
            I("s_cmp_lg_u32 s3, 0")
            I("s_cbranch_scc1 L_f_st3")
        I(f"s_waitcnt lgkmcnt({3-k})")
        I(f"s_add_u32 s60, s46, {8192*k}")
        I(f"buffer_store_dwordx4 v[{16+4*k}:{19+4*k}], v1, s[24:27], s60 offen sc1")
    L("L_f_st3")
    I("s_waitcnt vmcnt(0) lgkmcnt(0)")
    I("s_barrier")
    I("s_cmp_lg_u32 s3, 0")
    I("s_cbranch_scc1 L_f_done")
    I("v_mov_b32 v2, 1")
    I("v_mov_b32 v3, s2")
    I("s_mov_b64 exec, 1")
    I("buffer_store_byte v2, v3, s[64:67], 0 offen sc1")
    I("s_mov_b64 exec, -1")
    L("L_f_done")

def gen_wprep():
    I("v_and_b32 v2, 31, v67")
    I("v_lshlrev_b32 v2, 1, v2")
    I("v_and_b32 v3, 32, v67")
    I("v_lshl_add_u32 v2, v3, 5, v2")
    for k in range(5):
        I(f"s_add_u32 s46, s3, {8*k}")
        if k == 4:
            I("s_min_u32 s46, s46, 33")
        I("s_cmp_lt_u32 s46, 26")
        I("s_cselect_b32 s28, s90, s88")
        I("s_cselect_b32 s29, s91, s89")
        I("s_cselect_b32 s60, 18, 26")
        I("s_cmp_lt_u32 s46, 18")
        I("s_cselect_b32 s28, s58, s28")
        I("s_cselect_b32 s29, s59, s29")
        I("s_cselect_b32 s60, 0, s60")
        I(f"s_mov_b32 s30, {64*128}")
        I(f"s_cselect_b32 s30, {144*128}, s30")
        I("s_mov_b32 s31, 0x00020000")
        I("s_sub_u32 s60, s46, s60")
        I("s_lshr_b32 s61, s60, 1")
        I("s_lshl_b32 s61, s61, 11")
        I("s_and_b32 s60, s60, 1")
        I("s_lshl_b32 s60, s60, 6")
        I("s_add_u32 s61, s61, s60")
        for j in range(8):
            I(f"buffer_load_ushort v{12+8*k+j}, v2, s[28:31], s61 offen offset:{128*j}")

def gen_wpack():
    for k in range(5):
        I(f"s_add_u32 s46, s3, {8*k}")
        if k == 4:
            I("s_min_u32 s46, s46, 33")
        I(f"s_waitcnt vmcnt({8*(4-k)})")
        b = 12 + 8 * k
        if PRESCALE:
            I("s_sub_u32 s60, s46, 8")
            I("s_cmp_lt_u32 s60, 10")
            I(f"s_cselect_b32 s61, {NEGLOG2E}, 1.0")
            for j in range(8):
                I(f"v_lshlrev_b32 v{b+j}, 16, v{b+j}")
            for j in range(8):
                I(f"v_mul_f32 v{b+j}, s61, v{b+j}")
            for j in range(4):
                I(f"v_cvt_pk_bf16_f32 v{52+j}, v{b+2*j}, v{b+2*j+1}")
        else:
            for j in range(4):
                I(f"v_lshl_or_b32 v{52+j}, v{b+2*j+1}, 16, v{b+2*j}")
        I("s_lshl_b32 s46, s46, 10")
        I("v_add_u32 v56, s46, v70")
        I(f"ds_write_b128 v56, v[52:55] offset:{WSTG}")

def gen_wait():
    I("s_cmp_lg_u32 s3, 0")
    I("s_cbranch_scc1 L_w_done")
    I("v_lshlrev_b32 v2, 2, v67")
    I("v_mov_b32 v3, 0x01010101")
    I("v_cmp_eq_u32 vcc, 62, v67")
    I("v_mov_b32 v4, 0x00000101")
    I("s_nop 0")
    I("v_cndmask_b32 v3, v3, v4, vcc")
    I("v_cmp_eq_u32 vcc, 63, v67")
    I("s_mov_b32 s60, 0")
    I("s_nop 0")
    I("v_cndmask_b32 v3, v3, 0, vcc")
    L("L_w_loop")
    I("buffer_load_dword v4, v2, s[64:67], 0 offen sc1")
    I("s_add_u32 s60, s60, 1")
    I("s_waitcnt vmcnt(0)")
    I("v_cmp_ne_u32 vcc, v3, v4")
    I("s_cmp_gt_u32 s60, 0x40000")
    I("s_cbranch_scc1 L_w_done")
    I("s_cmp_eq_u64 vcc, 0")
    I("s_cbranch_scc1 L_w_done")
    I("s_sleep 1")
    I("s_branch L_w_loop")
    L("L_w_done")
    I("s_waitcnt lgkmcnt(0)")
    I("s_barrier")

def gen_round_head():
    L("L_round")
    I("s_lshl_b32 s46, s3, 5")
    I("v_lshrrev_b32 v66, 1, v67")
    I("v_add_u32 v66, s46, v66")
    I("v_lshlrev_b32 v65, 6, v66")
    I("buffer_load_dwordx4 v[48:51], v65, s[20:23], 0 offen" + SC)

def gen_k2():
    emit(f".globl {MAIN}")
    emit(".p2align 8")
    emit(f".type {MAIN},@function")
    L(MAIN)
    I("s_cmp_ge_u32 s2, 256")
    I("s_cbranch_scc1 L_k2_end")
    I("s_load_dwordx2 s[10:11], s[0:1], 72")
    I("s_load_dwordx4 s[4:7], s[0:1], 0")
    I("s_load_dwordx2 s[8:9], s[0:1], 56")
    if FUSED:
        I("s_load_dwordx4 s[52:55], s[0:1], 16")
        I("s_load_dwordx4 s[88:91], s[0:1], 32")
        I("s_load_dwordx2 s[58:59], s[0:1], 48")
        I("s_load_dwordx2 s[64:65], s[0:1], 64")
    I("s_and_b32 s38, s2, 7")
    I("s_lshr_b32 s39, s2, 3")
    I("s_lshl_b32 s32, s38, 5")
    I("s_add_u32 s32, s32, s39")
    stamp(0)
    if STAMP:
        I("s_memrealtime s[86:87]")
    I("v_lshrrev_b32 v1, 6, v0")
    I("v_and_b32 v67, 63, v0")
    I("v_readfirstlane_b32 s3, v1")
    I("s_mov_b32 s33, 0")
    I(f"s_movk_i32 s34, {NC}")
    I("s_mov_b32 s47, 1")
    I("s_lshr_b32 s48, s32, 2")
    I("s_lshl_b32 s48, s48, 14")
    I("s_and_b32 s46, s32, 3")
    I("s_lshl_b32 s46, s46, 4")
    I("s_add_u32 s48, s48, s46")
    I(f"s_add_u32 s48, s48, {WS_TAB}")
    I("s_waitcnt lgkmcnt(0)")
    I("s_add_u32 s20, s10, s48")
    I("s_addc_u32 s21, s11, 0")
    I(f"s_mov_b32 s22, {(NC-1)*64+16}")
    I("s_mov_b32 s23, 0x00020000")
    if FUSED:
        I("s_movk_i32 s66, 256")
        I("s_mov_b32 s67, 0x00020000")
        gen_role1()
        I("v_lshlrev_b32 v70, 4, v67")
        gen_wprep()
    else:
        gen_round_head()
        I("s_cmp_eq_u32 s47, 0")
        I("s_cbranch_scc1 L_noconst")
        srd(28, 10, 11, 34 * 1024)
        I("v_lshlrev_b32 v70, 4, v67")
        for k in range(5):
            I(f"s_add_u32 s46, s3, {8*k}")
            if k == 4:
                I("s_min_u32 s46, s46, 33")
            I("s_lshl_b32 s46, s46, 10")
            I(f"s_add_u32 m0, s46, {WSTG}")
            I("s_nop 0")
            I("buffer_load_dwordx4 v70, s[28:31], s46 offen lds")
    srd(12, 4, 5, N * 128)
    if PERM:
        srd(16, 10, 11, E * 32, WS_EAS)
    else:
        srd(16, 6, 7, E * 32)
    srd(24, 10, 11, NC * RECROW, WS_REC)
    I(f"s_mov_b32 s40, {EMASK}")
    I("s_movk_i32 s42, 80")
    I(f"s_mov_b32 s43, {NEGLOG2E}")
    I(f"s_lshl_b32 s37, s3, 13")
    I(f"s_add_u32 s37, s37, {STG}")
    I("v_and_b32 v3, 31, v67")
    I("v_lshrrev_b32 v4, 5, v67")
    I("v_bfe_u32 v5, v3, 1, 3")
    I("v_xor_b32 v5, v5, v4")
    I("v_lshlrev_b32 v5, 4, v5")
    I("v_lshl_add_u32 v5, v3, 7, v5")
    I(f"v_add_u32 v{VAX}, s37, v5")
    for s in range(1, 4):
        I(f"v_xor_b32 v6, {32*s}, v5")
        I(f"v_add_u32 v{VAX+s}, s37, v6")
    I("v_lshrrev_b32 v5, 4, v67")
    I("v_and_b32 v6, 7, v67")
    I("v_xor_b32 v5, v5, v6")
    I(f"v_lshlrev_b32 v{PC}, 4, v5")
    I(f"v_lshlrev_b32 v{H16}, 4, v4")
    I(f"s_mul_i32 s46, s3, {SMW}")
    I(f"s_add_u32 s46, s46, {SM}")
    I("v_lshrrev_b32 v5, 4, v3")
    I("v_lshlrev_b32 v5, 5, v5")
    I("v_bfe_u32 v6, v3, 2, 1")
    I("v_lshl_add_u32 v5, v6, 4, v5")
    I("v_bfe_u32 v6, v3, 3, 1")
    I("v_lshl_add_u32 v5, v6, 3, v5")
    I("v_and_b32 v6, 3, v3")
    I("v_lshl_add_u32 v5, v6, 1, v5")
    I(f"v_add_u32 v{K1C}, s46, v5")
    I(f"v_add_u32 v6, s46, v{H16}")
    I(f"v_mad_u32_u24 v{SRA}, v3, s42, v6")
    I("v_lshlrev_b32 v6, 5, v4")
    I(f"v_add_u32 v{OHC}, {OH}, v6")
    I(f"v_mov_b32 v{ONE}, 1.0")
    for i in range(4):
        I(f"v_mov_b32 v{8+i}, 0")
    I("v_add_u32 v7, s46, v70")
    I("ds_write_b128 v7, v[8:11]")
    I("v_cmp_gt_u32 vcc, 61, v67")
    I("s_and_saveexec_b64 s[50:51], vcc")
    I("ds_write_b128 v7, v[8:11] offset:1024")
    I("s_mov_b64 exec, -1")
    I("s_cmp_lg_u32 s3, 0")
    I("s_cbranch_scc1 L_noconst")
    I(f"v_add_u32 v7, {OH}, v70")
    I("ds_write_b128 v7, v[8:11]")
    I("ds_write_b128 v7, v[8:11] offset:1024")
    I("s_mov_b32 exec_hi, 0")
    I("ds_write_b128 v7, v[8:11] offset:2048")
    I("v_bfe_u32 v6, v3, 2, 1")
    I("v_lshlrev_b32 v6, 5, v6")
    I("v_lshrrev_b32 v7, 4, v3")
    I("v_lshl_add_u32 v6, v7, 4, v6")
    I("v_and_b32 v7, 15, v5")
    I("v_add_u32 v6, v6, v7")
    I("v_mad_u32_u24 v6, v3, s42, v6")
    I(f"v_add_u32 v6, {OH}, v6")
    I(f"ds_write_b16_d16_hi v6, v{ONE}")
    I("s_mov_b64 exec, -1")
    L("L_noconst")
    if FUSED:
        gen_wpack()
        gen_wait()
        gen_round_head()
    if not FUSED:
        I("s_cmp_eq_u32 s47, 0")
        I("s_cbranch_scc1 L_tw0")
        I("s_waitcnt vmcnt(5)")
        I("s_branch L_tw1")
        L("L_tw0")
    I("s_waitcnt vmcnt(0)")
    L("L_tw1")
    stamp(1)
    I("v_bfe_u32 v52, v48, 12, 4")
    I("v_lshrrev_b32 v53, 28, v48")
    I("v_lshl_or_b32 v52, v53, 4, v52")
    I("v_bfe_u32 v53, v49, 12, 4")
    I("v_lshl_or_b32 v52, v53, 8, v52")
    I("v_and_b32 v48, 0x0fff0fff, v48")
    I("v_and_b32 v49, 0xffff0fff, v49")
    I("v_and_b32 v53, 0xffff, v48")
    I("v_subrev_u32 v54, s33, v66")
    I("s_sub_u32 s46, s34, s33")
    I("v_cmp_gt_u32 s[52:53], s46, v54")
    I("v_and_b32 v55, 1, v67")
    I("v_lshl_add_u32 v64, v55, 1, v53")
    I("v_cndmask_b32 v54, v53, v52, s[52:53]")
    I(f"s_movk_i32 s46, {RECROW}")
    I("v_mul_u32_u24 v65, s46, v66")
    I("v_lshl_add_u32 v65, v64, 3, v65")
    I("v_sub_u32 v68, v54, v64")
    def rec_loads(tag):
        for i in range(8):
            I(f"v_cmpx_lt_i32 vcc, {4*i}, v68")
            I("s_nop 0")
            I(f"s_cbranch_execz L_rl_{tag}")
            I(f"buffer_load_dwordx4 v[{4*i}:{4*i+3}], v65, s[24:27], 0 offen offset:{32*i}" + SC)
        L(f"L_rl_{tag}")
        I("s_mov_b64 exec, -1")
    rec_loads("a")
    if K2PF:
        I("s_cmp_eq_u32 s47, 0")
        I("s_cbranch_scc1 L_nopf")
        I("s_lshl_b32 s46, s39, 3")
        I("s_add_u32 s46, s46, s3")
        I(f"s_mul_i32 s46, s46, {K2PF*64*128}")
        I("v_lshlrev_b32 v71, 7, v67")
        for k in range(K2PF):
            I(f"s_add_u32 s50, s46, {k*8192}")
            I(f"buffer_load_dword v{T+k}, v71, s[12:15], s50 offen")
        L("L_nopf")
    I("v_cmp_eq_u32 vcc, 0, v55")
    I("s_and_b64 vcc, vcc, s[52:53]")
    I("v_alignbit_b32 v72, v49, v48, 16")
    I("v_alignbit_b32 v73, v50, v49, 16")
    I("v_alignbit_b32 v74, v51, v50, 16")
    I("v_alignbit_b32 v75, v52, v51, 16")
    for i in range(4):
        I(f"v_sub_u32 v{72+i}, v{72+i}, v{48+i}")
    I("v_sub_u32 v76, v52, v53")
    for i in range(5):
        I(f"v_cndmask_b32 v{72+i}, 0, v{72+i}, vcc")
    for i in range(5):
        I(f"v_mov_b32 v{80+i}, v{72+i}")
    wave_scan([80, 81, 82, 83, 84])
    I("s_lshl_b32 s46, s3, 5")
    I(f"s_add_u32 s46, s46, {WTOT}")
    I("v_mov_b32 v69, s46")
    I("s_mov_b32 exec_lo, 0")
    I("s_mov_b32 exec_hi, 0x80000000")
    I("ds_write_b128 v69, v[80:83]")
    I("ds_write_b32 v69, v84 offset:16")
    I("s_mov_b64 exec, -1")
    I("v_and_b32 v69, 7, v67")
    I("v_lshlrev_b32 v69, 5, v69")
    I(f"v_add_u32 v69, {WTOT}, v69")
    I("s_waitcnt lgkmcnt(0)")
    I("s_barrier")
    stamp(2)
    I("ds_read_b128 v[88:91], v69")
    I("ds_read_b32 v92, v69 offset:16")
    I("s_waitcnt lgkmcnt(0)")
    for i in range(5):
        I(f"v_mov_b32 v{56+i}, v{88+i}")
    I("s_nop 1")
    for sh in (1, 2, 4):
        for i in range(5):
            I(f"v_add_u32_dpp v{56+i}, v{56+i}, v{56+i} row_shr:{sh} row_mask:0xf bank_mask:0xf")
    I("s_nop 1")
    for i in range(4):
        I(f"v_sub_u32 v{88+i}, v{56+i}, v{88+i}")
    I("v_readlane_b32 s60, v60, 7")
    for i in range(4):
        I(f"v_readlane_b32 s{56+i}, v{56+i}, 7")
    for i in range(4):
        I(f"v_readlane_b32 s{52+i}, v{88+i}, s3")
    I(f"s_cmp_le_u32 s60, {TLIM}")
    I("s_cbranch_scc1 L_fits")
    I("s_sub_u32 s46, s34, s33")
    I("s_cmp_eq_u32 s46, 1")
    I("s_cselect_b32 s34, s34, s33")
    for i in range(4):
        I(f"s_mov_b32 s{56+i}, 0")
    I("v_mov_b32 v68, 0")
    L("L_fits")
    for i in range(4):
        I(f"v_mov_b32 v{56+i}, s{56+i}")
    I("v_and_b32 v60, 7, v67")
    I("v_lshrrev_b32 v61, 3, v67")
    def lane_count(src, dst):
        I(f"v_bfe_u32 v93, v{src}, 1, 1")
        I(f"v_cmp_eq_u32 vcc, 1, v93")
        I(f"v_bfe_u32 v93, v{src}, 2, 1")
        I(f"v_cmp_eq_u32 s[50:51], 1, v93")
        I("v_cndmask_b32 v94, v56, v57, vcc")
        I("v_cndmask_b32 v95, v58, v59, vcc")
        I(f"v_and_b32 v93, 1, v{src}")
        I("v_cndmask_b32 v94, v94, v95, s[50:51]")
        I("v_lshlrev_b32 v93, 4, v93")
        I(f"v_bfe_u32 v{dst}, v94, v93, 16")
    lane_count(60, 88)
    I("v_add_u32 v89, 0x5f, v88")
    I("v_and_b32 v89, 0xffe0, v89")
    I("v_mov_b32 v90, v89")
    I("s_cmp_eq_u32 s47, 0")
    I("s_cbranch_scc1 L_paired")
    if PAIR:
        lane_count(61, 63)
        I("v_lshl_add_u32 v62, v88, 3, v60")
        I("v_lshl_add_u32 v63, v63, 3, v61")
        I("v_cmp_gt_u32 vcc, v62, v63")
        I("s_sub_u32 s64, 11, s3")
        I("s_cmp_lt_u32 s3, 4")
        I("s_cselect_b32 s64, s3, s64")
        I("s_mov_b32 s41, 0")
        for i in range(8):
            I(f"s_bfe_u32 s65, {'vcc_lo' if i < 4 else 'vcc_hi'}, {(8*(i%4)) | (8 << 16)}")
            I("s_bcnt1_i32_b32 s65, s65")
            I("s_cmp_eq_u32 s65, s64")
            I(f"s_cselect_b32 s41, {i}, s41")
    else:
        I("s_mov_b32 s41, s3")
    L("L_paired")
    for sh in (1, 2, 4):
        I("s_nop 1")
        I(f"v_add_u32_dpp v90, v90, v90 row_shr:{sh} row_mask:0xf bank_mask:0xf")
    I("v_sub_u32 v91, v90, v89")
    I("v_lshl_or_b32 v92, v90, 16, v91")
    I("v_readlane_b32 s62, v91, s41")
    I("v_readlane_b32 s63, v88, s41")
    for i in range(4):
        I(f"v_readlane_b32 s{64+i}, v92, {2*i}")
    for i in range(4):
        I(f"s_add_u32 s{52+i}, s{52+i}, s{64+i}")
        I(f"s_add_u32 s{52+i}, s{52+i}, 0x10001000")
    for i in range(4):
        I(f"v_sub_u32 v{80+i}, v{80+i}, v{72+i}")
    for i in range(4):
        I(f"v_add_u32 v{80+i}, s{52+i}, v{80+i}")
    for i in range(4):
        I(f"v_sub_u32 v{80+i}, v{80+i}, v{48+i}")
    for i in range(4):
        I(f"v_lshlrev_b32 v{80+i}, 2, v{80+i}")
    I("v_lshlrev_b32 v69, 4, v66")
    I(f"v_add_u32 v69, {BASET}, v69")
    I("s_mov_b32 exec_lo, 0x55555555")
    I("s_mov_b32 exec_hi, 0x55555555")
    I("ds_write_b128 v69, v[80:83]")
    I("s_mov_b64 exec, -1")
    I("s_add_u32 s64, s63, 31")
    I("s_lshr_b32 s35, s64, 5")
    I("s_lshl_b32 s64, s35, 5")
    I("s_sub_u32 s64, s64, s63")
    I("s_add_u32 s65, s62, s63")
    I("v_add_lshl_u32 v72, v67, s65, 2")
    I("v_mov_b32 v73, 0xffffff00")
    I(f"v_mov_b32 v74, {EMASK}")
    I(f"ds_write2st64_b32 v72, v73, v74 offset0:{LIST_S//256} offset1:{LIST_M//256}")
    I("v_cmp_gt_u32 vcc, s64, v67")
    I("s_and_saveexec_b64 s[50:51], vcc")
    I(f"ds_write2st64_b32 v72, v73, v74 offset0:{LIST_S//256+1} offset1:{LIST_M//256+1}")
    I("s_mov_b64 exec, -1")
    I("s_lshl_b32 s64, s62, 2")
    I("v_lshrrev_b32 v72, 3, v67")
    I("v_lshlrev_b32 v72, 4, v72")
    I(f"s_add_u32 s65, s64, {LIST_S}")
    I(f"v_add_u32 v{LSA}, s65, v72")
    I("v_and_b32 v72, 7, v67")
    I("v_bfe_u32 v73, v67, 3, 2")
    I("v_lshl_add_u32 v72, v72, 2, v73")
    I("v_lshlrev_b32 v72, 2, v72")
    I(f"s_add_u32 s65, s64, {LIST_M}")
    I(f"v_add_u32 v{LMA}, s65, v72")
    I("s_cmp_eq_u32 s47, 0")
    I("s_cbranch_scc1 L_scat")
    for i in range(16):
        I(f"v_mov_b32 v{80+i}, 0")
    I("v_and_b32 v72, 31, v67")
    I(f"v_lshl_add_u32 v72, v72, 7, v{H16}")
    I("s_lshl_b32 s46, s32, 3")
    I("s_add_u32 s46, s46, s41")
    I("s_mul_i32 s46, s46, 3125")
    I("s_add_u32 s49, s46, 127")
    I("s_lshr_b32 s49, s49, 7")
    I(f"s_add_u32 s44, s46, {3125+127}")
    I("s_lshr_b32 s44, s44, 7")
    I("s_sub_u32 s44, s44, s49")
    I("s_lshl_b32 s49, s49, 7")
    I("s_bfm_b32 s46, s44, 0")
    I("s_mov_b32 exec_lo, s46")
    I("s_mov_b32 exec_hi, s46")
    for s in range(4):
        I(f"buffer_load_dwordx4 {vr(80+4*s,4)}, v72, s[12:15], s49 offen offset:{32*s}")
    I("s_mov_b64 exec, -1")
    I(f"s_waitcnt vmcnt({4+K2PF})")
    I("s_branch L_scat1")
    L("L_scat")
    I("s_waitcnt vmcnt(0)")
    L("L_scat1")
    stamp(3)
    o0 = (LIST_S - 16384) // 256; o1 = (LIST_M - 16384) // 256
    I("v_lshlrev_b32 v73, 2, v64")
    for half in range(2):
        R = range(8 * half, 8 * half + 8)
        if half:
            I("v_cmpx_lt_i32 vcc, 16, v68")
            I("v_add_u32 v73, 64, v73")
            I("s_cbranch_execz L_scat_done")
        for r in R:
            I(f"v_lshrrev_b32 v{32+r}, 28, v{2*r+1}")
        for r in R:
            I(f"v_add_u32 v{32+r}, v{32+r}, v69")
        for r in R:
            I(f"ds_read_u16 v{32+r}, v{32+r}")
        for r in R:
            i, k = r // 2, r % 2
            I(f"v_cmpx_lt_i32 vcc, {4*i+k}, v68")
            if r % 8 == 0:
                I("s_waitcnt lgkmcnt(0)")
            I(f"v_add3_u32 v{32+r}, v{32+r}, v73, {4*(4*i+k-16*half)}")
            if k == 0:
                I("s_cbranch_execz L_scat_done")
            I(f"ds_write2st64_b32 v{32+r}, v{2*r}, v{2*r+1} offset0:{o0} offset1:{o1}")
    I("v_cmpx_lt_i32 vcc, 32, v68")
    I("s_nop 0")
    I("s_cbranch_execz L_scat_done")
    I("s_mov_b64 exec, -1")
    I("v_add_u32 v64, 32, v64")
    I("v_subrev_u32 v68, 32, v68")
    I("v_add_u32 v65, 256, v65")
    I("s_waitcnt lgkmcnt(0)")
    rec_loads("b")
    I("s_branch L_scat")
    L("L_scat_done")
    I("s_mov_b64 exec, -1")
    I("s_waitcnt lgkmcnt(0)")
    I("s_barrier")
    stamp(4)
    I(f"ds_read_b128 {vr(T,4)}, v{LSA}")
    I(f"ds_read2_b32 {vr(T+4,2)}, v{LMA} offset0:0 offset1:32")
    I("s_waitcnt lgkmcnt(0)")
    put(x_dma(0))
    put(e_load(0, T + 4))
    I(f"ds_read_b128 {vr(T,4)}, v{LSA} offset:128")
    I("s_cmp_eq_u32 s47, 0")
    I("s_cbranch_scc1 L_noinit")
    for f in range(8):
        I(f"ds_read_b128 {vr(4*f,4)}, v70 offset:{WSTG+1024*f}")
    I("s_waitcnt vmcnt(5) lgkmcnt(0)")
    for c in range(2):
        d = vr(32 + 16 * c, 16)
        for s in range(4):
            I(mfma(d, vr(80 + 4 * s, 4), vr((2 * s + c) * 4, 4), "0" if s == 0 else d))
    for f in range(8):
        I(f"ds_read_b128 {vr(4*f,4)}, v70 offset:{WSTG+1024*(26+f)}")
    I("s_nop 7")
    if PRESCALE:
        for i in range(32):
            I(f"v_mul_f32 v{32+i}, s43, v{32+i}")
    I("s_waitcnt lgkmcnt(0)")
    for f in range(18):
        I(f"ds_read_b128 {ar(4*f,4)}, v70 offset:{WSTG+1024*(8+f)}")
    k = 0
    for c in range(2):
        a = ar(A_AGG + 16 * c, 16)
        for s in range(4):
            I(mfma(a, vr(80 + 4 * s, 4), vr((2 * s + c) * 4, 4), "0" if s == 0 else a))
            for p in (k, k + 1):
                I(f"v_cvt_pk_bf16_f32 v{64+p}, v{32+2*p}, v{32+2*p+1}")
            k += 2
    for c in range(2):
        for p in range(8):
            I(f"v_accvgpr_write_b32 a{xa(p//4, c) + p%4}, v{64+8*c+p}")
    I("s_mov_b32 s47, 0")
    L("L_noinit")
    I("s_cmp_eq_u32 s35, 0")
    I("s_cbranch_scc1 L_round_end")
    I(f"v_and_b32 v{T+4}, 31, v{T+4}")
    I(f"v_mad_u32_u24 v{T+7}, v{T+4}, s42, v{OHC}")
    I(f"v_mad_u32_u24 v{SW}, v{T+4}, s42, v{K1C}")
    I(f"ds_write_b16_d16_hi v{SW}, v{ONE}")
    I("s_waitcnt lgkmcnt(0)")
    put(x_dma(1))
    put(e_load(1, T + 5))
    for i in range(8):
        I(f"v_mov_b32 v{G[1]+i}, 0")
    for i in range(8):
        I(f"v_mov_b32 v{S+i}, 0")
    I("s_waitcnt vmcnt(5)")
    put(a_reads(0))
    I(f"ds_read_b128 {vr(T,4)}, v{LSA} offset:256")
    I("s_mov_b32 s36, s35")
    if PRIO:
        I("s_setprio 3")
    stamp(5)
    m0 = mfma_group(0, 0)
    I(m0[0])
    I("s_waitcnt lgkmcnt(0)")
    I(m0[1])
    put(x_dma(0))
    put(m0[2:])
    I("s_nop 7")
    I("s_branch L_p1_0")
    L("L_loop")
    INLOOP[0] = True
    nv = len(valu_group(0))
    pos = [2 + (k * (nv - 4)) // 13 for k in range(13)]
    def sched(mf, va, inserts):
        pend = []
        mi = 0
        for i, v in enumerate(va):
            if mi < len(mf) and i == pos[mi]:
                put(inserts.get(('b', mi), []))
                I(mf[mi])
                put(inserts.get(('m', mi), []))
                pend += inserts.get(('s', mi), [])
                mi += 1
            I(v)
            if pend:
                put([pend.pop(0)])
        assert mi == len(mf)
        put(pend)
    def nonop(lst):
        return [x for x in lst if x != "s_nop 0"]
    for par in range(2):
        ins = {('b', 3): ["s_waitcnt lgkmcnt(1)"],
               ('m', 4): ["s_waitcnt lgkmcnt(0)"],
               ('s', 4): nonop(x_dma(par))}
        if PRIO:
            ins[('m', 0)] = prio_code(par)
        if int(os.environ.get("DUPH", "0")):
            ins[('s', 5)] = [mfma_group(0, par)[7]] + ["s_nop 0"] * 2 + [mfma_group(0, par)[8]] + ["s_nop 0"] * 2 + [mfma_group(0, par)[9]] + ["s_nop 0"] * 2 + [mfma_group(0, par)[10]]
        sched(agg_group(0) + mfma_group(0, par), valu_group(1), ins)
        L(f"L_p1_{par}")
        ins = {('m', 0): [f"ds_read2_b32 {vr(T+4,2)}, v{LMA} offset0:32 offset1:64"],
               ('s', 1): [f"ds_read_b128 {vr(S,4)}, v{SRA}",
                          f"ds_read_b128 {vr(S+4,4)}, v{SRA} offset:32",
                          f"ds_write_b16 v{SW}, v{ONE}"],
               ('m', 3): ["s_waitcnt lgkmcnt(3)"] + e_load(par, T + 5),
               ('s', 3): [f"v_and_b32 v{T+4}, 31, v{T+4}",
                          f"v_add_u32 v{LSA}, 128, v{LSA}",
                          f"v_mad_u32_u24 v{T+7}, v{T+4}, s42, v{OHC}",
                          f"v_mad_u32_u24 v{SW}, v{T+4}, s42, v{K1C}",
                          f"v_add_u32 v{LMA}, 128, v{LMA}",
                          f"ds_write_b16_d16_hi v{SW}, v{ONE}",
                          "s_sub_u32 s36, s36, 1"],
               ('m', 4): [f"v_mov_b32 v{T+6}, v{T+6}"] * int(os.environ.get("EXTRAV", "0")),
               ('m', 12): ["s_waitcnt vmcnt(5) lgkmcnt(0)"] + a_reads(par ^ 1) + [f"ds_read_b128 {vr(T,4)}, v{LSA} offset:256"]}
        sched(agg_group(1) + mfma_group(1, par), valu_group(0), ins)
        I("s_cmp_eq_u32 s36, 0")
        if par == 0:
            I("s_cbranch_scc1 L_tail")
        else:
            I("s_cbranch_scc0 L_loop")
    L("L_tail")
    INLOOP[0] = False
    I(f"ds_write_b16 v{SW}, v{ONE}")
    I("s_nop 0")
    put(agg_group(0))
    put(valu_group(1))
    I("s_nop 1")
    put(agg_group(1))
    L("L_round_end")
    I(f"s_cmp_ge_u32 s34, {NC}")
    I("s_cbranch_scc1 L_epi")
    I("s_mov_b32 s33, s34")
    I("s_add_u32 s34, s34, 1")
    I("v_mbcnt_lo_u32_b32 v67, -1, 0")
    I("v_mbcnt_hi_u32_b32 v67, -1, v67")
    I("s_waitcnt vmcnt(0) lgkmcnt(0)")
    I("s_barrier")
    I("s_branch L_round")
    L("L_epi")
    I("s_waitcnt vmcnt(0) lgkmcnt(0)")
    stamp(6)
    srd(28, 8, 9, N * 128)
    I("v_mbcnt_lo_u32_b32 v67, -1, 0")
    I("v_mbcnt_hi_u32_b32 v67, -1, v67")
    I("v_and_b32 v68, 31, v67")
    I("v_lshrrev_b32 v69, 5, v67")
    I("v_lshlrev_b32 v68, 1, v68")
    I("v_lshl_add_u32 v68, v69, 9, v68")
    I("v_add_u32 v68, s37, v68")
    I("v_lshlrev_b32 v70, 4, v67")
    I("v_add_u32 v71, s37, v70")
    I("s_nop 7")
    I("s_nop 7")
    regs = [i for i in range(13)]
    for c in range(2):
        for i in regs:
            I(f"v_accvgpr_read_b32 v{16*c+i}, a{A_AGG+16*c+i}")
    ids = [16 * c + i for c in range(2) for i in regs]
    for r in ids:
        I(f"v_mul_f32 v{32+r}, s43, v{r}")
    for r in ids:
        I(f"v_exp_f32 v{32+r}, v{32+r}")
    for r in ids:
        I(f"v_add_f32 v{32+r}, 1.0, v{32+r}")
    for r in ids:
        I(f"v_rcp_f32 v{32+r}, v{32+r}")
    for r in ids:
        I(f"v_mul_f32 v{r}, v{r}, v{32+r}")
    for i in regs:
        I(f"v_cvt_pk_bf16_f32 v{32+i}, v{i}, v{16+i}")
    for i in regs:
        row = 8 * (i >> 2) + (i & 3)
        I(f"ds_write_b16 v68, v{32+i} offset:{row*128}")
        I(f"ds_write_b16_d16_hi v68, v{32+i} offset:{row*128+64}")
    I("s_waitcnt lgkmcnt(0)")
    for k in range(4):
        I(f"ds_read_b128 {vr(4*k,4)}, v71 offset:{1024*k}")
    for k in range(3):
        I(f"s_waitcnt lgkmcnt({3-k})")
        I(f"buffer_store_dwordx4 {vr(4*k,4)}, v70, s[28:31], s49 offen offset:{1024*k}" + os.environ.get("OST", " sc1"))
    I("s_cmp_lt_u32 s44, 25")
    I("s_cbranch_scc1 L_k2_fin")
    I("s_waitcnt lgkmcnt(0)")
    I("s_mov_b64 exec, 0xff")
    I(f"buffer_store_dwordx4 {vr(12,4)}, v70, s[28:31], s49 offen offset:3072" + os.environ.get("OST", " sc1"))
    L("L_k2_fin")
    if STAMP:
        I("s_waitcnt vmcnt(0)")
        stamp(7)
        srd(28, 10, 11, 0x100000, 0x1000000)
        I("s_mov_b64 exec, 1")
        I("s_lshl_b32 s46, s2, 3")
        I("s_add_u32 s46, s46, s3")
        I("s_lshl_b32 s46, s46, 6")
        I("v_mov_b32 v0, 0")
        for k in range(8):
            I(f"v_mov_b32 v1, s{70+2*k}")
            I(f"buffer_store_dword v1, v0, s[28:31], s46 offen offset:{4*k}")
        I("v_mov_b32 v1, s35")
        I(f"buffer_store_dword v1, v0, s[28:31], s46 offen offset:32")
        I("s_getreg_b32 s47, hwreg(HW_REG_XCC_ID)")
        I("v_mov_b32 v1, s47")
        I(f"buffer_store_dword v1, v0, s[28:31], s46 offen offset:36")
        I("s_getreg_b32 s47, hwreg(HW_REG_HW_ID)")
        I("v_mov_b32 v1, s47")
        I(f"buffer_store_dword v1, v0, s[28:31], s46 offen offset:40")
        I("s_memrealtime s[50:51]")
        I("s_waitcnt lgkmcnt(0)")
        I("v_mov_b32 v1, s50")
        I(f"buffer_store_dword v1, v0, s[28:31], s46 offen offset:44")
        I("v_mov_b32 v1, s86")
        I(f"buffer_store_dword v1, v0, s[28:31], s46 offen offset:48")
    if RT >= 0:
        I("s_waitcnt vmcnt(0)")
        stamp(7)
        I("s_add_u32 s46, s2, s3")
        I("s_cmp_lg_u32 s46, 0")
        I("s_cbranch_scc1 L_k2_end")
        srd(28, 10, 11, 64, 0x1800000)
        I("s_mov_b64 exec, 1")
        I("v_mov_b32 v0, 0")
        I("v_mov_b32 v1, s70")
        I("v_mov_b32 v2, s72")
        I("buffer_store_dword v1, v0, s[28:31], 0 offen")
        I("buffer_store_dword v2, v0, s[28:31], 0 offen offset:4")
    L("L_k2_end")
    L("L_k2_last")
    I("s_endpgm")

def kd(name, vgpr, sgpr, accum):
    emit(f".amdhsa_kernel {name}")
    emit(f"  .amdhsa_next_free_vgpr {vgpr}")
    emit(f"  .amdhsa_next_free_sgpr {sgpr}")
    emit(f"  .amdhsa_accum_offset {accum}")
    emit("  .amdhsa_group_segment_fixed_size 0")
    emit("  .amdhsa_kernarg_size 80")
    emit("  .amdhsa_user_sgpr_count 2")
    emit("  .amdhsa_user_sgpr_kernarg_segment_ptr 1")
    emit("  .amdhsa_system_sgpr_workgroup_id_x 1")
    emit(".end_amdhsa_kernel")

def main():
    emit(HEADER.rstrip("\n"))
    if FUSED == 1:
        emit(f"; @launch grid=(256,1,1) block=(512,1,1) lds={K2_LDS}")
    elif FUSED == 2:
        emit(f"; @launch kernel=egc_main_kernel grid=(256,1,1) block=(512,1,1) lds={K2_LDS}")
    else:
        emit(f"; @launch kernel=egc_bin_kernel grid=({NC},1,1) block=(1024,1,1) lds={K1_LDS}")
        emit(f"; @launch kernel=egc_main_kernel grid=(256,1,1) block=(512,1,1) lds={K2_LDS}")
    emit('.amdgcn_target "amdgcn-amd-amdhsa--gfx950"')
    emit(".text")
    if not FUSED:
        gen_k1()
    gen_k2()
    emit('.section .rodata,"a"')
    if not FUSED:
        emit(".p2align 6")
        kd("egc_bin_kernel", 84 if PERM else 56, 96 if STAMP1 else 72, 84 if PERM else 56)
    emit(".p2align 6")
    kd(MAIN, 248, 96, 128)
    path = sys.argv[1] if len(sys.argv) > 1 else "standalone__edge_featured_mpnn_egc__graph.s"
    open(path, "w").write("\n".join(out) + "\n")

main()
```

```python
import sys, os

N = 50000; E = 800000
WN = 25; NWIN = 2048; NB = 256; CH = 3200; NC = 250
WS_WF = 0; WS_TAB = 0x10000; TABROW = 8192; WS_REC = 0x400000; RECROW = CH * 8
PRESCALE = int(os.environ.get('PRESCALE', '1')) if 'os' in globals() else 0
PERM = int(os.environ.get('PERM', '0'))
WS_EAS = 0x2000000
K1PF = int(os.environ.get('K1PF', '0'))
K2PF = int(os.environ.get('K2PF', '0'))
PAIR = int(os.environ.get('PAIR', '1'))
CODEPF = int(os.environ.get('CODEPF', '0'))
STAMP1 = int(os.environ.get('STAMP1', '0'))
FUSED = int(os.environ.get('FUSED', '0'))
SC = ' sc1' if FUSED else ''
MAIN = 'standalone__edge_featured_mpnn_egc__graph_kernel' if FUSED == 1 else 'egc_main_kernel'
TLBPF = int(os.environ.get('TLBPF', '65536'))
M25 = 175921861
NEGLOG2E = 0xBFB8AA3B

import os
STAMP = int(os.environ.get("STAMP", "0"))
RT = int(os.environ.get("RT", "-1"))
def stamp(k):
    if RT >= 0 and k in (0, RT):
        r = 70 if k == 0 else 72
        I(f"s_memrealtime s[{r}:{r+1}]")
        I("s_waitcnt lgkmcnt(0)")
    if STAMP:
        I(f"s_memtime s[{70+2*k}:{71+2*k}]")
        I("s_waitcnt lgkmcnt(0)")
out = []
def emit(s=""):
    out.append(s)
DROP = os.environ.get("DROP", "").split(",")
INLOOP = [False]
def I(s):
    if INLOOP[0]:
        op = s.split()[0]
        if "mfma" in DROP and op.startswith("v_mfma"): return
        if "msparse" in DROP and op.startswith("v_mfma") and (s.split()[1].startswith("a[") or s.split()[2] in ("v[80:83],", "v[84:87],")): return
        if "mh" in DROP and op.startswith("v_mfma") and s.split()[1] in ("v[16:31],", "v[48:63],"): return
        if "trans" in DROP and op in ("v_exp_f32", "v_rcp_f32"): return
        if "valu" in DROP and op in ("v_exp_f32", "v_rcp_f32", "v_mul_f32", "v_add_f32", "v_cvt_pk_bf16_f32"): return
        if "dma" in DROP and op.startswith("buffer_load"): return
        if "lds" in DROP and op.startswith("ds_read_b128"): return
    out.append("    " + s)
def L(s):
    out.append(s + ":")

HEADER = """; Kernarg layout for this problem (80 bytes, ptrs only, base s[0:1]):
"""

def srd(d, lo, hi, size, add=0):
    if add:
        I(f"s_add_u32 s{d}, s{lo}, {add}")
        I(f"s_addc_u32 s{d+1}, s{hi}, 0")
    else:
        I(f"s_mov_b32 s{d}, s{lo}")
        I(f"s_mov_b32 s{d+1}, s{hi}")
    I(f"s_mov_b32 s{d+2}, {size}")
    I(f"s_mov_b32 s{d+3}, 0x00020000")

def wave_scan(regs):
    steps = ["row_shr:1 row_mask:0xf bank_mask:0xf", "row_shr:2 row_mask:0xf bank_mask:0xf",
             "row_shr:4 row_mask:0xf bank_mask:0xf", "row_shr:8 row_mask:0xf bank_mask:0xf",
             "row_bcast:15 row_mask:0xa bank_mask:0xf", "row_bcast:31 row_mask:0xc bank_mask:0xf"]
    I("s_nop 1")
    for st in steps:
        for r in regs:
            I(f"v_add_u32_dpp v{r}, v{r}, v{r} {st}")
        if len(regs) < 3:
            I(f"s_nop {2 - len(regs)}")

K1_HIST = 0
K1_WTOT = 8256
K1_STG = 8448
K1_POS = K1_STG + RECROW
K1_LDS = K1_POS + (CH * 4 if PERM else 0)

def gen_k1():
    emit(".globl egc_bin_kernel")
    emit(".p2align 8")
    emit(".type egc_bin_kernel,@function")
    L("egc_bin_kernel")
    I(f"s_cmp_ge_u32 s2, {NC}")
    I("s_cbranch_scc1 L_k1_end")
    if STAMP1:
        I("s_memtime s[70:71]")
        I("s_waitcnt lgkmcnt(0)")
    if STAMP:
        I("s_memrealtime s[68:69]")
    I("s_load_dwordx4 s[4:7], s[0:1], 16")
    I("s_load_dwordx4 s[8:11], s[0:1], 32")
    I("s_load_dwordx2 s[12:13], s[0:1], 48")
    I("s_load_dwordx2 s[14:15], s[0:1], 72")
    if PERM:
        I("s_load_dwordx2 s[60:61], s[0:1], 8")
    if K1PF:
        I("s_load_dwordx2 s[68:69], s[0:1], 0")
    I("v_lshlrev_b32 v1, 3, v0")
    I("v_mov_b32 v2, 0")
    I("v_mov_b32 v3, 0")
    I(f"ds_write_b64 v1, v[2:3] offset:{K1_HIST}")
    I(f"v_mov_b32 v3, {CH}")
    I(f"ds_write_b32 v2, v3 offset:{K1_HIST+8192}")
    I("v_lshlrev_b32 v4, 4, v0")
    I("v_lshrrev_b32 v5, 6, v0")
    I(f"s_mul_i32 s32, s2, {CH*4}")
    I("v_readfirstlane_b32 s3, v5")
    I(f"s_mov_b32 s33, {M25}")
    I("s_movk_i32 s36, 3125")
    I(f"s_mul_i32 s37, s2, {CH*32}")
    I("s_waitcnt lgkmcnt(0)")
    if STAMP1:
        I("s_memtime s[72:73]")
        I("s_waitcnt lgkmcnt(0)")
    srd(16, 4, 5, E * 4)
    srd(20, 6, 7, E * 4)
    srd(24, 14, 15, 0x1000000)
    if STAMP:
        srd(64, 14, 15, 0x1000, 0x1100000)
        I("s_lshl_b32 s62, s2, 2")
        I("v_mov_b32 v40, s68")
        I("v_lshlrev_b32 v41, 12, v0")
        I("buffer_store_dword v40, v41, s[64:67], s62 offen")
    if PERM:
        srd(52, 60, 61, E * 32)
        srd(56, 14, 15, E * 32, WS_EAS)
    I(f"v_cmp_gt_u32 vcc, {CH//4}, v0")
    I("s_and_saveexec_b64 s[34:35], vcc")
    I("s_cbranch_execz L_k1_noload")
    I("buffer_load_dwordx4 v[8:11], v4, s[20:23], s32 offen")
    I("buffer_load_dwordx4 v[12:15], v4, s[16:19], s32 offen")
    L("L_k1_noload")
    I("s_mov_b64 exec, s[34:35]")
    if CODEPF:
        I("s_cmp_lg_u32 s3, 14")
        I("s_cbranch_scc1 L_k1_nocpf")
        I("s_getpc_b64 s[62:63]")
        L("L_k1_pc")
        I("s_add_u32 s62, s62, egc_main_kernel-L_k1_pc")
        I("s_addc_u32 s63, s63, 0")
        I("v_and_b32 v40, 63, v0")
        I("v_lshlrev_b32 v40, 7, v40")
        I("v_min_u32 v41, L_k2_last-egc_main_kernel-8192, v40")
        I("v_add_u32 v41, 8192, v41")
        I("global_load_dword v42, v40, s[62:63]")
        I("global_load_dword v43, v41, s[62:63]")
        L("L_k1_nocpf")
    if TLBPF:
        I("s_cmp_lg_u32 s3, 13")
        I("s_cbranch_scc1 L_k1_notlb")
        I("s_load_dwordx4 s[52:55], s[0:1], 0")
        I("s_load_dwordx2 s[56:57], s[0:1], 56")
        I("s_lshr_b32 s62, s2, 3")
        I("v_and_b32 v40, 63, v0")
        ne_ = -(-(E * 32) // (TLBPF * 32)); nx_ = -(-(N * 128) // (TLBPF * 32))
        I(f"s_mul_i32 s63, s62, {ne_ * TLBPF}")
        I(f"s_mul_i32 s62, s62, {nx_ * TLBPF}")
        I(f"s_mov_b32 s58, {TLBPF}")
        I("v_mul_lo_u32 v41, v40, s58")
        I("s_waitcnt lgkmcnt(0)")
        srd(64, 54, 55, E * 32)
        I(f"s_bfm_b64 exec, {ne_}, 0")
        I("buffer_load_dword v42, v41, s[64:67], s63 offen")
        srd(64, 52, 53, N * 128)
        I(f"s_bfm_b64 exec, {nx_}, 0")
        I("buffer_load_dword v43, v41, s[64:67], s62 offen")
        srd(64, 56, 57, N * 128)
        I("buffer_load_dword v44, v41, s[64:67], s62 offen")
        I("s_mov_b64 exec, -1")
        L("L_k1_notlb")
    I("s_mov_b32 s40, 0")
    I("s_cmp_lg_u32 s3, 15")
    I("s_cbranch_scc1 L_k1_nowf")
    I("s_cmp_ge_u32 s2, 34")
    I("s_cbranch_scc1 L_k1_nowf")
    I("s_mov_b32 s40, 1")
    I("s_mov_b32 s28, s12")
    I("s_mov_b32 s29, s13")
    I(f"s_mov_b32 s30, {144*128}")
    I("s_mov_b32 s31, 0x00020000")
    I("s_mov_b32 s41, s2")
    I("s_cmp_lt_u32 s2, 18")
    I("s_cbranch_scc1 L_k1_wsel")
    I("s_mov_b32 s28, s10")
    I("s_mov_b32 s29, s11")
    I(f"s_mov_b32 s30, {64*128}")
    I("s_sub_u32 s41, s2, 18")
    I("s_cmp_lt_u32 s2, 26")
    I("s_cbranch_scc1 L_k1_wsel")
    I("s_mov_b32 s28, s8")
    I("s_mov_b32 s29, s9")
    I("s_sub_u32 s41, s2, 26")
    L("L_k1_wsel")
    I("s_lshr_b32 s42, s41, 1")
    I("s_lshl_b32 s42, s42, 11")
    I("s_and_b32 s43, s41, 1")
    I("s_lshl_b32 s43, s43, 6")
    I("s_add_u32 s42, s42, s43")
    I("v_and_b32 v40, 31, v0")
    I("v_lshlrev_b32 v40, 1, v40")
    I("v_and_b32 v41, 32, v0")
    I("v_lshl_add_u32 v40, v41, 5, v40")
    for j in range(8):
        I(f"buffer_load_ushort v{44+j}, v40, s[28:31], s42 offen offset:{128*j}")
    L("L_k1_nowf")
    I("s_barrier")
    if PERM:
        for k in range(7):
            if k == 6:
                I("s_cmp_ge_u32 s3, 4")
                I("s_cbranch_scc1 L_k1_e6")
            I(f"s_add_u32 s62, s37, {16384*k}")
            I(f"buffer_load_dwordx4 v[{56+4*k}:{59+4*k}], v4, s[52:55], s62 offen" + os.environ.get("K1EPOL", ""))
        L("L_k1_e6")
    ne = 6 if PERM else 0
    I("s_and_saveexec_b64 s[34:35], vcc")
    I("s_cbranch_execz L_k1_nohist")
    I("v_mov_b32 v6, 1")
    if PERM:
        I("v_mov_b32 v7, s37")
    else:
        I("v_lshl_add_u32 v7, v0, 7, s37")
    I(f"s_waitcnt vmcnt({ne+1})")
    if STAMP1:
        I("s_memtime s[74:75]")
        I("s_waitcnt lgkmcnt(0)")
    for i in range(4):
        I(f"v_mul_hi_u32 v{16+i}, v{8+i}, s33")
    for i in range(4):
        I(f"v_lshlrev_b32 v{20+i}, 2, v{16+i}")
    for i in range(4):
        I(f"ds_add_rtn_u32 v{24+i}, v{20+i}, v6 offset:{K1_HIST}")
    I("v_mov_b32 v5, 0x7f")
    for i in range(4):
        I(f"v_mad_u32_u24 v{28+i}, v{16+i}, s36, v5")
    for i in range(4):
        I(f"v_lshrrev_b32 v{28+i}, 7, v{28+i}")
    for i in range(4):
        I(f"v_sub_u32 v{28+i}, v{8+i}, v{28+i}")
    for i in range(4):
        I(f"v_lshlrev_b32 v{16+i}, 29, v{16+i}")
    for i in range(4):
        I(f"v_or3_b32 v{33+2*i}, v{16+i}, v7, v{28+i}")
    if not PERM:
        for i in range(1, 4):
            I(f"v_add_u32 v{33+2*i}, {32*i}, v{33+2*i}")
    I(f"s_waitcnt vmcnt({ne})")
    for i in range(4):
        I(f"v_lshlrev_b32 v{32+2*i}, 7, v{12+i}")
    L("L_k1_nohist")
    I("s_mov_b64 exec, s[34:35]")
    if K1PF:
        I(f"s_mov_b32 s70, {N*128}")
        I("s_mov_b32 s71, 0x00020000")
        I("s_lshr_b32 s62, s2, 3")
        I(f"s_mul_i32 s62, s62, {K1PF*128}")
        I("s_and_b32 s63, s2, 7")
        I(f"s_mul_i32 s63, s63, {6250*128}")
        I("s_add_u32 s62, s62, s63")
        I("v_lshlrev_b32 v41, 7, v0")
        I(f"s_movk_i32 s63, {K1PF}")
        I("v_cmp_gt_u32 s[48:49], s63, v0")
        I("s_and_saveexec_b64 s[34:35], s[48:49]")
        I("s_cbranch_execz L_k1_nopf")
        I("buffer_load_dword v42, v41, s[68:71], s62 offen")
        L("L_k1_nopf")
        I("s_mov_b64 exec, s[34:35]")
    I("s_waitcnt lgkmcnt(0)")
    I("s_barrier")
    if STAMP1:
        I("s_memtime s[76:77]")
        I("s_waitcnt lgkmcnt(0)")
    I(f"ds_read_b64 v[2:3], v1 offset:{K1_HIST}")
    I("s_waitcnt lgkmcnt(0)")
    I("v_add_u32 v8, v2, v3")
    I("v_mov_b32 v9, v8")
    wave_scan([9])
    I("s_lshl_b32 s44, s3, 2")
    I("v_mov_b32 v10, s44")
    I("s_mov_b32 exec_lo, 0")
    I("s_mov_b32 exec_hi, 0x80000000")
    I(f"ds_write_b32 v10, v9 offset:{K1_WTOT}")
    I("s_mov_b64 exec, -1")
    I("v_and_b32 v10, 15, v0")
    I("v_lshlrev_b32 v10, 2, v10")
    I("s_waitcnt lgkmcnt(0)")
    I("s_barrier")
    I(f"ds_read_b32 v11, v10 offset:{K1_WTOT}")
    I("s_waitcnt lgkmcnt(0)")
    I("v_mov_b32 v12, v11")
    I("s_nop 1")
    for sh in (1, 2, 4, 8):
        I(f"v_add_u32_dpp v12, v12, v12 row_shr:{sh} row_mask:0xf bank_mask:0xf")
        I("s_nop 1")
    I("v_sub_u32 v12, v12, v11")
    I("s_nop 0")
    I("v_readlane_b32 s45, v12, s3")
    I("v_sub_u32 v9, v9, v8")
    I("s_nop 1")
    I("v_add_u32 v9, s45, v9")
    I("v_add_u32 v10, v9, v2")
    I("v_mov_b32 v12, v9")
    I("v_mov_b32 v13, v10")
    I(f"ds_write_b64 v1, v[12:13] offset:{K1_HIST}")
    I("s_waitcnt lgkmcnt(0)")
    I("s_barrier")
    if STAMP1:
        I("s_memtime s[78:79]")
        I("s_waitcnt lgkmcnt(0)")
    I(f"s_movk_i32 s50, {NB}")
    I("v_subrev_u32 v15, 0x300, v0")
    I("v_cmp_gt_u32 s[48:49], s50, v15")
    I("s_and_saveexec_b64 s[34:35], s[48:49]")
    I("s_cbranch_execz L_k1_notab")
    I("v_lshlrev_b32 v14, 5, v15")
    I(f"ds_read_b128 v[8:11], v14 offset:{K1_HIST}")
    I(f"ds_read_b128 v[16:19], v14 offset:{K1_HIST+16}")
    I(f"ds_read_b32 v12, v14 offset:{K1_HIST+32}")
    I("v_lshrrev_b32 v14, 2, v15")
    I("v_lshlrev_b32 v14, 14, v14")
    I("v_and_b32 v13, 3, v15")
    I("v_lshl_add_u32 v14, v13, 4, v14")
    I("s_lshl_b32 s46, s2, 6")
    I(f"s_add_u32 s46, s46, {WS_TAB}")
    I("s_waitcnt lgkmcnt(0)")
    I("v_lshl_or_b32 v8, v9, 16, v8")
    I("v_lshl_or_b32 v9, v11, 16, v10")
    I("v_lshl_or_b32 v10, v17, 16, v16")
    I("v_lshl_or_b32 v11, v19, 16, v18")
    I("v_and_b32 v13, 15, v12")
    I("v_lshl_or_b32 v8, v13, 12, v8")
    I("v_lshrrev_b32 v13, 4, v12")
    I("v_lshl_or_b32 v8, v13, 28, v8")
    I("v_lshrrev_b32 v13, 8, v12")
    I("v_lshl_or_b32 v9, v13, 12, v9")
    I("buffer_store_dwordx4 v[8:11], v14, s[24:27], s46 offen" + os.environ.get("K1ST", " sc1"))
    L("L_k1_notab")
    I("s_mov_b64 exec, s[34:35]")
    I("s_and_saveexec_b64 s[34:35], vcc")
    I("s_cbranch_execz L_k1_noscat")
    for i in range(4):
        I(f"ds_read_b32 v{28+i}, v{20+i} offset:{K1_HIST}")
    for i in range(4):
        I(f"s_waitcnt lgkmcnt({3-i})")
        I(f"v_add_lshl_u32 v{28+i}, v{28+i}, v{24+i}, 3")
    if PERM:
        for i in range(4):
            I(f"v_lshlrev_b32 v{20+i}, 2, v{28+i}")
        for i in range(4):
            I(f"v_add_u32 v{33+2*i}, v{33+2*i}, v{20+i}")
        I(f"ds_write_b128 v4, v[20:23] offset:{K1_POS}")
    for i in range(4):
        I(f"ds_write_b64 v{28+i}, v[{32+2*i}:{33+2*i}] offset:{K1_STG}")
    L("L_k1_noscat")
    I("s_mov_b64 exec, s[34:35]")
    I("s_waitcnt lgkmcnt(0)")
    I("s_barrier")
    if STAMP1:
        I("s_memtime s[80:81]")
        I("s_waitcnt lgkmcnt(0)")
    I(f"s_mul_i32 s46, s2, {RECROW}")
    I(f"s_add_u32 s46, s46, {WS_REC}")
    I(f"ds_read_b128 v[8:11], v4 offset:{K1_STG}")
    I(f"v_cmp_gt_u32 vcc, {RECROW//16 - 1024}, v0")
    I("s_and_saveexec_b64 s[34:35], vcc")
    I("s_cbranch_execz L_k1_no2")
    I(f"ds_read_b128 v[12:15], v4 offset:{K1_STG + 16384}")
    I("s_add_u32 s47, s46, 16384")
    I("s_waitcnt lgkmcnt(0)")
    I("buffer_store_dwordx4 v[12:15], v4, s[24:27], s47 offen" + os.environ.get("K1ST", " sc1"))
    L("L_k1_no2")
    I("s_mov_b64 exec, s[34:35]")
    I("s_waitcnt lgkmcnt(0)")
    I("buffer_store_dwordx4 v[8:11], v4, s[24:27], s46 offen" + os.environ.get("K1ST", " sc1"))
    if PERM:
        I("v_lshrrev_b32 v16, 1, v0")
        I("v_lshlrev_b32 v16, 2, v16")
        I("v_and_b32 v17, 1, v0")
        I("v_lshlrev_b32 v17, 4, v17")
        for k in range(7):
            I(f"ds_read_b32 v{20+k}, v16 offset:{K1_POS+2048*k}")
        for k in range(7):
            if k == 6:
                I("s_cmp_ge_u32 s3, 4")
                I("s_cbranch_scc1 L_k1_s6")
            I(f"s_waitcnt lgkmcnt({6-k})")
            I(f"v_add_u32 v{20+k}, v{20+k}, v17")
            if k == 0:
                I("s_waitcnt vmcnt(0)")
            I(f"buffer_store_dwordx4 v[{56+4*k}:{59+4*k}], v{20+k}, s[56:59], s37 offen" + os.environ.get("K1SPOL", ""))
        L("L_k1_s6")
    if STAMP1:
        I("s_memtime s[82:83]")
        I("s_waitcnt lgkmcnt(0)")
    if STAMP1:
        I("s_waitcnt vmcnt(0)")
        I("s_memtime s[84:85]")
        I("s_waitcnt lgkmcnt(0)")
        srd(64, 14, 15, 0x100000, 0x1000000)
        I("s_mov_b64 s[34:35], exec")
        I("s_mov_b64 exec, 1")
        I("s_lshl_b32 s46, s2, 4")
        I("s_add_u32 s46, s46, s3")
        I("s_lshl_b32 s46, s46, 6")
        I("v_mov_b32 v2, 0")
        for k in range(8):
            I(f"v_mov_b32 v1, s{70+2*k}")
            I(f"buffer_store_dword v1, v2, s[64:67], s46 offen offset:{4*k}")
        I("s_mov_b64 exec, s[34:35]")
    I("s_cmp_eq_u32 s40, 0")
    I("s_cbranch_scc1 L_k1_end")
    I("s_waitcnt vmcnt(0)")
    if PRESCALE:
        I("s_sub_u32 s46, s2, 8")
        I("s_cmp_lt_u32 s46, 10")
        I(f"s_cselect_b32 s47, {NEGLOG2E}, 1.0")
        for j in range(8):
            I(f"v_lshlrev_b32 v{44+j}, 16, v{44+j}")
        for j in range(8):
            I(f"v_mul_f32 v{44+j}, s47, v{44+j}")
        for j in range(4):
            I(f"v_cvt_pk_bf16_f32 v{52+j}, v{44+2*j}, v{45+2*j}")
    else:
        for j in range(4):
            I(f"v_lshl_or_b32 v{52+j}, v{45+2*j}, 16, v{44+2*j}")
    I("v_and_b32 v40, 63, v0")
    I("v_lshlrev_b32 v40, 4, v40")
    I("s_lshl_b32 s46, s2, 10")
    I("buffer_store_dwordx4 v[52:55], v40, s[24:27], s46 offen")
    L("L_k1_end")
    I("s_endpgm")

WSTG = 0
LCAP = 4352
TLIM = 3584
LIST_S = 34816
LIST_M = LIST_S + LCAP * 4
SM = LIST_M + LCAP * 4
SMW = 2000
OH = SM + 16576
BASET = OH + 2560
WTOT = BASET + 4096
STG = WTOT + 256
STGW = 8192
K2_LDS = STG + 8 * STGW
assert STG % 128 == 0 or True
EMASK = 0x01FFFFE0

G = [0, 32]; H = [16, 48]
AX = 64; ST = 80; S = 88; EB = [96, 100]; T = 104
VAX = 112; PC = 116; H16 = 117; LSA = 118; LMA = 119; K1C = 120; SRA = 121; OHC = 122; SW = 123; ONE = 124
A_WB = 0; A_WV = 40; A_XA = 72; A_AGG = 88

def wb(s, c): return A_WB + (2 * s + c) * 4
def wv(s, c): return A_WV + (2 * s + c) * 4
def xa(s, c): return A_XA + (2 * s + c) * 4
def vr(b, n): return f"v[{b}:{b+n-1}]"
def ar(b, n): return f"a[{b}:{b+n-1}]"

def mfma(d, a, b, c):
    return f"v_mfma_f32_32x32x16_bf16 {d}, {a}, {b}, {c}"

def mfma_group(c, par):
    m = []
    g = vr(G[c], 16); h = vr(H[c], 16)
    m.append(mfma(g, vr(EB[par], 4), ar(wb(4, c), 4), "0"))
    for s in range(2):
        m.append(mfma(g, vr(ST + 4 * s, 4), ar(xa(s, c), 4), g))
    for s in range(4):
        m.append(mfma(g, vr(AX + 4 * s, 4), ar(wb(s, c), 4), g))
    for s in range(4):
        m.append(mfma(h, vr(AX + 4 * s, 4), ar(wv(s, c), 4), "0" if s == 0 else h))
    return m

def valu_group(c):
    g = G[c]; h = H[c]
    stages = [
        lambda i: f"v_mul_f32 v{g+i}, s43, v{g+i}",
        lambda i: f"v_exp_f32 v{g+i}, v{g+i}",
        lambda i: f"v_add_f32 v{g+i}, 1.0, v{g+i}",
        lambda i: f"v_rcp_f32 v{g+i}, v{g+i}",
        lambda i: f"v_mul_f32 v{g+i}, v{g+i}, v{h+i}",
    ]
    if PRESCALE:
        stages = stages[1:]
    v = []
    D = 2
    nst = len(stages)
    for step in range(16 + D * nst + 2):
        for k in range(nst):
            i = step - D * k
            if 0 <= i < 16:
                v.append(stages[k](i))
        i = step - D * nst
        if 0 <= i < 16 and i % 2 == 1:
            p = i // 2
            v.append(f"v_cvt_pk_bf16_f32 v{g+p}, v{g+i-1}, v{g+i}")
    return v

def agg_group(c):
    a = ar(A_AGG + 16 * c, 16)
    return [mfma(a, vr(S, 4), vr(G[c], 4), a), mfma(a, vr(S + 4, 4), vr(G[c] + 4, 4), a)]

def put(lst):
    for x in lst:
        if x.endswith(":"):
            emit(x)
        else:
            I(x)

def interleave(mf, va, per, inserts):
    mi = 0
    for i, v in enumerate(va):
        if i % per == 0 and mi < len(mf):
            I(mf[mi])
            mi += 1
        if i in inserts:
            put(inserts[i])
        I(v)
    assert mi == len(mf)

NOMEM = int(os.environ.get("NOMEM", "0"))
def x_dma(par):
    r = []
    if NOMEM:
        for k in range(4):
            r.append(f"v_and_b32 v{T+k}, 0x3f80, v{T+k}")
    r.append(f"v_add_u32 v{T+0}, v{PC}, v{T+0}")
    r.append(f"v_xad_u32 v{T+1}, v{PC}, 64, v{T+1}")
    r.append(f"v_add_u32 v{T+2}, v{PC}, v{T+2}")
    r.append(f"v_xad_u32 v{T+3}, v{PC}, 64, v{T+3}")
    for k in range(4):
        r.append(f"s_add_u32 m0, s37, {par*4096 + k*1024}")
        r.append("s_nop 0")
        r.append(f"buffer_load_dwordx4 v{T+k}, s[12:15], 0 offen lds")
    return r

def e_load(par, meta):
    r = []
    if NOMEM:
        r.append(f"v_and_b32 v{meta}, 0x3fff, v{meta}")
    r.append(f"v_and_or_b32 v{T+6}, v{meta}, s40, v{H16}")
    r.append(f"buffer_load_dwordx4 {vr(EB[par],4)}, v{T+6}, s[16:19], 0 offen" + (os.environ.get("EPOL", "") if (par == 0 or not int(os.environ.get("EHALF", "1"))) else ""))
    return r

def a_reads(par):
    r = []
    for s in range(2):
        r.append(f"ds_read_b128 {vr(ST+4*s,4)}, v{T+7} offset:{16*s}")
    for s in range(4):
        r.append(f"ds_read_b128 {vr(AX+4*s,4)}, v{VAX+s} offset:{par*4096}")
    return r

PRIO = int(os.environ.get("PRIO", "0"))
PTH = [int(x) for x in os.environ.get("PTH", "4,3,2").split(",")]
def prio_code(par):
    r = []
    for lim, p in zip(PTH, (2, 1, 0)):
        r += [f"s_cmp_lt_u32 s36, {lim}",
              f"s_cbranch_scc0 L_pr_done_{par}",
              f"s_setprio {p}"]
    r += [f"L_pr_done_{par}:"]
    return r


def gen_role1():
    FH = STG; FW = STG + 8256; FS = STG + 8448
    I(f"s_cmp_ge_u32 s2, {NC}")
    I("s_cbranch_scc1 L_f_done")
    I("v_lshlrev_b32 v1, 4, v0")
    for i in range(4):
        I(f"v_mov_b32 v{2+i}, 0")
    I(f"v_add_u32 v64, {FH}, v1")
    I("ds_write_b128 v64, v[2:5]")
    I(f"v_mov_b32 v6, {CH}")
    I(f"v_mov_b32 v7, {FH+8192}")
    I("ds_write_b32 v7, v6")
    I("v_lshlrev_b32 v65, 5, v0")
    I(f"s_mul_i32 s60, s2, {CH*4}")
    I(f"s_mov_b32 s61, {M25}")
    I("s_movk_i32 s62, 3125")
    I(f"s_mul_i32 s63, s2, {CH*32}")
    I("s_waitcnt lgkmcnt(0)")
    srd(12, 52, 53, E * 4)
    srd(16, 54, 55, E * 4)
    srd(24, 10, 11, 0x1000000)
    I(f"v_cmp_gt_u32 vcc, {CH//8}, v0")
    I("s_and_saveexec_b64 s[50:51], vcc")
    I("s_cbranch_execz L_f_noload")
    I("buffer_load_dwordx4 v[8:11], v65, s[16:19], s60 offen")
    I("buffer_load_dwordx4 v[12:15], v65, s[16:19], s60 offen offset:16")
    I("buffer_load_dwordx4 v[16:19], v65, s[12:15], s60 offen")
    I("buffer_load_dwordx4 v[20:23], v65, s[12:15], s60 offen offset:16")
    L("L_f_noload")
    I("s_mov_b64 exec, -1")
    I("s_barrier")
    I("s_and_saveexec_b64 s[50:51], vcc")
    I("s_cbranch_execz L_f_nohist")
    I("v_mov_b32 v6, 1")
    I("v_mov_b32 v5, 0x7f")
    I("v_lshl_add_u32 v7, v0, 8, s63")
    I("s_waitcnt vmcnt(2)")
    for i in range(8):
        I(f"v_mul_hi_u32 v{24+i}, v{8+i}, s61")
    for i in range(8):
        I(f"v_lshlrev_b32 v{32+i}, 2, v{24+i}")
    for i in range(8):
        I(f"v_add_u32 v{32+i}, {FH}, v{32+i}")
    for i in range(8):
        I(f"ds_add_rtn_u32 v{40+i}, v{32+i}, v6")
    for i in range(8):
        I(f"v_mad_u32_u24 v{72+i}, v{24+i}, s62, v5")
    for i in range(8):
        I(f"v_lshrrev_b32 v{72+i}, 7, v{72+i}")
    for i in range(8):
        I(f"v_sub_u32 v{72+i}, v{8+i}, v{72+i}")
    for i in range(8):
        I(f"v_lshlrev_b32 v{24+i}, 29, v{24+i}")
    for i in range(8):
        I(f"v_or3_b32 v{49+2*i}, v{24+i}, v7, v{72+i}")
    for i in range(1, 8):
        I(f"v_add_u32 v{49+2*i}, {32*i}, v{49+2*i}")
    I("s_waitcnt vmcnt(0)")
    for i in range(8):
        I(f"v_lshlrev_b32 v{48+2*i}, 7, v{16+i}")
    L("L_f_nohist")
    I("s_mov_b64 exec, -1")
    I("s_waitcnt lgkmcnt(0)")
    I("s_barrier")
    I("ds_read_b128 v[8:11], v64")
    I("s_waitcnt lgkmcnt(0)")
    I("v_add_u32 v12, v8, v9")
    I("v_add_u32 v13, v12, v10")
    I("v_add_u32 v14, v13, v11")
    I("v_mov_b32 v15, v14")
    wave_scan([15])
    I("s_lshl_b32 s46, s3, 2")
    I(f"s_add_u32 s46, s46, {FW}")
    I("v_mov_b32 v16, s46")
    I("s_mov_b32 exec_lo, 0")
    I("s_mov_b32 exec_hi, 0x80000000")
    I("ds_write_b32 v16, v15")
    I("s_mov_b64 exec, -1")
    I("v_and_b32 v16, 7, v0")
    I("v_lshlrev_b32 v16, 2, v16")
    I(f"v_add_u32 v16, {FW}, v16")
    I("s_waitcnt lgkmcnt(0)")
    I("s_barrier")
    I("ds_read_b32 v17, v16")
    I("s_waitcnt lgkmcnt(0)")
    I("v_mov_b32 v18, v17")
    I("s_nop 1")
    for sh in (1, 2, 4):
        I(f"v_add_u32_dpp v18, v18, v18 row_shr:{sh} row_mask:0xf bank_mask:0xf")
        I("s_nop 1")
    I("v_sub_u32 v18, v18, v17")
    I("s_nop 0")
    I("v_readlane_b32 s46, v18, s3")
    I("v_sub_u32 v15, v15, v14")
    I("s_nop 1")
    I("v_add_u32 v20, s46, v15")
    I("v_add_u32 v21, v20, v8")
    I("v_add_u32 v22, v20, v12")
    I("v_add_u32 v23, v20, v13")
    I("ds_write_b128 v64, v[20:23]")
    I("s_waitcnt lgkmcnt(0)")
    I("s_barrier")
    I("s_cmp_lt_u32 s3, 4")
    I("s_cbranch_scc1 L_f_notab")
    I("v_subrev_u32 v15, 0x100, v0")
    I("v_lshlrev_b32 v14, 5, v15")
    I(f"v_add_u32 v14, {FH}, v14")
    I("ds_read_b128 v[8:11], v14")
    I("ds_read_b128 v[16:19], v14 offset:16")
    I("ds_read_b32 v12, v14 offset:32")
    I("v_lshrrev_b32 v14, 2, v15")
    I("v_lshlrev_b32 v14, 14, v14")
    I("v_and_b32 v13, 3, v15")
    I("v_lshl_add_u32 v14, v13, 4, v14")
    I("s_lshl_b32 s46, s2, 6")
    I(f"s_add_u32 s46, s46, {WS_TAB}")
    I("s_waitcnt lgkmcnt(0)")
    I("v_lshl_or_b32 v8, v9, 16, v8")
    I("v_lshl_or_b32 v9, v11, 16, v10")
    I("v_lshl_or_b32 v10, v17, 16, v16")
    I("v_lshl_or_b32 v11, v19, 16, v18")
    I("v_and_b32 v13, 15, v12")
    I("v_lshl_or_b32 v8, v13, 12, v8")
    I("v_lshrrev_b32 v13, 4, v12")
    I("v_lshl_or_b32 v8, v13, 28, v8")
    I("v_lshrrev_b32 v13, 8, v12")
    I("v_lshl_or_b32 v9, v13, 12, v9")
    I("buffer_store_dwordx4 v[8:11], v14, s[24:27], s46 offen sc1")
    L("L_f_notab")
    I("s_and_saveexec_b64 s[50:51], vcc")
    I("s_cbranch_execz L_f_noscat")
    for i in range(8):
        I(f"ds_read_b32 v{72+i}, v{32+i}")
    for i in range(8):
        I(f"s_waitcnt lgkmcnt({7-i})")
        I(f"v_add_lshl_u32 v{72+i}, v{72+i}, v{40+i}, 3")
    for i in range(8):
        I(f"v_add_u32 v{72+i}, {FS}, v{72+i}")
    for i in range(8):
        I(f"ds_write_b64 v{72+i}, v[{48+2*i}:{49+2*i}]")
    L("L_f_noscat")
    I("s_mov_b64 exec, -1")
    I("s_waitcnt lgkmcnt(0)")
    I("s_barrier")
    I(f"s_mul_i32 s46, s2, {RECROW}")
    I(f"s_add_u32 s46, s46, {WS_REC}")
    I(f"v_add_u32 v64, {FS}, v1")
    for k in range(4):
        I(f"ds_read_b128 v[{16+4*k}:{19+4*k}], v64 offset:{8192*k}")
    for k in range(4):
        if k == 3:
            I("s_cmp_lg_u32 s3, 0")
            I("s_cbranch_scc1 L_f_st3")
        I(f"s_waitcnt lgkmcnt({3-k})")
        I(f"s_add_u32 s60, s46, {8192*k}")
        I(f"buffer_store_dwordx4 v[{16+4*k}:{19+4*k}], v1, s[24:27], s60 offen sc1")
    L("L_f_st3")
    I("s_waitcnt vmcnt(0) lgkmcnt(0)")
    I("s_barrier")
    I("s_cmp_lg_u32 s3, 0")
    I("s_cbranch_scc1 L_f_done")
    I("v_mov_b32 v2, 1")
    I("v_mov_b32 v3, s2")
    I("s_mov_b64 exec, 1")
    I("buffer_store_byte v2, v3, s[64:67], 0 offen sc1")
    I("s_mov_b64 exec, -1")
    L("L_f_done")

def gen_wprep():
    I("v_and_b32 v2, 31, v67")
    I("v_lshlrev_b32 v2, 1, v2")
    I("v_and_b32 v3, 32, v67")
    I("v_lshl_add_u32 v2, v3, 5, v2")
    for k in range(5):
        I(f"s_add_u32 s46, s3, {8*k}")
        if k == 4:
            I("s_min_u32 s46, s46, 33")
        I("s_cmp_lt_u32 s46, 26")
        I("s_cselect_b32 s28, s90, s88")
        I("s_cselect_b32 s29, s91, s89")
        I("s_cselect_b32 s60, 18, 26")
        I("s_cmp_lt_u32 s46, 18")
        I("s_cselect_b32 s28, s58, s28")
        I("s_cselect_b32 s29, s59, s29")
        I("s_cselect_b32 s60, 0, s60")
        I(f"s_mov_b32 s30, {64*128}")
        I(f"s_cselect_b32 s30, {144*128}, s30")
        I("s_mov_b32 s31, 0x00020000")
        I("s_sub_u32 s60, s46, s60")
        I("s_lshr_b32 s61, s60, 1")
        I("s_lshl_b32 s61, s61, 11")
        I("s_and_b32 s60, s60, 1")
        I("s_lshl_b32 s60, s60, 6")
        I("s_add_u32 s61, s61, s60")
        for j in range(8):
            I(f"buffer_load_ushort v{12+8*k+j}, v2, s[28:31], s61 offen offset:{128*j}")

def gen_wpack():
    for k in range(5):
        I(f"s_add_u32 s46, s3, {8*k}")
        if k == 4:
            I("s_min_u32 s46, s46, 33")
        I(f"s_waitcnt vmcnt({8*(4-k)})")
        b = 12 + 8 * k
        if PRESCALE:
            I("s_sub_u32 s60, s46, 8")
            I("s_cmp_lt_u32 s60, 10")
            I(f"s_cselect_b32 s61, {NEGLOG2E}, 1.0")
            for j in range(8):
                I(f"v_lshlrev_b32 v{b+j}, 16, v{b+j}")
            for j in range(8):
                I(f"v_mul_f32 v{b+j}, s61, v{b+j}")
            for j in range(4):
                I(f"v_cvt_pk_bf16_f32 v{52+j}, v{b+2*j}, v{b+2*j+1}")
        else:
            for j in range(4):
                I(f"v_lshl_or_b32 v{52+j}, v{b+2*j+1}, 16, v{b+2*j}")
        I("s_lshl_b32 s46, s46, 10")
        I("v_add_u32 v56, s46, v70")
        I(f"ds_write_b128 v56, v[52:55] offset:{WSTG}")

def gen_wait():
    I("s_cmp_lg_u32 s3, 0")
    I("s_cbranch_scc1 L_w_done")
    I("v_lshlrev_b32 v2, 2, v67")
    I("v_mov_b32 v3, 0x01010101")
    I("v_cmp_eq_u32 vcc, 62, v67")
    I("v_mov_b32 v4, 0x00000101")
    I("s_nop 0")
    I("v_cndmask_b32 v3, v3, v4, vcc")
    I("v_cmp_eq_u32 vcc, 63, v67")
    I("s_mov_b32 s60, 0")
    I("s_nop 0")
    I("v_cndmask_b32 v3, v3, 0, vcc")
    L("L_w_loop")
    I("buffer_load_dword v4, v2, s[64:67], 0 offen sc1")
    I("s_add_u32 s60, s60, 1")
    I("s_waitcnt vmcnt(0)")
    I("v_cmp_ne_u32 vcc, v3, v4")
    I("s_cmp_gt_u32 s60, 0x40000")
    I("s_cbranch_scc1 L_w_done")
    I("s_cmp_eq_u64 vcc, 0")
    I("s_cbranch_scc1 L_w_done")
    I("s_sleep 1")
    I("s_branch L_w_loop")
    L("L_w_done")
    I("s_waitcnt lgkmcnt(0)")
    I("s_barrier")

def gen_round_head():
    L("L_round")
    I("s_lshl_b32 s46, s3, 5")
    I("v_lshrrev_b32 v66, 1, v67")
    I("v_add_u32 v66, s46, v66")
    I("v_lshlrev_b32 v65, 6, v66")
    I("buffer_load_dwordx4 v[48:51], v65, s[20:23], 0 offen" + SC)

def gen_k2():
    emit(f".globl {MAIN}")
    emit(".p2align 8")
    emit(f".type {MAIN},@function")
    L(MAIN)
    I("s_cmp_ge_u32 s2, 256")
    I("s_cbranch_scc1 L_k2_end")
    I("s_load_dwordx2 s[10:11], s[0:1], 72")
    I("s_load_dwordx4 s[4:7], s[0:1], 0")
    I("s_load_dwordx2 s[8:9], s[0:1], 56")
    if FUSED:
        I("s_load_dwordx4 s[52:55], s[0:1], 16")
        I("s_load_dwordx4 s[88:91], s[0:1], 32")
        I("s_load_dwordx2 s[58:59], s[0:1], 48")
        I("s_load_dwordx2 s[64:65], s[0:1], 64")
    I("s_and_b32 s38, s2, 7")
    I("s_lshr_b32 s39, s2, 3")
    I("s_lshl_b32 s32, s38, 5")
    I("s_add_u32 s32, s32, s39")
    stamp(0)
    if STAMP:
        I("s_memrealtime s[86:87]")
    I("v_lshrrev_b32 v1, 6, v0")
    I("v_and_b32 v67, 63, v0")
    I("v_readfirstlane_b32 s3, v1")
    I("s_mov_b32 s33, 0")
    I(f"s_movk_i32 s34, {NC}")
    I("s_mov_b32 s47, 1")
    I("s_lshr_b32 s48, s32, 2")
    I("s_lshl_b32 s48, s48, 14")
    I("s_and_b32 s46, s32, 3")
    I("s_lshl_b32 s46, s46, 4")
    I("s_add_u32 s48, s48, s46")
    I(f"s_add_u32 s48, s48, {WS_TAB}")
    I("s_waitcnt lgkmcnt(0)")
    I("s_add_u32 s20, s10, s48")
    I("s_addc_u32 s21, s11, 0")
    I(f"s_mov_b32 s22, {(NC-1)*64+16}")
    I("s_mov_b32 s23, 0x00020000")
    if FUSED:
        I("s_movk_i32 s66, 256")
        I("s_mov_b32 s67, 0x00020000")
        gen_role1()
        I("v_lshlrev_b32 v70, 4, v67")
        gen_wprep()
    else:
        gen_round_head()
        I("s_cmp_eq_u32 s47, 0")
        I("s_cbranch_scc1 L_noconst")
        srd(28, 10, 11, 34 * 1024)
        I("v_lshlrev_b32 v70, 4, v67")
        for k in range(5):
            I(f"s_add_u32 s46, s3, {8*k}")
            if k == 4:
                I("s_min_u32 s46, s46, 33")
            I("s_lshl_b32 s46, s46, 10")
            I(f"s_add_u32 m0, s46, {WSTG}")
            I("s_nop 0")
            I("buffer_load_dwordx4 v70, s[28:31], s46 offen lds")
    srd(12, 4, 5, N * 128)
    if PERM:
        srd(16, 10, 11, E * 32, WS_EAS)
    else:
        srd(16, 6, 7, E * 32)
    srd(24, 10, 11, NC * RECROW, WS_REC)
    I(f"s_mov_b32 s40, {EMASK}")
    I("s_movk_i32 s42, 80")
    I(f"s_mov_b32 s43, {NEGLOG2E}")
    I(f"s_lshl_b32 s37, s3, 13")
    I(f"s_add_u32 s37, s37, {STG}")
    I("v_and_b32 v3, 31, v67")
    I("v_lshrrev_b32 v4, 5, v67")
    I("v_bfe_u32 v5, v3, 1, 3")
    I("v_xor_b32 v5, v5, v4")
    I("v_lshlrev_b32 v5, 4, v5")
    I("v_lshl_add_u32 v5, v3, 7, v5")
    I(f"v_add_u32 v{VAX}, s37, v5")
    for s in range(1, 4):
        I(f"v_xor_b32 v6, {32*s}, v5")
        I(f"v_add_u32 v{VAX+s}, s37, v6")
    I("v_lshrrev_b32 v5, 4, v67")
    I("v_and_b32 v6, 7, v67")
    I("v_xor_b32 v5, v5, v6")
    I(f"v_lshlrev_b32 v{PC}, 4, v5")
    I(f"v_lshlrev_b32 v{H16}, 4, v4")
    I(f"s_mul_i32 s46, s3, {SMW}")
    I(f"s_add_u32 s46, s46, {SM}")
    I("v_lshrrev_b32 v5, 4, v3")
    I("v_lshlrev_b32 v5, 5, v5")
    I("v_bfe_u32 v6, v3, 2, 1")
    I("v_lshl_add_u32 v5, v6, 4, v5")
    I("v_bfe_u32 v6, v3, 3, 1")
    I("v_lshl_add_u32 v5, v6, 3, v5")
    I("v_and_b32 v6, 3, v3")
    I("v_lshl_add_u32 v5, v6, 1, v5")
    I(f"v_add_u32 v{K1C}, s46, v5")
    I(f"v_add_u32 v6, s46, v{H16}")
    I(f"v_mad_u32_u24 v{SRA}, v3, s42, v6")
    I("v_lshlrev_b32 v6, 5, v4")
    I(f"v_add_u32 v{OHC}, {OH}, v6")
    I(f"v_mov_b32 v{ONE}, 1.0")
    for i in range(4):
        I(f"v_mov_b32 v{8+i}, 0")
    I("v_add_u32 v7, s46, v70")
    I("ds_write_b128 v7, v[8:11]")
    I("v_cmp_gt_u32 vcc, 61, v67")
    I("s_and_saveexec_b64 s[50:51], vcc")
    I("ds_write_b128 v7, v[8:11] offset:1024")
    I("s_mov_b64 exec, -1")
    I("s_cmp_lg_u32 s3, 0")
    I("s_cbranch_scc1 L_noconst")
    I(f"v_add_u32 v7, {OH}, v70")
    I("ds_write_b128 v7, v[8:11]")
    I("ds_write_b128 v7, v[8:11] offset:1024")
    I("s_mov_b32 exec_hi, 0")
    I("ds_write_b128 v7, v[8:11] offset:2048")
    I("v_bfe_u32 v6, v3, 2, 1")
    I("v_lshlrev_b32 v6, 5, v6")
    I("v_lshrrev_b32 v7, 4, v3")
    I("v_lshl_add_u32 v6, v7, 4, v6")
    I("v_and_b32 v7, 15, v5")
    I("v_add_u32 v6, v6, v7")
    I("v_mad_u32_u24 v6, v3, s42, v6")
    I(f"v_add_u32 v6, {OH}, v6")
    I(f"ds_write_b16_d16_hi v6, v{ONE}")
    I("s_mov_b64 exec, -1")
    L("L_noconst")
    if FUSED:
        gen_wpack()
        gen_wait()
        gen_round_head()
    if not FUSED:
        I("s_cmp_eq_u32 s47, 0")
        I("s_cbranch_scc1 L_tw0")
        I("s_waitcnt vmcnt(5)")
        I("s_branch L_tw1")
        L("L_tw0")
    I("s_waitcnt vmcnt(0)")
    L("L_tw1")
    stamp(1)
    I("v_bfe_u32 v52, v48, 12, 4")
    I("v_lshrrev_b32 v53, 28, v48")
    I("v_lshl_or_b32 v52, v53, 4, v52")
    I("v_bfe_u32 v53, v49, 12, 4")
    I("v_lshl_or_b32 v52, v53, 8, v52")
    I("v_and_b32 v48, 0x0fff0fff, v48")
    I("v_and_b32 v49, 0xffff0fff, v49")
    I("v_and_b32 v53, 0xffff, v48")
    I("v_subrev_u32 v54, s33, v66")
    I("s_sub_u32 s46, s34, s33")
    I("v_cmp_gt_u32 s[52:53], s46, v54")
    I("v_and_b32 v55, 1, v67")
    I("v_lshl_add_u32 v64, v55, 1, v53")
    I("v_cndmask_b32 v54, v53, v52, s[52:53]")
    I(f"s_movk_i32 s46, {RECROW}")
    I("v_mul_u32_u24 v65, s46, v66")
    I("v_lshl_add_u32 v65, v64, 3, v65")
    I("v_sub_u32 v68, v54, v64")
    def rec_loads(tag):
        for i in range(8):
            I(f"v_cmpx_lt_i32 vcc, {4*i}, v68")
            I("s_nop 0")
            I(f"s_cbranch_execz L_rl_{tag}")
            I(f"buffer_load_dwordx4 v[{4*i}:{4*i+3}], v65, s[24:27], 0 offen offset:{32*i}" + SC)
        L(f"L_rl_{tag}")
        I("s_mov_b64 exec, -1")
    rec_loads("a")
    if K2PF:
        I("s_cmp_eq_u32 s47, 0")
        I("s_cbranch_scc1 L_nopf")
        I("s_lshl_b32 s46, s39, 3")
        I("s_add_u32 s46, s46, s3")
        I(f"s_mul_i32 s46, s46, {K2PF*64*128}")
        I("v_lshlrev_b32 v71, 7, v67")
        for k in range(K2PF):
            I(f"s_add_u32 s50, s46, {k*8192}")
            I(f"buffer_load_dword v{T+k}, v71, s[12:15], s50 offen")
        L("L_nopf")
    I("v_cmp_eq_u32 vcc, 0, v55")
    I("s_and_b64 vcc, vcc, s[52:53]")
    I("v_alignbit_b32 v72, v49, v48, 16")
    I("v_alignbit_b32 v73, v50, v49, 16")
    I("v_alignbit_b32 v74, v51, v50, 16")
    I("v_alignbit_b32 v75, v52, v51, 16")
    for i in range(4):
        I(f"v_sub_u32 v{72+i}, v{72+i}, v{48+i}")
    I("v_sub_u32 v76, v52, v53")
    for i in range(5):
        I(f"v_cndmask_b32 v{72+i}, 0, v{72+i}, vcc")
    for i in range(5):
        I(f"v_mov_b32 v{80+i}, v{72+i}")
    wave_scan([80, 81, 82, 83, 84])
    I("s_lshl_b32 s46, s3, 5")
    I(f"s_add_u32 s46, s46, {WTOT}")
    I("v_mov_b32 v69, s46")
    I("s_mov_b32 exec_lo, 0")
    I("s_mov_b32 exec_hi, 0x80000000")
    I("ds_write_b128 v69, v[80:83]")
    I("ds_write_b32 v69, v84 offset:16")
    I("s_mov_b64 exec, -1")
    I("v_and_b32 v69, 7, v67")
    I("v_lshlrev_b32 v69, 5, v69")
    I(f"v_add_u32 v69, {WTOT}, v69")
    I("s_waitcnt lgkmcnt(0)")
    I("s_barrier")
    stamp(2)
    I("ds_read_b128 v[88:91], v69")
    I("ds_read_b32 v92, v69 offset:16")
    I("s_waitcnt lgkmcnt(0)")
    for i in range(5):
        I(f"v_mov_b32 v{56+i}, v{88+i}")
    I("s_nop 1")
    for sh in (1, 2, 4):
        for i in range(5):
            I(f"v_add_u32_dpp v{56+i}, v{56+i}, v{56+i} row_shr:{sh} row_mask:0xf bank_mask:0xf")
    I("s_nop 1")
    for i in range(4):
        I(f"v_sub_u32 v{88+i}, v{56+i}, v{88+i}")
    I("v_readlane_b32 s60, v60, 7")
    for i in range(4):
        I(f"v_readlane_b32 s{56+i}, v{56+i}, 7")
    for i in range(4):
        I(f"v_readlane_b32 s{52+i}, v{88+i}, s3")
    I(f"s_cmp_le_u32 s60, {TLIM}")
    I("s_cbranch_scc1 L_fits")
    I("s_sub_u32 s46, s34, s33")
    I("s_cmp_eq_u32 s46, 1")
    I("s_cselect_b32 s34, s34, s33")
    for i in range(4):
        I(f"s_mov_b32 s{56+i}, 0")
    I("v_mov_b32 v68, 0")
    L("L_fits")
    for i in range(4):
        I(f"v_mov_b32 v{56+i}, s{56+i}")
    I("v_and_b32 v60, 7, v67")
    I("v_lshrrev_b32 v61, 3, v67")
    def lane_count(src, dst):
        I(f"v_bfe_u32 v93, v{src}, 1, 1")
        I(f"v_cmp_eq_u32 vcc, 1, v93")
        I(f"v_bfe_u32 v93, v{src}, 2, 1")
        I(f"v_cmp_eq_u32 s[50:51], 1, v93")
        I("v_cndmask_b32 v94, v56, v57, vcc")
        I("v_cndmask_b32 v95, v58, v59, vcc")
        I(f"v_and_b32 v93, 1, v{src}")
        I("v_cndmask_b32 v94, v94, v95, s[50:51]")
        I("v_lshlrev_b32 v93, 4, v93")
        I(f"v_bfe_u32 v{dst}, v94, v93, 16")
    lane_count(60, 88)
    I("v_add_u32 v89, 0x5f, v88")
    I("v_and_b32 v89, 0xffe0, v89")
    I("v_mov_b32 v90, v89")
    I("s_cmp_eq_u32 s47, 0")
    I("s_cbranch_scc1 L_paired")
    if PAIR:
        lane_count(61, 63)
        I("v_lshl_add_u32 v62, v88, 3, v60")
        I("v_lshl_add_u32 v63, v63, 3, v61")
        I("v_cmp_gt_u32 vcc, v62, v63")
        I("s_sub_u32 s64, 11, s3")
        I("s_cmp_lt_u32 s3, 4")
        I("s_cselect_b32 s64, s3, s64")
        I("s_mov_b32 s41, 0")
        for i in range(8):
            I(f"s_bfe_u32 s65, {'vcc_lo' if i < 4 else 'vcc_hi'}, {(8*(i%4)) | (8 << 16)}")
            I("s_bcnt1_i32_b32 s65, s65")
            I("s_cmp_eq_u32 s65, s64")
            I(f"s_cselect_b32 s41, {i}, s41")
    else:
        I("s_mov_b32 s41, s3")
    L("L_paired")
    for sh in (1, 2, 4):
        I("s_nop 1")
        I(f"v_add_u32_dpp v90, v90, v90 row_shr:{sh} row_mask:0xf bank_mask:0xf")
    I("v_sub_u32 v91, v90, v89")
    I("v_lshl_or_b32 v92, v90, 16, v91")
    I("v_readlane_b32 s62, v91, s41")
    I("v_readlane_b32 s63, v88, s41")
    for i in range(4):
        I(f"v_readlane_b32 s{64+i}, v92, {2*i}")
    for i in range(4):
        I(f"s_add_u32 s{52+i}, s{52+i}, s{64+i}")
        I(f"s_add_u32 s{52+i}, s{52+i}, 0x10001000")
    for i in range(4):
        I(f"v_sub_u32 v{80+i}, v{80+i}, v{72+i}")
    for i in range(4):
        I(f"v_add_u32 v{80+i}, s{52+i}, v{80+i}")
    for i in range(4):
        I(f"v_sub_u32 v{80+i}, v{80+i}, v{48+i}")
    for i in range(4):
        I(f"v_lshlrev_b32 v{80+i}, 2, v{80+i}")
    I("v_lshlrev_b32 v69, 4, v66")
    I(f"v_add_u32 v69, {BASET}, v69")
    I("s_mov_b32 exec_lo, 0x55555555")
    I("s_mov_b32 exec_hi, 0x55555555")
    I("ds_write_b128 v69, v[80:83]")
    I("s_mov_b64 exec, -1")
    I("s_add_u32 s64, s63, 31")
    I("s_lshr_b32 s35, s64, 5")
    I("s_lshl_b32 s64, s35, 5")
    I("s_sub_u32 s64, s64, s63")
    I("s_add_u32 s65, s62, s63")
    I("v_add_lshl_u32 v72, v67, s65, 2")
    I("v_mov_b32 v73, 0xffffff00")
    I(f"v_mov_b32 v74, {EMASK}")
    I(f"ds_write2st64_b32 v72, v73, v74 offset0:{LIST_S//256} offset1:{LIST_M//256}")
    I("v_cmp_gt_u32 vcc, s64, v67")
    I("s_and_saveexec_b64 s[50:51], vcc")
    I(f"ds_write2st64_b32 v72, v73, v74 offset0:{LIST_S//256+1} offset1:{LIST_M//256+1}")
    I("s_mov_b64 exec, -1")
    I("s_lshl_b32 s64, s62, 2")
    I("v_lshrrev_b32 v72, 3, v67")
    I("v_lshlrev_b32 v72, 4, v72")
    I(f"s_add_u32 s65, s64, {LIST_S}")
    I(f"v_add_u32 v{LSA}, s65, v72")
    I("v_and_b32 v72, 7, v67")
    I("v_bfe_u32 v73, v67, 3, 2")
    I("v_lshl_add_u32 v72, v72, 2, v73")
    I("v_lshlrev_b32 v72, 2, v72")
    I(f"s_add_u32 s65, s64, {LIST_M}")
    I(f"v_add_u32 v{LMA}, s65, v72")
    I("s_cmp_eq_u32 s47, 0")
    I("s_cbranch_scc1 L_scat")
    for i in range(16):
        I(f"v_mov_b32 v{80+i}, 0")
    I("v_and_b32 v72, 31, v67")
    I(f"v_lshl_add_u32 v72, v72, 7, v{H16}")
    I("s_lshl_b32 s46, s32, 3")
    I("s_add_u32 s46, s46, s41")
    I("s_mul_i32 s46, s46, 3125")
    I("s_add_u32 s49, s46, 127")
    I("s_lshr_b32 s49, s49, 7")
    I(f"s_add_u32 s44, s46, {3125+127}")
    I("s_lshr_b32 s44, s44, 7")
    I("s_sub_u32 s44, s44, s49")
    I("s_lshl_b32 s49, s49, 7")
    I("s_bfm_b32 s46, s44, 0")
    I("s_mov_b32 exec_lo, s46")
    I("s_mov_b32 exec_hi, s46")
    for s in range(4):
        I(f"buffer_load_dwordx4 {vr(80+4*s,4)}, v72, s[12:15], s49 offen offset:{32*s}")
    I("s_mov_b64 exec, -1")
    I(f"s_waitcnt vmcnt({4+K2PF})")
    I("s_branch L_scat1")
    L("L_scat")
    I("s_waitcnt vmcnt(0)")
    L("L_scat1")
    stamp(3)
    o0 = (LIST_S - 16384) // 256; o1 = (LIST_M - 16384) // 256
    I("v_lshlrev_b32 v73, 2, v64")
    for half in range(2):
        R = range(8 * half, 8 * half + 8)
        if half:
            I("v_cmpx_lt_i32 vcc, 16, v68")
            I("v_add_u32 v73, 64, v73")
            I("s_cbranch_execz L_scat_done")
        for r in R:
            I(f"v_lshrrev_b32 v{32+r}, 28, v{2*r+1}")
        for r in R:
            I(f"v_add_u32 v{32+r}, v{32+r}, v69")
        for r in R:
            I(f"ds_read_u16 v{32+r}, v{32+r}")
        for r in R:
            i, k = r // 2, r % 2
            I(f"v_cmpx_lt_i32 vcc, {4*i+k}, v68")
            if r % 8 == 0:
                I("s_waitcnt lgkmcnt(0)")
            I(f"v_add3_u32 v{32+r}, v{32+r}, v73, {4*(4*i+k-16*half)}")
            if k == 0:
                I("s_cbranch_execz L_scat_done")
            I(f"ds_write2st64_b32 v{32+r}, v{2*r}, v{2*r+1} offset0:{o0} offset1:{o1}")
    I("v_cmpx_lt_i32 vcc, 32, v68")
    I("s_nop 0")
    I("s_cbranch_execz L_scat_done")
    I("s_mov_b64 exec, -1")
    I("v_add_u32 v64, 32, v64")
    I("v_subrev_u32 v68, 32, v68")
    I("v_add_u32 v65, 256, v65")
    I("s_waitcnt lgkmcnt(0)")
    rec_loads("b")
    I("s_branch L_scat")
    L("L_scat_done")
    I("s_mov_b64 exec, -1")
    I("s_waitcnt lgkmcnt(0)")
    I("s_barrier")
    stamp(4)
    I(f"ds_read_b128 {vr(T,4)}, v{LSA}")
    I(f"ds_read2_b32 {vr(T+4,2)}, v{LMA} offset0:0 offset1:32")
    I("s_waitcnt lgkmcnt(0)")
    put(x_dma(0))
    put(e_load(0, T + 4))
    I(f"ds_read_b128 {vr(T,4)}, v{LSA} offset:128")
    I("s_cmp_eq_u32 s47, 0")
    I("s_cbranch_scc1 L_noinit")
    for f in range(8):
        I(f"ds_read_b128 {vr(4*f,4)}, v70 offset:{WSTG+1024*f}")
    I("s_waitcnt vmcnt(5) lgkmcnt(0)")
    for c in range(2):
        d = vr(32 + 16 * c, 16)
        for s in range(4):
            I(mfma(d, vr(80 + 4 * s, 4), vr((2 * s + c) * 4, 4), "0" if s == 0 else d))
    for f in range(8):
        I(f"ds_read_b128 {vr(4*f,4)}, v70 offset:{WSTG+1024*(26+f)}")
    I("s_nop 7")
    if PRESCALE:
        for i in range(32):
            I(f"v_mul_f32 v{32+i}, s43, v{32+i}")
    I("s_waitcnt lgkmcnt(0)")
    for f in range(18):
        I(f"ds_read_b128 {ar(4*f,4)}, v70 offset:{WSTG+1024*(8+f)}")
    k = 0
    for c in range(2):
        a = ar(A_AGG + 16 * c, 16)
        for s in range(4):
            I(mfma(a, vr(80 + 4 * s, 4), vr((2 * s + c) * 4, 4), "0" if s == 0 else a))
            for p in (k, k + 1):
                I(f"v_cvt_pk_bf16_f32 v{64+p}, v{32+2*p}, v{32+2*p+1}")
            k += 2
    for c in range(2):
        for p in range(8):
            I(f"v_accvgpr_write_b32 a{xa(p//4, c) + p%4}, v{64+8*c+p}")
    I("s_mov_b32 s47, 0")
    L("L_noinit")
    I("s_cmp_eq_u32 s35, 0")
    I("s_cbranch_scc1 L_round_end")
    I(f"v_and_b32 v{T+4}, 31, v{T+4}")
    I(f"v_mad_u32_u24 v{T+7}, v{T+4}, s42, v{OHC}")
    I(f"v_mad_u32_u24 v{SW}, v{T+4}, s42, v{K1C}")
    I(f"ds_write_b16_d16_hi v{SW}, v{ONE}")
    I("s_waitcnt lgkmcnt(0)")
    put(x_dma(1))
    put(e_load(1, T + 5))
    for i in range(8):
        I(f"v_mov_b32 v{G[1]+i}, 0")
    for i in range(8):
        I(f"v_mov_b32 v{S+i}, 0")
    I("s_waitcnt vmcnt(5)")
    put(a_reads(0))
    I(f"ds_read_b128 {vr(T,4)}, v{LSA} offset:256")
    I("s_mov_b32 s36, s35")
    if PRIO:
        I("s_setprio 3")
    if int(os.environ.get("YPRIO", "0")):
        I("s_cmp_lt_u32 s3, 4")
        I("s_cbranch_scc1 L_yp")
        I("s_setprio 1")
        L("L_yp")
    stamp(5)
    m0 = mfma_group(0, 0)
    I(m0[0])
    I("s_waitcnt lgkmcnt(0)")
    I(m0[1])
    put(x_dma(0))
    put(m0[2:])
    I("s_nop 7")
    I("s_branch L_p1_0")
    L("L_loop")
    INLOOP[0] = True
    nv = len(valu_group(0))
    pos = [2 + (k * (nv - 4)) // 13 for k in range(13)]
    def sched(mf, va, inserts):
        pend = []
        mi = 0
        for i, v in enumerate(va):
            if mi < len(mf) and i == pos[mi]:
                put(inserts.get(('b', mi), []))
                I(mf[mi])
                put(inserts.get(('m', mi), []))
                pend += inserts.get(('s', mi), [])
                mi += 1
            I(v)
            if pend:
                put([pend.pop(0)])
        assert mi == len(mf)
        put(pend)
    def nonop(lst):
        return [x for x in lst if x != "s_nop 0"]
    for par in range(2):
        ins = {('b', 3): ["s_waitcnt lgkmcnt(1)"],
               ('m', 4): ["s_waitcnt lgkmcnt(0)"],
               ('s', 4): nonop(x_dma(par))}
        if PRIO:
            ins[('m', 0)] = prio_code(par)
        if int(os.environ.get("DUPH", "0")):
            ins[('s', 5)] = [mfma_group(0, par)[7]] + ["s_nop 0"] * 2 + [mfma_group(0, par)[8]] + ["s_nop 0"] * 2 + [mfma_group(0, par)[9]] + ["s_nop 0"] * 2 + [mfma_group(0, par)[10]]
        sched(agg_group(0) + mfma_group(0, par), valu_group(1), ins)
        L(f"L_p1_{par}")
        ins = {('m', 0): [f"ds_read2_b32 {vr(T+4,2)}, v{LMA} offset0:32 offset1:64"],
               ('s', 1): [f"ds_read_b128 {vr(S,4)}, v{SRA}",
                          f"ds_read_b128 {vr(S+4,4)}, v{SRA} offset:32",
                          f"ds_write_b16 v{SW}, v{ONE}"],
               ('m', 3): ["s_waitcnt lgkmcnt(3)"] + e_load(par, T + 5),
               ('s', 3): [f"v_and_b32 v{T+4}, 31, v{T+4}",
                          f"v_add_u32 v{LSA}, 128, v{LSA}",
                          f"v_mad_u32_u24 v{T+7}, v{T+4}, s42, v{OHC}",
                          f"v_mad_u32_u24 v{SW}, v{T+4}, s42, v{K1C}",
                          f"v_add_u32 v{LMA}, 128, v{LMA}",
                          f"ds_write_b16_d16_hi v{SW}, v{ONE}",
                          "s_sub_u32 s36, s36, 1"],
               ('m', 4): [f"v_mov_b32 v{T+6}, v{T+6}"] * int(os.environ.get("EXTRAV", "0")),
               ('m', 12): [f"s_waitcnt vmcnt({os.environ.get('VW', '5')}) lgkmcnt(0)"] + a_reads(par ^ 1) + [f"ds_read_b128 {vr(T,4)}, v{LSA} offset:256"]}
        sched(agg_group(1) + mfma_group(1, par), valu_group(0), ins)
        I("s_cmp_eq_u32 s36, 0")
        if par == 0:
            I("s_cbranch_scc1 L_tail")
        else:
            I("s_cbranch_scc0 L_loop")
    L("L_tail")
    INLOOP[0] = False
    I(f"ds_write_b16 v{SW}, v{ONE}")
    I("s_nop 0")
    put(agg_group(0))
    put(valu_group(1))
    I("s_nop 1")
    put(agg_group(1))
    L("L_round_end")
    I(f"s_cmp_ge_u32 s34, {NC}")
    I("s_cbranch_scc1 L_epi")
    I("s_mov_b32 s33, s34")
    I("s_add_u32 s34, s34, 1")
    I("v_mbcnt_lo_u32_b32 v67, -1, 0")
    I("v_mbcnt_hi_u32_b32 v67, -1, v67")
    I("s_waitcnt vmcnt(0) lgkmcnt(0)")
    I("s_barrier")
    I("s_branch L_round")
    L("L_epi")
    I("s_waitcnt vmcnt(0) lgkmcnt(0)")
    stamp(6)
    srd(28, 8, 9, N * 128)
    I("v_mbcnt_lo_u32_b32 v67, -1, 0")
    I("v_mbcnt_hi_u32_b32 v67, -1, v67")
    I("v_and_b32 v68, 31, v67")
    I("v_lshrrev_b32 v69, 5, v67")
    I("v_lshlrev_b32 v68, 1, v68")
    I("v_lshl_add_u32 v68, v69, 9, v68")
    I("v_add_u32 v68, s37, v68")
    I("v_lshlrev_b32 v70, 4, v67")
    I("v_add_u32 v71, s37, v70")
    I("s_nop 7")
    I("s_nop 7")
    regs = [i for i in range(13)]
    for c in range(2):
        for i in regs:
            I(f"v_accvgpr_read_b32 v{16*c+i}, a{A_AGG+16*c+i}")
    ids = [16 * c + i for c in range(2) for i in regs]
    for r in ids:
        I(f"v_mul_f32 v{32+r}, s43, v{r}")
    for r in ids:
        I(f"v_exp_f32 v{32+r}, v{32+r}")
    for r in ids:
        I(f"v_add_f32 v{32+r}, 1.0, v{32+r}")
    for r in ids:
        I(f"v_rcp_f32 v{32+r}, v{32+r}")
    for r in ids:
        I(f"v_mul_f32 v{r}, v{r}, v{32+r}")
    for i in regs:
        I(f"v_cvt_pk_bf16_f32 v{32+i}, v{i}, v{16+i}")
    for i in regs:
        row = 8 * (i >> 2) + (i & 3)
        I(f"ds_write_b16 v68, v{32+i} offset:{row*128}")
        I(f"ds_write_b16_d16_hi v68, v{32+i} offset:{row*128+64}")
    I("s_waitcnt lgkmcnt(0)")
    for k in range(4):
        I(f"ds_read_b128 {vr(4*k,4)}, v71 offset:{1024*k}")
    for k in range(3):
        I(f"s_waitcnt lgkmcnt({3-k})")
        I(f"buffer_store_dwordx4 {vr(4*k,4)}, v70, s[28:31], s49 offen offset:{1024*k}" + os.environ.get("OST", " sc1"))
    I("s_cmp_lt_u32 s44, 25")
    I("s_cbranch_scc1 L_k2_fin")
    I("s_waitcnt lgkmcnt(0)")
    I("s_mov_b64 exec, 0xff")
    I(f"buffer_store_dwordx4 {vr(12,4)}, v70, s[28:31], s49 offen offset:3072" + os.environ.get("OST", " sc1"))
    L("L_k2_fin")
    if STAMP:
        I("s_waitcnt vmcnt(0)")
        stamp(7)
        srd(28, 10, 11, 0x100000, 0x1000000)
        I("s_mov_b64 exec, 1")
        I("s_lshl_b32 s46, s2, 3")
        I("s_add_u32 s46, s46, s3")
        I("s_lshl_b32 s46, s46, 6")
        I("v_mov_b32 v0, 0")
        for k in range(8):
            I(f"v_mov_b32 v1, s{70+2*k}")
            I(f"buffer_store_dword v1, v0, s[28:31], s46 offen offset:{4*k}")
        I("v_mov_b32 v1, s35")
        I(f"buffer_store_dword v1, v0, s[28:31], s46 offen offset:32")
        I("s_getreg_b32 s47, hwreg(HW_REG_XCC_ID)")
        I("v_mov_b32 v1, s47")
        I(f"buffer_store_dword v1, v0, s[28:31], s46 offen offset:36")
        I("s_getreg_b32 s47, hwreg(HW_REG_HW_ID)")
        I("v_mov_b32 v1, s47")
        I(f"buffer_store_dword v1, v0, s[28:31], s46 offen offset:40")
        I("s_memrealtime s[50:51]")
        I("s_waitcnt lgkmcnt(0)")
        I("v_mov_b32 v1, s50")
        I(f"buffer_store_dword v1, v0, s[28:31], s46 offen offset:44")
        I("v_mov_b32 v1, s86")
        I(f"buffer_store_dword v1, v0, s[28:31], s46 offen offset:48")
    if RT >= 0:
        I("s_waitcnt vmcnt(0)")
        stamp(7)
        I("s_add_u32 s46, s2, s3")
        I("s_cmp_lg_u32 s46, 0")
        I("s_cbranch_scc1 L_k2_end")
        srd(28, 10, 11, 64, 0x1800000)
        I("s_mov_b64 exec, 1")
        I("v_mov_b32 v0, 0")
        I("v_mov_b32 v1, s70")
        I("v_mov_b32 v2, s72")
        I("buffer_store_dword v1, v0, s[28:31], 0 offen")
        I("buffer_store_dword v2, v0, s[28:31], 0 offen offset:4")
    L("L_k2_end")
    L("L_k2_last")
    I("s_endpgm")

def kd(name, vgpr, sgpr, accum):
    emit(f".amdhsa_kernel {name}")
    emit(f"  .amdhsa_next_free_vgpr {vgpr}")
    emit(f"  .amdhsa_next_free_sgpr {sgpr}")
    emit(f"  .amdhsa_accum_offset {accum}")
    emit("  .amdhsa_group_segment_fixed_size 0")
    emit("  .amdhsa_kernarg_size 80")
    emit("  .amdhsa_user_sgpr_count 2")
    emit("  .amdhsa_user_sgpr_kernarg_segment_ptr 1")
    emit("  .amdhsa_system_sgpr_workgroup_id_x 1")
    emit(".end_amdhsa_kernel")

def main():
    emit(HEADER.rstrip("\n"))
    if FUSED == 1:
        emit(f"; @launch grid=(256,1,1) block=(512,1,1) lds={K2_LDS}")
    elif FUSED == 2:
        emit(f"; @launch kernel=egc_main_kernel grid=(256,1,1) block=(512,1,1) lds={K2_LDS}")
    else:
        emit(f"; @launch kernel=egc_bin_kernel grid=({NC},1,1) block=(1024,1,1) lds={K1_LDS}")
        emit(f"; @launch kernel=egc_main_kernel grid=(256,1,1) block=(512,1,1) lds={K2_LDS}")
    emit('.amdgcn_target "amdgcn-amd-amdhsa--gfx950"')
    emit(".text")
    if not FUSED:
        gen_k1()
    gen_k2()
    emit('.section .rodata,"a"')
    if not FUSED:
        emit(".p2align 6")
        kd("egc_bin_kernel", 84 if PERM else 56, 96 if STAMP1 else 72, 84 if PERM else 56)
    emit(".p2align 6")
    kd(MAIN, 248, 96, 128)
    path = sys.argv[1] if len(sys.argv) > 1 else "standalone__edge_featured_mpnn_egc__graph.s"
    open(path, "w").write("\n".join(out) + "\n")

main()
```

```python
import sys, os

N = 50000; E = 800000
NB = 256; CH = 3200; NC = 250
WS_TAB = 0x10000; WS_REC = 0x400000; RECROW = CH * 8
MW = 175921861
NEGLOG2E = 0xBFB8AA3B
def env(k, d): return os.environ.get(k, d)
STAMP = int(env("STAMP", "0"))
TLBPF = int(env("TLBPF", "65536"))
PSH = int(env("PSH", "13"))
PRIO = int(env("PRIO", "0"))
YPRIO = int(env("YPRIO", "1"))
PTH = [int(x) for x in env("PTH", "10,7,4").split(",")]
EPOL = env("EPOL", "")
NOMEM = int(env("NOMEM", "0"))
DROP = env("DROP", "").split(",")
INLOOP = [False]

out = []
def emit(s=""): out.append(s)
def I(s):
    if INLOOP[0]:
        op = s.split()[0]
        if "mfma" in DROP and op.startswith("v_mfma"): return
        if "valu" in DROP and op in ("v_exp_f32", "v_rcp_f32", "v_mul_f32", "v_add_f32", "v_cvt_pk_bf16_f32"): return
    out.append("    " + s)
def L(s): out.append(s + ":")
def put(lst):
    for x in lst:
        emit(x) if x.endswith(":") else I(x)
def stamp(k):
    if STAMP:
        I(f"s_memtime s[{70+2*k}:{71+2*k}]")
        I("s_waitcnt lgkmcnt(0)")

HEADER = """; Kernarg layout for this problem (80 bytes, ptrs only, base s[0:1]):
"""

def srd(d, lo, hi, size, add=0):
    if add:
        I(f"s_add_u32 s{d}, s{lo}, {add}")
        I(f"s_addc_u32 s{d+1}, s{hi}, 0")
    else:
        I(f"s_mov_b32 s{d}, s{lo}")
        I(f"s_mov_b32 s{d+1}, s{hi}")
    I(f"s_mov_b32 s{d+2}, {size}")
    I(f"s_mov_b32 s{d+3}, 0x00020000")

def wave_scan(r):
    for st in ["row_shr:1 row_mask:0xf", "row_shr:2 row_mask:0xf", "row_shr:4 row_mask:0xf", "row_shr:8 row_mask:0xf",
               "row_bcast:15 row_mask:0xa", "row_bcast:31 row_mask:0xc"]:
        I("s_nop 1")
        I(f"v_add_u32_dpp v{r}, v{r}, v{r} {st} bank_mask:0xf")

K1_HIST = 0
K1_STG = 1024
K1_LDS = K1_STG + RECROW

def gen_k1():
    emit(".globl egc_bin_kernel")
    emit(".p2align 8")
    emit(".type egc_bin_kernel,@function")
    L("egc_bin_kernel")
    I(f"s_cmp_ge_u32 s2, {NC}")
    I("s_cbranch_scc1 L_k1_end")
    if STAMP:
        I("s_memrealtime s[68:69]")
    I("s_load_dwordx4 s[4:7], s[0:1], 16")
    I("s_load_dwordx4 s[8:11], s[0:1], 32")
    I("s_load_dwordx2 s[12:13], s[0:1], 48")
    I("s_load_dwordx2 s[14:15], s[0:1], 72")
    I("v_and_b32 v1, 0xff, v0")
    I("v_lshlrev_b32 v1, 2, v1")
    I("v_mov_b32 v2, 0")
    I(f"ds_write_b32 v1, v2 offset:{K1_HIST}")
    I("v_lshlrev_b32 v4, 4, v0")
    I("v_lshrrev_b32 v5, 6, v0")
    I(f"s_mul_i32 s32, s2, {CH*4}")
    I("v_readfirstlane_b32 s3, v5")
    I(f"s_mov_b32 s33, {MW}")
    I("s_movk_i32 s36, 3125")
    I(f"s_mul_i32 s37, s2, {CH*32}")
    I("s_waitcnt lgkmcnt(0)")
    srd(16, 4, 5, E * 4)
    srd(20, 6, 7, E * 4)
    srd(24, 14, 15, 0x1000000)
    if STAMP:
        srd(64, 14, 15, 0x1000, 0x1100000)
        I("s_lshl_b32 s62, s2, 2")
        I("v_mov_b32 v40, s68")
        I("v_lshlrev_b32 v41, 12, v0")
        I("buffer_store_dword v40, v41, s[64:67], s62 offen")
    I(f"v_cmp_gt_u32 vcc, {CH//4}, v0")
    I("s_and_saveexec_b64 s[34:35], vcc")
    I("s_cbranch_execz L_k1_noload")
    I("buffer_load_dwordx4 v[8:11], v4, s[20:23], s32 offen")
    I("buffer_load_dwordx4 v[12:15], v4, s[16:19], s32 offen")
    L("L_k1_noload")
    I("s_mov_b64 exec, s[34:35]")
    if TLBPF:
        I("s_cmp_lg_u32 s3, 13")
        I("s_cbranch_scc1 L_k1_notlb")
        I("s_load_dwordx4 s[52:55], s[0:1], 0")
        I("s_load_dwordx2 s[56:57], s[0:1], 56")
        I("s_lshr_b32 s62, s2, 3")
        I("v_and_b32 v40, 63, v0")
        ne_ = -(-(E * 32) // (TLBPF * 32)); nx_ = -(-(N * 128) // (TLBPF * 32))
        I(f"s_mul_i32 s63, s62, {ne_ * TLBPF}")
        I(f"s_mul_i32 s62, s62, {nx_ * TLBPF}")
        I(f"s_mov_b32 s58, {TLBPF}")
        I("v_mul_lo_u32 v41, v40, s58")
        I("s_waitcnt lgkmcnt(0)")
        srd(64, 54, 55, E * 32)
        I(f"s_bfm_b64 exec, {ne_}, 0")
        I("buffer_load_dword v42, v41, s[64:67], s63 offen")
        srd(64, 52, 53, N * 128)
        I(f"s_bfm_b64 exec, {nx_}, 0")
        I("buffer_load_dword v43, v41, s[64:67], s62 offen")
        srd(64, 56, 57, N * 128)
        I("buffer_load_dword v44, v41, s[64:67], s62 offen")
        I("s_mov_b64 exec, -1")
        L("L_k1_notlb")
    I("s_mov_b32 s40, 0")
    I("s_cmp_lg_u32 s3, 15")
    I("s_cbranch_scc1 L_k1_nowf")
    I("s_cmp_ge_u32 s2, 34")
    I("s_cbranch_scc1 L_k1_nowf")
    I("s_mov_b32 s40, 1")
    I("s_mov_b32 s28, s12")
    I("s_mov_b32 s29, s13")
    I(f"s_mov_b32 s30, {144*128}")
    I("s_mov_b32 s31, 0x00020000")
    I("s_mov_b32 s41, s2")
    I("s_cmp_lt_u32 s2, 18")
    I("s_cbranch_scc1 L_k1_wsel")
    I("s_mov_b32 s28, s10")
    I("s_mov_b32 s29, s11")
    I(f"s_mov_b32 s30, {64*128}")
    I("s_sub_u32 s41, s2, 18")
    I("s_cmp_lt_u32 s2, 26")
    I("s_cbranch_scc1 L_k1_wsel")
    I("s_mov_b32 s28, s8")
    I("s_mov_b32 s29, s9")
    I("s_sub_u32 s41, s2, 26")
    L("L_k1_wsel")
    I("s_lshr_b32 s42, s41, 1")
    I("s_lshl_b32 s42, s42, 11")
    I("s_and_b32 s43, s41, 1")
    I("s_lshl_b32 s43, s43, 6")
    I("s_add_u32 s42, s42, s43")
    I("v_and_b32 v40, 31, v0")
    I("v_lshlrev_b32 v40, 1, v40")
    I("v_and_b32 v41, 32, v0")
    I("v_lshl_add_u32 v40, v41, 5, v40")
    for j in range(8):
        I(f"buffer_load_ushort v{44+j}, v40, s[28:31], s42 offen offset:{128*j}")
    L("L_k1_nowf")
    I("s_barrier")
    I("s_and_saveexec_b64 s[34:35], vcc")
    I("s_cbranch_execz L_k1_nohist")
    I("v_mov_b32 v6, 1")
    I("v_mov_b32 v5, 0x7f")
    I("v_lshl_add_u32 v7, v0, 7, s37")
    I("s_waitcnt vmcnt(1)")
    for i in range(4):
        I(f"v_mul_hi_u32 v{16+i}, v{8+i}, s33")
    for i in range(4):
        I(f"v_lshrrev_b32 v{20+i}, 3, v{16+i}")
    for i in range(4):
        I(f"v_lshlrev_b32 v{20+i}, 2, v{20+i}")
    for i in range(4):
        I(f"ds_add_rtn_u32 v{24+i}, v{20+i}, v6 offset:{K1_HIST}")
    for i in range(4):
        I(f"v_mad_u32_u24 v{28+i}, v{16+i}, s36, v5")
    for i in range(4):
        I(f"v_lshrrev_b32 v{28+i}, 7, v{28+i}")
    for i in range(4):
        I(f"v_sub_u32 v{28+i}, v{8+i}, v{28+i}")
    for i in range(4):
        I(f"v_lshlrev_b32 v{16+i}, 29, v{16+i}")
    for i in range(4):
        I(f"v_or3_b32 v{33+2*i}, v{16+i}, v7, v{28+i}")
    for i in range(1, 4):
        I(f"v_add_u32 v{33+2*i}, {32*i}, v{33+2*i}")
    I("s_waitcnt vmcnt(0)")
    for i in range(4):
        I(f"v_lshlrev_b32 v{32+2*i}, 7, v{12+i}")
    if int(env("PEQ", "0")):
        for i in range(4):
            I(f"v_mul_u32_u24 v{12+i}, 0x53e, v{12+i}")
        for i in range(4):
            I(f"v_bfe_u32 v{12+i}, v{12+i}, 23, 3")
    else:
        for i in range(4):
            I(f"v_bfe_u32 v{12+i}, v{12+i}, {PSH}, 3")
    for i in range(4):
        I(f"v_lshl_or_b32 v{33+2*i}, v{12+i}, 26, v{33+2*i}")
    L("L_k1_nohist")
    I("s_mov_b64 exec, s[34:35]")
    I("s_waitcnt lgkmcnt(0)")
    I("s_barrier")
    I("s_cmp_lg_u32 s3, 14")
    I("s_cbranch_scc1 L_k1_noscan")
    I("v_and_b32 v1, 63, v0")
    I("v_lshlrev_b32 v2, 4, v1")
    I(f"ds_read_b128 v[8:11], v2 offset:{K1_HIST}")
    I("v_lshrrev_b32 v3, 2, v1")
    I("v_lshlrev_b32 v3, 14, v3")
    I("v_and_b32 v1, 3, v1")
    I("v_lshl_add_u32 v3, v1, 4, v3")
    I("s_lshl_b32 s46, s2, 6")
    I(f"s_add_u32 s46, s46, {WS_TAB}")
    I("s_waitcnt lgkmcnt(0)")
    I("v_add_u32 v12, v8, v9")
    I("v_add_u32 v13, v12, v10")
    I("v_add_u32 v14, v13, v11")
    I("v_mov_b32 v15, v14")
    wave_scan(15)
    I("v_sub_u32 v16, v15, v14")
    I("v_add_u32 v17, v16, v8")
    I("v_add_u32 v18, v16, v12")
    I("v_add_u32 v19, v16, v13")
    I(f"ds_write_b128 v2, v[16:19] offset:{K1_HIST}")
    I("v_lshl_or_b32 v8, v17, 16, v16")
    I("v_lshl_or_b32 v9, v18, 16, v17")
    I("v_lshl_or_b32 v10, v19, 16, v18")
    I("v_lshl_or_b32 v11, v15, 16, v19")
    I("buffer_store_dwordx4 v[8:11], v3, s[24:27], s46 offen sc1")
    I("s_waitcnt lgkmcnt(0)")
    L("L_k1_noscan")
    I("s_barrier")
    I("s_and_saveexec_b64 s[34:35], vcc")
    I("s_cbranch_execz L_k1_noscat")
    for i in range(4):
        I(f"ds_read_b32 v{28+i}, v{20+i} offset:{K1_HIST}")
    for i in range(4):
        I(f"s_waitcnt lgkmcnt({3-i})")
        I(f"v_add_lshl_u32 v{28+i}, v{28+i}, v{24+i}, 3")
    for i in range(4):
        I(f"ds_write_b64 v{28+i}, v[{32+2*i}:{33+2*i}] offset:{K1_STG}")
    L("L_k1_noscat")
    I("s_mov_b64 exec, s[34:35]")
    I("s_waitcnt lgkmcnt(0)")
    I("s_barrier")
    I(f"s_mul_i32 s46, s2, {RECROW}")
    I(f"s_add_u32 s46, s46, {WS_REC}")
    I(f"ds_read_b128 v[16:19], v4 offset:{K1_STG}")
    I(f"s_cmp_ge_u32 s3, {(RECROW//16 - 1024) // 64}")
    I("s_cbranch_scc1 L_k1_no2")
    I(f"ds_read_b128 v[12:15], v4 offset:{K1_STG + 16384}")
    I("s_add_u32 s47, s46, 16384")
    I("s_waitcnt lgkmcnt(0)")
    I("buffer_store_dwordx4 v[12:15], v4, s[24:27], s47 offen sc1")
    L("L_k1_no2")
    I("s_waitcnt lgkmcnt(0)")
    I("buffer_store_dwordx4 v[16:19], v4, s[24:27], s46 offen sc1")
    I("s_cmp_eq_u32 s40, 0")
    I("s_cbranch_scc1 L_k1_end")
    I("s_waitcnt vmcnt(0)")
    I("s_sub_u32 s46, s2, 8")
    I("s_cmp_lt_u32 s46, 10")
    I(f"s_cselect_b32 s47, {NEGLOG2E}, 1.0")
    for j in range(8):
        I(f"v_lshlrev_b32 v{44+j}, 16, v{44+j}")
    for j in range(8):
        I(f"v_mul_f32 v{44+j}, s47, v{44+j}")
    for j in range(4):
        I(f"v_cvt_pk_bf16_f32 v{52+j}, v{44+2*j}, v{45+2*j}")
    I("v_and_b32 v40, 63, v0")
    I("v_lshlrev_b32 v40, 4, v40")
    I("s_lshl_b32 s46, s2, 10")
    I("buffer_store_dwordx4 v[52:55], v40, s[24:27], s46 offen sc1")
    L("L_k1_end")
    I("s_endpgm")

LCAP = 4352
TLIM = 3584
CBLK = 100
LIST_S = 0
LIST_M = LIST_S + LCAP * 4
CNT = LIST_M + LCAP * 4
WSTG = CNT + 512
SM = WSTG + 34 * 1024
SMW = 2000
OH = SM + 16576
STG = OH + 2560
STGW = 8192
K2_LDS = STG + 8 * STGW
assert CNT % 256 == 0 and STG % 16 == 0 and K2_LDS <= 163840
EMASK = 0x01FFFFE0

G = [0, 32]; H = [16, 48]
AX = 64; ST = 80; S = 88; EB = [96, 100]; T = 104
VAX = 112; PC = 116; H16 = 117; LSA = 118; LMA = 119; K1C = 120; SRA = 121; OHC = 122; SW = 123; ONE = 124
A_WB = 0; A_WV = 40; A_XA = 72; A_AGG = 88

def wb(s, c): return A_WB + (2 * s + c) * 4
def wv(s, c): return A_WV + (2 * s + c) * 4
def xa(s, c): return A_XA + (2 * s + c) * 4
def vr(b, n): return f"v[{b}:{b+n-1}]"
def ar(b, n): return f"a[{b}:{b+n-1}]"
def mfma(d, a, b, c): return f"v_mfma_f32_32x32x16_bf16 {d}, {a}, {b}, {c}"

def mfma_group(c, par):
    m = []
    g = vr(G[c], 16); h = vr(H[c], 16)
    m.append(mfma(g, vr(EB[par], 4), ar(wb(4, c), 4), "0"))
    for s in range(2):
        m.append(mfma(g, vr(ST + 4 * s, 4), ar(xa(s, c), 4), g))
    for s in range(4):
        m.append(mfma(g, vr(AX + 4 * s, 4), ar(wb(s, c), 4), g))
    for s in range(4):
        m.append(mfma(h, vr(AX + 4 * s, 4), ar(wv(s, c), 4), "0" if s == 0 else h))
    return m

def valu_group(c):
    g = G[c]; h = H[c]
    stages = [
        lambda i: f"v_exp_f32 v{g+i}, v{g+i}",
        lambda i: f"v_add_f32 v{g+i}, 1.0, v{g+i}",
        lambda i: f"v_rcp_f32 v{g+i}, v{g+i}",
        lambda i: f"v_mul_f32 v{g+i}, v{g+i}, v{h+i}",
    ]
    v = []
    D = 2
    nst = len(stages)
    for step in range(16 + D * nst + 2):
        for k in range(nst):
            i = step - D * k
            if 0 <= i < 16:
                v.append(stages[k](i))
        i = step - D * nst
        if 0 <= i < 16 and i % 2 == 1:
            v.append(f"v_cvt_pk_bf16_f32 v{g+i//2}, v{g+i-1}, v{g+i}")
    return v

def agg_group(c):
    a = ar(A_AGG + 16 * c, 16)
    return [mfma(a, vr(S, 4), vr(G[c], 4), a), mfma(a, vr(S + 4, 4), vr(G[c] + 4, 4), a)]

def x_dma(par):
    r = []
    if NOMEM:
        for k in range(4):
            r.append(f"v_and_b32 v{T+k}, 0x3f80, v{T+k}")
    r.append(f"v_add_u32 v{T+0}, v{PC}, v{T+0}")
    r.append(f"v_xad_u32 v{T+1}, v{PC}, 64, v{T+1}")
    r.append(f"v_add_u32 v{T+2}, v{PC}, v{T+2}")
    r.append(f"v_xad_u32 v{T+3}, v{PC}, 64, v{T+3}")
    for k in range(4):
        r.append(f"s_add_u32 m0, s37, {par*4096 + k*1024}")
        r.append("s_nop 0")
        r.append(f"buffer_load_dwordx4 v{T+k}, s[12:15], 0 offen lds")
    return r

def e_load(par, meta):
    r = []
    if NOMEM:
        r.append(f"v_and_b32 v{meta}, 0x3fff, v{meta}")
    r.append(f"v_and_or_b32 v{T+6}, v{meta}, s40, v{H16}")
    r.append(f"buffer_load_dwordx4 {vr(EB[par],4)}, v{T+6}, s[16:19], 0 offen" + EPOL)
    return r

def a_reads(par):
    r = []
    for s in range(2):
        r.append(f"ds_read_b128 {vr(ST+4*s,4)}, v{T+7} offset:{16*s}")
    for s in range(4):
        r.append(f"ds_read_b128 {vr(AX+4*s,4)}, v{VAX+s} offset:{par*4096}")
    return r

def prio_code(par):
    r = []
    for lim, p in zip(PTH, (2, 1, 0)):
        r += [f"s_cmp_lt_u32 s36, {lim}", f"s_cbranch_scc0 L_pr_done_{par}", f"s_setprio {p}"]
    return r + [f"L_pr_done_{par}:"]

def gen_k2():
    emit(".globl egc_main_kernel")
    emit(".p2align 8")
    emit(".type egc_main_kernel,@function")
    L("egc_main_kernel")
    I("s_cmp_ge_u32 s2, 256")
    I("s_cbranch_scc1 L_k2_end")
    I("s_load_dwordx2 s[10:11], s[0:1], 72")
    I("s_load_dwordx4 s[4:7], s[0:1], 0")
    I("s_load_dwordx2 s[8:9], s[0:1], 56")
    I("s_and_b32 s38, s2, 7")
    I("s_lshr_b32 s39, s2, 3")
    I("s_lshl_b32 s32, s38, 5")
    I("s_add_u32 s32, s32, s39")
    stamp(0)
    if STAMP:
        I("s_memrealtime s[86:87]")
    I("v_lshrrev_b32 v1, 6, v0")
    I("v_and_b32 v67, 63, v0")
    I("v_readfirstlane_b32 s3, v1")
    I("s_mov_b32 s33, 0")
    I(f"s_movk_i32 s34, {NC}")
    I("s_mov_b32 s45, 0")
    I("s_mov_b32 s47, 1")
    I("s_lshr_b32 s48, s32, 4")
    I("s_lshl_b32 s48, s48, 14")
    I("s_and_b32 s46, s32, 15")
    I("s_lshl_b32 s46, s46, 2")
    I("s_add_u32 s48, s48, s46")
    I(f"s_add_u32 s48, s48, {WS_TAB}")
    I("s_waitcnt lgkmcnt(0)")
    I("s_add_u32 s20, s10, s48")
    I("s_addc_u32 s21, s11, 0")
    I(f"s_mov_b32 s22, {(NC-1)*64+4}")
    I("s_mov_b32 s23, 0x00020000")
    L("L_round")
    I("s_lshl_b32 s46, s3, 5")
    I("v_lshrrev_b32 v66, 1, v67")
    I("v_add_u32 v66, s46, v66")
    I("v_lshlrev_b32 v65, 6, v66")
    I("buffer_load_dword v48, v65, s[20:23], 0 offen")
    I("v_lshlrev_b32 v69, 2, v67")
    I("v_mov_b32 v49, 0")
    I(f"ds_write2st64_b32 v69, v49, v49 offset0:{CNT//256} offset1:{CNT//256+1}")
    I("s_cmp_eq_u32 s47, 0")
    I("s_cbranch_scc1 L_tw0")
    srd(28, 10, 11, 34 * 1024)
    I("v_lshlrev_b32 v70, 4, v67")
    for k in range(5):
        I(f"s_add_u32 s46, s3, {8*k}")
        if k == 4:
            I("s_min_u32 s46, s46, 33")
        I("s_lshl_b32 s46, s46, 10")
        I(f"s_add_u32 m0, s46, {WSTG}")
        I("s_nop 0")
        I("buffer_load_dwordx4 v70, s[28:31], s46 offen lds")
    srd(12, 4, 5, N * 128)
    srd(16, 6, 7, E * 32)
    srd(24, 10, 11, NC * RECROW, WS_REC)
    I(f"s_mov_b32 s40, {EMASK}")
    I("s_movk_i32 s42, 80")
    I(f"s_mov_b32 s43, {NEGLOG2E}")
    I("s_lshl_b32 s37, s3, 13")
    I(f"s_add_u32 s37, s37, {STG}")
    I("v_and_b32 v3, 31, v67")
    I("v_lshrrev_b32 v4, 5, v67")
    I("v_bfe_u32 v5, v3, 1, 3")
    I("v_xor_b32 v5, v5, v4")
    I("v_lshlrev_b32 v5, 4, v5")
    I("v_lshl_add_u32 v5, v3, 7, v5")
    I(f"v_add_u32 v{VAX}, s37, v5")
    for s in range(1, 4):
        I(f"v_xor_b32 v6, {32*s}, v5")
        I(f"v_add_u32 v{VAX+s}, s37, v6")
    I("v_lshrrev_b32 v5, 4, v67")
    I("v_and_b32 v6, 7, v67")
    I("v_xor_b32 v5, v5, v6")
    I(f"v_lshlrev_b32 v{PC}, 4, v5")
    I(f"v_lshlrev_b32 v{H16}, 4, v4")
    I(f"s_mul_i32 s46, s3, {SMW}")
    I(f"s_add_u32 s46, s46, {SM}")
    I("v_lshrrev_b32 v5, 4, v3")
    I("v_lshlrev_b32 v5, 5, v5")
    I("v_bfe_u32 v6, v3, 2, 1")
    I("v_lshl_add_u32 v5, v6, 4, v5")
    I("v_bfe_u32 v6, v3, 3, 1")
    I("v_lshl_add_u32 v5, v6, 3, v5")
    I("v_and_b32 v6, 3, v3")
    I("v_lshl_add_u32 v5, v6, 1, v5")
    I(f"v_add_u32 v{K1C}, s46, v5")
    I(f"v_add_u32 v6, s46, v{H16}")
    I(f"v_mad_u32_u24 v{SRA}, v3, s42, v6")
    I("v_lshlrev_b32 v6, 5, v4")
    I(f"v_add_u32 v{OHC}, {OH}, v6")
    I(f"v_mov_b32 v{ONE}, 1.0")
    for i in range(4):
        I(f"v_mov_b32 v{8+i}, 0")
    I("v_add_u32 v7, s46, v70")
    I("ds_write_b128 v7, v[8:11]")
    I("v_cmp_gt_u32 vcc, 61, v67")
    I("s_and_saveexec_b64 s[50:51], vcc")
    I("ds_write_b128 v7, v[8:11] offset:1024")
    I("s_mov_b64 exec, -1")
    I(f"v_add_u32 v70, {WSTG}, v70")
    I("s_cmp_lg_u32 s3, 0")
    I("s_cbranch_scc1 L_noconst")
    I(f"v_add_u32 v7, {OH-WSTG}, v70")
    I("ds_write_b128 v7, v[8:11]")
    I("ds_write_b128 v7, v[8:11] offset:1024")
    I("s_mov_b32 exec_hi, 0")
    I("ds_write_b128 v7, v[8:11] offset:2048")
    I("v_bfe_u32 v6, v3, 2, 1")
    I("v_lshlrev_b32 v6, 5, v6")
    I("v_lshrrev_b32 v7, 4, v3")
    I("v_lshl_add_u32 v6, v7, 4, v6")
    I("v_and_b32 v7, 15, v5")
    I("v_add_u32 v6, v6, v7")
    I("v_mad_u32_u24 v6, v3, s42, v6")
    I(f"v_add_u32 v6, {OH}, v6")
    I(f"ds_write_b16_d16_hi v6, v{ONE}")
    I("s_mov_b64 exec, -1")
    L("L_noconst")
    I("s_waitcnt vmcnt(5)")
    I("s_branch L_tw1")
    L("L_tw0")
    I("s_waitcnt vmcnt(0)")
    L("L_tw1")
    stamp(1)
    I("v_and_b32 v53, 0xffff, v48")
    I("v_lshrrev_b32 v52, 16, v48")
    I("v_subrev_u32 v54, s33, v66")
    I("s_sub_u32 s46, s34, s33")
    I("v_cmp_gt_u32 vcc, s46, v54")
    I("v_and_b32 v55, 1, v67")
    I("v_lshl_add_u32 v64, v55, 1, v53")
    I("v_cndmask_b32 v54, v53, v52, vcc")
    I("v_add_u32 v64, s45, v64")
    I(f"s_movk_i32 s46, {RECROW}")
    I("v_mul_u32_u24 v65, s46, v66")
    I("v_lshl_add_u32 v65, v64, 3, v65")
    I("v_sub_u32 v68, v54, v64")
    for i in range(8):
        I(f"v_cmpx_lt_i32 vcc, {4*i}, v68")
        I("s_nop 0")
        I("s_cbranch_execz L_rl")
        I(f"buffer_load_dwordx4 v[{4*i}:{4*i+3}], v65, s[24:27], 0 offen offset:{32*i}")
    L("L_rl")
    I("s_mov_b64 exec, -1")
    I("v_mov_b32 v71, 1")
    I("v_mov_b32 v72, 0x100")
    I("s_waitcnt lgkmcnt(0)")
    I("s_barrier")
    I("s_waitcnt vmcnt(0)")
    stamp(2)
    for r in range(16):
        I(f"v_lshrrev_b32 v{32+r}, 26, v{2*r+1}")
    for r in range(16):
        I(f"v_lshlrev_b32 v{32+r}, 2, v{32+r}")
    for r in range(16):
        i, k = r // 2, r % 2
        I(f"v_cmpx_lt_i32 vcc, {4*i+k}, v68")
        if k == 0:
            I("s_nop 0")
            I("s_cbranch_execz L_rank_done")
        I(f"ds_add_rtn_u32 v{48+r}, v{32+r}, v71 offset:{CNT}")
    I("v_cmpx_lt_i32 vcc, 32, v68")
    I(f"ds_add_u32 v72, v71 offset:{CNT}")
    L("L_rank_done")
    I("s_mov_b64 exec, -1")
    I("v_and_b32 v73, 0xe0, v69")
    I("v_or_b32 v74, 28, v69")
    I("v_and_b32 v83, 7, v67")
    I("v_lshlrev_b32 v84, 5, v83")
    I("v_lshrrev_b32 v86, 3, v67")
    I("s_waitcnt lgkmcnt(0)")
    I("s_barrier")
    stamp(3)
    I(f"ds_read_b32 v75, v69 offset:{CNT}")
    I(f"ds_read_b32 v76, v72 offset:{CNT}")
    I("s_waitcnt lgkmcnt(1)")
    I("v_mov_b32 v77, v75")
    wave_scan(77)
    I("v_sub_u32 v78, v77, v75")
    I("v_readlane_b32 s60, v77, 63")
    I("ds_bpermute_b32 v79, v73, v78")
    I("ds_bpermute_b32 v80, v74, v77")
    I("v_cmp_eq_u32 vcc, v74, v69")
    I("s_waitcnt lgkmcnt(0)")
    I("v_readfirstlane_b32 s61, v76")
    I(f"s_cmp_le_u32 s60, {TLIM}")
    I("s_cbranch_scc1 L_fits")
    I("s_mov_b32 s34, s33")
    I("s_mov_b32 s61, 0")
    I("v_mov_b32 v68, 0")
    I("v_mov_b32 v78, 0")
    I("v_mov_b32 v79, 0")
    I("v_mov_b32 v80, 0")
    L("L_fits")
    I("v_sub_u32 v80, v80, v79")
    I("ds_bpermute_b32 v85, v84, v80")
    I("v_add_u32 v81, 0x5f, v80")
    I("v_and_b32 v81, 0xffe0, v81")
    I("v_sub_u32 v81, v81, v80")
    I("v_cndmask_b32 v81, 0, v81, vcc")
    I("v_mov_b32 v82, v81")
    wave_scan(82)
    I("v_sub_u32 v82, v82, v81")
    I("v_add_lshl_u32 v78, v78, v82, 2")
    I("v_lshl_add_u32 v86, v80, 3, v86")
    I("s_waitcnt lgkmcnt(0)")
    for r in range(16):
        I(f"ds_bpermute_b32 v{32+r}, v{32+r}, v78")
    I("s_cmp_eq_u32 s47, 0")
    I("s_cbranch_scc1 L_paired")
    I("v_lshl_add_u32 v85, v85, 3, v83")
    I("v_cmp_gt_u32 vcc, v85, v86")
    I("s_sub_u32 s64, 11, s3")
    I("s_cmp_lt_u32 s3, 4")
    I("s_cselect_b32 s64, s3, s64")
    I("s_mov_b32 s41, 0")
    for i in range(8):
        I(f"s_bfe_u32 s65, {'vcc_lo' if i < 4 else 'vcc_hi'}, {(8*(i%4)) | (8 << 16)}")
        I("s_bcnt1_i32_b32 s65, s65")
        I("s_cmp_eq_u32 s65, s64")
        I(f"s_cselect_b32 s41, {i}, s41")
    L("L_paired")
    I("s_lshl_b32 s46, s41, 3")
    I("v_readlane_b32 s62, v78, s46")
    I("v_readlane_b32 s63, v80, s46")
    I("s_waitcnt lgkmcnt(0)")
    for r in range(16):
        i, k = r // 2, r % 2
        I(f"v_cmpx_lt_i32 vcc, {4*i+k}, v68")
        I(f"v_lshl_add_u32 v{32+r}, v{48+r}, 2, v{32+r}")
        if k == 0:
            I("s_cbranch_execz L_scat_done")
        I(f"ds_write2st64_b32 v{32+r}, v{2*r}, v{2*r+1} offset0:{LIST_S//256} offset1:{LIST_M//256}")
    L("L_scat_done")
    I("s_mov_b64 exec, -1")
    I("s_cmp_eq_u32 s47, 0")
    I("s_cbranch_scc1 L_nowin")
    for i in range(16):
        I(f"v_mov_b32 v{80+i}, 0")
    I("v_and_b32 v72, 31, v67")
    I(f"v_lshl_add_u32 v72, v72, 7, v{H16}")
    I("s_lshl_b32 s46, s32, 3")
    I("s_add_u32 s46, s46, s41")
    I("s_mul_i32 s46, s46, 3125")
    I("s_add_u32 s49, s46, 127")
    I("s_lshr_b32 s49, s49, 7")
    I(f"s_add_u32 s44, s46, {3125+127}")
    I("s_lshr_b32 s44, s44, 7")
    I("s_sub_u32 s44, s44, s49")
    I("s_lshl_b32 s49, s49, 7")
    I("s_bfm_b32 s46, s44, 0")
    I("s_mov_b32 exec_lo, s46")
    I("s_mov_b32 exec_hi, s46")
    for s in range(4):
        I(f"buffer_load_dwordx4 {vr(80+4*s,4)}, v72, s[12:15], s49 offen offset:{32*s}")
    I("s_mov_b64 exec, -1")
    L("L_nowin")
    I("s_add_u32 s64, s63, 31")
    I("s_lshr_b32 s35, s64, 5")
    I("s_lshl_b32 s64, s35, 5")
    I("s_sub_u32 s64, s64, s63")
    I("s_lshl_b32 s65, s63, 2")
    I("s_add_u32 s65, s65, s62")
    I("v_add_u32 v72, s65, v69")
    I("v_mov_b32 v73, 0xffffff00")
    I(f"v_mov_b32 v74, {EMASK}")
    I(f"ds_write2st64_b32 v72, v73, v74 offset0:{LIST_S//256} offset1:{LIST_M//256}")
    I("v_cmp_gt_u32 vcc, s64, v67")
    I("s_and_saveexec_b64 s[50:51], vcc")
    I(f"ds_write2st64_b32 v72, v73, v74 offset0:{LIST_S//256+1} offset1:{LIST_M//256+1}")
    I("s_mov_b64 exec, -1")
    I("v_lshrrev_b32 v72, 3, v67")
    I(f"v_lshl_add_u32 v{LSA}, v72, 4, s62")
    I("v_and_b32 v72, 7, v67")
    I("v_bfe_u32 v73, v67, 3, 2")
    I("v_lshl_add_u32 v72, v72, 2, v73")
    I(f"s_add_u32 s65, s62, {LIST_M}")
    I(f"v_lshl_add_u32 v{LMA}, v72, 2, s65")
    I("s_waitcnt lgkmcnt(0)")
    I("s_barrier")
    stamp(4)
    I(f"ds_read_b128 {vr(T,4)}, v{LSA}")
    I(f"ds_read2_b32 {vr(T+4,2)}, v{LMA} offset0:0 offset1:32")
    I("s_waitcnt lgkmcnt(0)")
    put(x_dma(0))
    put(e_load(0, T + 4))
    I(f"ds_read_b128 {vr(T,4)}, v{LSA} offset:128")
    I("s_cmp_eq_u32 s47, 0")
    I("s_cbranch_scc1 L_noinit")
    for f in range(8):
        I(f"ds_read_b128 {vr(4*f,4)}, v70 offset:{1024*f}")
    I("s_waitcnt vmcnt(5) lgkmcnt(0)")
    for c in range(2):
        d = vr(32 + 16 * c, 16)
        for s in range(4):
            I(mfma(d, vr(80 + 4 * s, 4), vr((2 * s + c) * 4, 4), "0" if s == 0 else d))
    for f in range(8):
        I(f"ds_read_b128 {vr(4*f,4)}, v70 offset:{1024*(26+f)}")
    I("s_nop 7")
    for i in range(32):
        I(f"v_mul_f32 v{32+i}, s43, v{32+i}")
    I("s_waitcnt lgkmcnt(0)")
    for f in range(18):
        I(f"ds_read_b128 {ar(4*f,4)}, v70 offset:{1024*(8+f)}")
    k = 0
    for c in range(2):
        a = ar(A_AGG + 16 * c, 16)
        for s in range(4):
            I(mfma(a, vr(80 + 4 * s, 4), vr((2 * s + c) * 4, 4), "0" if s == 0 else a))
            for p in (k, k + 1):
                I(f"v_cvt_pk_bf16_f32 v{64+p}, v{32+2*p}, v{32+2*p+1}")
            k += 2
    for c in range(2):
        for p in range(8):
            I(f"v_accvgpr_write_b32 a{xa(p//4, c) + p%4}, v{64+8*c+p}")
    I("s_mov_b32 s47, 0")
    L("L_noinit")
    I("s_cmp_eq_u32 s35, 0")
    I("s_cbranch_scc1 L_round_end")
    I(f"v_and_b32 v{T+4}, 31, v{T+4}")
    I(f"v_mad_u32_u24 v{T+7}, v{T+4}, s42, v{OHC}")
    I(f"v_mad_u32_u24 v{SW}, v{T+4}, s42, v{K1C}")
    I(f"ds_write_b16_d16_hi v{SW}, v{ONE}")
    I("s_waitcnt lgkmcnt(0)")
    put(x_dma(1))
    put(e_load(1, T + 5))
    for i in range(8):
        I(f"v_mov_b32 v{G[1]+i}, 0")
    for i in range(8):
        I(f"v_mov_b32 v{S+i}, 0")
    I("s_waitcnt vmcnt(5)")
    put(a_reads(0))
    I(f"ds_read_b128 {vr(T,4)}, v{LSA} offset:256")
    I("s_mov_b32 s36, s35")
    if PRIO:
        I("s_setprio 3")
    elif YPRIO:
        I("s_cmp_lt_u32 s3, 4")
        I("s_cbranch_scc1 L_yp")
        I("s_setprio 1")
        L("L_yp")
    stamp(5)
    m0 = mfma_group(0, 0)
    I(m0[0])
    I("s_waitcnt lgkmcnt(0)")
    I(m0[1])
    put(x_dma(0))
    put(m0[2:])
    I("s_nop 7")
    I("s_branch L_p1_0")
    L("L_loop")
    INLOOP[0] = True
    nv = len(valu_group(0))
    pos = [2 + (k * (nv - 4)) // 13 for k in range(13)]
    def sched(mf, va, inserts):
        pend = []
        mi = 0
        for i, v in enumerate(va):
            if mi < len(mf) and i == pos[mi]:
                put(inserts.get(('b', mi), []))
                I(mf[mi])
                put(inserts.get(('m', mi), []))
                pend += inserts.get(('s', mi), [])
                mi += 1
            I(v)
            if pend:
                put([pend.pop(0)])
        assert mi == len(mf)
        put(pend)
    def nonop(lst): return [x for x in lst if x != "s_nop 0"] if "valu" not in DROP else lst
    for par in range(2):
        ins = {('b', 3): ["s_waitcnt lgkmcnt(1)"],
               ('m', 4): ["s_waitcnt lgkmcnt(0)"],
               ('s', 4): nonop(x_dma(par))}
        if PRIO:
            ins[('m', 0)] = prio_code(par)
        sched(agg_group(0) + mfma_group(0, par), valu_group(1), ins)
        L(f"L_p1_{par}")
        ins = {('m', 0): [f"ds_read2_b32 {vr(T+4,2)}, v{LMA} offset0:32 offset1:64"],
               ('s', 1): [f"ds_read_b128 {vr(S,4)}, v{SRA}",
                          f"ds_read_b128 {vr(S+4,4)}, v{SRA} offset:32",
                          f"ds_write_b16 v{SW}, v{ONE}"],
               ('m', 3): ["s_waitcnt lgkmcnt(3)"] + e_load(par, T + 5),
               ('s', 3): [f"v_and_b32 v{T+4}, 31, v{T+4}",
                          f"v_add_u32 v{LSA}, 128, v{LSA}",
                          f"v_mad_u32_u24 v{T+7}, v{T+4}, s42, v{OHC}",
                          f"v_mad_u32_u24 v{SW}, v{T+4}, s42, v{K1C}",
                          f"v_add_u32 v{LMA}, 128, v{LMA}",
                          f"ds_write_b16_d16_hi v{SW}, v{ONE}",
                          "s_sub_u32 s36, s36, 1"],
               ('m', 12): ["s_waitcnt vmcnt(5) lgkmcnt(0)"] + a_reads(par ^ 1) + [f"ds_read_b128 {vr(T,4)}, v{LSA} offset:256"]}
        sched(agg_group(1) + mfma_group(1, par), valu_group(0), ins)
        I("s_cmp_eq_u32 s36, 0")
        I("s_cbranch_scc1 L_tail" if par == 0 else "s_cbranch_scc0 L_loop")
    L("L_tail")
    INLOOP[0] = False
    I(f"ds_write_b16 v{SW}, v{ONE}")
    I("s_nop 0")
    put(agg_group(0))
    put(valu_group(1))
    I("s_nop 1")
    put(agg_group(1))
    L("L_round_end")
    I("s_add_u32 s45, s45, 32")
    I("s_cmp_lg_u32 s61, 0")
    I("s_cbranch_scc1 L_next")
    I(f"s_cmp_ge_u32 s34, {NC}")
    I("s_cbranch_scc1 L_epi")
    I("s_mov_b32 s33, s34")
    I(f"s_add_u32 s34, s34, {CBLK}")
    I(f"s_min_u32 s34, s34, {NC}")
    I("s_mov_b32 s45, 0")
    L("L_next")
    I("v_mbcnt_lo_u32_b32 v67, -1, 0")
    I("v_mbcnt_hi_u32_b32 v67, -1, v67")
    I("s_waitcnt vmcnt(0) lgkmcnt(0)")
    I("s_barrier")
    I("s_branch L_round")
    L("L_epi")
    I("s_waitcnt vmcnt(0) lgkmcnt(0)")
    stamp(6)
    srd(28, 8, 9, N * 128)
    I("v_mbcnt_lo_u32_b32 v67, -1, 0")
    I("v_mbcnt_hi_u32_b32 v67, -1, v67")
    I("v_and_b32 v68, 31, v67")
    I("v_lshrrev_b32 v69, 5, v67")
    I("v_lshlrev_b32 v68, 1, v68")
    I("v_lshl_add_u32 v68, v69, 9, v68")
    I("v_add_u32 v68, s37, v68")
    I("v_lshlrev_b32 v70, 4, v67")
    I("v_add_u32 v71, s37, v70")
    I("s_nop 7")
    regs = list(range(13))
    for c in range(2):
        for i in regs:
            I(f"v_accvgpr_read_b32 v{16*c+i}, a{A_AGG+16*c+i}")
    ids = [16 * c + i for c in range(2) for i in regs]
    for r in ids:
        I(f"v_mul_f32 v{32+r}, s43, v{r}")
    for r in ids:
        I(f"v_exp_f32 v{32+r}, v{32+r}")
    for r in ids:
        I(f"v_add_f32 v{32+r}, 1.0, v{32+r}")
    for r in ids:
        I(f"v_rcp_f32 v{32+r}, v{32+r}")
    for r in ids:
        I(f"v_mul_f32 v{r}, v{r}, v{32+r}")
    for i in regs:
        I(f"v_cvt_pk_bf16_f32 v{32+i}, v{i}, v{16+i}")
    for i in regs:
        row = 8 * (i >> 2) + (i & 3)
        I(f"ds_write_b16 v68, v{32+i} offset:{row*128}")
        I(f"ds_write_b16_d16_hi v68, v{32+i} offset:{row*128+64}")
    I("s_waitcnt lgkmcnt(0)")
    for k in range(4):
        I(f"ds_read_b128 {vr(4*k,4)}, v71 offset:{1024*k}")
    for k in range(3):
        I(f"s_waitcnt lgkmcnt({3-k})")
        I(f"buffer_store_dwordx4 {vr(4*k,4)}, v70, s[28:31], s49 offen offset:{1024*k} sc1")
    I("s_cmp_lt_u32 s44, 25")
    I("s_cbranch_scc1 L_k2_fin")
    I("s_waitcnt lgkmcnt(0)")
    I("s_mov_b64 exec, 0xff")
    I(f"buffer_store_dwordx4 {vr(12,4)}, v70, s[28:31], s49 offen offset:3072 sc1")
    L("L_k2_fin")
    if STAMP:
        I("s_waitcnt vmcnt(0)")
        stamp(7)
        srd(28, 10, 11, 0x100000, 0x1000000)
        I("s_mov_b64 exec, 1")
        I("s_lshl_b32 s46, s2, 3")
        I("s_add_u32 s46, s46, s3")
        I("s_lshl_b32 s46, s46, 6")
        I("v_mov_b32 v0, 0")
        for k in range(8):
            I(f"v_mov_b32 v1, s{70+2*k}")
            I(f"buffer_store_dword v1, v0, s[28:31], s46 offen offset:{4*k}")
        I("v_mov_b32 v1, s35")
        I("buffer_store_dword v1, v0, s[28:31], s46 offen offset:32")
        I("s_getreg_b32 s47, hwreg(HW_REG_XCC_ID)")
        I("v_mov_b32 v1, s47")
        I("buffer_store_dword v1, v0, s[28:31], s46 offen offset:36")
        I("s_getreg_b32 s47, hwreg(HW_REG_HW_ID)")
        I("v_mov_b32 v1, s47")
        I("buffer_store_dword v1, v0, s[28:31], s46 offen offset:40")
        I("s_memrealtime s[50:51]")
        I("s_waitcnt lgkmcnt(0)")
        I("v_mov_b32 v1, s50")
        I("buffer_store_dword v1, v0, s[28:31], s46 offen offset:44")
        I("v_mov_b32 v1, s86")
        I("buffer_store_dword v1, v0, s[28:31], s46 offen offset:48")
    L("L_k2_end")
    I("s_endpgm")

def kd(name, vgpr, sgpr, accum):
    emit(f".amdhsa_kernel {name}")
    emit(f"  .amdhsa_next_free_vgpr {vgpr}")
    emit(f"  .amdhsa_next_free_sgpr {sgpr}")
    emit(f"  .amdhsa_accum_offset {accum}")
    emit("  .amdhsa_group_segment_fixed_size 0")
    emit("  .amdhsa_kernarg_size 80")
    emit("  .amdhsa_user_sgpr_count 2")
    emit("  .amdhsa_user_sgpr_kernarg_segment_ptr 1")
    emit("  .amdhsa_system_sgpr_workgroup_id_x 1")
    emit(".end_amdhsa_kernel")

def main():
    emit(HEADER.rstrip("\n"))
    emit(f"; @launch kernel=egc_bin_kernel grid=({NC},1,1) block=(1024,1,1) lds={K1_LDS}")
    emit(f"; @launch kernel=egc_main_kernel grid=(256,1,1) block=(512,1,1) lds={K2_LDS}")
    emit('.amdgcn_target "amdgcn-amd-amdhsa--gfx950"')
    emit(".text")
    gen_k1()
    gen_k2()
    emit('.section .rodata,"a"')
    emit(".p2align 6")
    kd("egc_bin_kernel", 56, 72, 56)
    emit(".p2align 6")
    kd("egc_main_kernel", 248, 96, 128)
    path = sys.argv[1] if len(sys.argv) > 1 else "v10.s"
    open(path, "w").write("\n".join(out) + "\n")

main()
```

```python
import sys, os

N = 50000; E = 800000
NB = 256; CH = 3200; NC = 250
WS_TAB = 0x10000; WS_REC = 0x400000; RECROW = CH * 8
MW = 175921861
NEGLOG2E = 0xBFB8AA3B
def env(k, d): return os.environ.get(k, d)
STAMP = int(env("STAMP", "0"))
TLBPF = int(env("TLBPF", "65536"))
PSH = int(env("PSH", "13"))
SUBW = int(env("SUBW", "1"))
PRIO = int(env("PRIO", "0"))
YPRIO = int(env("YPRIO", "1"))
PTH = [int(x) for x in env("PTH", "10,7,4").split(",")]
EPOL = env("EPOL", "")
NOMEM = int(env("NOMEM", "0"))
DROP = env("DROP", "").split(",")
INLOOP = [False]

out = []
def emit(s=""): out.append(s)
def I(s):
    if INLOOP[0]:
        op = s.split()[0]
        if "mfma" in DROP and op.startswith("v_mfma"): return
        if "valu" in DROP and op in ("v_exp_f32", "v_rcp_f32", "v_mul_f32", "v_add_f32", "v_cvt_pk_bf16_f32"): return
    out.append("    " + s)
def L(s): out.append(s + ":")
def put(lst):
    for x in lst:
        emit(x) if x.endswith(":") else I(x)
def stamp(k):
    if STAMP:
        I(f"s_memtime s[{70+2*k}:{71+2*k}]")
        I("s_waitcnt lgkmcnt(0)")

HEADER = """; Kernarg layout for this problem (80 bytes, ptrs only, base s[0:1]):
"""

def srd(d, lo, hi, size, add=0):
    if add:
        I(f"s_add_u32 s{d}, s{lo}, {add}")
        I(f"s_addc_u32 s{d+1}, s{hi}, 0")
    else:
        I(f"s_mov_b32 s{d}, s{lo}")
        I(f"s_mov_b32 s{d+1}, s{hi}")
    I(f"s_mov_b32 s{d+2}, {size}")
    I(f"s_mov_b32 s{d+3}, 0x00020000")

def wave_scan(r):
    for st in ["row_shr:1 row_mask:0xf", "row_shr:2 row_mask:0xf", "row_shr:4 row_mask:0xf", "row_shr:8 row_mask:0xf",
               "row_bcast:15 row_mask:0xa", "row_bcast:31 row_mask:0xc"]:
        I("s_nop 1")
        I(f"v_add_u32_dpp v{r}, v{r}, v{r} {st} bank_mask:0xf")

K1_HIST = 0
K1_STG = 1024
K1_LDS = K1_STG + RECROW

def gen_k1():
    emit(".globl egc_bin_kernel")
    emit(".p2align 8")
    emit(".type egc_bin_kernel,@function")
    L("egc_bin_kernel")
    I(f"s_cmp_ge_u32 s2, {NC}")
    I("s_cbranch_scc1 L_k1_end")
    if STAMP:
        I("s_memrealtime s[68:69]")
    I("s_load_dwordx4 s[4:7], s[0:1], 16")
    I("s_load_dwordx4 s[8:11], s[0:1], 32")
    I("s_load_dwordx2 s[12:13], s[0:1], 48")
    I("s_load_dwordx2 s[14:15], s[0:1], 72")
    I("v_and_b32 v1, 0xff, v0")
    I("v_lshlrev_b32 v1, 2, v1")
    I("v_mov_b32 v2, 0")
    I(f"ds_write_b32 v1, v2 offset:{K1_HIST}")
    I("v_lshlrev_b32 v4, 4, v0")
    I("v_lshrrev_b32 v5, 6, v0")
    I(f"s_mul_i32 s32, s2, {CH*4}")
    I("v_readfirstlane_b32 s3, v5")
    I(f"s_mov_b32 s33, {MW}")
    I("s_movk_i32 s36, 3125")
    I(f"s_mul_i32 s37, s2, {CH*32}")
    I("s_waitcnt lgkmcnt(0)")
    srd(16, 4, 5, E * 4)
    srd(20, 6, 7, E * 4)
    srd(24, 14, 15, 0x1000000)
    if STAMP:
        srd(64, 14, 15, 0x1000, 0x1100000)
        I("s_lshl_b32 s62, s2, 2")
        I("v_mov_b32 v40, s68")
        I("v_lshlrev_b32 v41, 12, v0")
        I("buffer_store_dword v40, v41, s[64:67], s62 offen")
    I(f"v_cmp_gt_u32 vcc, {CH//4}, v0")
    I("s_and_saveexec_b64 s[34:35], vcc")
    I("s_cbranch_execz L_k1_noload")
    I("buffer_load_dwordx4 v[8:11], v4, s[20:23], s32 offen")
    I("buffer_load_dwordx4 v[12:15], v4, s[16:19], s32 offen")
    L("L_k1_noload")
    I("s_mov_b64 exec, s[34:35]")
    if TLBPF:
        I("s_cmp_lg_u32 s3, 13")
        I("s_cbranch_scc1 L_k1_notlb")
        I("s_load_dwordx4 s[52:55], s[0:1], 0")
        I("s_load_dwordx2 s[56:57], s[0:1], 56")
        I("s_lshr_b32 s62, s2, 3")
        I("v_and_b32 v40, 63, v0")
        ne_ = -(-(E * 32) // (TLBPF * 32)); nx_ = -(-(N * 128) // (TLBPF * 32))
        I(f"s_mul_i32 s63, s62, {ne_ * TLBPF}")
        I(f"s_mul_i32 s62, s62, {nx_ * TLBPF}")
        I(f"s_mov_b32 s58, {TLBPF}")
        I("v_mul_lo_u32 v41, v40, s58")
        I("s_waitcnt lgkmcnt(0)")
        srd(64, 54, 55, E * 32)
        I(f"s_bfm_b64 exec, {ne_}, 0")
        I("buffer_load_dword v42, v41, s[64:67], s63 offen")
        srd(64, 52, 53, N * 128)
        I(f"s_bfm_b64 exec, {nx_}, 0")
        I("buffer_load_dword v43, v41, s[64:67], s62 offen")
        srd(64, 56, 57, N * 128)
        I("buffer_load_dword v44, v41, s[64:67], s62 offen")
        I("s_mov_b64 exec, -1")
        L("L_k1_notlb")
    I("s_mov_b32 s40, 0")
    I("s_cmp_lg_u32 s3, 15")
    I("s_cbranch_scc1 L_k1_nowf")
    I("s_cmp_ge_u32 s2, 34")
    I("s_cbranch_scc1 L_k1_nowf")
    I("s_mov_b32 s40, 1")
    I("s_mov_b32 s28, s12")
    I("s_mov_b32 s29, s13")
    I(f"s_mov_b32 s30, {144*128}")
    I("s_mov_b32 s31, 0x00020000")
    I("s_mov_b32 s41, s2")
    I("s_cmp_lt_u32 s2, 18")
    I("s_cbranch_scc1 L_k1_wsel")
    I("s_mov_b32 s28, s10")
    I("s_mov_b32 s29, s11")
    I(f"s_mov_b32 s30, {64*128}")
    I("s_sub_u32 s41, s2, 18")
    I("s_cmp_lt_u32 s2, 26")
    I("s_cbranch_scc1 L_k1_wsel")
    I("s_mov_b32 s28, s8")
    I("s_mov_b32 s29, s9")
    I("s_sub_u32 s41, s2, 26")
    L("L_k1_wsel")
    I("s_lshr_b32 s42, s41, 1")
    I("s_lshl_b32 s42, s42, 11")
    I("s_and_b32 s43, s41, 1")
    I("s_lshl_b32 s43, s43, 6")
    I("s_add_u32 s42, s42, s43")
    I("v_and_b32 v40, 31, v0")
    I("v_lshlrev_b32 v40, 1, v40")
    I("v_and_b32 v41, 32, v0")
    I("v_lshl_add_u32 v40, v41, 5, v40")
    for j in range(8):
        I(f"buffer_load_ushort v{44+j}, v40, s[28:31], s42 offen offset:{128*j}")
    L("L_k1_nowf")
    I("s_barrier")
    I("s_and_saveexec_b64 s[34:35], vcc")
    I("s_cbranch_execz L_k1_nohist")
    I("v_mov_b32 v6, 1")
    I("v_mov_b32 v5, 0x7f")
    I("v_lshl_add_u32 v7, v0, 7, s37")
    I("s_waitcnt vmcnt(1)")
    for i in range(4):
        I(f"v_mul_hi_u32 v{16+i}, v{8+i}, s33")
    for i in range(4):
        I(f"v_lshrrev_b32 v{20+i}, 3, v{16+i}")
    for i in range(4):
        I(f"v_lshlrev_b32 v{20+i}, 2, v{20+i}")
    for i in range(4):
        I(f"ds_add_rtn_u32 v{24+i}, v{20+i}, v6 offset:{K1_HIST}")
    for i in range(4):
        I(f"v_mad_u32_u24 v{28+i}, v{16+i}, s36, v5")
    for i in range(4):
        I(f"v_lshrrev_b32 v{28+i}, 7, v{28+i}")
    for i in range(4):
        I(f"v_sub_u32 v{28+i}, v{8+i}, v{28+i}")
    for i in range(4):
        I(f"v_lshlrev_b32 v{16+i}, 29, v{16+i}")
    for i in range(4):
        I(f"v_or3_b32 v{33+2*i}, v{16+i}, v7, v{28+i}")
    for i in range(1, 4):
        I(f"v_add_u32 v{33+2*i}, {32*i}, v{33+2*i}")
    I("s_waitcnt vmcnt(0)")
    for i in range(4):
        I(f"v_lshlrev_b32 v{32+2*i}, 7, v{12+i}")
    if int(env("PEQ", "0")):
        for i in range(4):
            I(f"v_mul_u32_u24 v{12+i}, 0x53e, v{12+i}")
        for i in range(4):
            I(f"v_bfe_u32 v{12+i}, v{12+i}, 23, 3")
    else:
        for i in range(4):
            I(f"v_bfe_u32 v{12+i}, v{12+i}, {PSH}, 3")
    for i in range(4):
        I(f"v_lshl_or_b32 v{33+2*i}, v{12+i}, 26, v{33+2*i}")
    L("L_k1_nohist")
    I("s_mov_b64 exec, s[34:35]")
    I("s_waitcnt lgkmcnt(0)")
    I("s_barrier")
    I("s_cmp_lg_u32 s3, 14")
    I("s_cbranch_scc1 L_k1_noscan")
    I("v_and_b32 v1, 63, v0")
    I("v_lshlrev_b32 v2, 4, v1")
    I(f"ds_read_b128 v[8:11], v2 offset:{K1_HIST}")
    I("v_lshrrev_b32 v3, 2, v1")
    I("v_lshlrev_b32 v3, 14, v3")
    I("v_and_b32 v1, 3, v1")
    I("v_lshl_add_u32 v3, v1, 4, v3")
    I("s_lshl_b32 s46, s2, 6")
    I(f"s_add_u32 s46, s46, {WS_TAB}")
    I("s_waitcnt lgkmcnt(0)")
    I("v_add_u32 v12, v8, v9")
    I("v_add_u32 v13, v12, v10")
    I("v_add_u32 v14, v13, v11")
    I("v_mov_b32 v15, v14")
    wave_scan(15)
    I("v_sub_u32 v16, v15, v14")
    I("v_add_u32 v17, v16, v8")
    I("v_add_u32 v18, v16, v12")
    I("v_add_u32 v19, v16, v13")
    I(f"ds_write_b128 v2, v[16:19] offset:{K1_HIST}")
    I("v_lshl_or_b32 v8, v17, 16, v16")
    I("v_lshl_or_b32 v9, v18, 16, v17")
    I("v_lshl_or_b32 v10, v19, 16, v18")
    I("v_lshl_or_b32 v11, v15, 16, v19")
    I("buffer_store_dwordx4 v[8:11], v3, s[24:27], s46 offen sc1")
    I("s_waitcnt lgkmcnt(0)")
    L("L_k1_noscan")
    I("s_barrier")
    I("s_and_saveexec_b64 s[34:35], vcc")
    I("s_cbranch_execz L_k1_noscat")
    for i in range(4):
        I(f"ds_read_b32 v{28+i}, v{20+i} offset:{K1_HIST}")
    for i in range(4):
        I(f"s_waitcnt lgkmcnt({3-i})")
        I(f"v_add_lshl_u32 v{28+i}, v{28+i}, v{24+i}, 3")
    for i in range(4):
        I(f"ds_write_b64 v{28+i}, v[{32+2*i}:{33+2*i}] offset:{K1_STG}")
    L("L_k1_noscat")
    I("s_mov_b64 exec, s[34:35]")
    I("s_waitcnt lgkmcnt(0)")
    I("s_barrier")
    I(f"s_mul_i32 s46, s2, {RECROW}")
    I(f"s_add_u32 s46, s46, {WS_REC}")
    I(f"ds_read_b128 v[16:19], v4 offset:{K1_STG}")
    I(f"s_cmp_ge_u32 s3, {(RECROW//16 - 1024) // 64}")
    I("s_cbranch_scc1 L_k1_no2")
    I(f"ds_read_b128 v[12:15], v4 offset:{K1_STG + 16384}")
    I("s_add_u32 s47, s46, 16384")
    I("s_waitcnt lgkmcnt(0)")
    I("buffer_store_dwordx4 v[12:15], v4, s[24:27], s47 offen sc1")
    L("L_k1_no2")
    I("s_waitcnt lgkmcnt(0)")
    I("buffer_store_dwordx4 v[16:19], v4, s[24:27], s46 offen sc1")
    I("s_cmp_eq_u32 s40, 0")
    I("s_cbranch_scc1 L_k1_end")
    I("s_waitcnt vmcnt(0)")
    I("s_sub_u32 s46, s2, 8")
    I("s_cmp_lt_u32 s46, 10")
    I(f"s_cselect_b32 s47, {NEGLOG2E}, 1.0")
    for j in range(8):
        I(f"v_lshlrev_b32 v{44+j}, 16, v{44+j}")
    for j in range(8):
        I(f"v_mul_f32 v{44+j}, s47, v{44+j}")
    for j in range(4):
        I(f"v_cvt_pk_bf16_f32 v{52+j}, v{44+2*j}, v{45+2*j}")
    I("v_and_b32 v40, 63, v0")
    I("v_lshlrev_b32 v40, 4, v40")
    I("s_lshl_b32 s46, s2, 10")
    I("buffer_store_dwordx4 v[52:55], v40, s[24:27], s46 offen sc1")
    L("L_k1_end")
    I("s_endpgm")

LCAP = 4352
TLIM = 3584
CBLK = 100
LIST_S = 0
LIST_M = LIST_S + LCAP * 4
CNT = LIST_M + LCAP * 4
CW = CNT + 512
PW = CW + 2048
WSTG = PW + 2048
SM = WSTG + 34 * 1024
SMW = 2000
OH = SM + 16576
STG = OH + 2560
STGW = 8192
K2_LDS = STG + 8 * STGW
assert CNT % 256 == 0 and STG % 16 == 0 and K2_LDS <= 163840
EMASK = 0x01FFFFE0

G = [0, 32]; H = [16, 48]
AX = 64; ST = 80; S = 88; EB = [96, 100]; T = 104
VAX = 112; PC = 116; H16 = 117; LSA = 118; LMA = 119; K1C = 120; SRA = 121; OHC = 122; SW = 123; ONE = 124
A_WB = 0; A_WV = 40; A_XA = 72; A_AGG = 88

def wb(s, c): return A_WB + (2 * s + c) * 4
def wv(s, c): return A_WV + (2 * s + c) * 4
def xa(s, c): return A_XA + (2 * s + c) * 4
def vr(b, n): return f"v[{b}:{b+n-1}]"
def ar(b, n): return f"a[{b}:{b+n-1}]"
def mfma(d, a, b, c): return f"v_mfma_f32_32x32x16_bf16 {d}, {a}, {b}, {c}"

def mfma_group(c, par):
    m = []
    g = vr(G[c], 16); h = vr(H[c], 16)
    m.append(mfma(g, vr(EB[par], 4), ar(wb(4, c), 4), "0"))
    for s in range(2):
        m.append(mfma(g, vr(ST + 4 * s, 4), ar(xa(s, c), 4), g))
    for s in range(4):
        m.append(mfma(g, vr(AX + 4 * s, 4), ar(wb(s, c), 4), g))
    for s in range(4):
        m.append(mfma(h, vr(AX + 4 * s, 4), ar(wv(s, c), 4), "0" if s == 0 else h))
    return m

def valu_group(c):
    g = G[c]; h = H[c]
    stages = [
        lambda i: f"v_exp_f32 v{g+i}, v{g+i}",
        lambda i: f"v_add_f32 v{g+i}, 1.0, v{g+i}",
        lambda i: f"v_rcp_f32 v{g+i}, v{g+i}",
        lambda i: f"v_mul_f32 v{g+i}, v{g+i}, v{h+i}",
    ]
    v = []
    D = 2
    nst = len(stages)
    for step in range(16 + D * nst + 2):
        for k in range(nst):
            i = step - D * k
            if 0 <= i < 16:
                v.append(stages[k](i))
        i = step - D * nst
        if 0 <= i < 16 and i % 2 == 1:
            v.append(f"v_cvt_pk_bf16_f32 v{g+i//2}, v{g+i-1}, v{g+i}")
    return v

def agg_group(c):
    a = ar(A_AGG + 16 * c, 16)
    return [mfma(a, vr(S, 4), vr(G[c], 4), a), mfma(a, vr(S + 4, 4), vr(G[c] + 4, 4), a)]

def x_dma(par):
    r = []
    if NOMEM:
        for k in range(4):
            r.append(f"v_and_b32 v{T+k}, 0x3f80, v{T+k}")
    r.append(f"v_add_u32 v{T+0}, v{PC}, v{T+0}")
    r.append(f"v_xad_u32 v{T+1}, v{PC}, 64, v{T+1}")
    r.append(f"v_add_u32 v{T+2}, v{PC}, v{T+2}")
    r.append(f"v_xad_u32 v{T+3}, v{PC}, 64, v{T+3}")
    for k in range(4):
        r.append(f"s_add_u32 m0, s37, {par*4096 + k*1024}")
        r.append("s_nop 0")
        r.append(f"buffer_load_dwordx4 v{T+k}, s[12:15], 0 offen lds")
    return r

def e_load(par, meta):
    r = []
    if NOMEM:
        r.append(f"v_and_b32 v{meta}, 0x3fff, v{meta}")
    r.append(f"v_and_or_b32 v{T+6}, v{meta}, s40, v{H16}")
    r.append(f"buffer_load_dwordx4 {vr(EB[par],4)}, v{T+6}, s[16:19], 0 offen" + EPOL)
    return r

def a_reads(par):
    r = []
    for s in range(2):
        r.append(f"ds_read_b128 {vr(ST+4*s,4)}, v{T+7} offset:{16*s}")
    for s in range(4):
        r.append(f"ds_read_b128 {vr(AX+4*s,4)}, v{VAX+s} offset:{par*4096}")
    return r

def prio_code(par):
    r = []
    for lim, p in zip(PTH, (2, 1, 0)):
        r += [f"s_cmp_lt_u32 s36, {lim}", f"s_cbranch_scc0 L_pr_done_{par}", f"s_setprio {p}"]
    return r + [f"L_pr_done_{par}:"]

def gen_k2():
    emit(".globl egc_main_kernel")
    emit(".p2align 8")
    emit(".type egc_main_kernel,@function")
    L("egc_main_kernel")
    I("s_cmp_ge_u32 s2, 256")
    I("s_cbranch_scc1 L_k2_end")
    I("s_load_dwordx2 s[10:11], s[0:1], 72")
    I("s_load_dwordx4 s[4:7], s[0:1], 0")
    I("s_load_dwordx2 s[8:9], s[0:1], 56")
    I("s_and_b32 s38, s2, 7")
    I("s_lshr_b32 s39, s2, 3")
    I("s_lshl_b32 s32, s38, 5")
    I("s_add_u32 s32, s32, s39")
    stamp(0)
    if STAMP:
        I("s_memrealtime s[86:87]")
    I("v_lshrrev_b32 v1, 6, v0")
    I("v_and_b32 v67, 63, v0")
    I("v_readfirstlane_b32 s3, v1")
    I("s_mov_b32 s33, 0")
    I(f"s_movk_i32 s34, {NC}")
    I("s_mov_b32 s45, 0")
    I("s_mov_b32 s47, 1")
    I("s_lshr_b32 s48, s32, 4")
    I("s_lshl_b32 s48, s48, 14")
    I("s_and_b32 s46, s32, 15")
    I("s_lshl_b32 s46, s46, 2")
    I("s_add_u32 s48, s48, s46")
    I(f"s_add_u32 s48, s48, {WS_TAB}")
    I("s_waitcnt lgkmcnt(0)")
    I("s_add_u32 s20, s10, s48")
    I("s_addc_u32 s21, s11, 0")
    I(f"s_mov_b32 s22, {(NC-1)*64+4}")
    I("s_mov_b32 s23, 0x00020000")
    L("L_round")
    I("s_lshl_b32 s46, s3, 5")
    I("v_lshrrev_b32 v66, 1, v67")
    I("v_add_u32 v66, s46, v66")
    I("v_lshlrev_b32 v65, 6, v66")
    I("buffer_load_dword v48, v65, s[20:23], 0 offen")
    I("v_lshlrev_b32 v69, 2, v67")
    I("v_mov_b32 v49, 0")
    I(f"ds_write2st64_b32 v69, v49, v49 offset0:{CNT//256} offset1:{CNT//256+1}")
    if SUBW:
        I("s_lshl_b32 s59, s3, 8")
        I("v_add_u32 v87, s59, v69")
        I(f"ds_write2st64_b32 v87, v49, v49 offset0:{CW//256} offset1:{PW//256}")
    I("s_cmp_eq_u32 s47, 0")
    I("s_cbranch_scc1 L_tw0")
    srd(28, 10, 11, 34 * 1024)
    I("v_lshlrev_b32 v70, 4, v67")
    for k in range(5):
        I(f"s_add_u32 s46, s3, {8*k}")
        if k == 4:
            I("s_min_u32 s46, s46, 33")
        I("s_lshl_b32 s46, s46, 10")
        I(f"s_add_u32 m0, s46, {WSTG}")
        I("s_nop 0")
        I("buffer_load_dwordx4 v70, s[28:31], s46 offen lds")
    srd(12, 4, 5, N * 128)
    srd(16, 6, 7, E * 32)
    srd(24, 10, 11, NC * RECROW, WS_REC)
    I(f"s_mov_b32 s40, {EMASK}")
    I("s_movk_i32 s42, 80")
    I(f"s_mov_b32 s43, {NEGLOG2E}")
    I("s_lshl_b32 s37, s3, 13")
    I(f"s_add_u32 s37, s37, {STG}")
    I("v_and_b32 v3, 31, v67")
    I("v_lshrrev_b32 v4, 5, v67")
    I("v_bfe_u32 v5, v3, 1, 3")
    I("v_xor_b32 v5, v5, v4")
    I("v_lshlrev_b32 v5, 4, v5")
    I("v_lshl_add_u32 v5, v3, 7, v5")
    I(f"v_add_u32 v{VAX}, s37, v5")
    for s in range(1, 4):
        I(f"v_xor_b32 v6, {32*s}, v5")
        I(f"v_add_u32 v{VAX+s}, s37, v6")
    I("v_lshrrev_b32 v5, 4, v67")
    I("v_and_b32 v6, 7, v67")
    I("v_xor_b32 v5, v5, v6")
    I(f"v_lshlrev_b32 v{PC}, 4, v5")
    I(f"v_lshlrev_b32 v{H16}, 4, v4")
    I(f"s_mul_i32 s46, s3, {SMW}")
    I(f"s_add_u32 s46, s46, {SM}")
    I("v_lshrrev_b32 v5, 4, v3")
    I("v_lshlrev_b32 v5, 5, v5")
    I("v_bfe_u32 v6, v3, 2, 1")
    I("v_lshl_add_u32 v5, v6, 4, v5")
    I("v_bfe_u32 v6, v3, 3, 1")
    I("v_lshl_add_u32 v5, v6, 3, v5")
    I("v_and_b32 v6, 3, v3")
    I("v_lshl_add_u32 v5, v6, 1, v5")
    I(f"v_add_u32 v{K1C}, s46, v5")
    I(f"v_add_u32 v6, s46, v{H16}")
    I(f"v_mad_u32_u24 v{SRA}, v3, s42, v6")
    I("v_lshlrev_b32 v6, 5, v4")
    I(f"v_add_u32 v{OHC}, {OH}, v6")
    I(f"v_mov_b32 v{ONE}, 1.0")
    for i in range(4):
        I(f"v_mov_b32 v{8+i}, 0")
    I("v_add_u32 v7, s46, v70")
    I("ds_write_b128 v7, v[8:11]")
    I("v_cmp_gt_u32 vcc, 61, v67")
    I("s_and_saveexec_b64 s[50:51], vcc")
    I("ds_write_b128 v7, v[8:11] offset:1024")
    I("s_mov_b64 exec, -1")
    I(f"v_add_u32 v70, {WSTG}, v70")
    I("s_cmp_lg_u32 s3, 0")
    I("s_cbranch_scc1 L_noconst")
    I(f"v_add_u32 v7, {OH-WSTG}, v70")
    I("ds_write_b128 v7, v[8:11]")
    I("ds_write_b128 v7, v[8:11] offset:1024")
    I("s_mov_b32 exec_hi, 0")
    I("ds_write_b128 v7, v[8:11] offset:2048")
    I("v_bfe_u32 v6, v3, 2, 1")
    I("v_lshlrev_b32 v6, 5, v6")
    I("v_lshrrev_b32 v7, 4, v3")
    I("v_lshl_add_u32 v6, v7, 4, v6")
    I("v_and_b32 v7, 15, v5")
    I("v_add_u32 v6, v6, v7")
    I("v_mad_u32_u24 v6, v3, s42, v6")
    I(f"v_add_u32 v6, {OH}, v6")
    I(f"ds_write_b16_d16_hi v6, v{ONE}")
    I("s_mov_b64 exec, -1")
    L("L_noconst")
    I("s_waitcnt vmcnt(5)")
    I("s_branch L_tw1")
    L("L_tw0")
    I("s_waitcnt vmcnt(0)")
    L("L_tw1")
    stamp(1)
    I("v_and_b32 v53, 0xffff, v48")
    I("v_lshrrev_b32 v52, 16, v48")
    I("v_subrev_u32 v54, s33, v66")
    I("s_sub_u32 s46, s34, s33")
    I("v_cmp_gt_u32 vcc, s46, v54")
    I("v_and_b32 v55, 1, v67")
    I("v_lshl_add_u32 v64, v55, 1, v53")
    I("v_cndmask_b32 v54, v53, v52, vcc")
    I("v_add_u32 v64, s45, v64")
    I(f"s_movk_i32 s46, {RECROW}")
    I("v_mul_u32_u24 v65, s46, v66")
    I("v_lshl_add_u32 v65, v64, 3, v65")
    I("v_sub_u32 v68, v54, v64")
    for i in range(8):
        I(f"v_cmpx_lt_i32 vcc, {4*i}, v68")
        I("s_nop 0")
        I("s_cbranch_execz L_rl")
        I(f"buffer_load_dwordx4 v[{4*i}:{4*i+3}], v65, s[24:27], 0 offen offset:{32*i}")
    L("L_rl")
    I("s_mov_b64 exec, -1")
    I("v_mov_b32 v71, 1")
    I("v_mov_b32 v72, 0x100")
    I("s_waitcnt lgkmcnt(0)")
    I("s_barrier")
    I("s_waitcnt vmcnt(0)")
    stamp(2)
    for r in range(16):
        I(f"v_lshrrev_b32 v{32+r}, 26, v{2*r+1}")
    for r in range(16):
        I(f"v_lshl_add_u32 v{32+r}, v{32+r}, 2, s59" if SUBW else f"v_lshlrev_b32 v{32+r}, 2, v{32+r}")
    for r in range(16):
        i, k = r // 2, r % 2
        I(f"v_cmpx_lt_i32 vcc, {4*i+k}, v68")
        if k == 0:
            I("s_nop 0")
            I("s_cbranch_execz L_rank_done")
        I(f"ds_add_rtn_u32 v{48+r}, v{32+r}, v71 offset:{CW if SUBW else CNT}")
    I("v_cmpx_lt_i32 vcc, 32, v68")
    I(f"ds_add_u32 v72, v71 offset:{CNT}")
    L("L_rank_done")
    I("s_mov_b64 exec, -1")
    if SUBW:
        I(f"ds_read_b32 v75, v87 offset:{CW}")
    I("v_and_b32 v73, 0xe0, v69")
    I("v_or_b32 v74, 28, v69")
    I("v_and_b32 v83, 7, v67")
    I("v_lshlrev_b32 v84, 5, v83")
    I("v_lshrrev_b32 v86, 3, v67")
    I("s_waitcnt lgkmcnt(0)")
    if SUBW:
        I(f"ds_add_u32 v69, v75 offset:{CNT}")
        for k in range(1, 8):
            I(f"s_cmp_gt_u32 s3, {7-k}")
            I("s_cbranch_scc1 L_pw_done")
            I(f"ds_add_u32 v87, v75 offset:{PW+256*k}")
        L("L_pw_done")
        I("s_waitcnt lgkmcnt(0)")
    I("s_barrier")
    stamp(3)
    I(f"ds_read_b32 v75, v69 offset:{CNT}")
    I(f"ds_read_b32 v76, v72 offset:{CNT}")
    if SUBW:
        I(f"ds_read_b32 v88, v87 offset:{PW}")
    I("s_waitcnt lgkmcnt(2)" if SUBW else "s_waitcnt lgkmcnt(1)")
    I("v_mov_b32 v77, v75")
    wave_scan(77)
    I("v_sub_u32 v78, v77, v75")
    I("v_readlane_b32 s60, v77, 63")
    I("ds_bpermute_b32 v79, v73, v78")
    I("ds_bpermute_b32 v80, v74, v77")
    I("v_cmp_eq_u32 vcc, v74, v69")
    I("s_waitcnt lgkmcnt(0)")
    I("v_readfirstlane_b32 s61, v76")
    I(f"s_cmp_le_u32 s60, {TLIM}")
    I("s_cbranch_scc1 L_fits")
    I("s_mov_b32 s34, s33")
    I("s_mov_b32 s61, 0")
    I("v_mov_b32 v68, 0")
    I("v_mov_b32 v78, 0")
    I("v_mov_b32 v79, 0")
    I("v_mov_b32 v80, 0")
    L("L_fits")
    I("v_sub_u32 v80, v80, v79")
    I("ds_bpermute_b32 v85, v84, v80")
    I("v_add_u32 v81, 0x5f, v80")
    I("v_and_b32 v81, 0xffe0, v81")
    I("v_sub_u32 v81, v81, v80")
    I("v_cndmask_b32 v81, 0, v81, vcc")
    I("v_mov_b32 v82, v81")
    wave_scan(82)
    I("v_sub_u32 v82, v82, v81")
    I("v_add_lshl_u32 v78, v78, v82, 2")
    I("v_lshl_add_u32 v86, v80, 3, v86")
    if SUBW:
        I("v_lshl_add_u32 v88, v88, 2, v78")
    I("s_waitcnt lgkmcnt(0)")
    for r in range(16):
        I(f"ds_bpermute_b32 v{32+r}, v{32+r}, v{88 if SUBW else 78}")
    I("s_cmp_eq_u32 s47, 0")
    I("s_cbranch_scc1 L_paired")
    I("v_lshl_add_u32 v85, v85, 3, v83")
    I("v_cmp_gt_u32 vcc, v85, v86")
    I("s_sub_u32 s64, 11, s3")
    I("s_cmp_lt_u32 s3, 4")
    I("s_cselect_b32 s64, s3, s64")
    I("s_mov_b32 s41, 0")
    for i in range(8):
        I(f"s_bfe_u32 s65, {'vcc_lo' if i < 4 else 'vcc_hi'}, {(8*(i%4)) | (8 << 16)}")
        I("s_bcnt1_i32_b32 s65, s65")
        I("s_cmp_eq_u32 s65, s64")
        I(f"s_cselect_b32 s41, {i}, s41")
    L("L_paired")
    I("s_lshl_b32 s46, s41, 3")
    I("v_readlane_b32 s62, v78, s46")
    I("v_readlane_b32 s63, v80, s46")
    I("s_waitcnt lgkmcnt(0)")
    for r in range(16):
        i, k = r // 2, r % 2
        I(f"v_cmpx_lt_i32 vcc, {4*i+k}, v68")
        I(f"v_lshl_add_u32 v{32+r}, v{48+r}, 2, v{32+r}")
        if k == 0:
            I("s_cbranch_execz L_scat_done")
        I(f"ds_write2st64_b32 v{32+r}, v{2*r}, v{2*r+1} offset0:{LIST_S//256} offset1:{LIST_M//256}")
    L("L_scat_done")
    I("s_mov_b64 exec, -1")
    I("s_cmp_eq_u32 s47, 0")
    I("s_cbranch_scc1 L_nowin")
    for i in range(16):
        I(f"v_mov_b32 v{80+i}, 0")
    I("v_and_b32 v72, 31, v67")
    I(f"v_lshl_add_u32 v72, v72, 7, v{H16}")
    I("s_lshl_b32 s46, s32, 3")
    I("s_add_u32 s46, s46, s41")
    I("s_mul_i32 s46, s46, 3125")
    I("s_add_u32 s49, s46, 127")
    I("s_lshr_b32 s49, s49, 7")
    I(f"s_add_u32 s44, s46, {3125+127}")
    I("s_lshr_b32 s44, s44, 7")
    I("s_sub_u32 s44, s44, s49")
    I("s_lshl_b32 s49, s49, 7")
    I("s_bfm_b32 s46, s44, 0")
    I("s_mov_b32 exec_lo, s46")
    I("s_mov_b32 exec_hi, s46")
    for s in range(4):
        I(f"buffer_load_dwordx4 {vr(80+4*s,4)}, v72, s[12:15], s49 offen offset:{32*s}")
    I("s_mov_b64 exec, -1")
    L("L_nowin")
    I("s_add_u32 s64, s63, 31")
    I("s_lshr_b32 s35, s64, 5")
    I("s_lshl_b32 s64, s35, 5")
    I("s_sub_u32 s64, s64, s63")
    I("s_lshl_b32 s65, s63, 2")
    I("s_add_u32 s65, s65, s62")
    I("v_add_u32 v72, s65, v69")
    I("v_mov_b32 v73, 0xffffff00")
    I(f"v_mov_b32 v74, {EMASK}")
    I(f"ds_write2st64_b32 v72, v73, v74 offset0:{LIST_S//256} offset1:{LIST_M//256}")
    I("v_cmp_gt_u32 vcc, s64, v67")
    I("s_and_saveexec_b64 s[50:51], vcc")
    I(f"ds_write2st64_b32 v72, v73, v74 offset0:{LIST_S//256+1} offset1:{LIST_M//256+1}")
    I("s_mov_b64 exec, -1")
    I("v_lshrrev_b32 v72, 3, v67")
    I(f"v_lshl_add_u32 v{LSA}, v72, 4, s62")
    I("v_and_b32 v72, 7, v67")
    I("v_bfe_u32 v73, v67, 3, 2")
    I("v_lshl_add_u32 v72, v72, 2, v73")
    I(f"s_add_u32 s65, s62, {LIST_M}")
    I(f"v_lshl_add_u32 v{LMA}, v72, 2, s65")
    I("s_waitcnt lgkmcnt(0)")
    I("s_barrier")
    stamp(4)
    I(f"ds_read_b128 {vr(T,4)}, v{LSA}")
    I(f"ds_read2_b32 {vr(T+4,2)}, v{LMA} offset0:0 offset1:32")
    I("s_waitcnt lgkmcnt(0)")
    put(x_dma(0))
    put(e_load(0, T + 4))
    I(f"ds_read_b128 {vr(T,4)}, v{LSA} offset:128")
    I("s_cmp_eq_u32 s47, 0")
    I("s_cbranch_scc1 L_noinit")
    for f in range(8):
        I(f"ds_read_b128 {vr(4*f,4)}, v70 offset:{1024*f}")
    I("s_waitcnt vmcnt(5) lgkmcnt(0)")
    for c in range(2):
        d = vr(32 + 16 * c, 16)
        for s in range(4):
            I(mfma(d, vr(80 + 4 * s, 4), vr((2 * s + c) * 4, 4), "0" if s == 0 else d))
    for f in range(8):
        I(f"ds_read_b128 {vr(4*f,4)}, v70 offset:{1024*(26+f)}")
    I("s_nop 7")
    for i in range(32):
        I(f"v_mul_f32 v{32+i}, s43, v{32+i}")
    I("s_waitcnt lgkmcnt(0)")
    for f in range(18):
        I(f"ds_read_b128 {ar(4*f,4)}, v70 offset:{1024*(8+f)}")
    k = 0
    for c in range(2):
        a = ar(A_AGG + 16 * c, 16)
        for s in range(4):
            I(mfma(a, vr(80 + 4 * s, 4), vr((2 * s + c) * 4, 4), "0" if s == 0 else a))
            for p in (k, k + 1):
                I(f"v_cvt_pk_bf16_f32 v{64+p}, v{32+2*p}, v{32+2*p+1}")
            k += 2
    for c in range(2):
        for p in range(8):
            I(f"v_accvgpr_write_b32 a{xa(p//4, c) + p%4}, v{64+8*c+p}")
    I("s_mov_b32 s47, 0")
    L("L_noinit")
    I("s_cmp_eq_u32 s35, 0")
    I("s_cbranch_scc1 L_round_end")
    I(f"v_and_b32 v{T+4}, 31, v{T+4}")
    I(f"v_mad_u32_u24 v{T+7}, v{T+4}, s42, v{OHC}")
    I(f"v_mad_u32_u24 v{SW}, v{T+4}, s42, v{K1C}")
    I(f"ds_write_b16_d16_hi v{SW}, v{ONE}")
    I("s_waitcnt lgkmcnt(0)")
    put(x_dma(1))
    put(e_load(1, T + 5))
    for i in range(8):
        I(f"v_mov_b32 v{G[1]+i}, 0")
    for i in range(8):
        I(f"v_mov_b32 v{S+i}, 0")
    I("s_waitcnt vmcnt(5)")
    put(a_reads(0))
    I(f"ds_read_b128 {vr(T,4)}, v{LSA} offset:256")
    I("s_mov_b32 s36, s35")
    if PRIO:
        I("s_setprio 3")
    elif YPRIO:
        I("s_cmp_lt_u32 s3, 4")
        I("s_cbranch_scc1 L_yp")
        I("s_setprio 1")
        L("L_yp")
    stamp(5)
    m0 = mfma_group(0, 0)
    I(m0[0])
    I("s_waitcnt lgkmcnt(0)")
    I(m0[1])
    put(x_dma(0))
    put(m0[2:])
    I("s_nop 7")
    I("s_branch L_p1_0")
    L("L_loop")
    INLOOP[0] = True
    nv = len(valu_group(0))
    pos = [2 + (k * (nv - 4)) // 13 for k in range(13)]
    def sched(mf, va, inserts):
        pend = []
        mi = 0
        for i, v in enumerate(va):
            if mi < len(mf) and i == pos[mi]:
                put(inserts.get(('b', mi), []))
                I(mf[mi])
                put(inserts.get(('m', mi), []))
                pend += inserts.get(('s', mi), [])
                mi += 1
            I(v)
            if pend:
                put([pend.pop(0)])
        assert mi == len(mf)
        put(pend)
    def nonop(lst): return [x for x in lst if x != "s_nop 0"] if "valu" not in DROP else lst
    for par in range(2):
        ins = {('b', 3): ["s_waitcnt lgkmcnt(1)"],
               ('m', 4): ["s_waitcnt lgkmcnt(0)"],
               ('s', 4): nonop(x_dma(par))}
        if PRIO:
            ins[('m', 0)] = prio_code(par)
        sched(agg_group(0) + mfma_group(0, par), valu_group(1), ins)
        L(f"L_p1_{par}")
        ins = {('m', 0): [f"ds_read2_b32 {vr(T+4,2)}, v{LMA} offset0:32 offset1:64"],
               ('s', 1): [f"ds_read_b128 {vr(S,4)}, v{SRA}",
                          f"ds_read_b128 {vr(S+4,4)}, v{SRA} offset:32",
                          f"ds_write_b16 v{SW}, v{ONE}"],
               ('m', 3): ["s_waitcnt lgkmcnt(3)"] + e_load(par, T + 5),
               ('s', 3): [f"v_and_b32 v{T+4}, 31, v{T+4}",
                          f"v_add_u32 v{LSA}, 128, v{LSA}",
                          f"v_mad_u32_u24 v{T+7}, v{T+4}, s42, v{OHC}",
                          f"v_mad_u32_u24 v{SW}, v{T+4}, s42, v{K1C}",
                          f"v_add_u32 v{LMA}, 128, v{LMA}",
                          f"ds_write_b16_d16_hi v{SW}, v{ONE}",
                          "s_sub_u32 s36, s36, 1"],
               ('m', 12): ["s_waitcnt vmcnt(5) lgkmcnt(0)"] + a_reads(par ^ 1) + [f"ds_read_b128 {vr(T,4)}, v{LSA} offset:256"]}
        sched(agg_group(1) + mfma_group(1, par), valu_group(0), ins)
        I("s_cmp_eq_u32 s36, 0")
        I("s_cbranch_scc1 L_tail" if par == 0 else "s_cbranch_scc0 L_loop")
    L("L_tail")
    INLOOP[0] = False
    I(f"ds_write_b16 v{SW}, v{ONE}")
    I("s_nop 0")
    put(agg_group(0))
    put(valu_group(1))
    I("s_nop 1")
    put(agg_group(1))
    L("L_round_end")
    I("s_add_u32 s45, s45, 32")
    I("s_cmp_lg_u32 s61, 0")
    I("s_cbranch_scc1 L_next")
    I(f"s_cmp_ge_u32 s34, {NC}")
    I("s_cbranch_scc1 L_epi")
    I("s_mov_b32 s33, s34")
    I(f"s_add_u32 s34, s34, {CBLK}")
    I(f"s_min_u32 s34, s34, {NC}")
    I("s_mov_b32 s45, 0")
    L("L_next")
    I("v_mbcnt_lo_u32_b32 v67, -1, 0")
    I("v_mbcnt_hi_u32_b32 v67, -1, v67")
    I("s_waitcnt vmcnt(0) lgkmcnt(0)")
    I("s_barrier")
    I("s_branch L_round")
    L("L_epi")
    I("s_waitcnt vmcnt(0) lgkmcnt(0)")
    stamp(6)
    srd(28, 8, 9, N * 128)
    I("v_mbcnt_lo_u32_b32 v67, -1, 0")
    I("v_mbcnt_hi_u32_b32 v67, -1, v67")
    I("v_and_b32 v68, 31, v67")
    I("v_lshrrev_b32 v69, 5, v67")
    I("v_lshlrev_b32 v68, 1, v68")
    I("v_lshl_add_u32 v68, v69, 9, v68")
    I("v_add_u32 v68, s37, v68")
    I("v_lshlrev_b32 v70, 4, v67")
    I("v_add_u32 v71, s37, v70")
    I("s_nop 7")
    regs = list(range(13))
    for c in range(2):
        for i in regs:
            I(f"v_accvgpr_read_b32 v{16*c+i}, a{A_AGG+16*c+i}")
    ids = [16 * c + i for c in range(2) for i in regs]
    for r in ids:
        I(f"v_mul_f32 v{32+r}, s43, v{r}")
    for r in ids:
        I(f"v_exp_f32 v{32+r}, v{32+r}")
    for r in ids:
        I(f"v_add_f32 v{32+r}, 1.0, v{32+r}")
    for r in ids:
        I(f"v_rcp_f32 v{32+r}, v{32+r}")
    for r in ids:
        I(f"v_mul_f32 v{r}, v{r}, v{32+r}")
    for i in regs:
        I(f"v_cvt_pk_bf16_f32 v{32+i}, v{i}, v{16+i}")
    for i in regs:
        row = 8 * (i >> 2) + (i & 3)
        I(f"ds_write_b16 v68, v{32+i} offset:{row*128}")
        I(f"ds_write_b16_d16_hi v68, v{32+i} offset:{row*128+64}")
    I("s_waitcnt lgkmcnt(0)")
    for k in range(4):
        I(f"ds_read_b128 {vr(4*k,4)}, v71 offset:{1024*k}")
    for k in range(3):
        I(f"s_waitcnt lgkmcnt({3-k})")
        I(f"buffer_store_dwordx4 {vr(4*k,4)}, v70, s[28:31], s49 offen offset:{1024*k} sc1")
    I("s_cmp_lt_u32 s44, 25")
    I("s_cbranch_scc1 L_k2_fin")
    I("s_waitcnt lgkmcnt(0)")
    I("s_mov_b64 exec, 0xff")
    I(f"buffer_store_dwordx4 {vr(12,4)}, v70, s[28:31], s49 offen offset:3072 sc1")
    L("L_k2_fin")
    if STAMP:
        I("s_waitcnt vmcnt(0)")
        stamp(7)
        srd(28, 10, 11, 0x100000, 0x1000000)
        I("s_mov_b64 exec, 1")
        I("s_lshl_b32 s46, s2, 3")
        I("s_add_u32 s46, s46, s3")
        I("s_lshl_b32 s46, s46, 6")
        I("v_mov_b32 v0, 0")
        for k in range(8):
            I(f"v_mov_b32 v1, s{70+2*k}")
            I(f"buffer_store_dword v1, v0, s[28:31], s46 offen offset:{4*k}")
        I("v_mov_b32 v1, s35")
        I("buffer_store_dword v1, v0, s[28:31], s46 offen offset:32")
        I("s_getreg_b32 s47, hwreg(HW_REG_XCC_ID)")
        I("v_mov_b32 v1, s47")
        I("buffer_store_dword v1, v0, s[28:31], s46 offen offset:36")
        I("s_getreg_b32 s47, hwreg(HW_REG_HW_ID)")
        I("v_mov_b32 v1, s47")
        I("buffer_store_dword v1, v0, s[28:31], s46 offen offset:40")
        I("s_memrealtime s[50:51]")
        I("s_waitcnt lgkmcnt(0)")
        I("v_mov_b32 v1, s50")
        I("buffer_store_dword v1, v0, s[28:31], s46 offen offset:44")
        I("v_mov_b32 v1, s86")
        I("buffer_store_dword v1, v0, s[28:31], s46 offen offset:48")
    L("L_k2_end")
    I("s_endpgm")

def kd(name, vgpr, sgpr, accum):
    emit(f".amdhsa_kernel {name}")
    emit(f"  .amdhsa_next_free_vgpr {vgpr}")
    emit(f"  .amdhsa_next_free_sgpr {sgpr}")
    emit(f"  .amdhsa_accum_offset {accum}")
    emit("  .amdhsa_group_segment_fixed_size 0")
    emit("  .amdhsa_kernarg_size 80")
    emit("  .amdhsa_user_sgpr_count 2")
    emit("  .amdhsa_user_sgpr_kernarg_segment_ptr 1")
    emit("  .amdhsa_system_sgpr_workgroup_id_x 1")
    emit(".end_amdhsa_kernel")

def main():
    emit(HEADER.rstrip("\n"))
    emit(f"; @launch kernel=egc_bin_kernel grid=({NC},1,1) block=(1024,1,1) lds={K1_LDS}")
    emit(f"; @launch kernel=egc_main_kernel grid=(256,1,1) block=(512,1,1) lds={K2_LDS}")
    emit('.amdgcn_target "amdgcn-amd-amdhsa--gfx950"')
    emit(".text")
    gen_k1()
    gen_k2()
    emit('.section .rodata,"a"')
    emit(".p2align 6")
    kd("egc_bin_kernel", 56, 72, 56)
    emit(".p2align 6")
    kd("egc_main_kernel", 248, 96, 128)
    path = sys.argv[1] if len(sys.argv) > 1 else "v10.s"
    open(path, "w").write("\n".join(out) + "\n")

main()
```

```python
import sys, os

N = 50000; E = 800000
NB = 256; CH = 3200; NC = 250
WS_TAB = 0x10000; WS_REC = 0x400000; RECROW = CH * 8
MW = 175921861
NEGLOG2E = 0xBFB8AA3B
def env(k, d): return os.environ.get(k, d)
STAMP = int(env("STAMP", "0"))
TLBPF = int(env("TLBPF", "65536"))
PSH = int(env("PSH", "13"))
SUBW = int(env("SUBW", "1"))
SYNC = int(env("SYNC", "1"))
PRIO = int(env("PRIO", "0"))
YPRIO = int(env("YPRIO", "1"))
PTH = [int(x) for x in env("PTH", "10,7,4").split(",")]
EPOL = env("EPOL", "")
NOMEM = int(env("NOMEM", "0"))
DROP = env("DROP", "").split(",")
INLOOP = [False]

out = []
def emit(s=""): out.append(s)
def I(s):
    if INLOOP[0]:
        op = s.split()[0]
        if "mfma" in DROP and op.startswith("v_mfma"): return
        if "valu" in DROP and op in ("v_exp_f32", "v_rcp_f32", "v_mul_f32", "v_add_f32", "v_cvt_pk_bf16_f32"): return
    out.append("    " + s)
def L(s): out.append(s + ":")
def put(lst):
    for x in lst:
        emit(x) if x.endswith(":") else I(x)
def stamp(k):
    if STAMP:
        I(f"s_memtime s[{70+2*k}:{71+2*k}]")
        I("s_waitcnt lgkmcnt(0)")

HEADER = """; Kernarg layout for this problem (80 bytes, ptrs only, base s[0:1]):
"""

def srd(d, lo, hi, size, add=0):
    if add:
        I(f"s_add_u32 s{d}, s{lo}, {add}")
        I(f"s_addc_u32 s{d+1}, s{hi}, 0")
    else:
        I(f"s_mov_b32 s{d}, s{lo}")
        I(f"s_mov_b32 s{d+1}, s{hi}")
    I(f"s_mov_b32 s{d+2}, {size}")
    I(f"s_mov_b32 s{d+3}, 0x00020000")

def wave_scan(r):
    for st in ["row_shr:1 row_mask:0xf", "row_shr:2 row_mask:0xf", "row_shr:4 row_mask:0xf", "row_shr:8 row_mask:0xf",
               "row_bcast:15 row_mask:0xa", "row_bcast:31 row_mask:0xc"]:
        I("s_nop 1")
        I(f"v_add_u32_dpp v{r}, v{r}, v{r} {st} bank_mask:0xf")

K1_HIST = 0
K1_STG = 1024
K1_LDS = K1_STG + RECROW

def gen_k1():
    emit(".globl egc_bin_kernel")
    emit(".p2align 8")
    emit(".type egc_bin_kernel,@function")
    L("egc_bin_kernel")
    I(f"s_cmp_ge_u32 s2, {NC}")
    I("s_cbranch_scc1 L_k1_end")
    if STAMP:
        I("s_memrealtime s[68:69]")
    I("s_load_dwordx4 s[4:7], s[0:1], 16")
    I("s_load_dwordx4 s[8:11], s[0:1], 32")
    I("s_load_dwordx2 s[12:13], s[0:1], 48")
    I("s_load_dwordx2 s[14:15], s[0:1], 72")
    I("v_and_b32 v1, 0xff, v0")
    I("v_lshlrev_b32 v1, 2, v1")
    I("v_mov_b32 v2, 0")
    I(f"ds_write_b32 v1, v2 offset:{K1_HIST}")
    I("v_lshlrev_b32 v4, 4, v0")
    I("v_lshrrev_b32 v5, 6, v0")
    I(f"s_mul_i32 s32, s2, {CH*4}")
    I("v_readfirstlane_b32 s3, v5")
    I(f"s_mov_b32 s33, {MW}")
    I("s_movk_i32 s36, 3125")
    I(f"s_mul_i32 s37, s2, {CH*32}")
    I("s_waitcnt lgkmcnt(0)")
    srd(16, 4, 5, E * 4)
    srd(20, 6, 7, E * 4)
    srd(24, 14, 15, 0x1000000)
    if STAMP:
        srd(64, 14, 15, 0x1000, 0x1100000)
        I("s_lshl_b32 s62, s2, 2")
        I("v_mov_b32 v40, s68")
        I("v_lshlrev_b32 v41, 12, v0")
        I("buffer_store_dword v40, v41, s[64:67], s62 offen")
    I(f"v_cmp_gt_u32 vcc, {CH//4}, v0")
    I("s_and_saveexec_b64 s[34:35], vcc")
    I("s_cbranch_execz L_k1_noload")
    I("buffer_load_dwordx4 v[8:11], v4, s[20:23], s32 offen")
    I("buffer_load_dwordx4 v[12:15], v4, s[16:19], s32 offen")
    L("L_k1_noload")
    I("s_mov_b64 exec, s[34:35]")
    if TLBPF:
        I("s_cmp_lg_u32 s3, 13")
        I("s_cbranch_scc1 L_k1_notlb")
        I("s_load_dwordx4 s[52:55], s[0:1], 0")
        I("s_load_dwordx2 s[56:57], s[0:1], 56")
        I("s_lshr_b32 s62, s2, 3")
        I("v_and_b32 v40, 63, v0")
        ne_ = -(-(E * 32) // (TLBPF * 32)); nx_ = -(-(N * 128) // (TLBPF * 32))
        I(f"s_mul_i32 s63, s62, {ne_ * TLBPF}")
        I(f"s_mul_i32 s62, s62, {nx_ * TLBPF}")
        I(f"s_mov_b32 s58, {TLBPF}")
        I("v_mul_lo_u32 v41, v40, s58")
        I("s_waitcnt lgkmcnt(0)")
        srd(64, 54, 55, E * 32)
        I(f"s_bfm_b64 exec, {ne_}, 0")
        I("buffer_load_dword v42, v41, s[64:67], s63 offen")
        srd(64, 52, 53, N * 128)
        I(f"s_bfm_b64 exec, {nx_}, 0")
        I("buffer_load_dword v43, v41, s[64:67], s62 offen")
        srd(64, 56, 57, N * 128)
        I("buffer_load_dword v44, v41, s[64:67], s62 offen")
        I("s_mov_b64 exec, -1")
        L("L_k1_notlb")
    I("s_mov_b32 s40, 0")
    I("s_cmp_lg_u32 s3, 15")
    I("s_cbranch_scc1 L_k1_nowf")
    I("s_cmp_ge_u32 s2, 34")
    I("s_cbranch_scc1 L_k1_nowf")
    I("s_mov_b32 s40, 1")
    I("s_mov_b32 s28, s12")
    I("s_mov_b32 s29, s13")
    I(f"s_mov_b32 s30, {144*128}")
    I("s_mov_b32 s31, 0x00020000")
    I("s_mov_b32 s41, s2")
    I("s_cmp_lt_u32 s2, 18")
    I("s_cbranch_scc1 L_k1_wsel")
    I("s_mov_b32 s28, s10")
    I("s_mov_b32 s29, s11")
    I(f"s_mov_b32 s30, {64*128}")
    I("s_sub_u32 s41, s2, 18")
    I("s_cmp_lt_u32 s2, 26")
    I("s_cbranch_scc1 L_k1_wsel")
    I("s_mov_b32 s28, s8")
    I("s_mov_b32 s29, s9")
    I("s_sub_u32 s41, s2, 26")
    L("L_k1_wsel")
    I("s_lshr_b32 s42, s41, 1")
    I("s_lshl_b32 s42, s42, 11")
    I("s_and_b32 s43, s41, 1")
    I("s_lshl_b32 s43, s43, 1")
    I("s_add_u32 s42, s42, s43")
    I("v_and_b32 v40, 31, v0")
    I("v_lshlrev_b32 v40, 2, v40")
    I("v_and_b32 v41, 32, v0")
    I("v_lshl_add_u32 v40, v41, 5, v40")
    for j in range(8):
        I(f"buffer_load_ushort v{44+j}, v40, s[28:31], s42 offen offset:{128*j}")
    L("L_k1_nowf")
    I("s_barrier")
    I("s_and_saveexec_b64 s[34:35], vcc")
    I("s_cbranch_execz L_k1_nohist")
    I("v_mov_b32 v6, 1")
    I("v_mov_b32 v5, 0x7f")
    I("v_lshl_add_u32 v7, v0, 7, s37")
    I("s_waitcnt vmcnt(1)")
    for i in range(4):
        I(f"v_mul_hi_u32 v{16+i}, v{8+i}, s33")
    for i in range(4):
        I(f"v_lshrrev_b32 v{20+i}, 3, v{16+i}")
    for i in range(4):
        I(f"v_lshlrev_b32 v{20+i}, 2, v{20+i}")
    for i in range(4):
        I(f"ds_add_rtn_u32 v{24+i}, v{20+i}, v6 offset:{K1_HIST}")
    for i in range(4):
        I(f"v_mad_u32_u24 v{28+i}, v{16+i}, s36, v5")
    for i in range(4):
        I(f"v_lshrrev_b32 v{28+i}, 7, v{28+i}")
    for i in range(4):
        I(f"v_sub_u32 v{28+i}, v{8+i}, v{28+i}")
    for i in range(4):
        I(f"v_lshlrev_b32 v{16+i}, 29, v{16+i}")
    for i in range(4):
        I(f"v_or3_b32 v{33+2*i}, v{16+i}, v7, v{28+i}")
    for i in range(1, 4):
        I(f"v_add_u32 v{33+2*i}, {32*i}, v{33+2*i}")
    I("s_waitcnt vmcnt(0)")
    for i in range(4):
        I(f"v_lshlrev_b32 v{32+2*i}, 7, v{12+i}")
    if int(env("PEQ", "1")):
        for i in range(4):
            I(f"v_mul_u32_u24 v{12+i}, 0x53e, v{12+i}")
        for i in range(4):
            I(f"v_bfe_u32 v{12+i}, v{12+i}, 23, 3")
    else:
        for i in range(4):
            I(f"v_bfe_u32 v{12+i}, v{12+i}, {PSH}, 3")
    for i in range(4):
        I(f"v_lshl_or_b32 v{33+2*i}, v{12+i}, 26, v{33+2*i}")
    L("L_k1_nohist")
    I("s_mov_b64 exec, s[34:35]")
    I("s_waitcnt lgkmcnt(0)")
    I("s_barrier")
    I("s_cmp_lg_u32 s3, 14")
    I("s_cbranch_scc1 L_k1_noscan")
    I("v_and_b32 v1, 63, v0")
    I("v_lshlrev_b32 v2, 4, v1")
    I(f"ds_read_b128 v[8:11], v2 offset:{K1_HIST}")
    I("v_lshrrev_b32 v3, 2, v1")
    I("v_lshlrev_b32 v3, 14, v3")
    I("v_and_b32 v1, 3, v1")
    I("v_lshl_add_u32 v3, v1, 4, v3")
    I("s_lshl_b32 s46, s2, 6")
    I(f"s_add_u32 s46, s46, {WS_TAB}")
    I("s_waitcnt lgkmcnt(0)")
    I("v_add_u32 v12, v8, v9")
    I("v_add_u32 v13, v12, v10")
    I("v_add_u32 v14, v13, v11")
    I("v_mov_b32 v15, v14")
    wave_scan(15)
    I("v_sub_u32 v16, v15, v14")
    I("v_add_u32 v17, v16, v8")
    I("v_add_u32 v18, v16, v12")
    I("v_add_u32 v19, v16, v13")
    I(f"ds_write_b128 v2, v[16:19] offset:{K1_HIST}")
    I("v_lshl_or_b32 v8, v17, 16, v16")
    I("v_lshl_or_b32 v9, v18, 16, v17")
    I("v_lshl_or_b32 v10, v19, 16, v18")
    I("v_lshl_or_b32 v11, v15, 16, v19")
    I("buffer_store_dwordx4 v[8:11], v3, s[24:27], s46 offen sc1")
    I("s_waitcnt lgkmcnt(0)")
    L("L_k1_noscan")
    I("s_barrier")
    I("s_and_saveexec_b64 s[34:35], vcc")
    I("s_cbranch_execz L_k1_noscat")
    for i in range(4):
        I(f"ds_read_b32 v{28+i}, v{20+i} offset:{K1_HIST}")
    for i in range(4):
        I(f"s_waitcnt lgkmcnt({3-i})")
        I(f"v_add_lshl_u32 v{28+i}, v{28+i}, v{24+i}, 3")
    for i in range(4):
        I(f"ds_write_b64 v{28+i}, v[{32+2*i}:{33+2*i}] offset:{K1_STG}")
    L("L_k1_noscat")
    I("s_mov_b64 exec, s[34:35]")
    I("s_waitcnt lgkmcnt(0)")
    I("s_barrier")
    I(f"s_mul_i32 s46, s2, {RECROW}")
    I(f"s_add_u32 s46, s46, {WS_REC}")
    I(f"ds_read_b128 v[16:19], v4 offset:{K1_STG}")
    I(f"s_cmp_ge_u32 s3, {(RECROW//16 - 1024) // 64}")
    I("s_cbranch_scc1 L_k1_no2")
    I(f"ds_read_b128 v[12:15], v4 offset:{K1_STG + 16384}")
    I("s_add_u32 s47, s46, 16384")
    I("s_waitcnt lgkmcnt(0)")
    I("buffer_store_dwordx4 v[12:15], v4, s[24:27], s47 offen sc1")
    L("L_k1_no2")
    I("s_waitcnt lgkmcnt(0)")
    I("buffer_store_dwordx4 v[16:19], v4, s[24:27], s46 offen sc1")
    I("s_cmp_eq_u32 s40, 0")
    I("s_cbranch_scc1 L_k1_end")
    I("s_waitcnt vmcnt(0)")
    I("s_sub_u32 s46, s2, 8")
    I("s_cmp_lt_u32 s46, 10")
    I(f"s_cselect_b32 s47, {NEGLOG2E}, 1.0")
    for j in range(8):
        I(f"v_lshlrev_b32 v{44+j}, 16, v{44+j}")
    for j in range(8):
        I(f"v_mul_f32 v{44+j}, s47, v{44+j}")
    for j in range(4):
        I(f"v_cvt_pk_bf16_f32 v{52+j}, v{44+2*j}, v{45+2*j}")
    I("v_and_b32 v40, 63, v0")
    I("v_lshlrev_b32 v40, 4, v40")
    I("s_lshl_b32 s46, s2, 10")
    I("buffer_store_dwordx4 v[52:55], v40, s[24:27], s46 offen sc1")
    L("L_k1_end")
    I("s_endpgm")

LCAP = 4352
TLIM = 3584
CBLK = 100
LIST_S = 0
LIST_M = LIST_S + LCAP * 4
CNT = LIST_M + LCAP * 4
CW = CNT + 512
PW = CW + 2048
WSTG = PW + 2048
SM = WSTG + 34 * 1024
SMW = 2000
OH = SM + 16576
STG = OH + 2560
STGW = 8192
K2_LDS = STG + 8 * STGW
assert CNT % 256 == 0 and STG % 16 == 0 and K2_LDS <= 163840
EMASK = 0x01FFFFE0

G = [0, 32]; H = [16, 48]
AX = 64; ST = 80; S = 88; EB = [96, 100]; T = 104
VAX = 112; PC = 116; H16 = 117; LSA = 118; LMA = 119; K1C = 120; SRA = 121; OHC = 122; SW = 123; ONE = 124
A_WB = 0; A_WV = 40; A_XA = 72; A_AGG = 88

def wb(s, c): return A_WB + (2 * s + c) * 4
def wv(s, c): return A_WV + (2 * s + c) * 4
def xa(s, c): return A_XA + (2 * s + c) * 4
def vr(b, n): return f"v[{b}:{b+n-1}]"
def ar(b, n): return f"a[{b}:{b+n-1}]"
def mfma(d, a, b, c): return f"v_mfma_f32_32x32x16_bf16 {d}, {a}, {b}, {c}"

def mfma_group(c, par):
    m = []
    g = vr(G[c], 16); h = vr(H[c], 16)
    m.append(mfma(g, vr(EB[par], 4), ar(wb(4, c), 4), "0"))
    for s in range(2):
        m.append(mfma(g, vr(ST + 4 * s, 4), ar(xa(s, c), 4), g))
    for s in range(4):
        m.append(mfma(g, vr(AX + 4 * s, 4), ar(wb(s, c), 4), g))
    for s in range(4):
        m.append(mfma(h, vr(AX + 4 * s, 4), ar(wv(s, c), 4), "0" if s == 0 else h))
    return m

def valu_group(c):
    g = G[c]; h = H[c]
    stages = [
        lambda i: f"v_exp_f32 v{g+i}, v{g+i}",
        lambda i: f"v_add_f32 v{g+i}, 1.0, v{g+i}",
        lambda i: f"v_rcp_f32 v{g+i}, v{g+i}",
        lambda i: f"v_mul_f32 v{g+i}, v{g+i}, v{h+i}",
    ]
    v = []
    D = 2
    nst = len(stages)
    for step in range(16 + D * nst + 2):
        for k in range(nst):
            i = step - D * k
            if 0 <= i < 16:
                v.append(stages[k](i))
        i = step - D * nst
        if 0 <= i < 16 and i % 2 == 1:
            v.append(f"v_cvt_pk_bf16_f32 v{g+i//2}, v{g+i-1}, v{g+i}")
    return v

def agg_group(c):
    a = ar(A_AGG + 16 * c, 16)
    return [mfma(a, vr(S, 4), vr(G[c], 4), a), mfma(a, vr(S + 4, 4), vr(G[c] + 4, 4), a)]

def x_dma(par):
    r = []
    if NOMEM:
        for k in range(4):
            r.append(f"v_and_b32 v{T+k}, 0x3f80, v{T+k}")
    r.append(f"v_add_u32 v{T+0}, v{PC}, v{T+0}")
    r.append(f"v_xad_u32 v{T+1}, v{PC}, 64, v{T+1}")
    r.append(f"v_add_u32 v{T+2}, v{PC}, v{T+2}")
    r.append(f"v_xad_u32 v{T+3}, v{PC}, 64, v{T+3}")
    for k in range(4):
        r.append(f"s_add_u32 m0, s37, {par*4096 + k*1024}")
        r.append("s_nop 0")
        r.append(f"buffer_load_dwordx4 v{T+k}, s[12:15], 0 offen lds")
    return r

def e_load(par, meta):
    r = []
    if NOMEM:
        r.append(f"v_and_b32 v{meta}, 0x3fff, v{meta}")
    r.append(f"v_and_or_b32 v{T+6}, v{meta}, s40, v{H16}")
    r.append(f"buffer_load_dwordx4 {vr(EB[par],4)}, v{T+6}, s[16:19], 0 offen" + EPOL)
    return r

def a_reads(par):
    r = []
    for s in range(2):
        r.append(f"ds_read_b128 {vr(ST+4*s,4)}, v{T+7} offset:{16*s}")
    for s in range(4):
        r.append(f"ds_read_b128 {vr(AX+4*s,4)}, v{VAX+s} offset:{par*4096}")
    return r

def prio_code(par):
    r = []
    for lim, p in zip(PTH, (2, 1, 0)):
        r += [f"s_cmp_lt_u32 s36, {lim}", f"s_cbranch_scc0 L_pr_done_{par}", f"s_setprio {p}"]
    return r + [f"L_pr_done_{par}:"]

def gen_k2():
    emit(".globl egc_main_kernel")
    emit(".p2align 8")
    emit(".type egc_main_kernel,@function")
    L("egc_main_kernel")
    I("s_cmp_ge_u32 s2, 256")
    I("s_cbranch_scc1 L_k2_end")
    I("s_load_dwordx2 s[10:11], s[0:1], 72")
    I("s_load_dwordx4 s[4:7], s[0:1], 0")
    I("s_load_dwordx2 s[8:9], s[0:1], 56")
    I("s_and_b32 s38, s2, 7")
    I("s_lshr_b32 s39, s2, 3")
    I("s_lshl_b32 s32, s38, 5")
    I("s_add_u32 s32, s32, s39")
    stamp(0)
    if STAMP:
        I("s_memrealtime s[86:87]")
    I("v_lshrrev_b32 v1, 6, v0")
    I("v_and_b32 v67, 63, v0")
    I("v_readfirstlane_b32 s3, v1")
    I("s_mov_b32 s33, 0")
    I(f"s_movk_i32 s34, {NC}")
    I("s_mov_b32 s45, 0")
    I("s_mov_b32 s47, 1")
    I("s_lshr_b32 s48, s32, 4")
    I("s_lshl_b32 s48, s48, 14")
    I("s_and_b32 s46, s32, 15")
    I("s_lshl_b32 s46, s46, 2")
    I("s_add_u32 s48, s48, s46")
    I(f"s_add_u32 s48, s48, {WS_TAB}")
    I("s_waitcnt lgkmcnt(0)")
    I("s_add_u32 s20, s10, s48")
    I("s_addc_u32 s21, s11, 0")
    I(f"s_mov_b32 s22, {(NC-1)*64+4}")
    I("s_mov_b32 s23, 0x00020000")
    L("L_round")
    I("s_lshl_b32 s46, s3, 5")
    I("v_lshrrev_b32 v66, 1, v67")
    I("v_add_u32 v66, s46, v66")
    I("v_lshlrev_b32 v65, 6, v66")
    I("buffer_load_dword v48, v65, s[20:23], 0 offen")
    I("v_lshlrev_b32 v69, 2, v67")
    I("v_mov_b32 v49, 0")
    I(f"ds_write2st64_b32 v69, v49, v49 offset0:{CNT//256} offset1:{CNT//256+1}")
    if SUBW:
        I("s_lshl_b32 s59, s3, 8")
        I("v_add_u32 v87, s59, v69")
        I(f"ds_write2st64_b32 v87, v49, v49 offset0:{CW//256} offset1:{PW//256}")
    I("s_cmp_eq_u32 s47, 0")
    I("s_cbranch_scc1 L_tw0")
    srd(28, 10, 11, 34 * 1024)
    I("v_lshlrev_b32 v70, 4, v67")
    for k in range(5):
        I(f"s_add_u32 s46, s3, {8*k}")
        if k == 4:
            I("s_min_u32 s46, s46, 33")
        I("s_lshl_b32 s46, s46, 10")
        I(f"s_add_u32 m0, s46, {WSTG}")
        I("s_nop 0")
        I("buffer_load_dwordx4 v70, s[28:31], s46 offen lds")
    srd(12, 4, 5, N * 128)
    srd(16, 6, 7, E * 32)
    srd(24, 10, 11, NC * RECROW, WS_REC)
    I(f"s_mov_b32 s40, {EMASK}")
    I("s_movk_i32 s42, 80")
    I(f"s_mov_b32 s43, {NEGLOG2E}")
    I("s_lshl_b32 s37, s3, 13")
    I(f"s_add_u32 s37, s37, {STG}")
    I("v_and_b32 v3, 31, v67")
    I("v_lshrrev_b32 v4, 5, v67")
    I("v_bfe_u32 v5, v3, 1, 3")
    I("v_xor_b32 v5, v5, v4")
    I("v_lshlrev_b32 v5, 4, v5")
    I("v_lshl_add_u32 v5, v3, 7, v5")
    I(f"v_add_u32 v{VAX}, s37, v5")
    for s in range(1, 4):
        I(f"v_xor_b32 v6, {32*s}, v5")
        I(f"v_add_u32 v{VAX+s}, s37, v6")
    I("v_lshrrev_b32 v5, 4, v67")
    I("v_and_b32 v6, 7, v67")
    I("v_xor_b32 v5, v5, v6")
    I(f"v_lshlrev_b32 v{PC}, 4, v5")
    I(f"v_lshlrev_b32 v{H16}, 4, v4")
    I(f"s_mul_i32 s46, s3, {SMW}")
    I(f"s_add_u32 s46, s46, {SM}")
    I("v_lshrrev_b32 v5, 4, v3")
    I("v_lshlrev_b32 v5, 5, v5")
    I("v_bfe_u32 v6, v3, 2, 1")
    I("v_lshl_add_u32 v5, v6, 4, v5")
    I("v_bfe_u32 v6, v3, 3, 1")
    I("v_lshl_add_u32 v5, v6, 3, v5")
    I("v_and_b32 v6, 3, v3")
    I("v_lshl_add_u32 v5, v6, 1, v5")
    I(f"v_add_u32 v{K1C}, s46, v5")
    I(f"v_add_u32 v6, s46, v{H16}")
    I(f"v_mad_u32_u24 v{SRA}, v3, s42, v6")
    I("v_lshlrev_b32 v6, 5, v4")
    I(f"v_add_u32 v{OHC}, {OH}, v6")
    I(f"v_mov_b32 v{ONE}, 1.0")
    for i in range(4):
        I(f"v_mov_b32 v{8+i}, 0")
    I("v_add_u32 v7, s46, v70")
    I("ds_write_b128 v7, v[8:11]")
    I("v_cmp_gt_u32 vcc, 61, v67")
    I("s_and_saveexec_b64 s[50:51], vcc")
    I("ds_write_b128 v7, v[8:11] offset:1024")
    I("s_mov_b64 exec, -1")
    I(f"v_add_u32 v70, {WSTG}, v70")
    I("s_cmp_lg_u32 s3, 0")
    I("s_cbranch_scc1 L_noconst")
    I(f"v_add_u32 v7, {OH-WSTG}, v70")
    I("ds_write_b128 v7, v[8:11]")
    I("ds_write_b128 v7, v[8:11] offset:1024")
    I("s_mov_b32 exec_hi, 0")
    I("ds_write_b128 v7, v[8:11] offset:2048")
    I("v_bfe_u32 v6, v3, 2, 1")
    I("v_lshlrev_b32 v6, 5, v6")
    I("v_lshrrev_b32 v7, 4, v3")
    I("v_lshl_add_u32 v6, v7, 4, v6")
    I("v_and_b32 v7, 15, v5")
    I("v_add_u32 v6, v6, v7")
    I("v_mad_u32_u24 v6, v3, s42, v6")
    I(f"v_add_u32 v6, {OH}, v6")
    I(f"ds_write_b16_d16_hi v6, v{ONE}")
    I("s_mov_b64 exec, -1")
    L("L_noconst")
    I("s_waitcnt vmcnt(5)")
    I("s_branch L_tw1")
    L("L_tw0")
    I("s_waitcnt vmcnt(0)")
    L("L_tw1")
    stamp(1)
    I("v_and_b32 v53, 0xffff, v48")
    I("v_lshrrev_b32 v52, 16, v48")
    I("v_subrev_u32 v54, s33, v66")
    I("s_sub_u32 s46, s34, s33")
    I("v_cmp_gt_u32 vcc, s46, v54")
    I("v_and_b32 v55, 1, v67")
    I("v_lshl_add_u32 v64, v55, 1, v53")
    I("v_cndmask_b32 v54, v53, v52, vcc")
    I("v_add_u32 v64, s45, v64")
    I(f"s_movk_i32 s46, {RECROW}")
    I("v_mul_u32_u24 v65, s46, v66")
    I("v_lshl_add_u32 v65, v64, 3, v65")
    I("v_sub_u32 v68, v54, v64")
    for i in range(8):
        I(f"v_cmpx_lt_i32 vcc, {4*i}, v68")
        I("s_nop 0")
        I("s_cbranch_execz L_rl")
        I(f"buffer_load_dwordx4 v[{4*i}:{4*i+3}], v65, s[24:27], 0 offen offset:{32*i}")
    L("L_rl")
    I("s_mov_b64 exec, -1")
    I("v_mov_b32 v71, 1")
    I("v_mov_b32 v72, 0x100")
    I("s_waitcnt lgkmcnt(0)")
    I("s_barrier")
    I("s_waitcnt vmcnt(0)")
    stamp(2)
    for r in range(16):
        I(f"v_lshrrev_b32 v{32+r}, 26, v{2*r+1}")
    for r in range(16):
        I(f"v_lshl_add_u32 v{32+r}, v{32+r}, 2, s59" if SUBW else f"v_lshlrev_b32 v{32+r}, 2, v{32+r}")
    for r in range(16):
        i, k = r // 2, r % 2
        I(f"v_cmpx_lt_i32 vcc, {4*i+k}, v68")
        if k == 0:
            I(f"s_mov_b32 s58, {r}")
            I("s_cbranch_execz L_rank_done")
        I(f"ds_add_rtn_u32 v{48+r}, v{32+r}, v71 offset:{CW if SUBW else CNT}")
    I("s_mov_b32 s58, 16")
    I("v_cmpx_lt_i32 vcc, 32, v68")
    I(f"ds_add_u32 v72, v71 offset:{CNT}")
    L("L_rank_done")
    I("s_mov_b64 exec, -1")
    if SUBW:
        I(f"ds_read_b32 v75, v87 offset:{CW}")
    I("v_and_b32 v73, 0xe0, v69")
    I("v_or_b32 v74, 28, v69")
    I("v_and_b32 v83, 7, v67")
    I("v_lshlrev_b32 v84, 5, v83")
    I("v_lshrrev_b32 v86, 3, v67")
    I("s_waitcnt lgkmcnt(0)")
    if SUBW:
        I(f"ds_add_u32 v69, v75 offset:{CNT}")
        for k in range(1, 8):
            I(f"s_cmp_gt_u32 s3, {7-k}")
            I("s_cbranch_scc1 L_pw_done")
            I(f"ds_add_u32 v87, v75 offset:{PW+256*k}")
        L("L_pw_done")
        I("s_waitcnt lgkmcnt(0)")
    I("s_barrier")
    stamp(3)
    I(f"ds_read_b32 v75, v69 offset:{CNT}")
    I(f"ds_read_b32 v76, v72 offset:{CNT}")
    if SUBW:
        I(f"ds_read_b32 v88, v87 offset:{PW}")
    I("s_waitcnt lgkmcnt(2)" if SUBW else "s_waitcnt lgkmcnt(1)")
    I("v_mov_b32 v77, v75")
    wave_scan(77)
    I("v_sub_u32 v78, v77, v75")
    I("v_readlane_b32 s60, v77, 63")
    I("ds_bpermute_b32 v79, v73, v78")
    I("ds_bpermute_b32 v80, v74, v77")
    I("v_cmp_eq_u32 vcc, v74, v69")
    I("s_waitcnt lgkmcnt(0)")
    I("v_readfirstlane_b32 s61, v76")
    I(f"s_cmp_le_u32 s60, {TLIM}")
    I("s_cbranch_scc1 L_fits")
    I("s_mov_b32 s34, s33")
    I("s_mov_b32 s61, 0")
    I("v_mov_b32 v68, 0")
    I("v_mov_b32 v78, 0")
    I("v_mov_b32 v79, 0")
    I("v_mov_b32 v80, 0")
    L("L_fits")
    I("v_sub_u32 v80, v80, v79")
    I("ds_bpermute_b32 v85, v84, v80")
    I("v_add_u32 v81, 0x5f, v80")
    I("v_and_b32 v81, 0xffe0, v81")
    I("v_sub_u32 v81, v81, v80")
    I("v_cndmask_b32 v81, 0, v81, vcc")
    I("v_mov_b32 v82, v81")
    wave_scan(82)
    I("v_sub_u32 v82, v82, v81")
    I("v_add_lshl_u32 v78, v78, v82, 3")
    I("v_lshl_add_u32 v86, v80, 3, v86")
    if SUBW:
        I("v_lshl_add_u32 v88, v88, 3, v78")
    I("s_waitcnt lgkmcnt(0)")
    for r in range(16):
        if r >= 8 and r % 2 == 0:
            I(f"s_cmp_le_u32 s58, {r}")
            I("s_cbranch_scc1 L_lk_done")
        I(f"ds_bpermute_b32 v{32+r}, v{32+r}, v{88 if SUBW else 78}")
    L("L_lk_done")
    I("s_cmp_eq_u32 s47, 0")
    I("s_cbranch_scc1 L_paired")
    I("v_lshl_add_u32 v85, v85, 3, v83")
    I("v_cmp_gt_u32 vcc, v85, v86")
    I("s_sub_u32 s64, 11, s3")
    I("s_cmp_lt_u32 s3, 4")
    I("s_cselect_b32 s64, s3, s64")
    I("s_mov_b32 s41, 0")
    for i in range(8):
        I(f"s_bfe_u32 s65, {'vcc_lo' if i < 4 else 'vcc_hi'}, {(8*(i%4)) | (8 << 16)}")
        I("s_bcnt1_i32_b32 s65, s65")
        I("s_cmp_eq_u32 s65, s64")
        I(f"s_cselect_b32 s41, {i}, s41")
    L("L_paired")
    I("s_lshl_b32 s46, s41, 3")
    I("v_readlane_b32 s62, v78, s46")
    I("v_readlane_b32 s63, v80, s46")
    I("s_waitcnt lgkmcnt(0)")
    for r in range(16):
        i, k = r // 2, r % 2
        I(f"v_cmpx_lt_i32 vcc, {4*i+k}, v68")
        I(f"v_lshl_add_u32 v{32+r}, v{48+r}, 3, v{32+r}")
        if k == 0:
            I("s_cbranch_execz L_scat_done")
        I(f"ds_write_b64 v{32+r}, v[{2*r}:{2*r+1}]")
    L("L_scat_done")
    I("s_mov_b64 exec, -1")
    I("s_cmp_eq_u32 s47, 0")
    I("s_cbranch_scc1 L_nowin")
    for i in range(16):
        I(f"v_mov_b32 v{80+i}, 0")
    I("v_and_b32 v72, 31, v67")
    I(f"v_lshl_add_u32 v72, v72, 7, v{H16}")
    I("s_lshl_b32 s46, s32, 3")
    I("s_add_u32 s46, s46, s41")
    I("s_mul_i32 s46, s46, 3125")
    I("s_add_u32 s49, s46, 127")
    I("s_lshr_b32 s49, s49, 7")
    I(f"s_add_u32 s44, s46, {3125+127}")
    I("s_lshr_b32 s44, s44, 7")
    I("s_sub_u32 s44, s44, s49")
    I("s_lshl_b32 s49, s49, 7")
    I("s_bfm_b32 s46, s44, 0")
    I("s_mov_b32 exec_lo, s46")
    I("s_mov_b32 exec_hi, s46")
    for s in range(4):
        I(f"buffer_load_dwordx4 {vr(80+4*s,4)}, v72, s[12:15], s49 offen offset:{32*s}")
    I("s_mov_b64 exec, -1")
    L("L_nowin")
    I("s_add_u32 s64, s63, 31")
    I("s_lshr_b32 s35, s64, 5")
    I("s_lshl_b32 s64, s35, 5")
    I("s_sub_u32 s64, s64, s63")
    I("s_lshl_b32 s65, s63, 3")
    I("s_add_u32 s65, s65, s62")
    I("v_lshl_add_u32 v72, v67, 3, s65")
    I("v_mov_b32 v74, 0xffffff00")
    I(f"v_mov_b32 v75, {EMASK}")
    I("ds_write_b64 v72, v[74:75]")
    I("v_cmp_gt_u32 vcc, s64, v67")
    I("s_and_saveexec_b64 s[50:51], vcc")
    I("ds_write_b64 v72, v[74:75] offset:512")
    I("s_mov_b64 exec, -1")
    I("v_lshrrev_b32 v72, 3, v67")
    I(f"v_lshl_add_u32 v{LSA}, v72, 5, s62")
    I("v_and_b32 v72, 7, v67")
    I("v_bfe_u32 v73, v67, 3, 2")
    I("v_lshl_add_u32 v72, v72, 2, v73")
    I(f"v_lshl_add_u32 v{LMA}, v72, 3, s62")
    I("s_waitcnt lgkmcnt(0)")
    I("s_barrier")
    stamp(4)
    put([f"ds_read2_b32 {vr(T,2)}, v{LSA} offset0:0 offset1:2", f"ds_read2_b32 {vr(T+2,2)}, v{LSA} offset0:4 offset1:6"])
    I(f"ds_read2_b32 {vr(T+4,2)}, v{LMA} offset0:1 offset1:65")
    I("s_waitcnt lgkmcnt(0)")
    put(x_dma(0))
    put(e_load(0, T + 4))
    put([f"ds_read2_b32 {vr(T,2)}, v{LSA} offset0:64 offset1:66", f"ds_read2_b32 {vr(T+2,2)}, v{LSA} offset0:68 offset1:70"])
    I("s_cmp_eq_u32 s47, 0")
    I("s_cbranch_scc1 L_noinit")
    for f in range(8):
        I(f"ds_read_b128 {vr(4*f,4)}, v70 offset:{1024*f}")
    I("s_waitcnt vmcnt(5) lgkmcnt(0)")
    for c in range(2):
        d = vr(32 + 16 * c, 16)
        for s in range(4):
            I(mfma(d, vr(80 + 4 * s, 4), vr((2 * s + c) * 4, 4), "0" if s == 0 else d))
    for f in range(8):
        I(f"ds_read_b128 {vr(4*f,4)}, v70 offset:{1024*(26+f)}")
    I("s_nop 7")
    for i in range(32):
        I(f"v_mul_f32 v{32+i}, s43, v{32+i}")
    I("s_waitcnt lgkmcnt(0)")
    for f in range(18):
        I(f"ds_read_b128 {ar(4*f,4)}, v70 offset:{1024*(8+f)}")
    k = 0
    for c in range(2):
        a = ar(A_AGG + 16 * c, 16)
        for s in range(4):
            I(mfma(a, vr(80 + 4 * s, 4), vr((2 * s + c) * 4, 4), "0" if s == 0 else a))
            for p in (k, k + 1):
                I(f"v_cvt_pk_bf16_f32 v{64+p}, v{32+2*p}, v{32+2*p+1}")
            k += 2
    for c in range(2):
        for p in range(8):
            I(f"v_accvgpr_write_b32 a{xa(p//4, c) + p%4}, v{64+8*c+p}")
    I("s_mov_b32 s47, 0")
    L("L_noinit")
    I("s_cmp_eq_u32 s35, 0")
    I("s_cbranch_scc1 L_round_end")
    I(f"v_and_b32 v{T+4}, 31, v{T+4}")
    I(f"v_mad_u32_u24 v{T+7}, v{T+4}, s42, v{OHC}")
    I(f"v_mad_u32_u24 v{SW}, v{T+4}, s42, v{K1C}")
    I(f"ds_write_b16_d16_hi v{SW}, v{ONE}")
    I("s_waitcnt lgkmcnt(0)")
    put(x_dma(1))
    put(e_load(1, T + 5))
    for i in range(8):
        I(f"v_mov_b32 v{G[1]+i}, 0")
    for i in range(8):
        I(f"v_mov_b32 v{S+i}, 0")
    I("s_waitcnt vmcnt(5)")
    put(a_reads(0))
    put([f"ds_read2_b32 {vr(T,2)}, v{LSA} offset0:128 offset1:130", f"ds_read2_b32 {vr(T+2,2)}, v{LSA} offset0:132 offset1:134"])
    I("s_mov_b32 s36, s35")
    if SYNC:
        I("s_lshl_b32 s46, s3, 2")
        I(f"s_add_u32 s46, s46, {CNT+384}")
        I("v_mov_b32 v125, s46")
        I("v_xor_b32 v126, 16, v125")
    if PRIO:
        I("s_setprio 3")
    elif YPRIO:
        I("s_cmp_lt_u32 s3, 4")
        I("s_cbranch_scc1 L_yp")
        I("s_setprio 1")
        L("L_yp")
    stamp(5)
    m0 = mfma_group(0, 0)
    I(m0[0])
    I("s_waitcnt lgkmcnt(0)")
    I(m0[1])
    put(x_dma(0))
    put(m0[2:])
    I("s_nop 7")
    I("s_branch L_p1_0")
    L("L_loop")
    INLOOP[0] = True
    nv = len(valu_group(0))
    pos = [2 + (k * (nv - 4)) // 13 for k in range(13)]
    def sched(mf, va, inserts):
        pend = []
        mi = 0
        for i, v in enumerate(va):
            if mi < len(mf) and i == pos[mi]:
                put(inserts.get(('b', mi), []))
                I(mf[mi])
                put(inserts.get(('m', mi), []))
                pend += inserts.get(('s', mi), [])
                mi += 1
            I(v)
            if pend:
                put([pend.pop(0)])
        assert mi == len(mf)
        put(pend)
    def nonop(lst): return [x for x in lst if x != "s_nop 0"] if "valu" not in DROP else lst
    for par in range(2):
        ins = {('b', 3): ["s_waitcnt lgkmcnt(2)"],
               ('m', 4): ["s_waitcnt lgkmcnt(0)"],
               ('s', 4): nonop(x_dma(par))}
        if PRIO:
            ins[('m', 0)] = prio_code(par)
        sched(agg_group(0) + mfma_group(0, par), valu_group(1), ins)
        L(f"L_p1_{par}")
        ins = {('m', 0): [f"ds_read2_b32 {vr(T+4,2)}, v{LMA} offset0:65 offset1:129"],
               ('s', 1): [f"ds_read_b128 {vr(S,4)}, v{SRA}",
                          f"ds_read_b128 {vr(S+4,4)}, v{SRA} offset:32",
                          f"ds_write_b16 v{SW}, v{ONE}"],
               ('m', 3): ["s_waitcnt lgkmcnt(3)"] + e_load(par, T + 5),
               ('s', 3): [f"v_and_b32 v{T+4}, 31, v{T+4}",
                          f"v_add_u32 v{LSA}, 256, v{LSA}",
                          f"v_mad_u32_u24 v{T+7}, v{T+4}, s42, v{OHC}",
                          f"v_mad_u32_u24 v{SW}, v{T+4}, s42, v{K1C}",
                          f"v_add_u32 v{LMA}, 256, v{LMA}",
                          f"ds_write_b16_d16_hi v{SW}, v{ONE}",
                          "s_sub_u32 s36, s36, 1"],
               ('m', 12): ["s_waitcnt vmcnt(5) lgkmcnt(0)"] + a_reads(par ^ 1) + [f"ds_read2_b32 {vr(T,2)}, v{LSA} offset0:128 offset1:130", f"ds_read2_b32 {vr(T+2,2)}, v{LSA} offset0:132 offset1:134"]}
        if SYNC:
            ins[('s', 6)] = ["v_mov_b32 v127, s36", "ds_write_b32 v125, v127", f"ds_read_b32 v{T+6}, v126"]
            ins[('m', 12)] += [f"v_readfirstlane_b32 s46, v{T+6}", "s_setprio 0", "s_cmp_lt_u32 s36, s46",
                               f"s_cbranch_scc1 L_sy_{par}", "s_setprio 1", f"L_sy_{par}:"]
        sched(agg_group(1) + mfma_group(1, par), valu_group(0), ins)
        I("s_cmp_eq_u32 s36, 0")
        I("s_cbranch_scc1 L_tail" if par == 0 else "s_cbranch_scc0 L_loop")
    L("L_tail")
    INLOOP[0] = False
    I(f"ds_write_b16 v{SW}, v{ONE}")
    I("s_nop 0")
    put(agg_group(0))
    put(valu_group(1))
    I("s_nop 1")
    put(agg_group(1))
    L("L_round_end")
    I("s_add_u32 s45, s45, 32")
    I("s_cmp_lg_u32 s61, 0")
    I("s_cbranch_scc1 L_next")
    I(f"s_cmp_ge_u32 s34, {NC}")
    I("s_cbranch_scc1 L_epi")
    I("s_mov_b32 s33, s34")
    I(f"s_add_u32 s34, s34, {CBLK}")
    I(f"s_min_u32 s34, s34, {NC}")
    I("s_mov_b32 s45, 0")
    L("L_next")
    I("v_mbcnt_lo_u32_b32 v67, -1, 0")
    I("v_mbcnt_hi_u32_b32 v67, -1, v67")
    I("s_waitcnt vmcnt(0) lgkmcnt(0)")
    I("s_barrier")
    I("s_branch L_round")
    L("L_epi")
    I("s_waitcnt vmcnt(0) lgkmcnt(0)")
    stamp(6)
    srd(28, 8, 9, N * 128)
    I("v_mbcnt_lo_u32_b32 v67, -1, 0")
    I("v_mbcnt_hi_u32_b32 v67, -1, v67")
    I("v_and_b32 v68, 31, v67")
    I("v_lshrrev_b32 v69, 5, v67")
    I("v_lshlrev_b32 v68, 2, v68")
    I("v_lshl_add_u32 v68, v69, 9, v68")
    I("v_add_u32 v68, s37, v68")
    I("v_lshlrev_b32 v70, 4, v67")
    I("v_add_u32 v71, s37, v70")
    I("s_nop 7")
    regs = list(range(13))
    for c in range(2):
        for i in regs:
            I(f"v_accvgpr_read_b32 v{16*c+i}, a{A_AGG+16*c+i}")
    ids = [16 * c + i for c in range(2) for i in regs]
    for r in ids:
        I(f"v_mul_f32 v{32+r}, s43, v{r}")
    for r in ids:
        I(f"v_exp_f32 v{32+r}, v{32+r}")
    for r in ids:
        I(f"v_add_f32 v{32+r}, 1.0, v{32+r}")
    for r in ids:
        I(f"v_rcp_f32 v{32+r}, v{32+r}")
    for r in ids:
        I(f"v_mul_f32 v{r}, v{r}, v{32+r}")
    for i in regs:
        I(f"v_cvt_pk_bf16_f32 v{32+i}, v{i}, v{16+i}")
    for i in regs:
        row = 8 * (i >> 2) + (i & 3)
        I(f"ds_write_b32 v68, v{32+i} offset:{row*128}")
    I("s_waitcnt lgkmcnt(0)")
    for k in range(4):
        I(f"ds_read_b128 {vr(4*k,4)}, v71 offset:{1024*k}")
    for k in range(3):
        I(f"s_waitcnt lgkmcnt({3-k})")
        I(f"buffer_store_dwordx4 {vr(4*k,4)}, v70, s[28:31], s49 offen offset:{1024*k} sc1")
    I("s_cmp_lt_u32 s44, 25")
    I("s_cbranch_scc1 L_k2_fin")
    I("s_waitcnt lgkmcnt(0)")
    I("s_mov_b64 exec, 0xff")
    I(f"buffer_store_dwordx4 {vr(12,4)}, v70, s[28:31], s49 offen offset:3072 sc1")
    L("L_k2_fin")
    if STAMP:
        I("s_waitcnt vmcnt(0)")
        stamp(7)
        srd(28, 10, 11, 0x100000, 0x1000000)
        I("s_mov_b64 exec, 1")
        I("s_lshl_b32 s46, s2, 3")
        I("s_add_u32 s46, s46, s3")
        I("s_lshl_b32 s46, s46, 6")
        I("v_mov_b32 v0, 0")
        for k in range(8):
            I(f"v_mov_b32 v1, s{70+2*k}")
            I(f"buffer_store_dword v1, v0, s[28:31], s46 offen offset:{4*k}")
        I("v_mov_b32 v1, s35")
        I("buffer_store_dword v1, v0, s[28:31], s46 offen offset:32")
        I("s_getreg_b32 s47, hwreg(HW_REG_XCC_ID)")
        I("v_mov_b32 v1, s47")
        I("buffer_store_dword v1, v0, s[28:31], s46 offen offset:36")
        I("s_getreg_b32 s47, hwreg(HW_REG_HW_ID)")
        I("v_mov_b32 v1, s47")
        I("buffer_store_dword v1, v0, s[28:31], s46 offen offset:40")
        I("s_memrealtime s[50:51]")
        I("s_waitcnt lgkmcnt(0)")
        I("v_mov_b32 v1, s50")
        I("buffer_store_dword v1, v0, s[28:31], s46 offen offset:44")
        I("v_mov_b32 v1, s86")
        I("buffer_store_dword v1, v0, s[28:31], s46 offen offset:48")
    L("L_k2_end")
    I("s_endpgm")

def kd(name, vgpr, sgpr, accum):
    emit(f".amdhsa_kernel {name}")
    emit(f"  .amdhsa_next_free_vgpr {vgpr}")
    emit(f"  .amdhsa_next_free_sgpr {sgpr}")
    emit(f"  .amdhsa_accum_offset {accum}")
    emit("  .amdhsa_group_segment_fixed_size 0")
    emit("  .amdhsa_kernarg_size 80")
    emit("  .amdhsa_user_sgpr_count 2")
    emit("  .amdhsa_user_sgpr_kernarg_segment_ptr 1")
    emit("  .amdhsa_system_sgpr_workgroup_id_x 1")
    emit(".end_amdhsa_kernel")

def main():
    emit(HEADER.rstrip("\n"))
    emit(f"; @launch kernel=egc_bin_kernel grid=({NC},1,1) block=(1024,1,1) lds={K1_LDS}")
    emit(f"; @launch kernel=egc_main_kernel grid=(256,1,1) block=(512,1,1) lds={K2_LDS}")
    emit('.amdgcn_target "amdgcn-amd-amdhsa--gfx950"')
    emit(".text")
    gen_k1()
    gen_k2()
    emit('.section .rodata,"a"')
    emit(".p2align 6")
    kd("egc_bin_kernel", 56, 72, 56)
    emit(".p2align 6")
    kd("egc_main_kernel", 248, 96, 128)
    path = sys.argv[1] if len(sys.argv) > 1 else "v10.s"
    open(path, "w").write("\n".join(out) + "\n")

main()
```

```python
import sys, os

N = 50000; E = 800000
NB = 256; CH = 3200; NC = 250
WS_TAB = 0x10000; WS_REC = 0x400000; RECROW = CH * 8
MW = 175921861
NEGLOG2E = 0xBFB8AA3B
def env(k, d): return os.environ.get(k, d)
STAMP = int(env("STAMP", "0"))
TLBPF = int(env("TLBPF", "65536"))
PSH = int(env("PSH", "13"))
SUBW = int(env("SUBW", "1"))
SYNC = int(env("SYNC", "1"))
PFR = int(env("PFR", "4"))
PFP = int(env("PFP", "1"))
XPF = int(env("XPF", "0"))
RPF = int(env("RPF", "0"))
PRIO = int(env("PRIO", "0"))
YPRIO = int(env("YPRIO", "1"))
PTH = [int(x) for x in env("PTH", "10,7,4").split(",")]
EPOL = env("EPOL", "")
NOMEM = int(env("NOMEM", "0"))
DROP = env("DROP", "").split(",")
INLOOP = [False]

out = []
def emit(s=""): out.append(s)
def I(s):
    if INLOOP[0]:
        op = s.split()[0]
        if "mfma" in DROP and op.startswith("v_mfma"): return
        if "valu" in DROP and op in ("v_exp_f32", "v_rcp_f32", "v_mul_f32", "v_add_f32", "v_cvt_pk_bf16_f32"): return
    out.append("    " + s)
def L(s): out.append(s + ":")
def put(lst):
    for x in lst:
        emit(x) if x.endswith(":") else I(x)
def stamp(k):
    if STAMP:
        I(f"s_memtime s[{70+2*k}:{71+2*k}]")
        I("s_waitcnt lgkmcnt(0)")

HEADER = """; Kernarg layout for this problem (80 bytes, ptrs only, base s[0:1]):
"""

def srd(d, lo, hi, size, add=0):
    if add:
        I(f"s_add_u32 s{d}, s{lo}, {add}")
        I(f"s_addc_u32 s{d+1}, s{hi}, 0")
    else:
        I(f"s_mov_b32 s{d}, s{lo}")
        I(f"s_mov_b32 s{d+1}, s{hi}")
    I(f"s_mov_b32 s{d+2}, {size}")
    I(f"s_mov_b32 s{d+3}, 0x00020000")

def wave_scan(r):
    for st in ["row_shr:1 row_mask:0xf", "row_shr:2 row_mask:0xf", "row_shr:4 row_mask:0xf", "row_shr:8 row_mask:0xf",
               "row_bcast:15 row_mask:0xa", "row_bcast:31 row_mask:0xc"]:
        I("s_nop 1")
        I(f"v_add_u32_dpp v{r}, v{r}, v{r} {st} bank_mask:0xf")

K1_HIST = 0
K1_STG = 1024
K1_LDS = K1_STG + RECROW

def gen_k1():
    emit(".globl egc_bin_kernel")
    emit(".p2align 8")
    emit(".type egc_bin_kernel,@function")
    L("egc_bin_kernel")
    I(f"s_cmp_ge_u32 s2, {NC}")
    I("s_cbranch_scc1 L_k1_end")
    if STAMP:
        I("s_memrealtime s[68:69]")
    I("s_load_dwordx4 s[4:7], s[0:1], 16")
    I("s_load_dwordx4 s[8:11], s[0:1], 32")
    I("s_load_dwordx2 s[12:13], s[0:1], 48")
    I("s_load_dwordx2 s[14:15], s[0:1], 72")
    I("v_and_b32 v1, 0xff, v0")
    I("v_lshlrev_b32 v1, 2, v1")
    I("v_mov_b32 v2, 0")
    I(f"ds_write_b32 v1, v2 offset:{K1_HIST}")
    I("v_lshlrev_b32 v4, 4, v0")
    I("v_lshrrev_b32 v5, 6, v0")
    I(f"s_mul_i32 s32, s2, {CH*4}")
    I("v_readfirstlane_b32 s3, v5")
    I(f"s_mov_b32 s33, {MW}")
    I("s_movk_i32 s36, 3125")
    I(f"s_mul_i32 s37, s2, {CH*32}")
    I("s_waitcnt lgkmcnt(0)")
    srd(16, 4, 5, E * 4)
    srd(20, 6, 7, E * 4)
    srd(24, 14, 15, 0x1000000)
    if STAMP:
        srd(64, 14, 15, 0x1000, 0x1100000)
        I("s_lshl_b32 s62, s2, 2")
        I("v_mov_b32 v40, s68")
        I("v_lshlrev_b32 v41, 12, v0")
        I("buffer_store_dword v40, v41, s[64:67], s62 offen")
    I(f"v_cmp_gt_u32 vcc, {CH//4}, v0")
    I("s_and_saveexec_b64 s[34:35], vcc")
    I("s_cbranch_execz L_k1_noload")
    I("buffer_load_dwordx4 v[8:11], v4, s[20:23], s32 offen")
    I("buffer_load_dwordx4 v[12:15], v4, s[16:19], s32 offen")
    L("L_k1_noload")
    I("s_mov_b64 exec, s[34:35]")
    if TLBPF:
        I("s_cmp_lg_u32 s3, 13")
        I("s_cbranch_scc1 L_k1_notlb")
        I("s_load_dwordx4 s[52:55], s[0:1], 0")
        I("s_load_dwordx2 s[56:57], s[0:1], 56")
        I("s_lshr_b32 s62, s2, 3")
        I("v_and_b32 v40, 63, v0")
        ne_ = -(-(E * 32) // (TLBPF * 32)); nx_ = -(-(N * 128) // (TLBPF * 32))
        I(f"s_mul_i32 s63, s62, {ne_ * TLBPF}")
        I(f"s_mul_i32 s62, s62, {nx_ * TLBPF}")
        I(f"s_mov_b32 s58, {TLBPF}")
        I("v_mul_lo_u32 v41, v40, s58")
        I("s_waitcnt lgkmcnt(0)")
        srd(64, 54, 55, E * 32)
        I(f"s_bfm_b64 exec, {ne_}, 0")
        I("buffer_load_dword v42, v41, s[64:67], s63 offen")
        srd(64, 52, 53, N * 128)
        I(f"s_bfm_b64 exec, {nx_}, 0")
        I("buffer_load_dword v43, v41, s[64:67], s62 offen")
        srd(64, 56, 57, N * 128)
        I("buffer_load_dword v44, v41, s[64:67], s62 offen")
        I("s_mov_b64 exec, -1")
        L("L_k1_notlb")
    I("s_mov_b32 s40, 0")
    I("s_cmp_lg_u32 s3, 15")
    I("s_cbranch_scc1 L_k1_nowf")
    I("s_cmp_ge_u32 s2, 34")
    I("s_cbranch_scc1 L_k1_nowf")
    I("s_mov_b32 s40, 1")
    I("s_mov_b32 s28, s12")
    I("s_mov_b32 s29, s13")
    I(f"s_mov_b32 s30, {144*128}")
    I("s_mov_b32 s31, 0x00020000")
    I("s_mov_b32 s41, s2")
    I("s_cmp_lt_u32 s2, 18")
    I("s_cbranch_scc1 L_k1_wsel")
    I("s_mov_b32 s28, s10")
    I("s_mov_b32 s29, s11")
    I(f"s_mov_b32 s30, {64*128}")
    I("s_sub_u32 s41, s2, 18")
    I("s_cmp_lt_u32 s2, 26")
    I("s_cbranch_scc1 L_k1_wsel")
    I("s_mov_b32 s28, s8")
    I("s_mov_b32 s29, s9")
    I("s_sub_u32 s41, s2, 26")
    L("L_k1_wsel")
    I("s_lshr_b32 s42, s41, 1")
    I("s_lshl_b32 s42, s42, 11")
    I("s_and_b32 s43, s41, 1")
    I("s_lshl_b32 s43, s43, 1")
    I("s_add_u32 s42, s42, s43")
    I("v_and_b32 v40, 31, v0")
    I("v_lshlrev_b32 v40, 2, v40")
    I("v_and_b32 v41, 32, v0")
    I("v_lshl_add_u32 v40, v41, 5, v40")
    for j in range(8):
        I(f"buffer_load_ushort v{44+j}, v40, s[28:31], s42 offen offset:{128*j}")
    L("L_k1_nowf")
    I("s_barrier")
    I("s_and_saveexec_b64 s[34:35], vcc")
    I("s_cbranch_execz L_k1_nohist")
    I("v_mov_b32 v6, 1")
    I("v_mov_b32 v5, 0x7f")
    I("v_lshl_add_u32 v7, v0, 7, s37")
    I("s_waitcnt vmcnt(1)")
    for i in range(4):
        I(f"v_mul_hi_u32 v{16+i}, v{8+i}, s33")
    for i in range(4):
        I(f"v_lshrrev_b32 v{20+i}, 3, v{16+i}")
    for i in range(4):
        I(f"v_lshlrev_b32 v{20+i}, 2, v{20+i}")
    for i in range(4):
        I(f"ds_add_rtn_u32 v{24+i}, v{20+i}, v6 offset:{K1_HIST}")
    for i in range(4):
        I(f"v_mad_u32_u24 v{28+i}, v{16+i}, s36, v5")
    for i in range(4):
        I(f"v_lshrrev_b32 v{28+i}, 7, v{28+i}")
    for i in range(4):
        I(f"v_sub_u32 v{28+i}, v{8+i}, v{28+i}")
    for i in range(4):
        I(f"v_lshlrev_b32 v{16+i}, 29, v{16+i}")
    for i in range(4):
        I(f"v_or3_b32 v{33+2*i}, v{16+i}, v7, v{28+i}")
    for i in range(1, 4):
        I(f"v_add_u32 v{33+2*i}, {32*i}, v{33+2*i}")
    I("s_waitcnt vmcnt(0)")
    for i in range(4):
        I(f"v_lshlrev_b32 v{32+2*i}, 7, v{12+i}")
    if int(env("PEQ", "1")):
        for i in range(4):
            I(f"v_mul_u32_u24 v{12+i}, 0x53e, v{12+i}")
        for i in range(4):
            I(f"v_bfe_u32 v{12+i}, v{12+i}, 23, 3")
    else:
        for i in range(4):
            I(f"v_bfe_u32 v{12+i}, v{12+i}, {PSH}, 3")
    for i in range(4):
        I(f"v_lshl_or_b32 v{33+2*i}, v{12+i}, 26, v{33+2*i}")
    L("L_k1_nohist")
    I("s_mov_b64 exec, s[34:35]")
    I("s_waitcnt lgkmcnt(0)")
    I("s_barrier")
    I("s_cmp_lg_u32 s3, 14")
    I("s_cbranch_scc1 L_k1_noscan")
    I("v_and_b32 v1, 63, v0")
    I("v_lshlrev_b32 v2, 4, v1")
    I(f"ds_read_b128 v[8:11], v2 offset:{K1_HIST}")
    I("v_lshrrev_b32 v3, 2, v1")
    I("v_lshlrev_b32 v3, 14, v3")
    I("v_and_b32 v1, 3, v1")
    I("v_lshl_add_u32 v3, v1, 4, v3")
    I("s_lshl_b32 s46, s2, 6")
    I(f"s_add_u32 s46, s46, {WS_TAB}")
    I("s_waitcnt lgkmcnt(0)")
    I("v_add_u32 v12, v8, v9")
    I("v_add_u32 v13, v12, v10")
    I("v_add_u32 v14, v13, v11")
    I("v_mov_b32 v15, v14")
    wave_scan(15)
    I("v_sub_u32 v16, v15, v14")
    I("v_add_u32 v17, v16, v8")
    I("v_add_u32 v18, v16, v12")
    I("v_add_u32 v19, v16, v13")
    I(f"ds_write_b128 v2, v[16:19] offset:{K1_HIST}")
    I("v_lshl_or_b32 v8, v17, 16, v16")
    I("v_lshl_or_b32 v9, v18, 16, v17")
    I("v_lshl_or_b32 v10, v19, 16, v18")
    I("v_lshl_or_b32 v11, v15, 16, v19")
    I("buffer_store_dwordx4 v[8:11], v3, s[24:27], s46 offen sc1")
    I("s_waitcnt lgkmcnt(0)")
    L("L_k1_noscan")
    I("s_barrier")
    I("s_and_saveexec_b64 s[34:35], vcc")
    I("s_cbranch_execz L_k1_noscat")
    for i in range(4):
        I(f"ds_read_b32 v{28+i}, v{20+i} offset:{K1_HIST}")
    for i in range(4):
        I(f"s_waitcnt lgkmcnt({3-i})")
        I(f"v_add_lshl_u32 v{28+i}, v{28+i}, v{24+i}, 3")
    for i in range(4):
        I(f"ds_write_b64 v{28+i}, v[{32+2*i}:{33+2*i}] offset:{K1_STG}")
    L("L_k1_noscat")
    I("s_mov_b64 exec, s[34:35]")
    I("s_waitcnt lgkmcnt(0)")
    I("s_barrier")
    I(f"s_mul_i32 s46, s2, {RECROW}")
    I(f"s_add_u32 s46, s46, {WS_REC}")
    I(f"ds_read_b128 v[16:19], v4 offset:{K1_STG}")
    I(f"s_cmp_ge_u32 s3, {(RECROW//16 - 1024) // 64}")
    I("s_cbranch_scc1 L_k1_no2")
    I(f"ds_read_b128 v[12:15], v4 offset:{K1_STG + 16384}")
    I("s_add_u32 s47, s46, 16384")
    I("s_waitcnt lgkmcnt(0)")
    I("buffer_store_dwordx4 v[12:15], v4, s[24:27], s47 offen sc1")
    L("L_k1_no2")
    I("s_waitcnt lgkmcnt(0)")
    I("buffer_store_dwordx4 v[16:19], v4, s[24:27], s46 offen sc1")
    I("s_cmp_eq_u32 s40, 0")
    I("s_cbranch_scc1 L_k1_end")
    I("s_waitcnt vmcnt(0)")
    I("s_sub_u32 s46, s2, 8")
    I("s_cmp_lt_u32 s46, 10")
    I(f"s_cselect_b32 s47, {NEGLOG2E}, 1.0")
    for j in range(8):
        I(f"v_lshlrev_b32 v{44+j}, 16, v{44+j}")
    for j in range(8):
        I(f"v_mul_f32 v{44+j}, s47, v{44+j}")
    for j in range(4):
        I(f"v_cvt_pk_bf16_f32 v{52+j}, v{44+2*j}, v{45+2*j}")
    I("v_and_b32 v40, 63, v0")
    I("v_lshlrev_b32 v40, 4, v40")
    I("s_lshl_b32 s46, s2, 10")
    I("buffer_store_dwordx4 v[52:55], v40, s[24:27], s46 offen sc1")
    L("L_k1_end")
    I("s_endpgm")

LCAP = 4352
TLIM = 3584
CBLK = 100
LIST_S = 0
LIST_M = LIST_S + LCAP * 4
CNT = LIST_M + LCAP * 4
CW = CNT + 512
PW = CW + 2048
WSTG = PW + 2048
SM = WSTG + 34 * 1024
SMW = 2000
OH = SM + 16576
STG = OH + 2560
STGW = 8192
K2_LDS = STG + 8 * STGW
assert CNT % 256 == 0 and STG % 16 == 0 and K2_LDS <= 163840
EMASK = 0x01FFFFE0

G = [0, 32]; H = [16, 48]
AX = 64; ST = 80; S = 88; EB = [96, 100]; T = 104
VAX = 112; PC = 116; H16 = 117; LSA = 118; LMA = 119; K1C = 120; SRA = 121; OHC = 122; SW = 123; ONE = 124
A_WB = 0; A_WV = 40; A_XA = 72; A_AGG = 88

def wb(s, c): return A_WB + (2 * s + c) * 4
def wv(s, c): return A_WV + (2 * s + c) * 4
def xa(s, c): return A_XA + (2 * s + c) * 4
def vr(b, n): return f"v[{b}:{b+n-1}]"
def ar(b, n): return f"a[{b}:{b+n-1}]"
def mfma(d, a, b, c): return f"v_mfma_f32_32x32x16_bf16 {d}, {a}, {b}, {c}"

def mfma_group(c, par):
    m = []
    g = vr(G[c], 16); h = vr(H[c], 16)
    m.append(mfma(g, vr(EB[par], 4), ar(wb(4, c), 4), "0"))
    for s in range(2):
        m.append(mfma(g, vr(ST + 4 * s, 4), ar(xa(s, c), 4), g))
    for s in range(4):
        m.append(mfma(g, vr(AX + 4 * s, 4), ar(wb(s, c), 4), g))
    for s in range(4):
        m.append(mfma(h, vr(AX + 4 * s, 4), ar(wv(s, c), 4), "0" if s == 0 else h))
    return m

def valu_group(c):
    g = G[c]; h = H[c]
    stages = [
        lambda i: f"v_exp_f32 v{g+i}, v{g+i}",
        lambda i: f"v_add_f32 v{g+i}, 1.0, v{g+i}",
        lambda i: f"v_rcp_f32 v{g+i}, v{g+i}",
        lambda i: f"v_mul_f32 v{g+i}, v{g+i}, v{h+i}",
    ]
    v = []
    D = 2
    nst = len(stages)
    for step in range(16 + D * nst + 2):
        for k in range(nst):
            i = step - D * k
            if 0 <= i < 16:
                v.append(stages[k](i))
        i = step - D * nst
        if 0 <= i < 16 and i % 2 == 1:
            v.append(f"v_cvt_pk_bf16_f32 v{g+i//2}, v{g+i-1}, v{g+i}")
    return v

def agg_group(c):
    a = ar(A_AGG + 16 * c, 16)
    return [mfma(a, vr(S, 4), vr(G[c], 4), a), mfma(a, vr(S + 4, 4), vr(G[c] + 4, 4), a)]

def x_dma(par):
    r = []
    if NOMEM:
        for k in range(4):
            r.append(f"v_and_b32 v{T+k}, 0x3f80, v{T+k}")
    r.append(f"v_add_u32 v{T+0}, v{PC}, v{T+0}")
    r.append(f"v_xad_u32 v{T+1}, v{PC}, 64, v{T+1}")
    r.append(f"v_add_u32 v{T+2}, v{PC}, v{T+2}")
    r.append(f"v_xad_u32 v{T+3}, v{PC}, 64, v{T+3}")
    for k in range(4):
        r.append(f"s_add_u32 m0, s37, {par*4096 + k*1024}")
        r.append("s_nop 0")
        r.append(f"buffer_load_dwordx4 v{T+k}, s[12:15], 0 offen lds")
    return r

def e_load(par, meta):
    r = []
    if NOMEM:
        r.append(f"v_and_b32 v{meta}, 0x3fff, v{meta}")
    r.append(f"v_and_or_b32 v{T+6}, v{meta}, s40, v{H16}")
    r.append(f"buffer_load_dwordx4 {vr(EB[par],4)}, v{T+6}, s[16:19], 0 offen" + EPOL)
    return r

def a_reads(par):
    r = []
    for s in range(2):
        r.append(f"ds_read_b128 {vr(ST+4*s,4)}, v{T+7} offset:{16*s}")
    for s in range(4):
        r.append(f"ds_read_b128 {vr(AX+4*s,4)}, v{VAX+s} offset:{par*4096}")
    return r

def prio_code(par):
    r = []
    for lim, p in zip(PTH, (2, 1, 0)):
        r += [f"s_cmp_lt_u32 s36, {lim}", f"s_cbranch_scc0 L_pr_done_{par}", f"s_setprio {p}"]
    return r + [f"L_pr_done_{par}:"]

PFX = int(env("PFX", "1")); PFLATE = int(env("PFLATE", "0"))
def gen_pf():
    for r in range(PFR):
        i, k = r // 2, r % 2
        I(f"v_bfe_u32 v89, v{2*r+1}, 26, 3")
        I(f"v_cmp_gt_u32 vcc, {PFP}, v89")
        I(f"v_cmp_lt_i32 s[50:51], {4*i+k}, v68")
        I(f"v_and_b32 v90, s40, v{2*r+1}")
        if PFX:
            I(f"v_and_b32 v91, 0x7fff80, v{2*r}")
        I("s_and_b64 exec, vcc, s[50:51]")
        I(f"s_cbranch_execz L_pf_{r}")
        I("buffer_load_dword v127, v90, s[16:19], 0 offen")
        if PFX:
            I("buffer_load_dword v126, v91, s[12:15], 0 offen")
        L(f"L_pf_{r}")
        I("s_mov_b64 exec, -1")

def gen_k2():
    emit(".globl egc_main_kernel")
    emit(".p2align 8")
    emit(".type egc_main_kernel,@function")
    L("egc_main_kernel")
    I("s_cmp_ge_u32 s2, 256")
    I("s_cbranch_scc1 L_k2_end")
    I("s_load_dwordx2 s[10:11], s[0:1], 72")
    I("s_load_dwordx4 s[4:7], s[0:1], 0")
    I("s_load_dwordx2 s[8:9], s[0:1], 56")
    I("s_and_b32 s38, s2, 7")
    I("s_lshr_b32 s39, s2, 3")
    I("s_lshl_b32 s32, s38, 5")
    I("s_add_u32 s32, s32, s39")
    stamp(0)
    if STAMP:
        I("s_memrealtime s[86:87]")
    I("v_lshrrev_b32 v1, 6, v0")
    I("v_and_b32 v67, 63, v0")
    I("v_readfirstlane_b32 s3, v1")
    I("s_mov_b32 s33, 0")
    I(f"s_movk_i32 s34, {NC}")
    I("s_mov_b32 s45, 0")
    I("s_mov_b32 s47, 1")
    I("s_lshr_b32 s48, s32, 4")
    I("s_lshl_b32 s48, s48, 14")
    I("s_and_b32 s46, s32, 15")
    I("s_lshl_b32 s46, s46, 2")
    I("s_add_u32 s48, s48, s46")
    I(f"s_add_u32 s48, s48, {WS_TAB}")
    I("s_waitcnt lgkmcnt(0)")
    I("s_add_u32 s20, s10, s48")
    I("s_addc_u32 s21, s11, 0")
    I(f"s_mov_b32 s22, {(NC-1)*64+4}")
    I("s_mov_b32 s23, 0x00020000")
    L("L_round")
    I("s_lshl_b32 s46, s3, 5")
    I("v_lshrrev_b32 v66, 1, v67")
    I("v_add_u32 v66, s46, v66")
    I("v_lshlrev_b32 v65, 6, v66")
    I("buffer_load_dword v48, v65, s[20:23], 0 offen")
    I("v_lshlrev_b32 v69, 2, v67")
    I("v_mov_b32 v49, 0")
    I(f"ds_write2st64_b32 v69, v49, v49 offset0:{CNT//256} offset1:{CNT//256+1}")
    if SUBW:
        I("s_lshl_b32 s59, s3, 8")
        I("v_add_u32 v87, s59, v69")
        I(f"ds_write2st64_b32 v87, v49, v49 offset0:{CW//256} offset1:{PW//256}")
    I("s_cmp_eq_u32 s47, 0")
    I("s_cbranch_scc1 L_tw0")
    srd(24, 10, 11, NC * RECROW, WS_REC)
    if int(env("TBAR", "0")):
        I("s_barrier")
    if RPF:
        I("s_lshl_b32 s46, s39, 3")
        I("s_add_u32 s46, s46, s3")
        I(f"s_mul_i32 s46, s46, {RECROW}")
        I(f"s_mul_i32 s50, s38, {RECROW//8}")
        I("s_add_u32 s46, s46, s50")
        I(f"s_sub_u32 s46, s46, {(RPF*128 - RECROW//8)//2}")
        I("v_lshl_add_u32 v3, v67, 7, s46")
        I(f"s_bfm_b64 exec, {RPF}, 0")
        I("buffer_load_dword v126, v3, s[24:27], 0 offen")
        I("s_mov_b64 exec, -1")
    srd(28, 10, 11, 34 * 1024)
    I("v_lshlrev_b32 v70, 4, v67")
    for k in range(5):
        I(f"s_add_u32 s46, s3, {8*k}")
        if k == 4:
            I("s_min_u32 s46, s46, 33")
        I("s_lshl_b32 s46, s46, 10")
        I(f"s_add_u32 m0, s46, {WSTG}")
        I("s_nop 0")
        I("buffer_load_dwordx4 v70, s[28:31], s46 offen lds")
    srd(12, 4, 5, N * 128)
    if XPF:
        I("s_lshl_b32 s46, s39, 3")
        I("s_add_u32 s46, s46, s3")
        I(f"s_mul_i32 s46, s46, {XPF*128}")
        I("v_lshlrev_b32 v3, 7, v67")
        I(f"s_bfm_b64 exec, {XPF}, 0")
        I("buffer_load_dword v126, v3, s[12:15], s46 offen")
        I("s_mov_b64 exec, -1")
    srd(16, 6, 7, E * 32)
    I(f"s_mov_b32 s40, {EMASK}")
    I("s_movk_i32 s42, 80")
    I(f"s_mov_b32 s43, {NEGLOG2E}")
    I("s_lshl_b32 s37, s3, 13")
    I(f"s_add_u32 s37, s37, {STG}")
    I("v_and_b32 v3, 31, v67")
    I("v_lshrrev_b32 v4, 5, v67")
    I("v_bfe_u32 v5, v3, 1, 3")
    I("v_xor_b32 v5, v5, v4")
    I("v_lshlrev_b32 v5, 4, v5")
    I("v_lshl_add_u32 v5, v3, 7, v5")
    I(f"v_add_u32 v{VAX}, s37, v5")
    for s in range(1, 4):
        I(f"v_xor_b32 v6, {32*s}, v5")
        I(f"v_add_u32 v{VAX+s}, s37, v6")
    I("v_lshrrev_b32 v5, 4, v67")
    I("v_and_b32 v6, 7, v67")
    I("v_xor_b32 v5, v5, v6")
    I(f"v_lshlrev_b32 v{PC}, 4, v5")
    I(f"v_lshlrev_b32 v{H16}, 4, v4")
    I(f"s_mul_i32 s46, s3, {SMW}")
    I(f"s_add_u32 s46, s46, {SM}")
    I("v_lshrrev_b32 v5, 4, v3")
    I("v_lshlrev_b32 v5, 5, v5")
    I("v_bfe_u32 v6, v3, 2, 1")
    I("v_lshl_add_u32 v5, v6, 4, v5")
    I("v_bfe_u32 v6, v3, 3, 1")
    I("v_lshl_add_u32 v5, v6, 3, v5")
    I("v_and_b32 v6, 3, v3")
    I("v_lshl_add_u32 v5, v6, 1, v5")
    I(f"v_add_u32 v{K1C}, s46, v5")
    I(f"v_add_u32 v6, s46, v{H16}")
    I(f"v_mad_u32_u24 v{SRA}, v3, s42, v6")
    I("v_lshlrev_b32 v6, 5, v4")
    I(f"v_add_u32 v{OHC}, {OH}, v6")
    I(f"v_mov_b32 v{ONE}, 1.0")
    for i in range(4):
        I(f"v_mov_b32 v{8+i}, 0")
    I("v_add_u32 v7, s46, v70")
    I("ds_write_b128 v7, v[8:11]")
    I("v_cmp_gt_u32 vcc, 61, v67")
    I("s_and_saveexec_b64 s[50:51], vcc")
    I("ds_write_b128 v7, v[8:11] offset:1024")
    I("s_mov_b64 exec, -1")
    I(f"v_add_u32 v70, {WSTG}, v70")
    I("s_cmp_lg_u32 s3, 0")
    I("s_cbranch_scc1 L_noconst")
    I(f"v_add_u32 v7, {OH-WSTG}, v70")
    I("ds_write_b128 v7, v[8:11]")
    I("ds_write_b128 v7, v[8:11] offset:1024")
    I("s_mov_b32 exec_hi, 0")
    I("ds_write_b128 v7, v[8:11] offset:2048")
    I("v_bfe_u32 v6, v3, 2, 1")
    I("v_lshlrev_b32 v6, 5, v6")
    I("v_lshrrev_b32 v7, 4, v3")
    I("v_lshl_add_u32 v6, v7, 4, v6")
    I("v_and_b32 v7, 15, v5")
    I("v_add_u32 v6, v6, v7")
    I("v_mad_u32_u24 v6, v3, s42, v6")
    I(f"v_add_u32 v6, {OH}, v6")
    I(f"ds_write_b16_d16_hi v6, v{ONE}")
    I("s_mov_b64 exec, -1")
    L("L_noconst")
    I(f"s_waitcnt vmcnt({5 + (1 if XPF else 0) + (1 if RPF else 0)})")
    I("s_branch L_tw1")
    L("L_tw0")
    I("s_waitcnt vmcnt(0)")
    L("L_tw1")
    stamp(1)
    I("v_and_b32 v53, 0xffff, v48")
    I("v_lshrrev_b32 v52, 16, v48")
    I("v_subrev_u32 v54, s33, v66")
    I("s_sub_u32 s46, s34, s33")
    I("v_cmp_gt_u32 vcc, s46, v54")
    I("v_and_b32 v55, 1, v67")
    I("v_lshl_add_u32 v64, v55, 1, v53")
    I("v_cndmask_b32 v54, v53, v52, vcc")
    I("v_add_u32 v64, s45, v64")
    I(f"s_movk_i32 s46, {RECROW}")
    I("v_mul_u32_u24 v65, s46, v66")
    I("v_lshl_add_u32 v65, v64, 3, v65")
    I("v_sub_u32 v68, v54, v64")
    for i in range(8):
        I(f"v_cmpx_lt_i32 vcc, {4*i}, v68")
        I("s_nop 0")
        I("s_cbranch_execz L_rl")
        I(f"buffer_load_dwordx4 v[{4*i}:{4*i+3}], v65, s[24:27], 0 offen offset:{32*i}")
    L("L_rl")
    I("s_mov_b64 exec, -1")
    I("v_mov_b32 v71, 1")
    I("v_mov_b32 v72, 0x100")
    I("s_waitcnt lgkmcnt(0)")
    I("s_barrier")
    I("s_waitcnt vmcnt(0)")
    stamp(2)
    if PFR and not PFLATE:
        gen_pf()
    for r in range(16):
        I(f"v_lshrrev_b32 v{32+r}, 26, v{2*r+1}")
    for r in range(16):
        I(f"v_lshl_add_u32 v{32+r}, v{32+r}, 2, s59" if SUBW else f"v_lshlrev_b32 v{32+r}, 2, v{32+r}")
    for r in range(16):
        i, k = r // 2, r % 2
        I(f"v_cmpx_lt_i32 vcc, {4*i+k}, v68")
        if k == 0:
            I(f"s_mov_b32 s58, {r}")
            I("s_cbranch_execz L_rank_done")
        I(f"ds_add_rtn_u32 v{48+r}, v{32+r}, v71 offset:{CW if SUBW else CNT}")
    I("s_mov_b32 s58, 16")
    I("v_cmpx_lt_i32 vcc, 32, v68")
    I(f"ds_add_u32 v72, v71 offset:{CNT}")
    L("L_rank_done")
    I("s_mov_b64 exec, -1")
    if PFR and PFLATE == 1:
        gen_pf()
    if SUBW:
        I(f"ds_read_b32 v75, v87 offset:{CW}")
    I("v_and_b32 v73, 0xe0, v69")
    I("v_or_b32 v74, 28, v69")
    I("v_and_b32 v83, 7, v67")
    I("v_lshlrev_b32 v84, 5, v83")
    I("v_lshrrev_b32 v86, 3, v67")
    I("s_waitcnt lgkmcnt(0)")
    if SUBW:
        I(f"ds_add_u32 v69, v75 offset:{CNT}")
        for k in range(1, 8):
            I(f"s_cmp_gt_u32 s3, {7-k}")
            I("s_cbranch_scc1 L_pw_done")
            I(f"ds_add_u32 v87, v75 offset:{PW+256*k}")
        L("L_pw_done")
        if PFR and PFLATE == 2:
            gen_pf()
        I("s_waitcnt lgkmcnt(0)")
    I("s_barrier")
    stamp(3)
    I(f"ds_read_b32 v75, v69 offset:{CNT}")
    I(f"ds_read_b32 v76, v72 offset:{CNT}")
    if SUBW:
        I(f"ds_read_b32 v88, v87 offset:{PW}")
    I("s_waitcnt lgkmcnt(2)" if SUBW else "s_waitcnt lgkmcnt(1)")
    I("v_mov_b32 v77, v75")
    wave_scan(77)
    I("v_sub_u32 v78, v77, v75")
    I("v_readlane_b32 s60, v77, 63")
    I("ds_bpermute_b32 v79, v73, v78")
    I("ds_bpermute_b32 v80, v74, v77")
    I("v_cmp_eq_u32 vcc, v74, v69")
    I("s_waitcnt lgkmcnt(0)")
    I("v_readfirstlane_b32 s61, v76")
    I(f"s_cmp_le_u32 s60, {TLIM}")
    I("s_cbranch_scc1 L_fits")
    I("s_mov_b32 s34, s33")
    I("s_mov_b32 s61, 0")
    I("v_mov_b32 v68, 0")
    I("v_mov_b32 v78, 0")
    I("v_mov_b32 v79, 0")
    I("v_mov_b32 v80, 0")
    L("L_fits")
    I("v_sub_u32 v80, v80, v79")
    I("ds_bpermute_b32 v85, v84, v80")
    I("v_add_u32 v81, 0x5f, v80")
    I("v_and_b32 v81, 0xffe0, v81")
    I("v_sub_u32 v81, v81, v80")
    I("v_cndmask_b32 v81, 0, v81, vcc")
    I("v_mov_b32 v82, v81")
    wave_scan(82)
    I("v_sub_u32 v82, v82, v81")
    I("v_add_lshl_u32 v78, v78, v82, 3")
    I("v_lshl_add_u32 v86, v80, 3, v86")
    if SUBW:
        I("v_lshl_add_u32 v88, v88, 3, v78")
    I("s_waitcnt lgkmcnt(0)")
    for r in range(16):
        if r >= 8 and r % 2 == 0:
            I(f"s_cmp_le_u32 s58, {r}")
            I("s_cbranch_scc1 L_lk_done")
        I(f"ds_bpermute_b32 v{32+r}, v{32+r}, v{88 if SUBW else 78}")
    L("L_lk_done")
    I("s_cmp_eq_u32 s47, 0")
    I("s_cbranch_scc1 L_paired")
    I("v_lshl_add_u32 v85, v85, 3, v83")
    I("v_cmp_gt_u32 vcc, v85, v86")
    I("s_sub_u32 s64, 11, s3")
    I("s_cmp_lt_u32 s3, 4")
    I("s_cselect_b32 s64, s3, s64")
    I("s_mov_b32 s41, 0")
    for i in range(8):
        I(f"s_bfe_u32 s65, {'vcc_lo' if i < 4 else 'vcc_hi'}, {(8*(i%4)) | (8 << 16)}")
        I("s_bcnt1_i32_b32 s65, s65")
        I("s_cmp_eq_u32 s65, s64")
        I(f"s_cselect_b32 s41, {i}, s41")
    L("L_paired")
    I("s_lshl_b32 s46, s41, 3")
    I("v_readlane_b32 s62, v78, s46")
    I("v_readlane_b32 s63, v80, s46")
    I("s_waitcnt lgkmcnt(0)")
    for r in range(16):
        i, k = r // 2, r % 2
        I(f"v_cmpx_lt_i32 vcc, {4*i+k}, v68")
        I(f"v_lshl_add_u32 v{32+r}, v{48+r}, 3, v{32+r}")
        if k == 0:
            I("s_cbranch_execz L_scat_done")
        I(f"ds_write_b64 v{32+r}, v[{2*r}:{2*r+1}]")
    L("L_scat_done")
    I("s_mov_b64 exec, -1")
    I("s_cmp_eq_u32 s47, 0")
    I("s_cbranch_scc1 L_nowin")
    for i in range(16):
        I(f"v_mov_b32 v{80+i}, 0")
    I("v_and_b32 v72, 31, v67")
    I(f"v_lshl_add_u32 v72, v72, 7, v{H16}")
    I("s_lshl_b32 s46, s32, 3")
    I("s_add_u32 s46, s46, s41")
    I("s_mul_i32 s46, s46, 3125")
    I("s_add_u32 s49, s46, 127")
    I("s_lshr_b32 s49, s49, 7")
    I(f"s_add_u32 s44, s46, {3125+127}")
    I("s_lshr_b32 s44, s44, 7")
    I("s_sub_u32 s44, s44, s49")
    I("s_lshl_b32 s49, s49, 7")
    I("s_bfm_b32 s46, s44, 0")
    I("s_mov_b32 exec_lo, s46")
    I("s_mov_b32 exec_hi, s46")
    for s in range(4):
        I(f"buffer_load_dwordx4 {vr(80+4*s,4)}, v72, s[12:15], s49 offen offset:{32*s}")
    I("s_mov_b64 exec, -1")
    L("L_nowin")
    I("s_add_u32 s64, s63, 31")
    I("s_lshr_b32 s35, s64, 5")
    I("s_lshl_b32 s64, s35, 5")
    I("s_sub_u32 s64, s64, s63")
    I("s_lshl_b32 s65, s63, 3")
    I("s_add_u32 s65, s65, s62")
    I("v_lshl_add_u32 v72, v67, 3, s65")
    I("v_mov_b32 v74, 0xffffff00")
    I(f"v_mov_b32 v75, {EMASK}")
    I("ds_write_b64 v72, v[74:75]")
    I("v_cmp_gt_u32 vcc, s64, v67")
    I("s_and_saveexec_b64 s[50:51], vcc")
    I("ds_write_b64 v72, v[74:75] offset:512")
    I("s_mov_b64 exec, -1")
    I("v_lshrrev_b32 v72, 3, v67")
    I(f"v_lshl_add_u32 v{LSA}, v72, 5, s62")
    I("v_and_b32 v72, 7, v67")
    I("v_bfe_u32 v73, v67, 3, 2")
    I("v_lshl_add_u32 v72, v72, 2, v73")
    I(f"v_lshl_add_u32 v{LMA}, v72, 3, s62")
    I("s_waitcnt lgkmcnt(0)")
    I("s_barrier")
    stamp(4)
    put([f"ds_read2_b32 {vr(T,2)}, v{LSA} offset0:0 offset1:2", f"ds_read2_b32 {vr(T+2,2)}, v{LSA} offset0:4 offset1:6"])
    I(f"ds_read2_b32 {vr(T+4,2)}, v{LMA} offset0:1 offset1:65")
    I("s_waitcnt lgkmcnt(0)")
    put(x_dma(0))
    put(e_load(0, T + 4))
    put([f"ds_read2_b32 {vr(T,2)}, v{LSA} offset0:64 offset1:66", f"ds_read2_b32 {vr(T+2,2)}, v{LSA} offset0:68 offset1:70"])
    I("s_cmp_eq_u32 s47, 0")
    I("s_cbranch_scc1 L_noinit")
    for f in range(8):
        I(f"ds_read_b128 {vr(4*f,4)}, v70 offset:{1024*f}")
    I("s_waitcnt vmcnt(5) lgkmcnt(0)")
    for c in range(2):
        d = vr(32 + 16 * c, 16)
        for s in range(4):
            I(mfma(d, vr(80 + 4 * s, 4), vr((2 * s + c) * 4, 4), "0" if s == 0 else d))
    for f in range(8):
        I(f"ds_read_b128 {vr(4*f,4)}, v70 offset:{1024*(26+f)}")
    I("s_nop 7")
    for i in range(32):
        I(f"v_mul_f32 v{32+i}, s43, v{32+i}")
    I("s_waitcnt lgkmcnt(0)")
    for f in range(18):
        I(f"ds_read_b128 {ar(4*f,4)}, v70 offset:{1024*(8+f)}")
    k = 0
    for c in range(2):
        a = ar(A_AGG + 16 * c, 16)
        for s in range(4):
            I(mfma(a, vr(80 + 4 * s, 4), vr((2 * s + c) * 4, 4), "0" if s == 0 else a))
            for p in (k, k + 1):
                I(f"v_cvt_pk_bf16_f32 v{64+p}, v{32+2*p}, v{32+2*p+1}")
            k += 2
    for c in range(2):
        for p in range(8):
            I(f"v_accvgpr_write_b32 a{xa(p//4, c) + p%4}, v{64+8*c+p}")
    I("s_mov_b32 s47, 0")
    L("L_noinit")
    I("s_cmp_eq_u32 s35, 0")
    I("s_cbranch_scc1 L_round_end")
    I(f"v_and_b32 v{T+4}, 31, v{T+4}")
    I(f"v_mad_u32_u24 v{T+7}, v{T+4}, s42, v{OHC}")
    I(f"v_mad_u32_u24 v{SW}, v{T+4}, s42, v{K1C}")
    I(f"ds_write_b16_d16_hi v{SW}, v{ONE}")
    I("s_waitcnt lgkmcnt(0)")
    put(x_dma(1))
    put(e_load(1, T + 5))
    for i in range(8):
        I(f"v_mov_b32 v{G[1]+i}, 0")
    for i in range(8):
        I(f"v_mov_b32 v{S+i}, 0")
    I("s_waitcnt vmcnt(5)")
    put(a_reads(0))
    put([f"ds_read2_b32 {vr(T,2)}, v{LSA} offset0:128 offset1:130", f"ds_read2_b32 {vr(T+2,2)}, v{LSA} offset0:132 offset1:134"])
    I("s_mov_b32 s36, s35")
    if SYNC:
        I("s_lshl_b32 s46, s3, 2")
        I(f"s_add_u32 s46, s46, {CNT+384}")
        I("v_mov_b32 v125, s46")
        I("v_xor_b32 v126, 16, v125")
    if PRIO:
        I("s_setprio 3")
    elif YPRIO:
        I("s_cmp_lt_u32 s3, 4")
        I("s_cbranch_scc1 L_yp")
        I("s_setprio 1")
        L("L_yp")
    stamp(5)
    m0 = mfma_group(0, 0)
    I(m0[0])
    I("s_waitcnt lgkmcnt(0)")
    I(m0[1])
    put(x_dma(0))
    put(m0[2:])
    I("s_nop 7")
    I("s_branch L_p1_0")
    L("L_loop")
    INLOOP[0] = True
    nv = len(valu_group(0))
    pos = [2 + (k * (nv - 4)) // 13 for k in range(13)]
    def sched(mf, va, inserts):
        pend = []
        mi = 0
        for i, v in enumerate(va):
            if mi < len(mf) and i == pos[mi]:
                put(inserts.get(('b', mi), []))
                I(mf[mi])
                put(inserts.get(('m', mi), []))
                pend += inserts.get(('s', mi), [])
                mi += 1
            I(v)
            if pend:
                put([pend.pop(0)])
        assert mi == len(mf)
        put(pend)
    def nonop(lst): return [x for x in lst if x != "s_nop 0"] if "valu" not in DROP else lst
    for par in range(2):
        ins = {('b', 3): ["s_waitcnt lgkmcnt(2)"],
               ('m', 4): ["s_waitcnt lgkmcnt(0)"],
               ('s', 4): nonop(x_dma(par))}
        if PRIO:
            ins[('m', 0)] = prio_code(par)
        sched(agg_group(0) + mfma_group(0, par), valu_group(1), ins)
        L(f"L_p1_{par}")
        ins = {('m', 0): [f"ds_read2_b32 {vr(T+4,2)}, v{LMA} offset0:65 offset1:129"],
               ('s', 1): [f"ds_read_b128 {vr(S,4)}, v{SRA}",
                          f"ds_read_b128 {vr(S+4,4)}, v{SRA} offset:32",
                          f"ds_write_b16 v{SW}, v{ONE}"],
               ('m', 3): ["s_waitcnt lgkmcnt(3)"] + e_load(par, T + 5),
               ('s', 3): [f"v_and_b32 v{T+4}, 31, v{T+4}",
                          f"v_add_u32 v{LSA}, 256, v{LSA}",
                          f"v_mad_u32_u24 v{T+7}, v{T+4}, s42, v{OHC}",
                          f"v_mad_u32_u24 v{SW}, v{T+4}, s42, v{K1C}",
                          f"v_add_u32 v{LMA}, 256, v{LMA}",
                          f"ds_write_b16_d16_hi v{SW}, v{ONE}",
                          "s_sub_u32 s36, s36, 1"],
               ('m', 12): ["s_waitcnt vmcnt(5) lgkmcnt(0)"] + a_reads(par ^ 1) + [f"ds_read2_b32 {vr(T,2)}, v{LSA} offset0:128 offset1:130", f"ds_read2_b32 {vr(T+2,2)}, v{LSA} offset0:132 offset1:134"]}
        if SYNC:
            ins[('s', 6)] = ["v_mov_b32 v127, s36", "ds_write_b32 v125, v127", f"ds_read_b32 v{T+6}, v126"]
            ins[('m', 12)] += [f"v_readfirstlane_b32 s46, v{T+6}", "s_setprio 0", "s_cmp_lt_u32 s36, s46",
                               f"s_cbranch_scc1 L_sy_{par}", "s_setprio 1", f"L_sy_{par}:"]
        sched(agg_group(1) + mfma_group(1, par), valu_group(0), ins)
        I("s_cmp_eq_u32 s36, 0")
        I("s_cbranch_scc1 L_tail" if par == 0 else "s_cbranch_scc0 L_loop")
    L("L_tail")
    INLOOP[0] = False
    I(f"ds_write_b16 v{SW}, v{ONE}")
    I("s_nop 0")
    put(agg_group(0))
    put(valu_group(1))
    I("s_nop 1")
    put(agg_group(1))
    L("L_round_end")
    I("s_add_u32 s45, s45, 32")
    I("s_cmp_lg_u32 s61, 0")
    I("s_cbranch_scc1 L_next")
    I(f"s_cmp_ge_u32 s34, {NC}")
    I("s_cbranch_scc1 L_epi")
    I("s_mov_b32 s33, s34")
    I(f"s_add_u32 s34, s34, {CBLK}")
    I(f"s_min_u32 s34, s34, {NC}")
    I("s_mov_b32 s45, 0")
    L("L_next")
    I("v_mbcnt_lo_u32_b32 v67, -1, 0")
    I("v_mbcnt_hi_u32_b32 v67, -1, v67")
    I("s_waitcnt vmcnt(0) lgkmcnt(0)")
    I("s_barrier")
    I("s_branch L_round")
    L("L_epi")
    I("s_waitcnt vmcnt(0) lgkmcnt(0)")
    stamp(6)
    srd(28, 8, 9, N * 128)
    I("v_mbcnt_lo_u32_b32 v67, -1, 0")
    I("v_mbcnt_hi_u32_b32 v67, -1, v67")
    I("v_and_b32 v68, 31, v67")
    I("v_lshrrev_b32 v69, 5, v67")
    I("v_lshlrev_b32 v68, 2, v68")
    I("v_lshl_add_u32 v68, v69, 9, v68")
    I("v_add_u32 v68, s37, v68")
    I("v_lshlrev_b32 v70, 4, v67")
    I("v_add_u32 v71, s37, v70")
    I("s_nop 7")
    regs = list(range(13))
    for c in range(2):
        for i in regs:
            I(f"v_accvgpr_read_b32 v{16*c+i}, a{A_AGG+16*c+i}")
    ids = [16 * c + i for c in range(2) for i in regs]
    for r in ids:
        I(f"v_mul_f32 v{32+r}, s43, v{r}")
    for r in ids:
        I(f"v_exp_f32 v{32+r}, v{32+r}")
    for r in ids:
        I(f"v_add_f32 v{32+r}, 1.0, v{32+r}")
    for r in ids:
        I(f"v_rcp_f32 v{32+r}, v{32+r}")
    for r in ids:
        I(f"v_mul_f32 v{r}, v{r}, v{32+r}")
    for i in regs:
        I(f"v_cvt_pk_bf16_f32 v{32+i}, v{i}, v{16+i}")
    for i in regs:
        row = 8 * (i >> 2) + (i & 3)
        I(f"ds_write_b32 v68, v{32+i} offset:{row*128}")
    I("s_waitcnt lgkmcnt(0)")
    for k in range(4):
        I(f"ds_read_b128 {vr(4*k,4)}, v71 offset:{1024*k}")
    for k in range(3):
        I(f"s_waitcnt lgkmcnt({3-k})")
        I(f"buffer_store_dwordx4 {vr(4*k,4)}, v70, s[28:31], s49 offen offset:{1024*k} sc1")
    I("s_cmp_lt_u32 s44, 25")
    I("s_cbranch_scc1 L_k2_fin")
    I("s_waitcnt lgkmcnt(0)")
    I("s_mov_b64 exec, 0xff")
    I(f"buffer_store_dwordx4 {vr(12,4)}, v70, s[28:31], s49 offen offset:3072 sc1")
    L("L_k2_fin")
    if STAMP:
        I("s_waitcnt vmcnt(0)")
        stamp(7)
        srd(28, 10, 11, 0x100000, 0x1000000)
        I("s_mov_b64 exec, 1")
        I("s_lshl_b32 s46, s2, 3")
        I("s_add_u32 s46, s46, s3")
        I("s_lshl_b32 s46, s46, 6")
        I("v_mov_b32 v0, 0")
        for k in range(8):
            I(f"v_mov_b32 v1, s{70+2*k}")
            I(f"buffer_store_dword v1, v0, s[28:31], s46 offen offset:{4*k}")
        I("v_mov_b32 v1, s35")
        I("buffer_store_dword v1, v0, s[28:31], s46 offen offset:32")
        I("s_getreg_b32 s47, hwreg(HW_REG_XCC_ID)")
        I("v_mov_b32 v1, s47")
        I("buffer_store_dword v1, v0, s[28:31], s46 offen offset:36")
        I("s_getreg_b32 s47, hwreg(HW_REG_HW_ID)")
        I("v_mov_b32 v1, s47")
        I("buffer_store_dword v1, v0, s[28:31], s46 offen offset:40")
        I("s_memrealtime s[50:51]")
        I("s_waitcnt lgkmcnt(0)")
        I("v_mov_b32 v1, s50")
        I("buffer_store_dword v1, v0, s[28:31], s46 offen offset:44")
        I("v_mov_b32 v1, s86")
        I("buffer_store_dword v1, v0, s[28:31], s46 offen offset:48")
    L("L_k2_end")
    I("s_endpgm")

def kd(name, vgpr, sgpr, accum):
    emit(f".amdhsa_kernel {name}")
    emit(f"  .amdhsa_next_free_vgpr {vgpr}")
    emit(f"  .amdhsa_next_free_sgpr {sgpr}")
    emit(f"  .amdhsa_accum_offset {accum}")
    emit("  .amdhsa_group_segment_fixed_size 0")
    emit("  .amdhsa_kernarg_size 80")
    emit("  .amdhsa_user_sgpr_count 2")
    emit("  .amdhsa_user_sgpr_kernarg_segment_ptr 1")
    emit("  .amdhsa_system_sgpr_workgroup_id_x 1")
    emit(".end_amdhsa_kernel")

DOC = """
egc_bin_kernel : one workgroup per 3200-edge chunk; LDS counting sort of the edges by destination bucket
                 (256 buckets of 8 windows, a window = 24/25 nodes); writes 8-byte records + a segment table
                 to d_ws, and the weight matrices as MFMA B-operand fragments (gate parts times -log2 e).
egc_main_kernel: one workgroup per bucket, one wave per window. Builds per-window edge lists in LDS ordered by
                 source range (keeps the gathered x rows L2 resident), then per 32-edge tile:
                 gathers x[src] rows (LDS-DMA) and e_attr rows, G = gate pre-activation and H = x[src] @ v_w by MFMA
                 (x[dst] part through a one-hot operand), msg = H / (1 + 2^G), segment sum by a one-hot MFMA into
                 accumulators that start at x @ u_w; SiLU and store. Extra rounds handle any skew of dst.
"""

def main():
    emit(HEADER.rstrip("\n"))
    emit(f"; @launch kernel=egc_bin_kernel grid=({NC},1,1) block=(1024,1,1) lds={K1_LDS}")
    emit(f"; @launch kernel=egc_main_kernel grid=(256,1,1) block=(512,1,1) lds={K2_LDS}")
    for ln in DOC.strip("\n").split("\n"):
        emit("; " + ln)
    emit('.amdgcn_target "amdgcn-amd-amdhsa--gfx950"')
    emit(".text")
    gen_k1()
    gen_k2()
    emit('.section .rodata,"a"')
    emit(".p2align 6")
    kd("egc_bin_kernel", 56, 72, 56)
    emit(".p2align 6")
    kd("egc_main_kernel", 248, 96, 128)
    path = sys.argv[1] if len(sys.argv) > 1 else "v10.s"
    open(path, "w").write("\n".join(out) + "\n")

main()
```

```python
import sys, os

N = 50000; E = 800000
NB = 256; CH = 3200; NC = 250
WS_TAB = 0x10000; WS_REC = 0x400000; RECROW = CH * 8
MW = 175921861
NEGLOG2E = 0xBFB8AA3B
def env(k, d): return os.environ.get(k, d)
STAMP = int(env("STAMP", "0"))
TLBPF = int(env("TLBPF", "65536"))
PSH = int(env("PSH", "13"))
SUBW = int(env("SUBW", "1"))
SYNC = int(env("SYNC", "1"))
PFR = int(env("PFR", "4"))
PFP = int(env("PFP", "1"))
XPF = int(env("XPF", "0"))
RPF = int(env("RPF", "0"))
PRIO = int(env("PRIO", "0"))
YPRIO = int(env("YPRIO", "1"))
PTH = [int(x) for x in env("PTH", "10,7,4").split(",")]
EPOL = env("EPOL", "")
NOMEM = int(env("NOMEM", "0"))
DROP = env("DROP", "").split(",")
INLOOP = [False]

out = []
def emit(s=""): out.append(s)
def I(s):
    if INLOOP[0]:
        op = s.split()[0]
        if "mfma" in DROP and op.startswith("v_mfma"): return
        if "valu" in DROP and op in ("v_exp_f32", "v_rcp_f32", "v_mul_f32", "v_add_f32", "v_cvt_pk_bf16_f32"): return
    out.append("    " + s)
def L(s): out.append(s + ":")
def put(lst):
    for x in lst:
        emit(x) if x.endswith(":") else I(x)
def stamp(k):
    if STAMP:
        I(f"s_memtime s[{70+2*k}:{71+2*k}]")
        I("s_waitcnt lgkmcnt(0)")

HEADER = """; Kernarg layout for this problem (80 bytes, ptrs only, base s[0:1]):
"""

def srd(d, lo, hi, size, add=0):
    if add:
        I(f"s_add_u32 s{d}, s{lo}, {add}")
        I(f"s_addc_u32 s{d+1}, s{hi}, 0")
    else:
        I(f"s_mov_b32 s{d}, s{lo}")
        I(f"s_mov_b32 s{d+1}, s{hi}")
    I(f"s_mov_b32 s{d+2}, {size}")
    I(f"s_mov_b32 s{d+3}, 0x00020000")

def wave_scan(r):
    for st in ["row_shr:1 row_mask:0xf", "row_shr:2 row_mask:0xf", "row_shr:4 row_mask:0xf", "row_shr:8 row_mask:0xf",
               "row_bcast:15 row_mask:0xa", "row_bcast:31 row_mask:0xc"]:
        I("s_nop 1")
        I(f"v_add_u32_dpp v{r}, v{r}, v{r} {st} bank_mask:0xf")

K1_HIST = 0
K1_STG = 1024
K1_LDS = K1_STG + RECROW

def gen_k1():
    emit(".globl egc_bin_kernel")
    emit(".p2align 8")
    emit(".type egc_bin_kernel,@function")
    L("egc_bin_kernel")
    I(f"s_cmp_ge_u32 s2, {NC}")
    I("s_cbranch_scc1 L_k1_end")
    if STAMP:
        I("s_memrealtime s[68:69]")
    I("s_load_dwordx4 s[4:7], s[0:1], 16")
    I("s_load_dwordx4 s[8:11], s[0:1], 32")
    I("s_load_dwordx2 s[12:13], s[0:1], 48")
    I("s_load_dwordx2 s[14:15], s[0:1], 72")
    I("v_and_b32 v1, 0xff, v0")
    I("v_lshlrev_b32 v1, 2, v1")
    I("v_mov_b32 v2, 0")
    I(f"ds_write_b32 v1, v2 offset:{K1_HIST}")
    I("v_lshlrev_b32 v4, 4, v0")
    I("v_lshrrev_b32 v5, 6, v0")
    I(f"s_mul_i32 s32, s2, {CH*4}")
    I("v_readfirstlane_b32 s3, v5")
    I(f"s_mov_b32 s33, {MW}")
    I("s_movk_i32 s36, 3125")
    I(f"s_mul_i32 s37, s2, {CH*32}")
    I("s_waitcnt lgkmcnt(0)")
    srd(16, 4, 5, E * 4)
    srd(20, 6, 7, E * 4)
    srd(24, 14, 15, 0x1000000)
    if STAMP:
        srd(64, 14, 15, 0x1000, 0x1100000)
        I("s_lshl_b32 s62, s2, 2")
        I("v_mov_b32 v40, s68")
        I("v_lshlrev_b32 v41, 12, v0")
        I("buffer_store_dword v40, v41, s[64:67], s62 offen")
    I(f"v_cmp_gt_u32 vcc, {CH//4}, v0")
    I("s_and_saveexec_b64 s[34:35], vcc")
    I("s_cbranch_execz L_k1_noload")
    I("buffer_load_dwordx4 v[8:11], v4, s[20:23], s32 offen")
    I("buffer_load_dwordx4 v[12:15], v4, s[16:19], s32 offen")
    L("L_k1_noload")
    I("s_mov_b64 exec, s[34:35]")
    if TLBPF:
        I("s_cmp_lg_u32 s3, 13")
        I("s_cbranch_scc1 L_k1_notlb")
        I("s_load_dwordx4 s[52:55], s[0:1], 0")
        I("s_load_dwordx2 s[56:57], s[0:1], 56")
        if int(env("WSPF", "0")):
            I(f"s_mul_i32 s62, s2, {RECROW}")
            I(f"s_add_u32 s62, s62, {WS_REC}")
            I("v_and_b32 v45, 1, v0")
            I(f"v_mul_u32_u24 v45, {RECROW-4}, v45")
            I("s_mov_b64 exec, 3")
            I("buffer_load_dword v46, v45, s[24:27], s62 offen")
            I(f"s_mov_b32 s62, {WS_TAB}")
            I("buffer_load_dword v47, v45, s[24:27], s62 offen")
            I("s_mov_b64 exec, -1")
        I("s_lshr_b32 s62, s2, 3")
        I("v_and_b32 v40, 63, v0")
        ne_ = -(-(E * 32) // (TLBPF * 32)); nx_ = -(-(N * 128) // (TLBPF * 32))
        I(f"s_mul_i32 s63, s62, {ne_ * TLBPF}")
        I(f"s_mul_i32 s62, s62, {nx_ * TLBPF}")
        I(f"s_mov_b32 s58, {TLBPF}")
        I("v_mul_lo_u32 v41, v40, s58")
        I("s_waitcnt lgkmcnt(0)")
        srd(64, 54, 55, E * 32)
        I(f"s_bfm_b64 exec, {ne_}, 0")
        I("buffer_load_dword v42, v41, s[64:67], s63 offen")
        srd(64, 52, 53, N * 128)
        I(f"s_bfm_b64 exec, {nx_}, 0")
        I("buffer_load_dword v43, v41, s[64:67], s62 offen")
        srd(64, 56, 57, N * 128)
        I("buffer_load_dword v44, v41, s[64:67], s62 offen")
        I("s_mov_b64 exec, -1")
        L("L_k1_notlb")
    I("s_mov_b32 s40, 0")
    I("s_cmp_lg_u32 s3, 15")
    I("s_cbranch_scc1 L_k1_nowf")
    I("s_cmp_ge_u32 s2, 34")
    I("s_cbranch_scc1 L_k1_nowf")
    I("s_mov_b32 s40, 1")
    I("s_mov_b32 s28, s12")
    I("s_mov_b32 s29, s13")
    I(f"s_mov_b32 s30, {144*128}")
    I("s_mov_b32 s31, 0x00020000")
    I("s_mov_b32 s41, s2")
    I("s_cmp_lt_u32 s2, 18")
    I("s_cbranch_scc1 L_k1_wsel")
    I("s_mov_b32 s28, s10")
    I("s_mov_b32 s29, s11")
    I(f"s_mov_b32 s30, {64*128}")
    I("s_sub_u32 s41, s2, 18")
    I("s_cmp_lt_u32 s2, 26")
    I("s_cbranch_scc1 L_k1_wsel")
    I("s_mov_b32 s28, s8")
    I("s_mov_b32 s29, s9")
    I("s_sub_u32 s41, s2, 26")
    L("L_k1_wsel")
    I("s_lshr_b32 s42, s41, 1")
    I("s_lshl_b32 s42, s42, 11")
    I("s_and_b32 s43, s41, 1")
    I("s_lshl_b32 s43, s43, 1")
    I("s_add_u32 s42, s42, s43")
    I("v_and_b32 v40, 31, v0")
    I("v_lshlrev_b32 v40, 2, v40")
    I("v_and_b32 v41, 32, v0")
    I("v_lshl_add_u32 v40, v41, 5, v40")
    for j in range(8):
        I(f"buffer_load_ushort v{44+j}, v40, s[28:31], s42 offen offset:{128*j}")
    L("L_k1_nowf")
    I("s_barrier")
    I("s_and_saveexec_b64 s[34:35], vcc")
    I("s_cbranch_execz L_k1_nohist")
    I("v_mov_b32 v6, 1")
    I("v_mov_b32 v5, 0x7f")
    I("v_lshl_add_u32 v7, v0, 7, s37")
    I("s_waitcnt vmcnt(1)")
    for i in range(4):
        I(f"v_mul_hi_u32 v{16+i}, v{8+i}, s33")
    for i in range(4):
        I(f"v_lshrrev_b32 v{20+i}, 3, v{16+i}")
    for i in range(4):
        I(f"v_lshlrev_b32 v{20+i}, 2, v{20+i}")
    for i in range(4):
        I(f"ds_add_rtn_u32 v{24+i}, v{20+i}, v6 offset:{K1_HIST}")
    for i in range(4):
        I(f"v_mad_u32_u24 v{28+i}, v{16+i}, s36, v5")
    for i in range(4):
        I(f"v_lshrrev_b32 v{28+i}, 7, v{28+i}")
    for i in range(4):
        I(f"v_sub_u32 v{28+i}, v{8+i}, v{28+i}")
    for i in range(4):
        I(f"v_lshlrev_b32 v{16+i}, 29, v{16+i}")
    for i in range(4):
        I(f"v_or3_b32 v{33+2*i}, v{16+i}, v7, v{28+i}")
    for i in range(1, 4):
        I(f"v_add_u32 v{33+2*i}, {32*i}, v{33+2*i}")
    I("s_waitcnt vmcnt(0)")
    for i in range(4):
        I(f"v_lshlrev_b32 v{32+2*i}, 7, v{12+i}")
    if int(env("PEQ", "1")):
        for i in range(4):
            I(f"v_mul_u32_u24 v{12+i}, 0x53e, v{12+i}")
        for i in range(4):
            I(f"v_bfe_u32 v{12+i}, v{12+i}, 23, 3")
    else:
        for i in range(4):
            I(f"v_bfe_u32 v{12+i}, v{12+i}, {PSH}, 3")
    for i in range(4):
        I(f"v_lshl_or_b32 v{33+2*i}, v{12+i}, 26, v{33+2*i}")
    L("L_k1_nohist")
    I("s_mov_b64 exec, s[34:35]")
    I("s_waitcnt lgkmcnt(0)")
    I("s_barrier")
    I("s_cmp_lg_u32 s3, 14")
    I("s_cbranch_scc1 L_k1_noscan")
    I("v_and_b32 v1, 63, v0")
    I("v_lshlrev_b32 v2, 4, v1")
    I(f"ds_read_b128 v[8:11], v2 offset:{K1_HIST}")
    I("v_lshrrev_b32 v3, 2, v1")
    I("v_lshlrev_b32 v3, 14, v3")
    I("v_and_b32 v1, 3, v1")
    I("v_lshl_add_u32 v3, v1, 4, v3")
    I("s_lshl_b32 s46, s2, 6")
    I(f"s_add_u32 s46, s46, {WS_TAB}")
    I("s_waitcnt lgkmcnt(0)")
    I("v_add_u32 v12, v8, v9")
    I("v_add_u32 v13, v12, v10")
    I("v_add_u32 v14, v13, v11")
    I("v_mov_b32 v15, v14")
    wave_scan(15)
    I("v_sub_u32 v16, v15, v14")
    I("v_add_u32 v17, v16, v8")
    I("v_add_u32 v18, v16, v12")
    I("v_add_u32 v19, v16, v13")
    I(f"ds_write_b128 v2, v[16:19] offset:{K1_HIST}")
    I("v_lshl_or_b32 v8, v17, 16, v16")
    I("v_lshl_or_b32 v9, v18, 16, v17")
    I("v_lshl_or_b32 v10, v19, 16, v18")
    I("v_lshl_or_b32 v11, v15, 16, v19")
    I("buffer_store_dwordx4 v[8:11], v3, s[24:27], s46 offen sc1")
    I("s_waitcnt lgkmcnt(0)")
    L("L_k1_noscan")
    I("s_barrier")
    I("s_and_saveexec_b64 s[34:35], vcc")
    I("s_cbranch_execz L_k1_noscat")
    for i in range(4):
        I(f"ds_read_b32 v{28+i}, v{20+i} offset:{K1_HIST}")
    for i in range(4):
        I(f"s_waitcnt lgkmcnt({3-i})")
        I(f"v_add_lshl_u32 v{28+i}, v{28+i}, v{24+i}, 3")
    for i in range(4):
        I(f"ds_write_b64 v{28+i}, v[{32+2*i}:{33+2*i}] offset:{K1_STG}")
    L("L_k1_noscat")
    I("s_mov_b64 exec, s[34:35]")
    I("s_waitcnt lgkmcnt(0)")
    I("s_barrier")
    I(f"s_mul_i32 s46, s2, {RECROW}")
    I(f"s_add_u32 s46, s46, {WS_REC}")
    I(f"ds_read_b128 v[16:19], v4 offset:{K1_STG}")
    I(f"s_cmp_ge_u32 s3, {(RECROW//16 - 1024) // 64}")
    I("s_cbranch_scc1 L_k1_no2")
    I(f"ds_read_b128 v[12:15], v4 offset:{K1_STG + 16384}")
    I("s_add_u32 s47, s46, 16384")
    I("s_waitcnt lgkmcnt(0)")
    I("buffer_store_dwordx4 v[12:15], v4, s[24:27], s47 offen sc1")
    L("L_k1_no2")
    I("s_waitcnt lgkmcnt(0)")
    I("buffer_store_dwordx4 v[16:19], v4, s[24:27], s46 offen sc1")
    I("s_cmp_eq_u32 s40, 0")
    I("s_cbranch_scc1 L_k1_end")
    I("s_waitcnt vmcnt(0)")
    I("s_sub_u32 s46, s2, 8")
    I("s_cmp_lt_u32 s46, 10")
    I(f"s_cselect_b32 s47, {NEGLOG2E}, 1.0")
    for j in range(8):
        I(f"v_lshlrev_b32 v{44+j}, 16, v{44+j}")
    for j in range(8):
        I(f"v_mul_f32 v{44+j}, s47, v{44+j}")
    for j in range(4):
        I(f"v_cvt_pk_bf16_f32 v{52+j}, v{44+2*j}, v{45+2*j}")
    I("v_and_b32 v40, 63, v0")
    I("v_lshlrev_b32 v40, 4, v40")
    I("s_lshl_b32 s46, s2, 10")
    I("buffer_store_dwordx4 v[52:55], v40, s[24:27], s46 offen sc1")
    L("L_k1_end")
    I("s_endpgm")

LCAP = 4352
TLIM = 3584
CBLK = 100
LIST_S = 0
LIST_M = LIST_S + LCAP * 4
CNT = LIST_M + LCAP * 4
CW = CNT + 512
PW = CW + 2048
WSTG = PW + 2048
SM = WSTG + 34 * 1024
SMW = 2000
OH = SM + 16576
STG = OH + 2560
STGW = 8192
K2_LDS = STG + 8 * STGW
assert CNT % 256 == 0 and STG % 16 == 0 and K2_LDS <= 163840
EMASK = 0x01FFFFE0

G = [0, 32]; H = [16, 48]
AX = 64; ST = 80; S = 88; EB = [96, 100]; T = 104
VAX = 112; PC = 116; H16 = 117; LSA = 118; LMA = 119; K1C = 120; SRA = 121; OHC = 122; SW = 123; ONE = 124
A_WB = 0; A_WV = 40; A_XA = 72; A_AGG = 88

def wb(s, c): return A_WB + (2 * s + c) * 4
def wv(s, c): return A_WV + (2 * s + c) * 4
def xa(s, c): return A_XA + (2 * s + c) * 4
def vr(b, n): return f"v[{b}:{b+n-1}]"
def ar(b, n): return f"a[{b}:{b+n-1}]"
def mfma(d, a, b, c): return f"v_mfma_f32_32x32x16_bf16 {d}, {a}, {b}, {c}"

def mfma_group(c, par):
    m = []
    g = vr(G[c], 16); h = vr(H[c], 16)
    m.append(mfma(g, vr(EB[par], 4), ar(wb(4, c), 4), "0"))
    for s in range(2):
        m.append(mfma(g, vr(ST + 4 * s, 4), ar(xa(s, c), 4), g))
    for s in range(4):
        m.append(mfma(g, vr(AX + 4 * s, 4), ar(wb(s, c), 4), g))
    for s in range(4):
        m.append(mfma(h, vr(AX + 4 * s, 4), ar(wv(s, c), 4), "0" if s == 0 else h))
    return m

def valu_group(c):
    g = G[c]; h = H[c]
    stages = [
        lambda i: f"v_exp_f32 v{g+i}, v{g+i}",
        lambda i: f"v_add_f32 v{g+i}, 1.0, v{g+i}",
        lambda i: f"v_rcp_f32 v{g+i}, v{g+i}",
        lambda i: f"v_mul_f32 v{g+i}, v{g+i}, v{h+i}",
    ]
    v = []
    D = 2
    nst = len(stages)
    for step in range(16 + D * nst + 2):
        for k in range(nst):
            i = step - D * k
            if 0 <= i < 16:
                v.append(stages[k](i))
        i = step - D * nst
        if 0 <= i < 16 and i % 2 == 1:
            v.append(f"v_cvt_pk_bf16_f32 v{g+i//2}, v{g+i-1}, v{g+i}")
    return v

def agg_group(c):
    a = ar(A_AGG + 16 * c, 16)
    return [mfma(a, vr(S, 4), vr(G[c], 4), a), mfma(a, vr(S + 4, 4), vr(G[c] + 4, 4), a)]

def x_dma(par):
    r = []
    if NOMEM:
        for k in range(4):
            r.append(f"v_and_b32 v{T+k}, 0x3f80, v{T+k}")
    r.append(f"v_add_u32 v{T+0}, v{PC}, v{T+0}")
    r.append(f"v_xad_u32 v{T+1}, v{PC}, 64, v{T+1}")
    r.append(f"v_add_u32 v{T+2}, v{PC}, v{T+2}")
    r.append(f"v_xad_u32 v{T+3}, v{PC}, 64, v{T+3}")
    for k in range(4):
        r.append(f"s_add_u32 m0, s37, {par*4096 + k*1024}")
        r.append("s_nop 0")
        r.append(f"buffer_load_dwordx4 v{T+k}, s[12:15], 0 offen lds")
    return r

def e_load(par, meta):
    r = []
    if NOMEM:
        r.append(f"v_and_b32 v{meta}, 0x3fff, v{meta}")
    r.append(f"v_and_or_b32 v{T+6}, v{meta}, s40, v{H16}")
    r.append(f"buffer_load_dwordx4 {vr(EB[par],4)}, v{T+6}, s[16:19], 0 offen" + EPOL)
    return r

def a_reads(par):
    r = []
    for s in range(2):
        r.append(f"ds_read_b128 {vr(ST+4*s,4)}, v{T+7} offset:{16*s}")
    for s in range(4):
        r.append(f"ds_read_b128 {vr(AX+4*s,4)}, v{VAX+s} offset:{par*4096}")
    return r

def prio_code(par):
    r = []
    for lim, p in zip(PTH, (2, 1, 0)):
        r += [f"s_cmp_lt_u32 s36, {lim}", f"s_cbranch_scc0 L_pr_done_{par}", f"s_setprio {p}"]
    return r + [f"L_pr_done_{par}:"]

PFX = int(env("PFX", "1")); PFLATE = int(env("PFLATE", "0"))
def gen_pf():
    for r in range(PFR):
        i, k = r // 2, r % 2
        I(f"v_bfe_u32 v89, v{2*r+1}, 26, 3")
        I(f"v_cmp_gt_u32 vcc, {PFP}, v89")
        I(f"v_cmp_lt_i32 s[50:51], {4*i+k}, v68")
        I(f"v_and_b32 v90, s40, v{2*r+1}")
        if PFX:
            I(f"v_and_b32 v91, 0x7fff80, v{2*r}")
        I("s_and_b64 exec, vcc, s[50:51]")
        I(f"s_cbranch_execz L_pf_{r}")
        I("buffer_load_dword v127, v90, s[16:19], 0 offen")
        if PFX:
            I("buffer_load_dword v126, v91, s[12:15], 0 offen")
        L(f"L_pf_{r}")
        I("s_mov_b64 exec, -1")

def gen_k2():
    emit(".globl egc_main_kernel")
    emit(".p2align 8")
    emit(".type egc_main_kernel,@function")
    L("egc_main_kernel")
    I("s_cmp_ge_u32 s2, 256")
    I("s_cbranch_scc1 L_k2_end")
    I("s_load_dwordx2 s[10:11], s[0:1], 72")
    I("s_load_dwordx4 s[4:7], s[0:1], 0")
    I("s_load_dwordx2 s[8:9], s[0:1], 56")
    I("s_and_b32 s38, s2, 7")
    I("s_lshr_b32 s39, s2, 3")
    I("s_lshl_b32 s32, s38, 5")
    I("s_add_u32 s32, s32, s39")
    stamp(0)
    if STAMP:
        I("s_memrealtime s[86:87]")
    I("v_lshrrev_b32 v1, 6, v0")
    I("v_and_b32 v67, 63, v0")
    I("v_readfirstlane_b32 s3, v1")
    I("s_mov_b32 s33, 0")
    I(f"s_movk_i32 s34, {NC}")
    I("s_mov_b32 s45, 0")
    I("s_mov_b32 s47, 1")
    I("s_lshr_b32 s48, s32, 4")
    I("s_lshl_b32 s48, s48, 14")
    I("s_and_b32 s46, s32, 15")
    I("s_lshl_b32 s46, s46, 2")
    I("s_add_u32 s48, s48, s46")
    I(f"s_add_u32 s48, s48, {WS_TAB}")
    I("s_waitcnt lgkmcnt(0)")
    I("s_add_u32 s20, s10, s48")
    I("s_addc_u32 s21, s11, 0")
    I(f"s_mov_b32 s22, {(NC-1)*64+4}")
    I("s_mov_b32 s23, 0x00020000")
    L("L_round")
    I("s_lshl_b32 s46, s3, 5")
    I("v_lshrrev_b32 v66, 1, v67")
    I("v_add_u32 v66, s46, v66")
    I("v_lshlrev_b32 v65, 6, v66")
    I("buffer_load_dword v48, v65, s[20:23], 0 offen")
    I("v_lshlrev_b32 v69, 2, v67")
    I("v_mov_b32 v49, 0")
    I(f"ds_write2st64_b32 v69, v49, v49 offset0:{CNT//256} offset1:{CNT//256+1}")
    if SUBW:
        I("s_lshl_b32 s59, s3, 8")
        I("v_add_u32 v87, s59, v69")
        I(f"ds_write2st64_b32 v87, v49, v49 offset0:{CW//256} offset1:{PW//256}")
    I("s_cmp_eq_u32 s47, 0")
    I("s_cbranch_scc1 L_tw0")
    srd(24, 10, 11, NC * RECROW, WS_REC)
    if int(env("TBAR", "0")):
        I("s_barrier")
    if RPF:
        I("s_lshl_b32 s46, s39, 3")
        I("s_add_u32 s46, s46, s3")
        I(f"s_mul_i32 s46, s46, {RECROW}")
        I(f"s_mul_i32 s50, s38, {RECROW//8}")
        I("s_add_u32 s46, s46, s50")
        I(f"s_sub_u32 s46, s46, {(RPF*128 - RECROW//8)//2}")
        I("v_lshl_add_u32 v3, v67, 7, s46")
        I(f"s_bfm_b64 exec, {RPF}, 0")
        I("buffer_load_dword v126, v3, s[24:27], 0 offen")
        I("s_mov_b64 exec, -1")
    srd(28, 10, 11, 34 * 1024)
    I("v_lshlrev_b32 v70, 4, v67")
    for k in range(5):
        I(f"s_add_u32 s46, s3, {8*k}")
        if k == 4:
            I("s_min_u32 s46, s46, 33")
        I("s_lshl_b32 s46, s46, 10")
        I(f"s_add_u32 m0, s46, {WSTG}")
        I("s_nop 0")
        I("buffer_load_dwordx4 v70, s[28:31], s46 offen lds")
    srd(12, 4, 5, N * 128)
    if XPF:
        I("s_lshl_b32 s46, s39, 3")
        I("s_add_u32 s46, s46, s3")
        I(f"s_mul_i32 s46, s46, {XPF*128}")
        I("v_lshlrev_b32 v3, 7, v67")
        I(f"s_bfm_b64 exec, {XPF}, 0")
        I("buffer_load_dword v126, v3, s[12:15], s46 offen")
        I("s_mov_b64 exec, -1")
    srd(16, 6, 7, E * 32)
    I(f"s_mov_b32 s40, {EMASK}")
    I("s_movk_i32 s42, 80")
    I(f"s_mov_b32 s43, {NEGLOG2E}")
    I("s_lshl_b32 s37, s3, 13")
    I(f"s_add_u32 s37, s37, {STG}")
    I("v_and_b32 v3, 31, v67")
    I("v_lshrrev_b32 v4, 5, v67")
    I("v_bfe_u32 v5, v3, 1, 3")
    I("v_xor_b32 v5, v5, v4")
    I("v_lshlrev_b32 v5, 4, v5")
    I("v_lshl_add_u32 v5, v3, 7, v5")
    I(f"v_add_u32 v{VAX}, s37, v5")
    for s in range(1, 4):
        I(f"v_xor_b32 v6, {32*s}, v5")
        I(f"v_add_u32 v{VAX+s}, s37, v6")
    I("v_lshrrev_b32 v5, 4, v67")
    I("v_and_b32 v6, 7, v67")
    I("v_xor_b32 v5, v5, v6")
    I(f"v_lshlrev_b32 v{PC}, 4, v5")
    I(f"v_lshlrev_b32 v{H16}, 4, v4")
    I(f"s_mul_i32 s46, s3, {SMW}")
    I(f"s_add_u32 s46, s46, {SM}")
    I("v_lshrrev_b32 v5, 4, v3")
    I("v_lshlrev_b32 v5, 5, v5")
    I("v_bfe_u32 v6, v3, 2, 1")
    I("v_lshl_add_u32 v5, v6, 4, v5")
    I("v_bfe_u32 v6, v3, 3, 1")
    I("v_lshl_add_u32 v5, v6, 3, v5")
    I("v_and_b32 v6, 3, v3")
    I("v_lshl_add_u32 v5, v6, 1, v5")
    I(f"v_add_u32 v{K1C}, s46, v5")
    I(f"v_add_u32 v6, s46, v{H16}")
    I(f"v_mad_u32_u24 v{SRA}, v3, s42, v6")
    I("v_lshlrev_b32 v6, 5, v4")
    I(f"v_add_u32 v{OHC}, {OH}, v6")
    I(f"v_mov_b32 v{ONE}, 1.0")
    for i in range(4):
        I(f"v_mov_b32 v{8+i}, 0")
    I("v_add_u32 v7, s46, v70")
    I("ds_write_b128 v7, v[8:11]")
    I("v_cmp_gt_u32 vcc, 61, v67")
    I("s_and_saveexec_b64 s[50:51], vcc")
    I("ds_write_b128 v7, v[8:11] offset:1024")
    I("s_mov_b64 exec, -1")
    I(f"v_add_u32 v70, {WSTG}, v70")
    I("s_cmp_lg_u32 s3, 0")
    I("s_cbranch_scc1 L_noconst")
    I(f"v_add_u32 v7, {OH-WSTG}, v70")
    I("ds_write_b128 v7, v[8:11]")
    I("ds_write_b128 v7, v[8:11] offset:1024")
    I("s_mov_b32 exec_hi, 0")
    I("ds_write_b128 v7, v[8:11] offset:2048")
    I("v_bfe_u32 v6, v3, 2, 1")
    I("v_lshlrev_b32 v6, 5, v6")
    I("v_lshrrev_b32 v7, 4, v3")
    I("v_lshl_add_u32 v6, v7, 4, v6")
    I("v_and_b32 v7, 15, v5")
    I("v_add_u32 v6, v6, v7")
    I("v_mad_u32_u24 v6, v3, s42, v6")
    I(f"v_add_u32 v6, {OH}, v6")
    I(f"ds_write_b16_d16_hi v6, v{ONE}")
    I("s_mov_b64 exec, -1")
    L("L_noconst")
    I(f"s_waitcnt vmcnt({5 + (1 if XPF else 0) + (1 if RPF else 0)})")
    I("s_branch L_tw1")
    L("L_tw0")
    I("s_waitcnt vmcnt(0)")
    L("L_tw1")
    stamp(1)
    I("v_and_b32 v53, 0xffff, v48")
    I("v_lshrrev_b32 v52, 16, v48")
    I("v_subrev_u32 v54, s33, v66")
    I("s_sub_u32 s46, s34, s33")
    I("v_cmp_gt_u32 vcc, s46, v54")
    I("v_and_b32 v55, 1, v67")
    I("v_lshl_add_u32 v64, v55, 1, v53")
    I("v_cndmask_b32 v54, v53, v52, vcc")
    I("v_add_u32 v64, s45, v64")
    I(f"s_movk_i32 s46, {RECROW}")
    I("v_mul_u32_u24 v65, s46, v66")
    I("v_lshl_add_u32 v65, v64, 3, v65")
    I("v_sub_u32 v68, v54, v64")
    for i in range(8):
        I(f"v_cmpx_lt_i32 vcc, {4*i}, v68")
        I("s_nop 0")
        I("s_cbranch_execz L_rl")
        I(f"buffer_load_dwordx4 v[{4*i}:{4*i+3}], v65, s[24:27], 0 offen offset:{32*i}")
    L("L_rl")
    I("s_mov_b64 exec, -1")
    I("v_mov_b32 v71, 1")
    I("v_mov_b32 v72, 0x100")
    I("s_waitcnt lgkmcnt(0)")
    I("s_barrier")
    I("s_waitcnt vmcnt(0)")
    stamp(2)
    if PFR and not PFLATE:
        gen_pf()
    for r in range(16):
        I(f"v_lshrrev_b32 v{32+r}, 26, v{2*r+1}")
    for r in range(16):
        I(f"v_lshl_add_u32 v{32+r}, v{32+r}, 2, s59" if SUBW else f"v_lshlrev_b32 v{32+r}, 2, v{32+r}")
    for r in range(16):
        i, k = r // 2, r % 2
        I(f"v_cmpx_lt_i32 vcc, {4*i+k}, v68")
        if k == 0:
            I(f"s_mov_b32 s58, {r}")
            I("s_cbranch_execz L_rank_done")
        I(f"ds_add_rtn_u32 v{48+r}, v{32+r}, v71 offset:{CW if SUBW else CNT}")
    I("s_mov_b32 s58, 16")
    I("v_cmpx_lt_i32 vcc, 32, v68")
    I(f"ds_add_u32 v72, v71 offset:{CNT}")
    L("L_rank_done")
    I("s_mov_b64 exec, -1")
    if PFR and PFLATE == 1:
        gen_pf()
    if SUBW:
        I(f"ds_read_b32 v75, v87 offset:{CW}")
    I("v_and_b32 v73, 0xe0, v69")
    I("v_or_b32 v74, 28, v69")
    I("v_and_b32 v83, 7, v67")
    I("v_lshlrev_b32 v84, 5, v83")
    I("v_lshrrev_b32 v86, 3, v67")
    I("s_waitcnt lgkmcnt(0)")
    if SUBW:
        I(f"ds_add_u32 v69, v75 offset:{CNT}")
        for k in range(1, 8):
            I(f"s_cmp_gt_u32 s3, {7-k}")
            I("s_cbranch_scc1 L_pw_done")
            I(f"ds_add_u32 v87, v75 offset:{PW+256*k}")
        L("L_pw_done")
        if PFR and PFLATE == 2:
            gen_pf()
        I("s_waitcnt lgkmcnt(0)")
    I("s_barrier")
    stamp(3)
    I(f"ds_read_b32 v75, v69 offset:{CNT}")
    I(f"ds_read_b32 v76, v72 offset:{CNT}")
    if SUBW:
        I(f"ds_read_b32 v88, v87 offset:{PW}")
    I("s_waitcnt lgkmcnt(2)" if SUBW else "s_waitcnt lgkmcnt(1)")
    I("v_mov_b32 v77, v75")
    wave_scan(77)
    I("v_sub_u32 v78, v77, v75")
    I("v_readlane_b32 s60, v77, 63")
    I("ds_bpermute_b32 v79, v73, v78")
    I("ds_bpermute_b32 v80, v74, v77")
    I("v_cmp_eq_u32 vcc, v74, v69")
    I("s_waitcnt lgkmcnt(0)")
    I("v_readfirstlane_b32 s61, v76")
    I(f"s_cmp_le_u32 s60, {TLIM}")
    I("s_cbranch_scc1 L_fits")
    I("s_mov_b32 s34, s33")
    I("s_mov_b32 s61, 0")
    I("v_mov_b32 v68, 0")
    I("v_mov_b32 v78, 0")
    I("v_mov_b32 v79, 0")
    I("v_mov_b32 v80, 0")
    L("L_fits")
    I("v_sub_u32 v80, v80, v79")
    I("ds_bpermute_b32 v85, v84, v80")
    I("v_add_u32 v81, 0x5f, v80")
    I("v_and_b32 v81, 0xffe0, v81")
    I("v_sub_u32 v81, v81, v80")
    I("v_cndmask_b32 v81, 0, v81, vcc")
    I("v_mov_b32 v82, v81")
    wave_scan(82)
    I("v_sub_u32 v82, v82, v81")
    I("v_add_lshl_u32 v78, v78, v82, 3")
    I("v_lshl_add_u32 v86, v80, 3, v86")
    if SUBW:
        I("v_lshl_add_u32 v88, v88, 3, v78")
    I("s_waitcnt lgkmcnt(0)")
    for r in range(16):
        if r >= 8 and r % 2 == 0:
            I(f"s_cmp_le_u32 s58, {r}")
            I("s_cbranch_scc1 L_lk_done")
        I(f"ds_bpermute_b32 v{32+r}, v{32+r}, v{88 if SUBW else 78}")
    L("L_lk_done")
    I("s_cmp_eq_u32 s47, 0")
    I("s_cbranch_scc1 L_paired")
    I("v_lshl_add_u32 v85, v85, 3, v83")
    I("v_cmp_gt_u32 vcc, v85, v86")
    I("s_sub_u32 s64, 11, s3")
    I("s_cmp_lt_u32 s3, 4")
    I("s_cselect_b32 s64, s3, s64")
    I("s_mov_b32 s41, 0")
    for i in range(8):
        I(f"s_bfe_u32 s65, {'vcc_lo' if i < 4 else 'vcc_hi'}, {(8*(i%4)) | (8 << 16)}")
        I("s_bcnt1_i32_b32 s65, s65")
        I("s_cmp_eq_u32 s65, s64")
        I(f"s_cselect_b32 s41, {i}, s41")
    L("L_paired")
    I("s_lshl_b32 s46, s41, 3")
    I("v_readlane_b32 s62, v78, s46")
    I("v_readlane_b32 s63, v80, s46")
    I("s_waitcnt lgkmcnt(0)")
    for r in range(16):
        i, k = r // 2, r % 2
        I(f"v_cmpx_lt_i32 vcc, {4*i+k}, v68")
        I(f"v_lshl_add_u32 v{32+r}, v{48+r}, 3, v{32+r}")
        if k == 0:
            I("s_cbranch_execz L_scat_done")
        I(f"ds_write_b64 v{32+r}, v[{2*r}:{2*r+1}]")
    L("L_scat_done")
    I("s_mov_b64 exec, -1")
    I("s_cmp_eq_u32 s47, 0")
    I("s_cbranch_scc1 L_nowin")
    for i in range(16):
        I(f"v_mov_b32 v{80+i}, 0")
    I("v_and_b32 v72, 31, v67")
    I(f"v_lshl_add_u32 v72, v72, 7, v{H16}")
    I("s_lshl_b32 s46, s32, 3")
    I("s_add_u32 s46, s46, s41")
    I("s_mul_i32 s46, s46, 3125")
    I("s_add_u32 s49, s46, 127")
    I("s_lshr_b32 s49, s49, 7")
    I(f"s_add_u32 s44, s46, {3125+127}")
    I("s_lshr_b32 s44, s44, 7")
    I("s_sub_u32 s44, s44, s49")
    I("s_lshl_b32 s49, s49, 7")
    I("s_bfm_b32 s46, s44, 0")
    I("s_mov_b32 exec_lo, s46")
    I("s_mov_b32 exec_hi, s46")
    for s in range(4):
        I(f"buffer_load_dwordx4 {vr(80+4*s,4)}, v72, s[12:15], s49 offen offset:{32*s}")
    I("s_mov_b64 exec, -1")
    L("L_nowin")
    I("s_add_u32 s64, s63, 31")
    I("s_lshr_b32 s35, s64, 5")
    I("s_lshl_b32 s64, s35, 5")
    I("s_sub_u32 s64, s64, s63")
    I("s_lshl_b32 s65, s63, 3")
    I("s_add_u32 s65, s65, s62")
    I("v_lshl_add_u32 v72, v67, 3, s65")
    I("v_mov_b32 v74, 0xffffff00")
    I(f"v_mov_b32 v75, {EMASK}")
    I("ds_write_b64 v72, v[74:75]")
    I("v_cmp_gt_u32 vcc, s64, v67")
    I("s_and_saveexec_b64 s[50:51], vcc")
    I("ds_write_b64 v72, v[74:75] offset:512")
    I("s_mov_b64 exec, -1")
    I("v_lshrrev_b32 v72, 3, v67")
    I(f"v_lshl_add_u32 v{LSA}, v72, 5, s62")
    I("v_and_b32 v72, 7, v67")
    I("v_bfe_u32 v73, v67, 3, 2")
    I("v_lshl_add_u32 v72, v72, 2, v73")
    I(f"v_lshl_add_u32 v{LMA}, v72, 3, s62")
    I("s_waitcnt lgkmcnt(0)")
    I("s_barrier")
    stamp(4)
    put([f"ds_read2_b32 {vr(T,2)}, v{LSA} offset0:0 offset1:2", f"ds_read2_b32 {vr(T+2,2)}, v{LSA} offset0:4 offset1:6"])
    I(f"ds_read2_b32 {vr(T+4,2)}, v{LMA} offset0:1 offset1:65")
    I("s_waitcnt lgkmcnt(0)")
    put(x_dma(0))
    put(e_load(0, T + 4))
    put([f"ds_read2_b32 {vr(T,2)}, v{LSA} offset0:64 offset1:66", f"ds_read2_b32 {vr(T+2,2)}, v{LSA} offset0:68 offset1:70"])
    I("s_cmp_eq_u32 s47, 0")
    I("s_cbranch_scc1 L_noinit")
    for f in range(8):
        I(f"ds_read_b128 {vr(4*f,4)}, v70 offset:{1024*f}")
    I("s_waitcnt vmcnt(5) lgkmcnt(0)")
    for c in range(2):
        d = vr(32 + 16 * c, 16)
        for s in range(4):
            I(mfma(d, vr(80 + 4 * s, 4), vr((2 * s + c) * 4, 4), "0" if s == 0 else d))
    for f in range(8):
        I(f"ds_read_b128 {vr(4*f,4)}, v70 offset:{1024*(26+f)}")
    I("s_nop 7")
    for i in range(32):
        I(f"v_mul_f32 v{32+i}, s43, v{32+i}")
    I("s_waitcnt lgkmcnt(0)")
    for f in range(18):
        I(f"ds_read_b128 {ar(4*f,4)}, v70 offset:{1024*(8+f)}")
    k = 0
    for c in range(2):
        a = ar(A_AGG + 16 * c, 16)
        for s in range(4):
            I(mfma(a, vr(80 + 4 * s, 4), vr((2 * s + c) * 4, 4), "0" if s == 0 else a))
            for p in (k, k + 1):
                I(f"v_cvt_pk_bf16_f32 v{64+p}, v{32+2*p}, v{32+2*p+1}")
            k += 2
    for c in range(2):
        for p in range(8):
            I(f"v_accvgpr_write_b32 a{xa(p//4, c) + p%4}, v{64+8*c+p}")
    I("s_mov_b32 s47, 0")
    L("L_noinit")
    I("s_cmp_eq_u32 s35, 0")
    I("s_cbranch_scc1 L_round_end")
    I(f"v_and_b32 v{T+4}, 31, v{T+4}")
    I(f"v_mad_u32_u24 v{T+7}, v{T+4}, s42, v{OHC}")
    I(f"v_mad_u32_u24 v{SW}, v{T+4}, s42, v{K1C}")
    I(f"ds_write_b16_d16_hi v{SW}, v{ONE}")
    I("s_waitcnt lgkmcnt(0)")
    put(x_dma(1))
    put(e_load(1, T + 5))
    for i in range(8):
        I(f"v_mov_b32 v{G[1]+i}, 0")
    for i in range(8):
        I(f"v_mov_b32 v{S+i}, 0")
    I("s_waitcnt vmcnt(5)")
    put(a_reads(0))
    put([f"ds_read2_b32 {vr(T,2)}, v{LSA} offset0:128 offset1:130", f"ds_read2_b32 {vr(T+2,2)}, v{LSA} offset0:132 offset1:134"])
    I("s_mov_b32 s36, s35")
    if SYNC:
        I("s_lshl_b32 s46, s3, 2")
        I(f"s_add_u32 s46, s46, {CNT+384}")
        I("v_mov_b32 v125, s46")
        I("v_xor_b32 v126, 16, v125")
    if PRIO:
        I("s_setprio 3")
    elif YPRIO:
        I("s_cmp_lt_u32 s3, 4")
        I("s_cbranch_scc1 L_yp")
        I("s_setprio 1")
        L("L_yp")
    stamp(5)
    m0 = mfma_group(0, 0)
    I(m0[0])
    I("s_waitcnt lgkmcnt(0)")
    I(m0[1])
    put(x_dma(0))
    put(m0[2:])
    I("s_nop 7")
    I("s_branch L_p1_0")
    L("L_loop")
    INLOOP[0] = True
    nv = len(valu_group(0))
    pos = [2 + (k * (nv - 4)) // 13 for k in range(13)]
    def sched(mf, va, inserts):
        pend = []
        mi = 0
        for i, v in enumerate(va):
            if mi < len(mf) and i == pos[mi]:
                put(inserts.get(('b', mi), []))
                I(mf[mi])
                put(inserts.get(('m', mi), []))
                pend += inserts.get(('s', mi), [])
                mi += 1
            I(v)
            if pend:
                put([pend.pop(0)])
        assert mi == len(mf)
        put(pend)
    def nonop(lst): return [x for x in lst if x != "s_nop 0"] if "valu" not in DROP else lst
    for par in range(2):
        ins = {('b', 3): ["s_waitcnt lgkmcnt(2)"],
               ('m', 4): ["s_waitcnt lgkmcnt(0)"],
               ('s', 4): nonop(x_dma(par))}
        if PRIO:
            ins[('m', 0)] = prio_code(par)
        sched(agg_group(0) + mfma_group(0, par), valu_group(1), ins)
        L(f"L_p1_{par}")
        ins = {('m', 0): [f"ds_read2_b32 {vr(T+4,2)}, v{LMA} offset0:65 offset1:129"],
               ('s', 1): [f"ds_read_b128 {vr(S,4)}, v{SRA}",
                          f"ds_read_b128 {vr(S+4,4)}, v{SRA} offset:32",
                          f"ds_write_b16 v{SW}, v{ONE}"],
               ('m', 3): ["s_waitcnt lgkmcnt(3)"] + e_load(par, T + 5),
               ('s', 3): [f"v_and_b32 v{T+4}, 31, v{T+4}",
                          f"v_add_u32 v{LSA}, 256, v{LSA}",
                          f"v_mad_u32_u24 v{T+7}, v{T+4}, s42, v{OHC}",
                          f"v_mad_u32_u24 v{SW}, v{T+4}, s42, v{K1C}",
                          f"v_add_u32 v{LMA}, 256, v{LMA}",
                          f"ds_write_b16_d16_hi v{SW}, v{ONE}",
                          "s_sub_u32 s36, s36, 1"],
               ('m', 12): ["s_waitcnt vmcnt(5) lgkmcnt(0)"] + a_reads(par ^ 1) + [f"ds_read2_b32 {vr(T,2)}, v{LSA} offset0:128 offset1:130", f"ds_read2_b32 {vr(T+2,2)}, v{LSA} offset0:132 offset1:134"]}
        if SYNC:
            ins[('s', 6)] = ["v_mov_b32 v127, s36", "ds_write_b32 v125, v127", f"ds_read_b32 v{T+6}, v126"]
            ins[('m', 12)] += [f"v_readfirstlane_b32 s46, v{T+6}", "s_setprio 0", "s_cmp_lt_u32 s36, s46",
                               f"s_cbranch_scc1 L_sy_{par}", "s_setprio 1", f"L_sy_{par}:"]
        sched(agg_group(1) + mfma_group(1, par), valu_group(0), ins)
        I("s_cmp_eq_u32 s36, 0")
        I("s_cbranch_scc1 L_tail" if par == 0 else "s_cbranch_scc0 L_loop")
    L("L_tail")
    INLOOP[0] = False
    I(f"ds_write_b16 v{SW}, v{ONE}")
    I("s_nop 0")
    put(agg_group(0))
    put(valu_group(1))
    I("s_nop 1")
    put(agg_group(1))
    L("L_round_end")
    I("s_add_u32 s45, s45, 32")
    I("s_cmp_lg_u32 s61, 0")
    I("s_cbranch_scc1 L_next")
    I(f"s_cmp_ge_u32 s34, {NC}")
    I("s_cbranch_scc1 L_epi")
    I("s_mov_b32 s33, s34")
    I(f"s_add_u32 s34, s34, {CBLK}")
    I(f"s_min_u32 s34, s34, {NC}")
    I("s_mov_b32 s45, 0")
    L("L_next")
    I("v_mbcnt_lo_u32_b32 v67, -1, 0")
    I("v_mbcnt_hi_u32_b32 v67, -1, v67")
    I("s_waitcnt vmcnt(0) lgkmcnt(0)")
    I("s_barrier")
    I("s_branch L_round")
    L("L_epi")
    I("s_waitcnt vmcnt(0) lgkmcnt(0)")
    stamp(6)
    srd(28, 8, 9, N * 128)
    I("v_mbcnt_lo_u32_b32 v67, -1, 0")
    I("v_mbcnt_hi_u32_b32 v67, -1, v67")
    I("v_and_b32 v68, 31, v67")
    I("v_lshrrev_b32 v69, 5, v67")
    I("v_lshlrev_b32 v68, 2, v68")
    I("v_lshl_add_u32 v68, v69, 9, v68")
    I("v_add_u32 v68, s37, v68")
    I("v_lshlrev_b32 v70, 4, v67")
    I("v_add_u32 v71, s37, v70")
    I("s_nop 7")
    regs = list(range(13))
    for c in range(2):
        for i in regs:
            I(f"v_accvgpr_read_b32 v{16*c+i}, a{A_AGG+16*c+i}")
    ids = [16 * c + i for c in range(2) for i in regs]
    for r in ids:
        I(f"v_mul_f32 v{32+r}, s43, v{r}")
    for r in ids:
        I(f"v_exp_f32 v{32+r}, v{32+r}")
    for r in ids:
        I(f"v_add_f32 v{32+r}, 1.0, v{32+r}")
    for r in ids:
        I(f"v_rcp_f32 v{32+r}, v{32+r}")
    for r in ids:
        I(f"v_mul_f32 v{r}, v{r}, v{32+r}")
    for i in regs:
        I(f"v_cvt_pk_bf16_f32 v{32+i}, v{i}, v{16+i}")
    for i in regs:
        row = 8 * (i >> 2) + (i & 3)
        I(f"ds_write_b32 v68, v{32+i} offset:{row*128}")
    I("s_waitcnt lgkmcnt(0)")
    for k in range(4):
        I(f"ds_read_b128 {vr(4*k,4)}, v71 offset:{1024*k}")
    for k in range(3):
        I(f"s_waitcnt lgkmcnt({3-k})")
        I(f"buffer_store_dwordx4 {vr(4*k,4)}, v70, s[28:31], s49 offen offset:{1024*k} sc1")
    I("s_cmp_lt_u32 s44, 25")
    I("s_cbranch_scc1 L_k2_fin")
    I("s_waitcnt lgkmcnt(0)")
    I("s_mov_b64 exec, 0xff")
    I(f"buffer_store_dwordx4 {vr(12,4)}, v70, s[28:31], s49 offen offset:3072 sc1")
    L("L_k2_fin")
    if STAMP:
        I("s_waitcnt vmcnt(0)")
        stamp(7)
        srd(28, 10, 11, 0x100000, 0x1000000)
        I("s_mov_b64 exec, 1")
        I("s_lshl_b32 s46, s2, 3")
        I("s_add_u32 s46, s46, s3")
        I("s_lshl_b32 s46, s46, 6")
        I("v_mov_b32 v0, 0")
        for k in range(8):
            I(f"v_mov_b32 v1, s{70+2*k}")
            I(f"buffer_store_dword v1, v0, s[28:31], s46 offen offset:{4*k}")
        I("v_mov_b32 v1, s35")
        I("buffer_store_dword v1, v0, s[28:31], s46 offen offset:32")
        I("s_getreg_b32 s47, hwreg(HW_REG_XCC_ID)")
        I("v_mov_b32 v1, s47")
        I("buffer_store_dword v1, v0, s[28:31], s46 offen offset:36")
        I("s_getreg_b32 s47, hwreg(HW_REG_HW_ID)")
        I("v_mov_b32 v1, s47")
        I("buffer_store_dword v1, v0, s[28:31], s46 offen offset:40")
        I("s_memrealtime s[50:51]")
        I("s_waitcnt lgkmcnt(0)")
        I("v_mov_b32 v1, s50")
        I("buffer_store_dword v1, v0, s[28:31], s46 offen offset:44")
        I("v_mov_b32 v1, s86")
        I("buffer_store_dword v1, v0, s[28:31], s46 offen offset:48")
    L("L_k2_end")
    I("s_endpgm")

def kd(name, vgpr, sgpr, accum):
    emit(f".amdhsa_kernel {name}")
    emit(f"  .amdhsa_next_free_vgpr {vgpr}")
    emit(f"  .amdhsa_next_free_sgpr {sgpr}")
    emit(f"  .amdhsa_accum_offset {accum}")
    emit("  .amdhsa_group_segment_fixed_size 0")
    emit("  .amdhsa_kernarg_size 80")
    emit("  .amdhsa_user_sgpr_count 2")
    emit("  .amdhsa_user_sgpr_kernarg_segment_ptr 1")
    emit("  .amdhsa_system_sgpr_workgroup_id_x 1")
    emit(".end_amdhsa_kernel")

DOC = """
egc_bin_kernel : one workgroup per 3200-edge chunk; LDS counting sort of the edges by destination bucket
                 (256 buckets of 8 windows, a window = 24/25 nodes); writes 8-byte records + a segment table
                 to d_ws, and the weight matrices as MFMA B-operand fragments (gate parts times -log2 e).
egc_main_kernel: one workgroup per bucket, one wave per window. Builds per-window edge lists in LDS ordered by
                 source range (keeps the gathered x rows L2 resident), then per 32-edge tile:
                 gathers x[src] rows (LDS-DMA) and e_attr rows, G = gate pre-activation and H = x[src] @ v_w by MFMA
                 (x[dst] part through a one-hot operand), msg = H / (1 + 2^G), segment sum by a one-hot MFMA into
                 accumulators that start at x @ u_w; SiLU and store. Extra rounds handle any skew of dst.
"""

K0 = int(env("K0", "0"))
def gen_k0():
    emit(".globl egc_warm_kernel")
    emit(".p2align 8")
    emit(".type egc_warm_kernel,@function")
    L("egc_warm_kernel")
    I("s_cmp_ge_u32 s2, 64")
    I("s_cbranch_scc1 L_k0_end")
    I("s_load_dwordx8 s[4:11], s[0:1], 0")
    I("s_load_dwordx2 s[12:13], s[0:1], 56")
    I("s_load_dwordx2 s[14:15], s[0:1], 72")
    I("s_lshr_b32 s3, s2, 3")
    I("v_lshlrev_b32 v1, 16, v0")
    I("s_lshl_b32 s20, s3, 22")
    I("s_waitcnt lgkmcnt(0)")
    srd(16, 6, 7, E * 32)
    I("buffer_load_dword v2, v1, s[16:19], s20 offen")
    srd(24, 14, 15, WS_REC + NC * RECROW)
    I("buffer_load_dword v3, v1, s[24:27], s20 offen")
    srd(28, 4, 5, N * 128)
    I("buffer_load_dword v4, v1, s[28:31], s20 offen")
    srd(32, 12, 13, N * 128)
    I("buffer_load_dword v5, v1, s[32:35], s20 offen")
    srd(36, 8, 9, E * 4)
    I("buffer_load_dword v6, v1, s[36:39], s20 offen")
    srd(40, 10, 11, E * 4)
    I("buffer_load_dword v7, v1, s[40:43], s20 offen")
    L("L_k0_end")
    I("s_endpgm")

def main():
    emit(HEADER.rstrip("\n"))
    if K0:
        emit("; @launch kernel=egc_warm_kernel grid=(64,1,1) block=(64,1,1) lds=0")
    emit(f"; @launch kernel=egc_bin_kernel grid=({NC},1,1) block=(1024,1,1) lds={K1_LDS}")
    emit(f"; @launch kernel=egc_main_kernel grid=(256,1,1) block=(512,1,1) lds={K2_LDS}")
    for ln in DOC.strip("\n").split("\n"):
        emit("; " + ln)
    emit('.amdgcn_target "amdgcn-amd-amdhsa--gfx950"')
    emit(".text")
    if K0:
        gen_k0()
    gen_k1()
    gen_k2()
    emit('.section .rodata,"a"')
    emit(".p2align 6")
    if K0:
        kd("egc_warm_kernel", 8, 48, 8)
        emit(".p2align 6")
    kd("egc_bin_kernel", 56, 72, 56)
    emit(".p2align 6")
    kd("egc_main_kernel", 248, 96, 128)
    path = sys.argv[1] if len(sys.argv) > 1 else "v10.s"
    open(path, "w").write("\n".join(out) + "\n")

main()
```

```python
import sys, os

N = 50000; E = 800000
NB = 256; CH = 3200; NC = 250
WS_TAB = 0x10000; WS_REC = 0x400000; RECROW = CH * 8
MW = 175921861
NEGLOG2E = 0xBFB8AA3B
def env(k, d): return os.environ.get(k, d)
STAMP = int(env("STAMP", "0"))
TLBPF = int(env("TLBPF", "65536"))
PSH = int(env("PSH", "13"))
SUBW = int(env("SUBW", "1"))
SYNC = int(env("SYNC", "1"))
PFR = int(env("PFR", "4"))
PFP = int(env("PFP", "1"))
XPF = int(env("XPF", "0"))
RPF = int(env("RPF", "0"))
PRIO = int(env("PRIO", "0"))
YPRIO = int(env("YPRIO", "1"))
PTH = [int(x) for x in env("PTH", "10,7,4").split(",")]
EPOL = env("EPOL", "")
NOMEM = int(env("NOMEM", "0"))
DROP = env("DROP", "").split(",")
INLOOP = [False]

out = []
def emit(s=""): out.append(s)
def I(s):
    if INLOOP[0]:
        op = s.split()[0]
        if "mfma" in DROP and op.startswith("v_mfma"): return
        if "valu" in DROP and op in ("v_exp_f32", "v_rcp_f32", "v_mul_f32", "v_add_f32", "v_cvt_pk_bf16_f32"): return
    out.append("    " + s)
def L(s): out.append(s + ":")
def put(lst):
    for x in lst:
        emit(x) if x.endswith(":") else I(x)
def stamp(k):
    if STAMP:
        I(f"s_memtime s[{70+2*k}:{71+2*k}]")
        I("s_waitcnt lgkmcnt(0)")

HEADER = """; Kernarg layout for this problem (80 bytes, ptrs only, base s[0:1]):
"""

def srd(d, lo, hi, size, add=0):
    if add:
        I(f"s_add_u32 s{d}, s{lo}, {add}")
        I(f"s_addc_u32 s{d+1}, s{hi}, 0")
    else:
        I(f"s_mov_b32 s{d}, s{lo}")
        I(f"s_mov_b32 s{d+1}, s{hi}")
    I(f"s_mov_b32 s{d+2}, {size}")
    I(f"s_mov_b32 s{d+3}, 0x00020000")

def wave_scan(r):
    for st in ["row_shr:1 row_mask:0xf", "row_shr:2 row_mask:0xf", "row_shr:4 row_mask:0xf", "row_shr:8 row_mask:0xf",
               "row_bcast:15 row_mask:0xa", "row_bcast:31 row_mask:0xc"]:
        I("s_nop 1")
        I(f"v_add_u32_dpp v{r}, v{r}, v{r} {st} bank_mask:0xf")

K1_HIST = 0
K1_STG = 1024
K1_LDS = K1_STG + RECROW

def gen_k1():
    emit(".globl egc_bin_kernel")
    emit(".p2align 8")
    emit(".type egc_bin_kernel,@function")
    L("egc_bin_kernel")
    I(f"s_cmp_ge_u32 s2, {NC}")
    I("s_cbranch_scc1 L_k1_end")
    if STAMP:
        I("s_memrealtime s[68:69]")
    I("s_load_dwordx4 s[4:7], s[0:1], 16")
    I("s_load_dwordx4 s[8:11], s[0:1], 32")
    I("s_load_dwordx2 s[12:13], s[0:1], 48")
    I("s_load_dwordx2 s[14:15], s[0:1], 72")
    I("v_and_b32 v1, 0xff, v0")
    I("v_lshlrev_b32 v1, 2, v1")
    I("v_mov_b32 v2, 0")
    I(f"ds_write_b32 v1, v2 offset:{K1_HIST}")
    I("v_lshlrev_b32 v4, 4, v0")
    I("v_lshrrev_b32 v5, 6, v0")
    I(f"s_mul_i32 s32, s2, {CH*4}")
    I("v_readfirstlane_b32 s3, v5")
    I(f"s_mov_b32 s33, {MW}")
    I("s_movk_i32 s36, 3125")
    I(f"s_mul_i32 s37, s2, {CH*32}")
    I("s_waitcnt lgkmcnt(0)")
    srd(16, 4, 5, E * 4)
    srd(20, 6, 7, E * 4)
    srd(24, 14, 15, 0x1000000)
    if STAMP:
        srd(64, 14, 15, 0x1000, 0x1100000)
        I("s_lshl_b32 s62, s2, 2")
        I("v_mov_b32 v40, s68")
        I("v_lshlrev_b32 v41, 12, v0")
        I("buffer_store_dword v40, v41, s[64:67], s62 offen")
    I(f"v_cmp_gt_u32 vcc, {CH//4}, v0")
    I("s_and_saveexec_b64 s[34:35], vcc")
    I("s_cbranch_execz L_k1_noload")
    I("buffer_load_dwordx4 v[8:11], v4, s[20:23], s32 offen")
    I("buffer_load_dwordx4 v[12:15], v4, s[16:19], s32 offen")
    L("L_k1_noload")
    I("s_mov_b64 exec, s[34:35]")
    if TLBPF:
        I("s_cmp_lg_u32 s3, 13")
        I("s_cbranch_scc1 L_k1_notlb")
        I("s_load_dwordx4 s[52:55], s[0:1], 0")
        I("s_load_dwordx2 s[56:57], s[0:1], 56")
        if int(env("WSPF", "0")):
            I(f"s_mul_i32 s62, s2, {RECROW}")
            I(f"s_add_u32 s62, s62, {WS_REC}")
            I("v_and_b32 v45, 1, v0")
            I(f"v_mul_u32_u24 v45, {RECROW-4}, v45")
            I("s_mov_b64 exec, 3")
            I("buffer_load_dword v46, v45, s[24:27], s62 offen")
            I(f"s_mov_b32 s62, {WS_TAB}")
            I("buffer_load_dword v47, v45, s[24:27], s62 offen")
            I("s_mov_b64 exec, -1")
        I("s_lshr_b32 s62, s2, 3")
        I("v_and_b32 v40, 63, v0")
        ne_ = -(-(E * 32) // (TLBPF * 32)); nx_ = -(-(N * 128) // (TLBPF * 32))
        I(f"s_mul_i32 s63, s62, {ne_ * TLBPF}")
        I(f"s_mul_i32 s62, s62, {nx_ * TLBPF}")
        I(f"s_mov_b32 s58, {TLBPF}")
        I("v_mul_lo_u32 v41, v40, s58")
        I("s_waitcnt lgkmcnt(0)")
        srd(64, 54, 55, E * 32)
        I(f"s_bfm_b64 exec, {ne_}, 0")
        I("buffer_load_dword v42, v41, s[64:67], s63 offen")
        srd(64, 52, 53, N * 128)
        I(f"s_bfm_b64 exec, {nx_}, 0")
        I("buffer_load_dword v43, v41, s[64:67], s62 offen")
        srd(64, 56, 57, N * 128)
        I("buffer_load_dword v44, v41, s[64:67], s62 offen")
        I("s_mov_b64 exec, -1")
        L("L_k1_notlb")
    I("s_mov_b32 s40, 0")
    I("s_cmp_lg_u32 s3, 15")
    I("s_cbranch_scc1 L_k1_nowf")
    I("s_cmp_ge_u32 s2, 34")
    I("s_cbranch_scc1 L_k1_nowf")
    I("s_mov_b32 s40, 1")
    I("s_mov_b32 s28, s12")
    I("s_mov_b32 s29, s13")
    I(f"s_mov_b32 s30, {144*128}")
    I("s_mov_b32 s31, 0x00020000")
    I("s_mov_b32 s41, s2")
    I("s_cmp_lt_u32 s2, 18")
    I("s_cbranch_scc1 L_k1_wsel")
    I("s_mov_b32 s28, s10")
    I("s_mov_b32 s29, s11")
    I(f"s_mov_b32 s30, {64*128}")
    I("s_sub_u32 s41, s2, 18")
    I("s_cmp_lt_u32 s2, 26")
    I("s_cbranch_scc1 L_k1_wsel")
    I("s_mov_b32 s28, s8")
    I("s_mov_b32 s29, s9")
    I("s_sub_u32 s41, s2, 26")
    L("L_k1_wsel")
    I("s_lshr_b32 s42, s41, 1")
    I("s_lshl_b32 s42, s42, 11")
    I("s_and_b32 s43, s41, 1")
    I("s_lshl_b32 s43, s43, 1")
    I("s_add_u32 s42, s42, s43")
    I("v_and_b32 v40, 31, v0")
    I("v_lshlrev_b32 v40, 2, v40")
    I("v_and_b32 v41, 32, v0")
    I("v_lshl_add_u32 v40, v41, 5, v40")
    for j in range(8):
        I(f"buffer_load_ushort v{44+j}, v40, s[28:31], s42 offen offset:{128*j}")
    L("L_k1_nowf")
    I("s_barrier")
    I("s_and_saveexec_b64 s[34:35], vcc")
    I("s_cbranch_execz L_k1_nohist")
    I("v_mov_b32 v6, 1")
    I("v_mov_b32 v5, 0x7f")
    I("v_lshl_add_u32 v7, v0, 7, s37")
    I("s_waitcnt vmcnt(1)")
    for i in range(4):
        I(f"v_mul_hi_u32 v{16+i}, v{8+i}, s33")
    for i in range(4):
        I(f"v_lshrrev_b32 v{20+i}, 3, v{16+i}")
    for i in range(4):
        I(f"v_lshlrev_b32 v{20+i}, 2, v{20+i}")
    for i in range(4):
        I(f"ds_add_rtn_u32 v{24+i}, v{20+i}, v6 offset:{K1_HIST}")
    for i in range(4):
        I(f"v_mad_u32_u24 v{28+i}, v{16+i}, s36, v5")
    for i in range(4):
        I(f"v_lshrrev_b32 v{28+i}, 7, v{28+i}")
    for i in range(4):
        I(f"v_sub_u32 v{28+i}, v{8+i}, v{28+i}")
    for i in range(4):
        I(f"v_lshlrev_b32 v{16+i}, 29, v{16+i}")
    for i in range(4):
        I(f"v_or3_b32 v{33+2*i}, v{16+i}, v7, v{28+i}")
    for i in range(1, 4):
        I(f"v_add_u32 v{33+2*i}, {32*i}, v{33+2*i}")
    I("s_waitcnt vmcnt(0)")
    for i in range(4):
        I(f"v_lshlrev_b32 v{32+2*i}, 7, v{12+i}")
    if int(env("PEQ", "1")):
        for i in range(4):
            I(f"v_mul_u32_u24 v{12+i}, 0x53e, v{12+i}")
        for i in range(4):
            I(f"v_bfe_u32 v{12+i}, v{12+i}, 23, 3")
    else:
        for i in range(4):
            I(f"v_bfe_u32 v{12+i}, v{12+i}, {PSH}, 3")
    if int(env("ROT", "1")):
        for i in range(4):
            I(f"v_lshrrev_b32 v{8+i}, 7, v{20+i}")
        for i in range(4):
            I(f"v_sub_u32 v{12+i}, v{12+i}, v{8+i}")
        for i in range(4):
            I(f"v_and_b32 v{12+i}, 7, v{12+i}")
    if int(env("MATE", "0")):
        for i in range(4):
            I(f"v_lshrrev_b32 v{8+i}, 7, v{20+i}")
        for (j, i, sr) in ((1, 0, 48), (2, 1, 50), (2, 0, 52), (3, 2, 54), (3, 1, 56), (3, 0, 58)):
            I(f"v_cmp_eq_u32 s[{sr}:{sr+1}], v{8+j}, v{8+i}")
        for (j, i, sr) in ((1, 0, 48), (2, 1, 50), (2, 0, 52), (3, 2, 54), (3, 1, 56), (3, 0, 58)):
            I(f"v_cndmask_b32 v{12+j}, v{12+j}, v{12+i}, s[{sr}:{sr+1}]")
    for i in range(4):
        I(f"v_lshl_or_b32 v{33+2*i}, v{12+i}, 26, v{33+2*i}")
    L("L_k1_nohist")
    I("s_mov_b64 exec, s[34:35]")
    I("s_waitcnt lgkmcnt(0)")
    I("s_barrier")
    I("s_cmp_lg_u32 s3, 14")
    I("s_cbranch_scc1 L_k1_noscan")
    I("v_and_b32 v1, 63, v0")
    I("v_lshlrev_b32 v2, 4, v1")
    I(f"ds_read_b128 v[8:11], v2 offset:{K1_HIST}")
    I("v_lshrrev_b32 v3, 2, v1")
    I("v_lshlrev_b32 v3, 14, v3")
    I("v_and_b32 v1, 3, v1")
    I("v_lshl_add_u32 v3, v1, 4, v3")
    I("s_lshl_b32 s46, s2, 6")
    I(f"s_add_u32 s46, s46, {WS_TAB}")
    I("s_waitcnt lgkmcnt(0)")
    I("v_add_u32 v12, v8, v9")
    I("v_add_u32 v13, v12, v10")
    I("v_add_u32 v14, v13, v11")
    I("v_mov_b32 v15, v14")
    wave_scan(15)
    I("v_sub_u32 v16, v15, v14")
    I("v_add_u32 v17, v16, v8")
    I("v_add_u32 v18, v16, v12")
    I("v_add_u32 v19, v16, v13")
    I(f"ds_write_b128 v2, v[16:19] offset:{K1_HIST}")
    I("v_lshl_or_b32 v8, v17, 16, v16")
    I("v_lshl_or_b32 v9, v18, 16, v17")
    I("v_lshl_or_b32 v10, v19, 16, v18")
    I("v_lshl_or_b32 v11, v15, 16, v19")
    I("buffer_store_dwordx4 v[8:11], v3, s[24:27], s46 offen sc1")
    I("s_waitcnt lgkmcnt(0)")
    L("L_k1_noscan")
    I("s_barrier")
    I("s_and_saveexec_b64 s[34:35], vcc")
    I("s_cbranch_execz L_k1_noscat")
    for i in range(4):
        I(f"ds_read_b32 v{28+i}, v{20+i} offset:{K1_HIST}")
    for i in range(4):
        I(f"s_waitcnt lgkmcnt({3-i})")
        I(f"v_add_lshl_u32 v{28+i}, v{28+i}, v{24+i}, 3")
    for i in range(4):
        I(f"ds_write_b64 v{28+i}, v[{32+2*i}:{33+2*i}] offset:{K1_STG}")
    L("L_k1_noscat")
    I("s_mov_b64 exec, s[34:35]")
    I("s_waitcnt lgkmcnt(0)")
    I("s_barrier")
    I(f"s_mul_i32 s46, s2, {RECROW}")
    I(f"s_add_u32 s46, s46, {WS_REC}")
    I(f"ds_read_b128 v[16:19], v4 offset:{K1_STG}")
    I(f"s_cmp_ge_u32 s3, {(RECROW//16 - 1024) // 64}")
    I("s_cbranch_scc1 L_k1_no2")
    I(f"ds_read_b128 v[12:15], v4 offset:{K1_STG + 16384}")
    I("s_add_u32 s47, s46, 16384")
    I("s_waitcnt lgkmcnt(0)")
    I("buffer_store_dwordx4 v[12:15], v4, s[24:27], s47 offen sc1")
    L("L_k1_no2")
    I("s_waitcnt lgkmcnt(0)")
    I("buffer_store_dwordx4 v[16:19], v4, s[24:27], s46 offen sc1")
    I("s_cmp_eq_u32 s40, 0")
    I("s_cbranch_scc1 L_k1_end")
    I("s_waitcnt vmcnt(0)")
    I("s_sub_u32 s46, s2, 8")
    I("s_cmp_lt_u32 s46, 10")
    I(f"s_cselect_b32 s47, {NEGLOG2E}, 1.0")
    for j in range(8):
        I(f"v_lshlrev_b32 v{44+j}, 16, v{44+j}")
    for j in range(8):
        I(f"v_mul_f32 v{44+j}, s47, v{44+j}")
    for j in range(4):
        I(f"v_cvt_pk_bf16_f32 v{52+j}, v{44+2*j}, v{45+2*j}")
    I("v_and_b32 v40, 63, v0")
    I("v_lshlrev_b32 v40, 4, v40")
    I("s_lshl_b32 s46, s2, 10")
    I("buffer_store_dwordx4 v[52:55], v40, s[24:27], s46 offen sc1")
    L("L_k1_end")
    I("s_endpgm")

LCAP = 4352
TLIM = 3584
CBLK = 100
LIST_S = 0
LIST_M = LIST_S + LCAP * 4
CNT = LIST_M + LCAP * 4
CW = CNT + 512
PW = CW + 2048
WSTG = PW + 2048
SM = WSTG + 34 * 1024
SMW = 2000
OH = SM + 16576
STG = OH + 2560
STGW = 8192
K2_LDS = STG + 8 * STGW
assert CNT % 256 == 0 and STG % 16 == 0 and K2_LDS <= 163840
EMASK = 0x01FFFFE0

G = [0, 32]; H = [16, 48]
AX = 64; ST = 80; S = 88; EB = [96, 100]; T = 104
VAX = 112; PC = 116; H16 = 117; LSA = 118; LMA = 119; K1C = 120; SRA = 121; OHC = 122; SW = 123; ONE = 124
A_WB = 0; A_WV = 40; A_XA = 72; A_AGG = 88

def wb(s, c): return A_WB + (2 * s + c) * 4
def wv(s, c): return A_WV + (2 * s + c) * 4
def xa(s, c): return A_XA + (2 * s + c) * 4
def vr(b, n): return f"v[{b}:{b+n-1}]"
def ar(b, n): return f"a[{b}:{b+n-1}]"
def mfma(d, a, b, c): return f"v_mfma_f32_32x32x16_bf16 {d}, {a}, {b}, {c}"

def mfma_group(c, par):
    m = []
    g = vr(G[c], 16); h = vr(H[c], 16)
    m.append(mfma(g, vr(EB[par], 4), ar(wb(4, c), 4), "0"))
    for s in range(2):
        m.append(mfma(g, vr(ST + 4 * s, 4), ar(xa(s, c), 4), g))
    for s in range(4):
        m.append(mfma(g, vr(AX + 4 * s, 4), ar(wb(s, c), 4), g))
    for s in range(4):
        m.append(mfma(h, vr(AX + 4 * s, 4), ar(wv(s, c), 4), "0" if s == 0 else h))
    return m

def valu_group(c):
    g = G[c]; h = H[c]
    stages = [
        lambda i: f"v_exp_f32 v{g+i}, v{g+i}",
        lambda i: f"v_add_f32 v{g+i}, 1.0, v{g+i}",
        lambda i: f"v_rcp_f32 v{g+i}, v{g+i}",
        lambda i: f"v_mul_f32 v{g+i}, v{g+i}, v{h+i}",
    ]
    v = []
    D = 2
    nst = len(stages)
    for step in range(16 + D * nst + 2):
        for k in range(nst):
            i = step - D * k
            if 0 <= i < 16:
                v.append(stages[k](i))
        i = step - D * nst
        if 0 <= i < 16 and i % 2 == 1:
            v.append(f"v_cvt_pk_bf16_f32 v{g+i//2}, v{g+i-1}, v{g+i}")
    return v

def agg_group(c):
    a = ar(A_AGG + 16 * c, 16)
    return [mfma(a, vr(S, 4), vr(G[c], 4), a), mfma(a, vr(S + 4, 4), vr(G[c] + 4, 4), a)]

def x_dma(par):
    r = []
    if NOMEM:
        for k in range(4):
            r.append(f"v_and_b32 v{T+k}, 0x3f80, v{T+k}")
    r.append(f"v_add_u32 v{T+0}, v{PC}, v{T+0}")
    r.append(f"v_xad_u32 v{T+1}, v{PC}, 64, v{T+1}")
    r.append(f"v_add_u32 v{T+2}, v{PC}, v{T+2}")
    r.append(f"v_xad_u32 v{T+3}, v{PC}, 64, v{T+3}")
    for k in range(4):
        r.append(f"s_add_u32 m0, s37, {par*4096 + k*1024}")
        r.append("s_nop 0")
        r.append(f"buffer_load_dwordx4 v{T+k}, s[12:15], 0 offen lds")
    return r

def e_load(par, meta):
    r = []
    if NOMEM:
        r.append(f"v_and_b32 v{meta}, 0x3fff, v{meta}")
    r.append(f"v_and_or_b32 v{T+6}, v{meta}, s40, v{H16}")
    r.append(f"buffer_load_dwordx4 {vr(EB[par],4)}, v{T+6}, s[16:19], 0 offen" + EPOL)
    return r

def a_reads(par):
    r = []
    for s in range(2):
        r.append(f"ds_read_b128 {vr(ST+4*s,4)}, v{T+7} offset:{16*s}")
    for s in range(4):
        r.append(f"ds_read_b128 {vr(AX+4*s,4)}, v{VAX+s} offset:{par*4096}")
    return r

def prio_code(par):
    r = []
    for lim, p in zip(PTH, (2, 1, 0)):
        r += [f"s_cmp_lt_u32 s36, {lim}", f"s_cbranch_scc0 L_pr_done_{par}", f"s_setprio {p}"]
    return r + [f"L_pr_done_{par}:"]

PFX = int(env("PFX", "0")); PFLATE = int(env("PFLATE", "0"))
def gen_pf():
    if int(env("WPF", "1")):
        I("s_lshl_b32 s46, s32, 3")
        I("s_add_u32 s46, s46, s3")
        I("s_mul_i32 s46, s46, 3125")
        I("s_add_u32 s46, s46, 127")
        I("s_lshr_b32 s46, s46, 7")
        I("s_lshl_b32 s46, s46, 7")
        I("v_lshlrev_b32 v89, 7, v67")
        I("s_bfm_b64 exec, 25, 0")
        I("buffer_load_dword v126, v89, s[12:15], s46 offen")
        I("s_mov_b64 exec, -1")
    for r in range(PFR):
        i, k = r // 2, r % 2
        I(f"v_bfe_u32 v89, v{2*r+1}, 26, 3")
        I(f"v_cmp_gt_u32 vcc, {PFP}, v89")
        I(f"v_cmp_lt_i32 s[50:51], {4*i+k}, v68")
        I(f"v_and_b32 v90, s40, v{2*r+1}")
        if PFX:
            I(f"v_and_b32 v91, 0x7fff80, v{2*r}")
        I("s_and_b64 exec, vcc, s[50:51]")
        I(f"s_cbranch_execz L_pf_{r}")
        I("buffer_load_dword v127, v90, s[16:19], 0 offen")
        if PFX:
            I("buffer_load_dword v126, v91, s[12:15], 0 offen")
        L(f"L_pf_{r}")
        I("s_mov_b64 exec, -1")

def gen_k2():
    emit(".globl egc_main_kernel")
    emit(".p2align 8")
    emit(".type egc_main_kernel,@function")
    L("egc_main_kernel")
    I("s_cmp_ge_u32 s2, 256")
    I("s_cbranch_scc1 L_k2_end")
    I("s_load_dwordx2 s[10:11], s[0:1], 72")
    I("s_load_dwordx4 s[4:7], s[0:1], 0")
    I("s_load_dwordx2 s[8:9], s[0:1], 56")
    I("s_and_b32 s38, s2, 7")
    I("s_lshr_b32 s39, s2, 3")
    I("s_lshl_b32 s32, s38, 5")
    I("s_add_u32 s32, s32, s39")
    stamp(0)
    if STAMP:
        I("s_memrealtime s[86:87]")
    I("v_lshrrev_b32 v1, 6, v0")
    I("v_and_b32 v67, 63, v0")
    I("v_readfirstlane_b32 s3, v1")
    I("s_mov_b32 s33, 0")
    I(f"s_movk_i32 s34, {NC}")
    I("s_mov_b32 s45, 0")
    I("s_mov_b32 s47, 1")
    I("s_lshr_b32 s48, s32, 4")
    I("s_lshl_b32 s48, s48, 14")
    I("s_and_b32 s46, s32, 15")
    I("s_lshl_b32 s46, s46, 2")
    I("s_add_u32 s48, s48, s46")
    I(f"s_add_u32 s48, s48, {WS_TAB}")
    I("s_waitcnt lgkmcnt(0)")
    I("s_add_u32 s20, s10, s48")
    I("s_addc_u32 s21, s11, 0")
    I(f"s_mov_b32 s22, {(NC-1)*64+4}")
    I("s_mov_b32 s23, 0x00020000")
    L("L_round")
    I("s_lshl_b32 s46, s3, 5")
    I("v_lshrrev_b32 v66, 1, v67")
    I("v_add_u32 v66, s46, v66")
    I("v_lshlrev_b32 v65, 6, v66")
    I("buffer_load_dword v48, v65, s[20:23], 0 offen")
    I("v_lshlrev_b32 v69, 2, v67")
    I("v_mov_b32 v49, 0")
    I(f"ds_write2st64_b32 v69, v49, v49 offset0:{CNT//256} offset1:{CNT//256+1}")
    if SUBW:
        I("s_lshl_b32 s59, s3, 8")
        I("v_add_u32 v87, s59, v69")
        I(f"ds_write2st64_b32 v87, v49, v49 offset0:{CW//256} offset1:{PW//256}")
    I("s_cmp_eq_u32 s47, 0")
    I("s_cbranch_scc1 L_tw0")
    srd(24, 10, 11, NC * RECROW, WS_REC)
    if int(env("TBAR", "0")):
        I("s_barrier")
    if RPF:
        I("s_lshl_b32 s46, s39, 3")
        I("s_add_u32 s46, s46, s3")
        I(f"s_mul_i32 s46, s46, {RECROW}")
        I(f"s_mul_i32 s50, s38, {RECROW//8}")
        I("s_add_u32 s46, s46, s50")
        I(f"s_sub_u32 s46, s46, {(RPF*128 - RECROW//8)//2}")
        I("v_lshl_add_u32 v3, v67, 7, s46")
        I(f"s_bfm_b64 exec, {RPF}, 0")
        I("buffer_load_dword v126, v3, s[24:27], 0 offen")
        I("s_mov_b64 exec, -1")
    srd(28, 10, 11, 34 * 1024)
    I("v_lshlrev_b32 v70, 4, v67")
    for k in range(5):
        I(f"s_add_u32 s46, s3, {8*k}")
        if k == 4:
            I("s_min_u32 s46, s46, 33")
        I("s_lshl_b32 s46, s46, 10")
        I(f"s_add_u32 m0, s46, {WSTG}")
        I("s_nop 0")
        I("buffer_load_dwordx4 v70, s[28:31], s46 offen lds")
    srd(12, 4, 5, N * 128)
    if XPF:
        I("s_lshl_b32 s46, s39, 3")
        I("s_add_u32 s46, s46, s3")
        I(f"s_mul_i32 s46, s46, {XPF*128}")
        I("v_lshlrev_b32 v3, 7, v67")
        I(f"s_bfm_b64 exec, {XPF}, 0")
        I("buffer_load_dword v126, v3, s[12:15], s46 offen")
        I("s_mov_b64 exec, -1")
    srd(16, 6, 7, E * 32)
    I(f"s_mov_b32 s40, {EMASK}")
    I("s_movk_i32 s42, 80")
    I(f"s_mov_b32 s43, {NEGLOG2E}")
    I("s_lshl_b32 s37, s3, 13")
    I(f"s_add_u32 s37, s37, {STG}")
    I("v_and_b32 v3, 31, v67")
    I("v_lshrrev_b32 v4, 5, v67")
    I("v_bfe_u32 v5, v3, 1, 3")
    I("v_xor_b32 v5, v5, v4")
    I("v_lshlrev_b32 v5, 4, v5")
    I("v_lshl_add_u32 v5, v3, 7, v5")
    I(f"v_add_u32 v{VAX}, s37, v5")
    for s in range(1, 4):
        I(f"v_xor_b32 v6, {32*s}, v5")
        I(f"v_add_u32 v{VAX+s}, s37, v6")
    I("v_lshrrev_b32 v5, 4, v67")
    I("v_and_b32 v6, 7, v67")
    I("v_xor_b32 v5, v5, v6")
    I(f"v_lshlrev_b32 v{PC}, 4, v5")
    I(f"v_lshlrev_b32 v{H16}, 4, v4")
    I(f"s_mul_i32 s46, s3, {SMW}")
    I(f"s_add_u32 s46, s46, {SM}")
    I("v_lshrrev_b32 v5, 4, v3")
    I("v_lshlrev_b32 v5, 5, v5")
    I("v_bfe_u32 v6, v3, 2, 1")
    I("v_lshl_add_u32 v5, v6, 4, v5")
    I("v_bfe_u32 v6, v3, 3, 1")
    I("v_lshl_add_u32 v5, v6, 3, v5")
    I("v_and_b32 v6, 3, v3")
    I("v_lshl_add_u32 v5, v6, 1, v5")
    I(f"v_add_u32 v{K1C}, s46, v5")
    I(f"v_add_u32 v6, s46, v{H16}")
    I(f"v_mad_u32_u24 v{SRA}, v3, s42, v6")
    I("v_lshlrev_b32 v6, 5, v4")
    I(f"v_add_u32 v{OHC}, {OH}, v6")
    I(f"v_mov_b32 v{ONE}, 1.0")
    for i in range(4):
        I(f"v_mov_b32 v{8+i}, 0")
    I("v_add_u32 v7, s46, v70")
    I("ds_write_b128 v7, v[8:11]")
    I("v_cmp_gt_u32 vcc, 61, v67")
    I("s_and_saveexec_b64 s[50:51], vcc")
    I("ds_write_b128 v7, v[8:11] offset:1024")
    I("s_mov_b64 exec, -1")
    I(f"v_add_u32 v70, {WSTG}, v70")
    I("s_cmp_lg_u32 s3, 0")
    I("s_cbranch_scc1 L_noconst")
    I(f"v_add_u32 v7, {OH-WSTG}, v70")
    I("ds_write_b128 v7, v[8:11]")
    I("ds_write_b128 v7, v[8:11] offset:1024")
    I("s_mov_b32 exec_hi, 0")
    I("ds_write_b128 v7, v[8:11] offset:2048")
    I("v_bfe_u32 v6, v3, 2, 1")
    I("v_lshlrev_b32 v6, 5, v6")
    I("v_lshrrev_b32 v7, 4, v3")
    I("v_lshl_add_u32 v6, v7, 4, v6")
    I("v_and_b32 v7, 15, v5")
    I("v_add_u32 v6, v6, v7")
    I("v_mad_u32_u24 v6, v3, s42, v6")
    I(f"v_add_u32 v6, {OH}, v6")
    I(f"ds_write_b16_d16_hi v6, v{ONE}")
    I("s_mov_b64 exec, -1")
    L("L_noconst")
    I(f"s_waitcnt vmcnt({5 + (1 if XPF else 0) + (1 if RPF else 0)})")
    I("s_branch L_tw1")
    L("L_tw0")
    I("s_waitcnt vmcnt(0)")
    L("L_tw1")
    stamp(1)
    I("v_and_b32 v53, 0xffff, v48")
    I("v_lshrrev_b32 v52, 16, v48")
    I("v_subrev_u32 v54, s33, v66")
    I("s_sub_u32 s46, s34, s33")
    I("v_cmp_gt_u32 vcc, s46, v54")
    I("v_and_b32 v55, 1, v67")
    I("v_lshl_add_u32 v64, v55, 1, v53")
    I("v_cndmask_b32 v54, v53, v52, vcc")
    I("v_add_u32 v64, s45, v64")
    I(f"s_movk_i32 s46, {RECROW}")
    I("v_mul_u32_u24 v65, s46, v66")
    I("v_lshl_add_u32 v65, v64, 3, v65")
    I("v_sub_u32 v68, v54, v64")
    for i in range(8):
        I(f"v_cmpx_lt_i32 vcc, {4*i}, v68")
        I("s_nop 0")
        I("s_cbranch_execz L_rl")
        I(f"buffer_load_dwordx4 v[{4*i}:{4*i+3}], v65, s[24:27], 0 offen offset:{32*i}")
    L("L_rl")
    I("s_mov_b64 exec, -1")
    if int(env("WPF2", "0")):
        I("s_lshl_b32 s46, s32, 3")
        I("s_add_u32 s46, s46, s3")
        I("s_mul_i32 s46, s46, 3125")
        I("s_add_u32 s46, s46, 127")
        I("s_lshr_b32 s46, s46, 7")
        I("s_lshl_b32 s46, s46, 7")
        I("v_lshlrev_b32 v89, 7, v67")
    I("v_mov_b32 v71, 1")
    I("v_mov_b32 v72, 0x100")
    I("s_waitcnt lgkmcnt(0)")
    I("s_barrier")
    if int(env("WPF2", "0")):
        I("s_bfm_b64 exec, 25, 0")
        I("buffer_load_dword v126, v89, s[12:15], s46 offen")
        I("s_mov_b64 exec, -1")
        I("s_waitcnt vmcnt(1)")
    else:
        I("s_waitcnt vmcnt(0)")
    stamp(2)
    if PFR and not PFLATE:
        gen_pf()
    for r in range(16):
        I(f"v_lshrrev_b32 v{32+r}, 26, v{2*r+1}")
    for r in range(16):
        I(f"v_lshl_add_u32 v{32+r}, v{32+r}, 2, s59" if SUBW else f"v_lshlrev_b32 v{32+r}, 2, v{32+r}")
    for r in range(16):
        i, k = r // 2, r % 2
        I(f"v_cmpx_lt_i32 vcc, {4*i+k}, v68")
        if k == 0:
            I(f"s_mov_b32 s58, {r}")
            I("s_cbranch_execz L_rank_done")
        I(f"ds_add_rtn_u32 v{48+r}, v{32+r}, v71 offset:{CW if SUBW else CNT}")
    I("s_mov_b32 s58, 16")
    I("v_cmpx_lt_i32 vcc, 32, v68")
    I(f"ds_add_u32 v72, v71 offset:{CNT}")
    L("L_rank_done")
    I("s_mov_b64 exec, -1")
    if PFR and PFLATE == 1:
        gen_pf()
    if SUBW:
        I(f"ds_read_b32 v75, v87 offset:{CW}")
    I("v_and_b32 v73, 0xe0, v69")
    I("v_or_b32 v74, 28, v69")
    I("v_and_b32 v83, 7, v67")
    I("v_lshlrev_b32 v84, 5, v83")
    I("v_lshrrev_b32 v86, 3, v67")
    I("s_waitcnt lgkmcnt(0)")
    if SUBW:
        I(f"ds_add_u32 v69, v75 offset:{CNT}")
        for k in range(1, 8):
            I(f"s_cmp_gt_u32 s3, {7-k}")
            I("s_cbranch_scc1 L_pw_done")
            I(f"ds_add_u32 v87, v75 offset:{PW+256*k}")
        L("L_pw_done")
        if PFR and PFLATE == 2:
            gen_pf()
        I("s_waitcnt lgkmcnt(0)")
    I("s_barrier")
    stamp(3)
    I(f"ds_read_b32 v75, v69 offset:{CNT}")
    I(f"ds_read_b32 v76, v72 offset:{CNT}")
    if SUBW:
        I(f"ds_read_b32 v88, v87 offset:{PW}")
    I("s_waitcnt lgkmcnt(2)" if SUBW else "s_waitcnt lgkmcnt(1)")
    I("v_mov_b32 v77, v75")
    wave_scan(77)
    I("v_sub_u32 v78, v77, v75")
    I("v_readlane_b32 s60, v77, 63")
    I("ds_bpermute_b32 v79, v73, v78")
    I("ds_bpermute_b32 v80, v74, v77")
    I("v_cmp_eq_u32 vcc, v74, v69")
    I("s_waitcnt lgkmcnt(0)")
    I("v_readfirstlane_b32 s61, v76")
    I(f"s_cmp_le_u32 s60, {TLIM}")
    I("s_cbranch_scc1 L_fits")
    I("s_mov_b32 s34, s33")
    I("s_mov_b32 s61, 0")
    I("v_mov_b32 v68, 0")
    I("v_mov_b32 v78, 0")
    I("v_mov_b32 v79, 0")
    I("v_mov_b32 v80, 0")
    L("L_fits")
    I("v_sub_u32 v80, v80, v79")
    I("ds_bpermute_b32 v85, v84, v80")
    I("v_add_u32 v81, 0x5f, v80")
    I("v_and_b32 v81, 0xffe0, v81")
    I("v_sub_u32 v81, v81, v80")
    I("v_cndmask_b32 v81, 0, v81, vcc")
    I("v_mov_b32 v82, v81")
    wave_scan(82)
    I("v_sub_u32 v82, v82, v81")
    I("v_add_lshl_u32 v78, v78, v82, 3")
    I("v_lshl_add_u32 v86, v80, 3, v86")
    if SUBW:
        I("v_lshl_add_u32 v88, v88, 3, v78")
    I("s_waitcnt lgkmcnt(0)")
    for r in range(16):
        if r >= 8 and r % 2 == 0:
            I(f"s_cmp_le_u32 s58, {r}")
            I("s_cbranch_scc1 L_lk_done")
        I(f"ds_bpermute_b32 v{32+r}, v{32+r}, v{88 if SUBW else 78}")
    L("L_lk_done")
    I("s_cmp_eq_u32 s47, 0")
    I("s_cbranch_scc1 L_paired")
    I("v_lshl_add_u32 v85, v85, 3, v83")
    I("v_cmp_gt_u32 vcc, v85, v86")
    I("s_sub_u32 s64, 11, s3")
    I("s_cmp_lt_u32 s3, 4")
    I("s_cselect_b32 s64, s3, s64")
    I("s_mov_b32 s41, 0")
    for i in range(8):
        I(f"s_bfe_u32 s65, {'vcc_lo' if i < 4 else 'vcc_hi'}, {(8*(i%4)) | (8 << 16)}")
        I("s_bcnt1_i32_b32 s65, s65")
        I("s_cmp_eq_u32 s65, s64")
        I(f"s_cselect_b32 s41, {i}, s41")
    L("L_paired")
    I("s_lshl_b32 s46, s41, 3")
    I("v_readlane_b32 s62, v78, s46")
    I("v_readlane_b32 s63, v80, s46")
    I("s_waitcnt lgkmcnt(0)")
    for r in range(16):
        i, k = r // 2, r % 2
        I(f"v_cmpx_lt_i32 vcc, {4*i+k}, v68")
        I(f"v_lshl_add_u32 v{32+r}, v{48+r}, 3, v{32+r}")
        if k == 0:
            I("s_cbranch_execz L_scat_done")
        I(f"ds_write_b64 v{32+r}, v[{2*r}:{2*r+1}]")
    L("L_scat_done")
    I("s_mov_b64 exec, -1")
    I("s_cmp_eq_u32 s47, 0")
    I("s_cbranch_scc1 L_nowin")
    for i in range(16):
        I(f"v_mov_b32 v{80+i}, 0")
    I("v_and_b32 v72, 31, v67")
    I(f"v_lshl_add_u32 v72, v72, 7, v{H16}")
    I("s_lshl_b32 s46, s32, 3")
    I("s_add_u32 s46, s46, s41")
    I("s_mul_i32 s46, s46, 3125")
    I("s_add_u32 s49, s46, 127")
    I("s_lshr_b32 s49, s49, 7")
    I(f"s_add_u32 s44, s46, {3125+127}")
    I("s_lshr_b32 s44, s44, 7")
    I("s_sub_u32 s44, s44, s49")
    I("s_lshl_b32 s49, s49, 7")
    I("s_bfm_b32 s46, s44, 0")
    I("s_mov_b32 exec_lo, s46")
    I("s_mov_b32 exec_hi, s46")
    for s in range(4):
        I(f"buffer_load_dwordx4 {vr(80+4*s,4)}, v72, s[12:15], s49 offen offset:{32*s}")
    I("s_mov_b64 exec, -1")
    L("L_nowin")
    I("s_add_u32 s64, s63, 31")
    I("s_lshr_b32 s35, s64, 5")
    I("s_lshl_b32 s64, s35, 5")
    I("s_sub_u32 s64, s64, s63")
    I("s_lshl_b32 s65, s63, 3")
    I("s_add_u32 s65, s65, s62")
    I("v_lshl_add_u32 v72, v67, 3, s65")
    I("v_mov_b32 v74, 0xffffff00")
    I(f"v_mov_b32 v75, {EMASK}")
    I("ds_write_b64 v72, v[74:75]")
    I("v_cmp_gt_u32 vcc, s64, v67")
    I("s_and_saveexec_b64 s[50:51], vcc")
    I("ds_write_b64 v72, v[74:75] offset:512")
    I("s_mov_b64 exec, -1")
    I("v_lshrrev_b32 v72, 3, v67")
    I(f"v_lshl_add_u32 v{LSA}, v72, 5, s62")
    I("v_and_b32 v72, 7, v67")
    I("v_bfe_u32 v73, v67, 3, 2")
    I("v_lshl_add_u32 v72, v72, 2, v73")
    I(f"v_lshl_add_u32 v{LMA}, v72, 3, s62")
    I("s_waitcnt lgkmcnt(0)")
    I("s_barrier")
    stamp(4)
    put([f"ds_read2_b32 {vr(T,2)}, v{LSA} offset0:0 offset1:2", f"ds_read2_b32 {vr(T+2,2)}, v{LSA} offset0:4 offset1:6"])
    I(f"ds_read2_b32 {vr(T+4,2)}, v{LMA} offset0:1 offset1:65")
    I("s_waitcnt lgkmcnt(0)")
    put(x_dma(0))
    put(e_load(0, T + 4))
    put([f"ds_read2_b32 {vr(T,2)}, v{LSA} offset0:64 offset1:66", f"ds_read2_b32 {vr(T+2,2)}, v{LSA} offset0:68 offset1:70"])
    I("s_cmp_eq_u32 s47, 0")
    I("s_cbranch_scc1 L_noinit")
    for f in range(8):
        I(f"ds_read_b128 {vr(4*f,4)}, v70 offset:{1024*f}")
    I("s_waitcnt vmcnt(5) lgkmcnt(0)")
    for c in range(2):
        d = vr(32 + 16 * c, 16)
        for s in range(4):
            I(mfma(d, vr(80 + 4 * s, 4), vr((2 * s + c) * 4, 4), "0" if s == 0 else d))
    for f in range(8):
        I(f"ds_read_b128 {vr(4*f,4)}, v70 offset:{1024*(26+f)}")
    I("s_nop 7")
    for i in range(32):
        I(f"v_mul_f32 v{32+i}, s43, v{32+i}")
    I("s_waitcnt lgkmcnt(0)")
    for f in range(18):
        I(f"ds_read_b128 {ar(4*f,4)}, v70 offset:{1024*(8+f)}")
    k = 0
    for c in range(2):
        a = ar(A_AGG + 16 * c, 16)
        for s in range(4):
            I(mfma(a, vr(80 + 4 * s, 4), vr((2 * s + c) * 4, 4), "0" if s == 0 else a))
            for p in (k, k + 1):
                I(f"v_cvt_pk_bf16_f32 v{64+p}, v{32+2*p}, v{32+2*p+1}")
            k += 2
    for c in range(2):
        for p in range(8):
            I(f"v_accvgpr_write_b32 a{xa(p//4, c) + p%4}, v{64+8*c+p}")
    I("s_mov_b32 s47, 0")
    L("L_noinit")
    I("s_cmp_eq_u32 s35, 0")
    I("s_cbranch_scc1 L_round_end")
    I(f"v_and_b32 v{T+4}, 31, v{T+4}")
    I(f"v_mad_u32_u24 v{T+7}, v{T+4}, s42, v{OHC}")
    I(f"v_mad_u32_u24 v{SW}, v{T+4}, s42, v{K1C}")
    I(f"ds_write_b16_d16_hi v{SW}, v{ONE}")
    I("s_waitcnt lgkmcnt(0)")
    put(x_dma(1))
    put(e_load(1, T + 5))
    for i in range(8):
        I(f"v_mov_b32 v{G[1]+i}, 0")
    for i in range(8):
        I(f"v_mov_b32 v{S+i}, 0")
    I("s_waitcnt vmcnt(5)")
    put(a_reads(0))
    put([f"ds_read2_b32 {vr(T,2)}, v{LSA} offset0:128 offset1:130", f"ds_read2_b32 {vr(T+2,2)}, v{LSA} offset0:132 offset1:134"])
    I("s_mov_b32 s36, s35")
    if SYNC:
        I("s_lshl_b32 s46, s3, 2")
        I(f"s_add_u32 s46, s46, {CNT+384}")
        I("v_mov_b32 v125, s46")
        I("v_xor_b32 v126, 16, v125")
    if PRIO:
        I("s_setprio 3")
    elif YPRIO:
        I("s_cmp_lt_u32 s3, 4")
        I("s_cbranch_scc1 L_yp")
        I("s_setprio 1")
        L("L_yp")
    stamp(5)
    m0 = mfma_group(0, 0)
    I(m0[0])
    I("s_waitcnt lgkmcnt(0)")
    I(m0[1])
    put(x_dma(0))
    put(m0[2:])
    I("s_nop 7")
    I("s_branch L_p1_0")
    L("L_loop")
    INLOOP[0] = True
    nv = len(valu_group(0))
    pos = [2 + (k * (nv - 4)) // 13 for k in range(13)]
    def sched(mf, va, inserts):
        pend = []
        mi = 0
        for i, v in enumerate(va):
            if mi < len(mf) and i == pos[mi]:
                put(inserts.get(('b', mi), []))
                I(mf[mi])
                put(inserts.get(('m', mi), []))
                pend += inserts.get(('s', mi), [])
                mi += 1
            I(v)
            if pend:
                put([pend.pop(0)])
        assert mi == len(mf)
        put(pend)
    def nonop(lst): return [x for x in lst if x != "s_nop 0"] if "valu" not in DROP else lst
    for par in range(2):
        ins = {('b', 3): ["s_waitcnt lgkmcnt(2)"],
               ('m', 4): ["s_waitcnt lgkmcnt(0)"],
               ('s', 4): nonop(x_dma(par))}
        if PRIO:
            ins[('m', 0)] = prio_code(par)
        sched(agg_group(0) + mfma_group(0, par), valu_group(1), ins)
        L(f"L_p1_{par}")
        ins = {('m', 0): [f"ds_read2_b32 {vr(T+4,2)}, v{LMA} offset0:65 offset1:129"],
               ('s', 1): [f"ds_read_b128 {vr(S,4)}, v{SRA}",
                          f"ds_read_b128 {vr(S+4,4)}, v{SRA} offset:32",
                          f"ds_write_b16 v{SW}, v{ONE}"],
               ('m', 3): ["s_waitcnt lgkmcnt(3)"] + e_load(par, T + 5),
               ('s', 3): [f"v_and_b32 v{T+4}, 31, v{T+4}",
                          f"v_add_u32 v{LSA}, 256, v{LSA}",
                          f"v_mad_u32_u24 v{T+7}, v{T+4}, s42, v{OHC}",
                          f"v_mad_u32_u24 v{SW}, v{T+4}, s42, v{K1C}",
                          f"v_add_u32 v{LMA}, 256, v{LMA}",
                          f"ds_write_b16_d16_hi v{SW}, v{ONE}",
                          "s_sub_u32 s36, s36, 1"],
               ('m', 12): ["s_waitcnt vmcnt(5) lgkmcnt(0)"] + a_reads(par ^ 1) + [f"ds_read2_b32 {vr(T,2)}, v{LSA} offset0:128 offset1:130", f"ds_read2_b32 {vr(T+2,2)}, v{LSA} offset0:132 offset1:134"]}
        if SYNC:
            ins[('s', 6)] = ["v_mov_b32 v127, s36", "ds_write_b32 v125, v127", f"ds_read_b32 v{T+6}, v126"]
            ins[('m', 12)] += [f"v_readfirstlane_b32 s46, v{T+6}", "s_setprio 0", "s_cmp_lt_u32 s36, s46",
                               f"s_cbranch_scc1 L_sy_{par}", "s_setprio 1", f"L_sy_{par}:"]
        sched(agg_group(1) + mfma_group(1, par), valu_group(0), ins)
        I("s_cmp_eq_u32 s36, 0")
        I("s_cbranch_scc1 L_tail" if par == 0 else "s_cbranch_scc0 L_loop")
    L("L_tail")
    INLOOP[0] = False
    I(f"ds_write_b16 v{SW}, v{ONE}")
    I("s_nop 0")
    put(agg_group(0))
    put(valu_group(1))
    I("s_nop 1")
    put(agg_group(1))
    L("L_round_end")
    I("s_add_u32 s45, s45, 32")
    I("s_cmp_lg_u32 s61, 0")
    I("s_cbranch_scc1 L_next")
    I(f"s_cmp_ge_u32 s34, {NC}")
    I("s_cbranch_scc1 L_epi")
    I("s_mov_b32 s33, s34")
    I(f"s_add_u32 s34, s34, {CBLK}")
    I(f"s_min_u32 s34, s34, {NC}")
    I("s_mov_b32 s45, 0")
    L("L_next")
    I("v_mbcnt_lo_u32_b32 v67, -1, 0")
    I("v_mbcnt_hi_u32_b32 v67, -1, v67")
    I("s_waitcnt vmcnt(0) lgkmcnt(0)")
    I("s_barrier")
    I("s_branch L_round")
    L("L_epi")
    I("s_waitcnt vmcnt(0) lgkmcnt(0)")
    stamp(6)
    srd(28, 8, 9, N * 128)
    I("v_mbcnt_lo_u32_b32 v67, -1, 0")
    I("v_mbcnt_hi_u32_b32 v67, -1, v67")
    I("v_and_b32 v68, 31, v67")
    I("v_lshrrev_b32 v69, 5, v67")
    I("v_lshlrev_b32 v68, 2, v68")
    I("v_lshl_add_u32 v68, v69, 9, v68")
    I("v_add_u32 v68, s37, v68")
    I("v_lshlrev_b32 v70, 4, v67")
    I("v_add_u32 v71, s37, v70")
    I("s_nop 7")
    regs = list(range(13))
    for c in range(2):
        for i in regs:
            I(f"v_accvgpr_read_b32 v{16*c+i}, a{A_AGG+16*c+i}")
    ids = [16 * c + i for c in range(2) for i in regs]
    for r in ids:
        I(f"v_mul_f32 v{32+r}, s43, v{r}")
    for r in ids:
        I(f"v_exp_f32 v{32+r}, v{32+r}")
    for r in ids:
        I(f"v_add_f32 v{32+r}, 1.0, v{32+r}")
    for r in ids:
        I(f"v_rcp_f32 v{32+r}, v{32+r}")
    for r in ids:
        I(f"v_mul_f32 v{r}, v{r}, v{32+r}")
    for i in regs:
        I(f"v_cvt_pk_bf16_f32 v{32+i}, v{i}, v{16+i}")
    for i in regs:
        row = 8 * (i >> 2) + (i & 3)
        I(f"ds_write_b32 v68, v{32+i} offset:{row*128}")
    I("s_waitcnt lgkmcnt(0)")
    for k in range(4):
        I(f"ds_read_b128 {vr(4*k,4)}, v71 offset:{1024*k}")
    for k in range(3):
        I(f"s_waitcnt lgkmcnt({3-k})")
        I(f"buffer_store_dwordx4 {vr(4*k,4)}, v70, s[28:31], s49 offen offset:{1024*k} sc1")
    I("s_cmp_lt_u32 s44, 25")
    I("s_cbranch_scc1 L_k2_fin")
    I("s_waitcnt lgkmcnt(0)")
    I("s_mov_b64 exec, 0xff")
    I(f"buffer_store_dwordx4 {vr(12,4)}, v70, s[28:31], s49 offen offset:3072 sc1")
    L("L_k2_fin")
    if STAMP:
        I("s_waitcnt vmcnt(0)")
        stamp(7)
        srd(28, 10, 11, 0x100000, 0x1000000)
        I("s_mov_b64 exec, 1")
        I("s_lshl_b32 s46, s2, 3")
        I("s_add_u32 s46, s46, s3")
        I("s_lshl_b32 s46, s46, 6")
        I("v_mov_b32 v0, 0")
        for k in range(8):
            I(f"v_mov_b32 v1, s{70+2*k}")
            I(f"buffer_store_dword v1, v0, s[28:31], s46 offen offset:{4*k}")
        I("v_mov_b32 v1, s35")
        I("buffer_store_dword v1, v0, s[28:31], s46 offen offset:32")
        I("s_getreg_b32 s47, hwreg(HW_REG_XCC_ID)")
        I("v_mov_b32 v1, s47")
        I("buffer_store_dword v1, v0, s[28:31], s46 offen offset:36")
        I("s_getreg_b32 s47, hwreg(HW_REG_HW_ID)")
        I("v_mov_b32 v1, s47")
        I("buffer_store_dword v1, v0, s[28:31], s46 offen offset:40")
        I("s_memrealtime s[50:51]")
        I("s_waitcnt lgkmcnt(0)")
        I("v_mov_b32 v1, s50")
        I("buffer_store_dword v1, v0, s[28:31], s46 offen offset:44")
        I("v_mov_b32 v1, s86")
        I("buffer_store_dword v1, v0, s[28:31], s46 offen offset:48")
    L("L_k2_end")
    I("s_endpgm")

def kd(name, vgpr, sgpr, accum):
    emit(f".amdhsa_kernel {name}")
    emit(f"  .amdhsa_next_free_vgpr {vgpr}")
    emit(f"  .amdhsa_next_free_sgpr {sgpr}")
    emit(f"  .amdhsa_accum_offset {accum}")
    emit("  .amdhsa_group_segment_fixed_size 0")
    emit("  .amdhsa_kernarg_size 80")
    emit("  .amdhsa_user_sgpr_count 2")
    emit("  .amdhsa_user_sgpr_kernarg_segment_ptr 1")
    emit("  .amdhsa_system_sgpr_workgroup_id_x 1")
    emit(".end_amdhsa_kernel")

DOC = """
egc_bin_kernel : one workgroup per 3200-edge chunk; LDS counting sort of the edges by destination bucket
                 (256 buckets of 8 windows, a window = 24/25 nodes); writes 8-byte records + a segment table
                 to d_ws, and the weight matrices as MFMA B-operand fragments (gate parts times -log2 e).
egc_main_kernel: one workgroup per bucket, one wave per window. Builds per-window edge lists in LDS ordered by
                 source range (keeps the gathered x rows L2 resident), then per 32-edge tile:
                 gathers x[src] rows (LDS-DMA) and e_attr rows, G = gate pre-activation and H = x[src] @ v_w by MFMA
                 (x[dst] part through a one-hot operand), msg = H / (1 + 2^G), segment sum by a one-hot MFMA into
                 accumulators that start at x @ u_w; SiLU and store. Extra rounds handle any skew of dst.
"""

K0 = int(env("K0", "0"))
def gen_k0():
    emit(".globl egc_warm_kernel")
    emit(".p2align 8")
    emit(".type egc_warm_kernel,@function")
    L("egc_warm_kernel")
    I("s_cmp_ge_u32 s2, 64")
    I("s_cbranch_scc1 L_k0_end")
    I("s_load_dwordx8 s[4:11], s[0:1], 0")
    I("s_load_dwordx2 s[12:13], s[0:1], 56")
    I("s_load_dwordx2 s[14:15], s[0:1], 72")
    I("s_lshr_b32 s3, s2, 3")
    I("v_lshlrev_b32 v1, 16, v0")
    I("s_lshl_b32 s20, s3, 22")
    I("s_waitcnt lgkmcnt(0)")
    srd(16, 6, 7, E * 32)
    I("buffer_load_dword v2, v1, s[16:19], s20 offen")
    srd(24, 14, 15, WS_REC + NC * RECROW)
    I("buffer_load_dword v3, v1, s[24:27], s20 offen")
    srd(28, 4, 5, N * 128)
    I("buffer_load_dword v4, v1, s[28:31], s20 offen")
    srd(32, 12, 13, N * 128)
    I("buffer_load_dword v5, v1, s[32:35], s20 offen")
    srd(36, 8, 9, E * 4)
    I("buffer_load_dword v6, v1, s[36:39], s20 offen")
    srd(40, 10, 11, E * 4)
    I("buffer_load_dword v7, v1, s[40:43], s20 offen")
    L("L_k0_end")
    I("s_endpgm")

def main():
    emit(HEADER.rstrip("\n"))
    if K0:
        emit("; @launch kernel=egc_warm_kernel grid=(64,1,1) block=(64,1,1) lds=0")
    emit(f"; @launch kernel=egc_bin_kernel grid=({NC},1,1) block=(1024,1,1) lds={K1_LDS}")
    emit(f"; @launch kernel=egc_main_kernel grid=(256,1,1) block=(512,1,1) lds={K2_LDS}")
    for ln in DOC.strip("\n").split("\n"):
        emit("; " + ln)
    emit('.amdgcn_target "amdgcn-amd-amdhsa--gfx950"')
    emit(".text")
    if K0:
        gen_k0()
    gen_k1()
    gen_k2()
    emit('.section .rodata,"a"')
    emit(".p2align 6")
    if K0:
        kd("egc_warm_kernel", 8, 48, 8)
        emit(".p2align 6")
    kd("egc_bin_kernel", 56, 72, 56)
    emit(".p2align 6")
    kd("egc_main_kernel", 248, 96, 128)
    path = sys.argv[1] if len(sys.argv) > 1 else "v10.s"
    open(path, "w").write("\n".join(out) + "\n")

main()
```
